```python
import torch

def _softmax(x, axis=-1):
    return torch.softmax(x, dim=axis)

def _gelu(x):
    return torch.nn.functional.gelu(x, approximate='tanh')

def _silu(x):
    return torch.nn.functional.silu(x)

def _sigmoid(x):
    return torch.sigmoid(x)

def _layernorm(x, axis=-1, eps=1e-05):
    m = x.mean(dim=axis, keepdim=True)
    v = x.var(dim=axis, keepdim=True, unbiased=False)
    return (x - m) / torch.sqrt(v + eps)

def _scatter_add(tgt, idx, src, axis=0):
    return tgt.clone().index_add_(axis, idx, src)

def _segment_sum(src, seg, n):
    out = torch.zeros((n,) + src.shape[1:], dtype=src.dtype)
    return out.index_add_(0, seg, src)

def _pad(x, pw):
    flat = tuple((v for pair in reversed(pw) for v in pair))
    return torch.nn.functional.pad(x, flat)
kernel_name = 'adaLN_cond__sliding_block__dense_activation_squared_relu__prompt'

def setup_inputs():

    _w = lambda a: (lambda t: t.to(torch.bfloat16) if t.is_floating_point() else t)(torch.as_tensor(a))

    def _A_setup():
        B, S, D = (1, 2048, 448)
        return {'x': _w((lambda *s: torch.randn(*s, dtype=torch.bfloat16) * 0.05)(B, S, D)), 'wqkv': _w((lambda *s: torch.randn(*s, dtype=torch.bfloat16) * 0.05)(D, 3 * D)), 'wo': _w((lambda *s: torch.randn(*s, dtype=torch.bfloat16) * 0.05)(D, D))}
    _A_in = _A_setup()

    def _B_setup():
        B, S, D, F = (1, 2048, 448, 1792)
        return {'x': _w((lambda *s: torch.randn(*s, dtype=torch.bfloat16) * 0.05)(B, S, D)), 'w1': _w((lambda *s: torch.randn(*s, dtype=torch.bfloat16) * 0.05)(D, F)), 'b1': _w((lambda *s: torch.randn(*s, dtype=torch.bfloat16) * 0.4)(F)), 'w2': _w((lambda *s: torch.randn(*s, dtype=torch.bfloat16) * 0.05)(F, D)), 'b2': _w((lambda *s: torch.randn(*s, dtype=torch.bfloat16) * 3.2)(D))}
    _B_in = _B_setup()
    return {'A_x': _A_in['x'], 'A_wqkv': _A_in['wqkv'], 'A_wo': _A_in['wo'], 'B_x': _B_in['x'], 'B_w1': _B_in['w1'], 'B_b1': _B_in['b1'], 'B_w2': _B_in['w2'], 'B_b2': _B_in['b2'], 'c': _w((lambda *s: torch.randn(*s, dtype=torch.bfloat16) * 0.1)(1, 448) * 8.0), 'w_mod': _w((lambda *s: torch.randn(*s, dtype=torch.bfloat16) * 0.1)(448, 6 * 448) * 448 ** (-0.5) * 8.0)}

def reference(A_x, A_wqkv, A_wo, B_x, B_w1, B_b1, B_w2, B_b2, c, w_mod):

    def _A_ref(x, wqkv, wo):
        B, S, D = x.shape
        H = 16
        Dh = D // H
        W = 256
        qkv = (lambda x, *d: x.permute(*d))((x @ wqkv).reshape(B, S, 3, H, Dh), 2, 0, 3, 1, 4)
        q, k, v = (qkv[0], qkv[1], qkv[2])
        scores = torch.einsum('bhqd,bhkd->bhqk', q, k) * Dh ** (-0.5)
        idx = torch.arange(S)
        mask = (idx[:, None] - idx[None, :] >= 0) & (idx[:, None] - idx[None, :] < W)
        scores = torch.where(mask[None, None], scores, -1000000000.0)
        p = _softmax(scores, axis=-1)
        o = torch.einsum('bhqk,bhkd->bhqd', p, v)
        return (lambda x, *d: x.permute(*d))(o, 0, 2, 1, 3).reshape(B, S, D) @ wo

    def _B_ref(x, w1, b1, w2, b2):
        h = torch.einsum('bsd,df->bsf', x, w1) + b1
        zero = torch.zeros_like(h)
        r = torch.where(h > zero, h, zero)
        h = r * r
        out = torch.einsum('bsf,fd->bsd', h, w2) + b2
        return out
    x = A_x
    mod = (_silu(c) @ w_mod).reshape(c.shape[0], 6, 1, -1)
    sa, ca, ga, sb, cb, gb = (mod[:, 0].clone(), mod[:, 1].clone(), mod[:, 2].clone(), mod[:, 3].clone(), mod[:, 4].clone(), mod[:, 5].clone())
    h = _layernorm(x, axis=-1) * (1 + ca) + sa
    x = x + ga * _A_ref(h, A_wqkv, A_wo)
    h = _layernorm(x, axis=-1) * (1 + cb) + sb
    x = x + gb * _B_ref(h, B_w1, B_b1, B_w2, B_b2)
    return x
```

```python
import re

def v(i, n=1): return f"v{i}" if n == 1 else f"v[{i}:{i+n-1}]"
def a(i, n=1): return f"a{i}" if n == 1 else f"a[{i}:{i+n-1}]"
def s(i, n=1): return f"s{i}" if n == 1 else f"s[{i}:{i+n-1}]"

_REG = re.compile(r"^(-?)(?:abs\()?\|?([vas])(?:(\d+)|\[(\d+):(\d+)\])\|?\)?$")
def regs_of(tok):
    tok = tok.strip()
    if tok in ("vcc",): return {("s", 106), ("s", 107)}
    if tok == "vcc_lo": return {("s", 106)}
    if tok == "vcc_hi": return {("s", 107)}
    if tok == "exec": return {("s", 126), ("s", 127)}
    if tok == "exec_lo": return {("s", 126)}
    if tok == "exec_hi": return {("s", 127)}
    if tok == "m0": return {("s", 124)}
    m = _REG.match(tok)
    if not m: return set()
    k = m.group(2)
    if m.group(3) is not None: return {(k, int(m.group(3)))}
    return {(k, i) for i in range(int(m.group(4)), int(m.group(5)) + 1)}

TRANS = ("v_exp_f32", "v_log_f32", "v_rcp_f32", "v_rsq_f32", "v_sqrt_f32", "v_sin_f32", "v_cos_f32", "v_rcp_iflag_f32")
VCC = {("s", 106), ("s", 107)}
EXEC = {("s", 126), ("s", 127)}
M0 = {("s", 124)}

class Ins:
    def __init__(self, text):
        self.text = text
        t = text.split(";")[0].strip()
        parts = t.split(None, 1)
        self.mn = parts[0]
        rest = parts[1] if len(parts) > 1 else ""
        ops = []; depth = 0; cur = ""
        for ch in rest + ",":
            if ch in "[(": depth += 1
            if ch in "])": depth -= 1
            if ch == "," and depth == 0:
                ops.append(cur.strip()); cur = ""
            else: cur += ch
        ops = [o for o in ops if o]
        self.mods = []
        if ops:
            last = ops[-1].split()
            ops[-1] = last[0]; self.mods = last[1:]
        self.ops = ops
        mn = self.mn
        self.mfma = mn.startswith("v_mfma")
        self.valu = mn.startswith("v_") and not self.mfma
        self.salu = mn.startswith("s_") and not mn.startswith(("s_load", "s_buffer_load", "s_waitcnt", "s_nop", "s_barrier", "s_cbranch", "s_branch", "s_endpgm", "s_sleep", "s_setprio", "s_mem"))
        self.vmem = mn.startswith(("buffer_", "global_", "flat_"))
        self.ds = mn.startswith("ds_")
        self.trans = mn.startswith(TRANS)
        self.dpp = any(m.startswith(("quad_perm", "row_", "wave_")) for m in self.mods) or "_dpp" in mn
        self.sdwa = "_sdwa" in mn or any(m.startswith("dst_sel") for m in self.mods)
        self.lds_dma = self.vmem and ("lds" in self.mods or "_lds_" in mn)
        self.passes = 0
        R = [regs_of(o) for o in ops]
        d = set(); u = set()
        self.srcc = set(); self.srcab = set(); self.stdata = set()
        if self.mfma:
            self.passes = 8 if "32x32" in mn else 4
            d = R[0]; self.srcab = R[1] | R[2]; self.srcc = R[3]; u = self.srcab | self.srcc
        elif self.valu:
            if mn.startswith("v_cmp"):
                d = R[0]; u = set().union(*R[1:])
                if mn.startswith("v_cmpx"): d = d | EXEC
            elif mn.startswith(("v_add_co", "v_sub_co", "v_addc_co", "v_subb_co", "v_subrev_co", "v_mad_u64", "v_div_scale")):
                d = R[0] | R[1]; u = set().union(*R[2:])
            elif mn.startswith(("v_permlane32_swap", "v_permlane16_swap", "v_swap")):
                d = R[0] | R[1]; u = d
            elif mn.startswith("v_nop"):
                pass
            else:
                d = R[0]; u = set().union(*R[1:]) if len(R) > 1 else set()
                if mn.startswith(("v_fmac", "v_dot2c", "v_pk_fmac", "v_writelane")) or self.dpp or self.sdwa: u = u | d
                if mn.startswith("v_div_fmas"): u = u | VCC
        elif self.vmem:
            if "load" in mn and not self.lds_dma:
                d = R[0]; u = set().union(*R[1:])
            elif self.lds_dma:
                u = set().union(*R) | M0
            elif "atomic" in mn:
                u = set().union(*R)
                if "sc0" in self.mods: d = R[0]
            elif "store" in mn:
                u = set().union(*R)
                if "x3" in mn or "x4" in mn:
                    self.stdata = R[0] if mn.startswith("buffer") else R[1]
        elif self.ds:
            if mn.startswith(("ds_read", "ds_bpermute", "ds_permute", "ds_swizzle")) or "_rtn" in mn:
                d = R[0]; u = set().union(*R[1:])
            else: u = set().union(*R)
        elif mn.startswith("s_"):
            if mn.startswith(("s_cmp", "s_bitcmp")): u = set().union(*R) if R else set()
            elif R:
                d = R[0]; u = set().union(*R[1:]) if len(R) > 1 else set()
                if "saveexec" in mn: d = d | EXEC
        self.d = d; self.u = u
        self.states = 1
        if mn == "s_nop": self.states = int(ops[0], 0) + 1

def need(p, c):
    n = 0
    vd = {r for r in p.d if r[0] in "va"}
    sd = {r for r in p.d if r[0] == "s"}
    if p.mfma:
        big = p.passes == 8
        if c.mfma:
            if vd & c.srcab: n = max(n, 12 if big else 8)
            if vd & c.srcc:
                if not (vd == c.srcc and p.passes == c.passes): n = max(n, 10 if big else 6)
            elif vd & c.d: n = max(n, 12 if big else 8)
        elif c.valu or c.vmem or c.ds:
            if vd & (c.u | c.d): n = max(n, 12 if big else 8)
        if c.valu and (p.srcc & c.d): n = max(n, 7 if big else 3)
    if p.valu:
        if c.mfma and vd & c.u: n = max(n, 2)
        if c.mfma and sd & EXEC: n = max(n, 4)
        if c.vmem and sd & c.u: n = max(n, 5)
        if c.valu and c.dpp and vd & c.u: n = max(n, 2)
        if c.valu and c.dpp and sd & EXEC: n = max(n, 5)
        if c.valu and sd & c.u: n = max(n, 2)
        if c.mn.startswith(("v_readlane", "v_writelane")) and sd & c.u: n = max(n, 4)
        if c.mn.startswith(("v_readlane", "v_readfirstlane", "v_writelane", "v_permlane")) and sd & EXEC: n = max(n, 4)
        if c.mn.startswith(("v_readlane", "v_readfirstlane")) and vd & c.u: n = max(n, 1)
        if c.mn.startswith("v_permlane") and vd & c.u: n = max(n, 2)
        if c.mn.startswith("v_div_fmas") and sd & VCC: n = max(n, 4)
        if p.trans and c.valu and not c.trans and vd & c.u: n = max(n, 1)
        if (p.sdwa or any(m.startswith("op_sel") for m in p.mods)) and c.valu and vd & (c.u | c.d): n = max(n, 1)
        if p.mn.startswith("v_dot") and (c.valu or c.mfma or c.vmem or c.ds) and vd & (c.u | c.d):
            same_c = c.mn == p.mn and not (vd & (regs_of(c.ops[1]) | regs_of(c.ops[2])))
            if not same_c: n = max(n, 3)
        if c.salu and sd & c.u: n = max(n, 1)
    if p.stdata and (c.d & p.stdata): n = max(n, 2)
    if p.salu and (sd & M0) and (c.lds_dma or "addtid" in c.mn): n = max(n, 1)
    return n

class Asm:
    def __init__(self):
        self.lines = []
        self.hist = []
        self.nops = 0
        self.count = 0
    def raw(self, t): self.lines.append(t)
    def label(self, name, join=True):
        self.lines.append(name + ":")
    def fence(self, n=12):
        self.e(f"s_nop {n-1}")
    def e(self, text):
        c = Ins(text)
        dist = 0; req = 0
        for p in reversed(self.hist):
            r = need(p, c) - dist
            if r > req: req = r
            dist += p.states
            if dist >= 20: break
        if req > 0:
            nop = Ins(f"s_nop {req-1}")
            self.lines.append("    " + nop.text); self.hist.append(nop); self.nops += 1; self.count += 1
        self.lines.append("    " + text); self.hist.append(c); self.count += 1
        if len(self.hist) > 40: self.hist = self.hist[-30:]
    def __call__(self, text):
        for t in text.strip().split("\n"):
            t = t.strip()
            if not t or t.startswith(";"): continue
            if t.endswith(":"): self.label(t[:-1])
            else: self.e(t)
    def text(self): return "\n".join(self.lines) + "\n"

def kernel_header(name):
    return f".globl {name}\n.p2align 8\n.type {name},@function\n{name}:\n"
def kernel_desc(name, vgpr=256, sgpr=102, accum=256):
    return f""".amdhsa_kernel {name}
  .amdhsa_next_free_vgpr {vgpr}
  .amdhsa_next_free_sgpr {sgpr}
  .amdhsa_accum_offset {accum}
  .amdhsa_group_segment_fixed_size 0
  .amdhsa_kernarg_size 104
  .amdhsa_user_sgpr_count 2
  .amdhsa_user_sgpr_kernarg_segment_ptr 1
  .amdhsa_system_sgpr_workgroup_id_x 1
  .amdhsa_float_denorm_mode_32 3
.end_amdhsa_kernel
"""
```

```python
import sys, json
from asmgen import *
NAME = "adaLN_cond__sliding_block__dense_activation_squared_relu__prompt_kernel"

CTL = 0x2000
C_S0A, C_FH, C_FQ, C_FO, C_FY, C_FD = 0, 0x1000, 0x1200, 0x1400, 0x1600, 0x1800
S0B = 0x12000
NU = 0x1A000
FKV = 0x1C000
STATS = 0x28000
QO = 0x100000
KG = 0x300000
VG = 0x500000
HID = 0x700000
STAMP = 0xF00000
WSZ = 0x1000000
OOB = 0x40000000
L_WKV, L_B, L_WQ = 0, 57344, 116736
L_K, L_V = 102400, 126976
L_W1 = 0
L_EX = 114688
L_MISC = 151552
L_X = L_MISC
L_AUG = L_MISC
L_VEC = L_MISC + 4096
L_SILU = L_MISC + 7168
L_MODV = L_MISC + 8192
LDS_BYTES = 163840
sW, sG, sM, sTAG, sUNI = 3, 4, 5, 6, 7
X, WQKV, WO, W1, W2, WMOD, OUT, WS = [f"s[{i}:{i+3}]" for i in (8, 12, 16, 20, 24, 28, 32, 36)]
sXCC, sCTL = 46, 47
sJ, sTQ, sHEAD, sRB, sTA, sNB, sTO, sKH, sMH, sRBQ, sPROD, sCH = 48, 49, 50, 51, 52, 53, 54, 55, 56, 57, 58, 59
ST0 = 80
vL, vL16, vTN0, vTN1, vTP0, vTP1 = 255, 254, 253, 252, 251, 250
vPAN = 246
vTAG, vHALF, vJUNK = 245, 244, 243
vT0, vT1, vT2, vT3 = 239, 240, 241, 242
NEG = 0xF149F2CA
SPIN_A, SPIN = 48, 60000

class Ctr:
    def __init__(s, A, name, mx): s.A, s.name, s.mx, s.n, s.done = A, name, mx, 0, 0
    def issue(s): s.n += 1; return s.n
    def wait(s, tok):
        if tok <= s.done: return
        k = s.n - tok
        if k > s.mx: k = s.mx
        s.A.e(f"s_waitcnt {s.name}({k})"); s.done = s.n - k
    def all(s): s.A.e(f"s_waitcnt {s.name}(0)"); s.done = s.n
    def drained(s): s.done = s.n

def gen(stop=99, stamps=False, hid_slow=False, force_slow=False):
    A = Asm()
    vm = Ctr(A, "vmcnt", 63); lg = Ctr(A, "lgkmcnt", 15)
    tail = []
    nst = [0]; uid = [0]; names = []
    def U(p): uid[0] += 1; return f"L_{p}{uid[0]}"
    def stamp(nm):
        if not stamps: return
        i = nst[0]; nst[0] += 1; names.append(nm)
        r = ST0 + i // 2
        A("s_memrealtime s[100:101]\ns_waitcnt lgkmcnt(0)")
        A(f"s_pack_ll_b32_b16 s{r}, s{r}, s100" if i & 1 else f"s_pack_lh_b32_b16 s{r}, s100, s{r}"); lg.drained()
    def VM(t): A(t); return vm.issue()
    def DS(t): A(t); return lg.issue()
    def barrier(): A("s_barrier")
    def mfma(d, a_, b_, c=None): A(f"v_mfma_f32_32x32x16_bf16 {d}, {a_}, {b_}, {c if c is not None else d}")

    def flag(soff, slow=False):
        A("s_mov_b64 exec, 1")
        if slow:
            VM(f"buffer_store_dword v{vTAG}, off, {WS}, s{soff} sc1")
        else:
            ls, lj = U("fs"), U("fj")
            A(f"s_cmp_eq_u32 s{sUNI}, 0\ns_cbranch_scc1 {ls}")
            VM(f"buffer_store_dword v{vTAG}, off, {WS}, s{soff}")
            A(f"{lj}:")
            tail.append(f"{ls}:\nbuffer_wbl2 sc1\ns_waitcnt vmcnt(0)\nbuffer_store_dword v{vTAG}, off, {WS}, s{soff} sc1\ns_branch {lj}")
        A("s_mov_b64 exec, -1")
    def poll(vaddr, soff):
        lp, ld, li, lj = U("p"), U("pd"), U("pi"), U("pj")
        A(f"s_mov_b32 s60, 0\n{lp}:\nbuffer_load_dword v{vJUNK}, v{vaddr}, {WS}, {soff} offen sc1\ns_add_u32 s60, s60, 1\ns_waitcnt vmcnt(0)")
        A(f"v_cmp_ne_u32 vcc, s{sTAG}, v{vJUNK}\ns_cbranch_vccz {ld}\ns_cmp_lt_u32 s60, {SPIN}\ns_cbranch_scc1 {lp}\n{ld}:")
        vm.drained()
        A(f"s_cmp_eq_u32 s{sUNI}, 0\ns_cbranch_scc1 {li}\n{lj}:")
        tail.append(f"{li}:\nbuffer_inv sc1\ns_waitcnt vmcnt(0)\ns_branch {lj}")
    def panel_addr(dst, rs, swz="std"):
        A(f"v_lshrrev_b32 v{vT0}, 3, v{vL}\nv_and_b32 v{vT1}, 7, v{vL}")
        if swz == "std": A(f"v_bfe_u32 v{vT2}, v{vL}, 4, 1\nv_lshlrev_b32 v{vT2}, 2, v{vT2}")
        else: A(f"v_bfe_u32 v{vT2}, v{vL}, 4, 2\nv_lshlrev_b32 v{vT2}, 1, v{vT2}")
        A(f"v_xor_b32 v{vT1}, v{vT1}, v{vT2}\nv_mul_u32_u24 v{vT0}, {rs}, v{vT0}\nv_lshl_add_u32 v{dst}, v{vT1}, 4, v{vT0}")
        for i in range(1, 4): A(f"v_add_u32 v{dst+i}, {i*(8*rs-1024)}, v{dst}")
    def panel_dma(srd, vp, rs, n, ssrc, slds):
        tok = None
        for i in range(0, n, 4):
            A(f"s_mov_b32 m0, s{slds}")
            for q in range(min(4, n - i)):
                tok = VM(f"buffer_load_dwordx4 v{vp+q}, {srd}, s{ssrc} offen offset:{1024*q} lds")
            if i + 4 < n: A(f"s_add_u32 s{ssrc}, s{ssrc}, {32*rs}\ns_add_u32 s{slds}, s{slds}, 4096")
        return tok
    def finish():
        if stamps:
            A(f"v_mov_b32 v{vT0}, 0")
            for i in range(20): A(f"v_writelane_b32 v{vT0}, s{ST0+i}, {i}")
            A(f"v_writelane_b32 v{vT0}, s{sUNI}, 31")
            A(f"s_lshl_b32 s60, s2, 2\ns_add_u32 s60, s60, s{sW}\ns_lshl_b32 s60, s60, 7\ns_add_u32 s60, s60, {STAMP}\nv_lshlrev_b32 v{vT1}, 2, v{vL}")
            A(f"s_mov_b32 exec_hi, 0\nbuffer_store_dword v{vT0}, v{vT1}, {WS}, s60 offen")
        A("s_endpgm")

    A("s_cmp_ge_u32 s2, 256\ns_cbranch_scc1 L_exit")
    if stamps:
        for i in range(20): A(f"s_mov_b32 s{ST0+i}, 0")
    stamp("entry")
    for r, off in ((28, 72), (44, 64), (8, 0), (36, 96), (12, 8), (32, 80), (16, 16), (20, 32), (40, 40), (24, 48), (42, 56)):
        A(f"s_load_dwordx2 s[{r}:{r+1}], s[0:1], {off}")
    A(f"v_lshrrev_b32 v1, 6, v0\nv_and_b32 v{vL}, 63, v0\ns_and_b32 s{sG}, s2, 7\nv_readfirstlane_b32 s{sW}, v1\ns_lshr_b32 s{sM}, s2, 3")
    for r, n in ((8, 1835008), (12, 1204224), (16, 401408), (20, 1605632), (24, 1605632), (28, 2408448), (32, 1835008), (36, WSZ)):
        A(f"s_mov_b32 s{r+2}, {n}\ns_mov_b32 s{r+3}, 0x20000")
    A(f"v_lshlrev_b32 v{vL16}, 4, v{vL}\nv_lshrrev_b32 v{vHALF}, 5, v{vL}")
    A(f"s_getreg_b32 s{sXCC}, hwreg(HW_REG_XCC_ID, 0, 4)\ns_lshl_b32 s{sCTL}, s{sG}, 13\ns_add_u32 s{sCTL}, s{sCTL}, {CTL}\ns_mov_b32 s{sUNI}, 0")
    A(f"""s_cmp_ge_u32 s{sM}, 14
    s_cselect_b32 s60, 1, 0
    s_cselect_b32 s61, 14, 0
    s_sub_u32 s{sJ}, s{sM}, s61
    s_lshl_b32 s{sRBQ}, s{sG}, 1
    s_add_u32 s{sRBQ}, s{sRBQ}, s60
    s_lshl_b32 s{sTQ}, s{sRBQ}, 2
    s_add_u32 s{sTQ}, s{sTQ}, s{sW}
    s_and_b32 s{sHEAD}, s{sM}, 15
    s_lshr_b32 s60, s{sM}, 4
    s_lshl_b32 s{sRB}, s{sG}, 1
    s_add_u32 s{sRB}, s{sRB}, s60
    s_lshl_b32 s{sTA}, s{sRB}, 2
    s_add_u32 s{sTA}, s{sTA}, s{sW}
    s_mul_i32 s60, s{sM}, 37
    s_lshr_b32 s60, s60, 8
    s_mul_i32 s61, s60, 7
    s_sub_u32 s{sNB}, s{sM}, s61
    s_and_b32 s{sMH}, s{sW}, 1
    s_lshr_b32 s{sKH}, s{sW}, 1
    s_lshl_b32 s{sTO}, s{sG}, 2
    s_add_u32 s{sTO}, s{sTO}, s60
    s_lshl_b32 s{sTO}, s{sTO}, 1
    s_add_u32 s{sTO}, s{sTO}, s{sMH}""")
    A(f"""s_mov_b32 s{sPROD}, 0
    s_mov_b32 s{sCH}, s{sM}
    s_cmp_lt_u32 s{sM}, 14
    s_cbranch_scc0 L_r1
    s_mov_b32 s{sPROD}, 1
    L_r1:
    s_cmp_lt_u32 s{sM}, 28
    s_cbranch_scc1 L_r2
    s_cmp_eq_u32 s{sG}, 7
    s_cbranch_scc1 L_r2
    s_mov_b32 s{sPROD}, 2
    s_lshl_b32 s{sCH}, s{sG}, 2
    s_add_u32 s{sCH}, s{sCH}, s{sM}
    s_sub_u32 s{sCH}, s{sCH}, 14
    L_r2:""")
    panel_addr(4, 5376, "mod")
    A(f"v_min_u32 v2, 223, v0\nv_lshlrev_b32 v3, 2, v2")
    A("s_waitcnt lgkmcnt(0)")
    stamp("karg")
    A(f"s_load_dword s{sTAG}, s[36:37], 0")
    A(f"s_cmp_eq_u32 s{sPROD}, 0\ns_cbranch_scc1 L_noP1")
    A("global_load_dword v8, v3, s[44:45]")
    A(f"s_lshl_b32 s61, s{sCH}, 7\ns_mul_i32 s62, s{sW}, {112*5376}\ns_add_u32 s61, s61, s62\ns_mul_i32 s62, s{sW}, 14336\ns_add_u32 s62, s62, {L_B}")
    panel_dma(WMOD, 4, 5376, 14, 61, 62)
    A("L_noP1:")
    vm.n = 0; vm.done = 0
    A(f"""v_lshrrev_b32 v9, 3, v{vL}
    v_mul_u32_u24 v9, 896, v9
    v_and_b32 v10, 7, v{vL}
    v_lshl_add_u32 v9, v10, 4, v9
    s_lshl_b32 s61, s{sG}, 5
    s_add_u32 s61, s61, s{sM}
    s_mul_i32 s61, s61, 7168
    s_lshl_b32 s62, s{sW}, 7
    s_add_u32 s61, s61, s62
    s_lshl_b32 s62, s{sW}, 10
    s_add_u32 s62, s62, {L_X}
    s_mov_b32 m0, s62
    s_add_u32 s63, s61, 512
    s_cmp_eq_u32 s{sW}, 3
    s_cselect_b32 s63, s61, s63
    s_cselect_b32 s64, 0, 4096
    s_add_u32 s64, s64, s62""")
    VM(f"buffer_load_dwordx4 v9, {X}, s61 offen lds")
    A("s_mov_b32 m0, s64")
    tx = VM(f"buffer_load_dwordx4 v9, {X}, s63 offen lds")
    A(f"""v_lshlrev_b32 v10, 7, v{vL}
    s_cmp_eq_u32 s{sW}, 1
    s_cbranch_scc1 L_t1
    s_cmp_eq_u32 s{sW}, 2
    s_cbranch_scc1 L_t2
    s_cmp_eq_u32 s{sW}, 3
    s_cbranch_scc1 L_t3
    v_min_u32 v10, 55, v{vL}
    v_lshlrev_b32 v10, 9, v10
    s_lshr_b32 s61, s{sM}, 2
    s_lshl_b32 s62, s{sG}, 3
    s_add_u32 s61, s61, s62
    s_mul_i32 s61, s61, 28672
    s_and_b32 s62, s{sM}, 3
    s_lshl_b32 s62, s62, 7
    s_add_u32 s61, s61, s62
    buffer_load_dword v{vJUNK}, v10, {OUT}, s61 offen sc1
    s_branch L_t4
    L_t1:
    s_lshl_b32 s61, s{sG}, 5
    s_add_u32 s61, s61, s{sM}
    s_lshl_b32 s61, s61, 13
    s_add_u32 s61, s61, {QO}
    buffer_load_dword v{vJUNK}, v10, {WS}, s61 offen sc1
    s_branch L_t4
    L_t2:
    buffer_load_dword v{vJUNK}, v10, {WS}, s{sCTL} offen sc1
    s_branch L_t4
    L_t3:
    s_getpc_b64 s[62:63]
    s_and_b32 s61, s{sM}, 3
    s_lshl_b32 s61, s61, 13
    v_add_u32 v10, s61, v10
    v_min_u32 v10, CODE_END-L_t3-8, v10
    v_and_b32 v10, -4, v10
    global_load_dword v{vJUNK}, v10, s[62:63]
    L_t4:""")
    vm.issue()
    panel_addr(12, 2688)
    A(f"""v_lshrrev_b32 v16, 2, v{vL}
    v_mul_u32_u24 v16, 2688, v16
    v_and_b32 v17, 3, v{vL}
    v_lshl_add_u32 v16, v17, 4, v16""")
    for i in range(1, 4): A(f"v_add_u32 v{16+i}, {i*(16*2688-1024)}, v16")
    A(f"s_cmp_ge_u32 s{sM}, 28\ns_cselect_b32 s65, {OOB}, 0")
    A(f"s_lshl_b32 s61, s{sJ}, 7\ns_add_u32 s61, s61, 896\ns_mul_i32 s62, s{sW}, {112*2688}\ns_add_u32 s61, s61, s62\ns_add_u32 s61, s61, s65\ns_mul_i32 s63, s{sW}, 14336")
    panel_dma(WQKV, 12, 2688, 14, 61, 63)
    A(f"s_lshl_b32 s61, s{sJ}, 6\ns_add_u32 s61, s61, s62\ns_add_u32 s61, s61, s65\ns_mul_i32 s63, s{sW}, 7168\ns_add_u32 s63, s63, {L_WQ}")
    panel_dma(WQKV, 16, 2 * 2688, 7, 61, 63)
    panel_addr(vPAN, 896)
    A(f"""v_and_b32 v{vT0}, 3, v{vL}
    v_lshlrev_b32 v{vT0}, 3, v{vT0}
    v_bfe_u32 v{vT1}, v{vL}, 4, 1
    v_lshl_add_u32 v{vT0}, v{vT1}, 5, v{vT0}
    v_bfe_u32 v{vT1}, v{vL}, 2, 2
    v_lshl_add_u32 v20, v{vT1}, 6, v{vT0}
    v_lshl_add_u32 v20, v{vHALF}, 9, v20
    v_lshl_add_u32 v{vT0}, v{vT1}, 7, v{vT0}
    v_bfe_u32 v{vT1}, v{vL}, 3, 1
    v_lshl_add_u32 v{vT0}, v{vT1}, 6, v{vT0}
    v_lshl_add_u32 v{vTN0}, v{vHALF}, 10, v{vT0}
    v_lshl_add_u32 v{vTP0}, v{vHALF}, 9, v{vT0}
    v_xor_b32 v{vTN1}, 64, v{vTN0}
    v_xor_b32 v{vTP1}, 64, v{vTP0}
    v_add_u32 v238, {L_WQ}, v20""")
    vWQ = 238
    stamp("issued")
    A(f"s_cmp_eq_u32 s{sPROD}, 0\ns_cbranch_scc1 L_noP2")
    A(f"s_waitcnt vmcnt({14 + vm.n})")
    A(f"""v_lshlrev_b32 v20, 16, v8
    v_and_b32 v21, 0xffff0000, v8
    v_mul_f32 v22, 0xbfb8aa3b, v20
    v_mul_f32 v23, 0xbfb8aa3b, v21
    v_exp_f32 v22, v22
    v_exp_f32 v23, v23
    v_bfe_u32 v24, v2, 1, 2
    v_add_f32 v22, 1.0, v22
    v_add_f32 v23, 1.0, v23
    v_rcp_f32 v22, v22
    v_rcp_f32 v23, v23
    v_and_b32 v25, 0xf1, v2
    v_lshl_add_u32 v25, v24, 2, v25
    v_bfe_u32 v24, v2, 3, 1
    v_lshl_add_u32 v25, v24, 1, v25
    v_mul_f32 v20, v20, v22
    v_mul_f32 v21, v21, v23
    v_lshlrev_b32 v25, 2, v25
    v_add_u32 v25, {L_SILU}, v25
    v_cvt_pk_bf16_f32 v20, v20, v21
    ds_write_b32 v25, v20
    L_noP2:""")
    A("s_waitcnt lgkmcnt(0)")
    A(f"s_mul_i32 s{sTAG}, s{sTAG}, 0x9E3779B1\ns_add_u32 s{sTAG}, s{sTAG}, 0x7F4A7C15\nv_mov_b32 v{vTAG}, s{sTAG}")
    vm.wait(tx)
    barrier()
    stamp("B1")
    A(f"""s_lshl_b32 s66, s{sG}, 12
    s_add_u32 s66, s66, {S0B}
    s_cmp_lg_u32 s{sW}, 0
    s_cbranch_scc1 L_nox
    v_mov_b32 v20, s{sXCC}
    v_mov_b32 v21, s{sTAG}
    s_lshl_b32 s61, s{sM}, 3
    s_add_u32 s62, s61, s{sCTL}
    s_add_u32 s61, s61, s66
    s_mov_b64 exec, 1
    buffer_store_dwordx2 v[20:21], off, {WS}, s62 offset:3584
    buffer_store_dwordx2 v[20:21], off, {WS}, s61 offset:3584 sc1
    s_mov_b64 exec, -1
    L_nox:""")
    A(f"s_cmp_eq_u32 s{sPROD}, 0\ns_cbranch_scc1 L_noP3")
    A(f"""v_lshrrev_b32 v20, 2, v{vL}
    v_bfe_u32 v21, v{vL}, 3, 2
    v_xor_b32 v21, s{sW}, v21
    v_lshlrev_b32 v21, 5, v21
    v_lshl_add_u32 v20, v20, 7, v21
    v_and_b32 v21, 3, v{vL}
    v_lshl_add_u32 v20, v21, 3, v20
    v_add_u32 v20, {L_B}, v20
    v_lshrrev_b32 v21, 4, v{vL}
    v_lshlrev_b32 v21, 4, v21
    v_add_u32 v21, {L_SILU}, v21""")
    lg.n = lg.done = 0
    toks = []
    def gemv_ld(s_):
        b = 32 + 8 * s_
        DS(f"ds_read_b128 v[{b}:{b+3}], v21 offset:{64*s_}")
        DS(f"ds_read_b64_tr_b16 v[{b+4}:{b+5}], v20 offset:{4096*s_}")
        toks.append(DS(f"ds_read_b64_tr_b16 v[{b+6}:{b+7}], v20 offset:{4096*s_+2048}"))
    for s_ in range(4): gemv_ld(s_)
    for s_ in range(14):
        lg.wait(toks[s_])
        b = 32 + 8 * s_
        A(f"v_mfma_f32_16x16x32_bf16 v[24:27], v[{b}:{b+3}], v[{b+4}:{b+7}], {'0' if s_ == 0 else 'v[24:27]'}")
        if s_ + 4 < 14: gemv_ld(s_ + 4)
    A(f"""s_sub_u32 s61, s{sCH}, 7
    s_cmp_lt_u32 s61, 7
    s_cselect_b32 s62, 1.0, 0
    s_sub_u32 s61, s{sCH}, 28
    s_cmp_lt_u32 s61, 7
    s_cselect_b32 s62, 1.0, s62
    s_lshl_b32 s61, s{sCH}, 8
    s_lshl_b32 s63, s{sW}, 6
    s_add_u32 s67, s61, s63
    v_lshlrev_b32 v22, 2, v{vL}
    v_cvt_pk_bf16_f32 v24, v24, v24
    v_and_b32 v24, 0xffff0000, v24
    v_add_f32 v24, s62, v24
    v_mov_b32 v29, s{sTAG}
    v_mov_b32_dpp v25, v24 quad_perm:[1,0,3,2] row_mask:0xf bank_mask:0xf
    v_cvt_pk_bf16_f32 v28, v24, v25
    s_cmp_eq_u32 s{sPROD}, 2
    s_cbranch_scc1 L_noP3
    s_add_u32 s61, s67, s{sCTL}
    s_add_u32 s62, s67, s66
    s_mov_b64 exec, 0x5555
    buffer_store_dwordx2 v[28:29], v22, {WS}, s61 offen
    buffer_store_dwordx2 v[28:29], v22, {WS}, s62 offen sc1
    s_mov_b64 exec, -1
    L_noP3:""")
    stamp("gemv")
    lg.n = lg.done = 0
    A(f"""v_and_b32 v30, 7, v{vL}
    v_lshrrev_b32 v31, 3, v{vL}
    v_lshlrev_b32 v32, 7, v30
    v_lshl_add_u32 v32, v31, 4, v32
    v_add_u32 v32, {L_X}, v32
    s_lshl_b32 s61, s{sW}, 10
    v_add_u32 v33, s61, v32""")
    tk = [DS(f"ds_read_b128 v[{40+4*i}:{43+4*i}], v32 offset:{1024*i}") for i in range(7)]
    DS("ds_read_b128 v[68:71], v33"); town = DS("ds_read_b128 v[72:75], v33 offset:4096")
    for i in range(7):
        lg.wait(tk[i])
        for d in range(4):
            A(f"v_lshlrev_b32 v{80+8*i+2*d}, 16, v{40+4*i+d}\nv_and_b32 v{81+8*i+2*d}, 0xffff0000, v{40+4*i+d}")
    A("v_pk_add_f32 v[34:35], v[80:81], v[82:83]")
    for i in range(2, 28): A(f"v_pk_add_f32 v[34:35], v[34:35], v[{80+2*i}:{81+2*i}]")
    def red8(r):
        A(f"""v_add_f32_dpp v{r}, v{r}, v{r} row_ror:8 row_mask:0xf bank_mask:0xf
        v_mov_b32 v{vT0}, v{r}
        v_permlane16_swap_b32 v{r}, v{vT0}
        v_add_f32 v{r}, v{r}, v{vT0}
        v_mov_b32 v{vT0}, v{r}
        v_permlane32_swap_b32 v{r}, v{vT0}
        v_add_f32 v{r}, v{r}, v{vT0}""")
    A("v_add_f32 v34, v34, v35"); red8(34)
    A("v_mul_f32 v34, 0xbb124925, v34\nv_mov_b32 v35, v34")
    for i in range(28): A(f"v_pk_add_f32 v[{80+2*i}:{81+2*i}], v[{80+2*i}:{81+2*i}], v[34:35]")
    A("v_pk_mul_f32 v[36:37], v[80:81], v[80:81]")
    for i in range(1, 28): A(f"v_pk_fma_f32 v[36:37], v[{80+2*i}:{81+2*i}], v[{80+2*i}:{81+2*i}], v[36:37]")
    A("v_add_f32 v36, v36, v37"); red8(36)
    A("v_mov_b32 v37, 0x3727c5ac\nv_fmac_f32 v37, 0x3b124925, v36\nv_rsq_f32 v36, v37")
    lg.wait(town)
    for d in range(8):
        A(f"v_lshlrev_b32 v{40+2*d}, 16, v{68+d}\nv_and_b32 v{41+2*d}, 0xffff0000, v{68+d}")
    A("v_mov_b32 v37, v36")
    for d in range(8): A(f"v_pk_add_f32 v[{40+2*d}:{41+2*d}], v[{40+2*d}:{41+2*d}], v[34:35]")
    for d in range(8): A(f"v_pk_mul_f32 v[{40+2*d}:{41+2*d}], v[{40+2*d}:{41+2*d}], v[36:37]")
    A(f"""v_min_u32 v56, 239, v0
    v_lshlrev_b32 v56, 4, v56
    v_add_u32 v57, {L_MODV}, v56
    s_lshl_b32 s61, s{sW}, 8
    s_add_u32 s61, s61, {L_MODV}
    v_lshl_add_u32 v58, v31, 5, s61
    v_and_b32 v59, 31, v{vL}
    v_lshlrev_b32 v59, 3, v59
    v_add_u32 v59, {L_MODV+3584}, v59
    v_lshlrev_b32 v60, 9, v31
    v_lshl_add_u32 v60, v30, 4, v60
    s_lshr_b32 s61, s{sM}, 2
    s_lshl_b32 s62, s{sG}, 3
    s_add_u32 s61, s61, s62
    s_mul_i32 s68, s61, 28672
    s_and_b32 s62, s{sM}, 3
    s_lshl_b32 s62, s62, 7
    s_add_u32 s68, s68, s62
    s_lshl_b32 s62, s{sW}, 12
    s_add_u32 s68, s68, s62
    s_add_u32 s69, s68, 16384
    s_cmp_eq_u32 s{sW}, 3
    s_cselect_b32 s69, {OOB}, s69
    s_lshl_b32 s70, s{sM}, 2
    s_add_u32 s70, s70, s{sW}
    s_lshl_b32 s70, s70, 2
    s_add_u32 s70, s70, s{sCTL}
    s_add_u32 s70, s70, {C_FH}""")
    stamp("stats")
    A(f"""s_mov_b32 s60, 0
    s_mov_b32 s61, s{sCTL}
    L_s0:
    buffer_load_dwordx4 v[64:67], v56, {WS}, s61 offen sc1
    s_add_u32 s60, s60, 1
    s_cmp_eq_u32 s60, {SPIN_A}
    s_cselect_b32 s61, s66, s61
    s_waitcnt vmcnt(0)
    v_cmp_ne_u32 vcc, s{sTAG}, v65
    v_cmp_ne_u32 s[62:63], s{sTAG}, v67
    s_or_b64 vcc, vcc, s[62:63]
    s_cbranch_vccz L_s0d
    s_cmp_lt_u32 s60, {SPIN}
    s_cbranch_scc1 L_s0
    L_s0d:
    v_and_b32 v65, 0xffff0000, v64
    v_lshlrev_b32 v64, 16, v64
    v_and_b32 v67, 0xffff0000, v66
    v_lshlrev_b32 v66, 16, v66
    ds_write_b128 v57, v[64:67]
    s_waitcnt lgkmcnt(0)""")
    vm.drained()
    barrier()
    stamp("S0")
    lg.n = lg.done = 0
    t0 = []
    for p in range(2):
        for q in range(2):
            DS(f"ds_read_b128 v[{64+16*p+4*q}:{67+16*p+4*q}], v58 offset:{1792+1024*p+16*q}")
            t0.append(DS(f"ds_read_b128 v[{72+16*p+4*q}:{75+16*p+4*q}], v58 offset:{1024*p+16*q}"))
    txc = DS("ds_read_b32 v61, v59")
    for p in range(2):
        for q in range(2):
            lg.wait(t0[2 * p + q])
            for e in range(0, 4, 2):
                r = 40 + 8 * p + 4 * q + e
                A(f"v_pk_fma_f32 v[{r}:{r+1}], v[{r}:{r+1}], v[{64+16*p+4*q+e}:{65+16*p+4*q+e}], v[{72+16*p+4*q+e}:{73+16*p+4*q+e}]")
        for d in range(4): A(f"v_cvt_pk_bf16_f32 v{96+4*p+d}, v{40+8*p+2*d}, v{41+8*p+2*d}")
        th = VM(f"buffer_store_dwordx4 v[{96+4*p}:{99+4*p}], v60, {OUT}, s{68+p} offen")
    lg.wait(txc)
    A(f"s_lshl_b32 s61, s{sXCC}, 16\nv_cmp_ne_u32 vcc, s61, v61\ns_cmp_eq_u64 vcc, 0\ns_cselect_b32 s{sUNI}, {0 if force_slow else 1}, 0")
    vm.wait(th)
    flag(70)
    stamp("hpub")
    A(f"""s_cmp_lg_u32 s{sPROD}, 2
    s_cbranch_scc1 L_noP4
    s_add_u32 s61, s67, {NU - 14*256}
    s_mov_b64 exec, 0x5555
    buffer_store_dwordx2 v[28:29], v22, {WS}, s61 offen sc1
    s_mov_b64 exec, -1
    L_noP4:""")
    if stop <= 1:
        finish(); return wrap(A, tail), names

    A(f"s_cmp_ge_u32 s{sM}, 28\ns_cbranch_scc1 L_att")
    A(f"s_lshl_b32 s61, s{sNB}, 7\ns_mul_i32 s62, s{sW}, {112*896}\ns_add_u32 s61, s61, s62\ns_mul_i32 s63, s{sW}, 14336\ns_add_u32 s63, s63, {L_B}")
    panel_dma(WO, vPAN, 896, 15, 61, 63)
    A(f"""v_and_b32 v{vT3}, 31, v{vL}
    s_mul_i32 s71, s{sTQ}, 1792
    s_lshl_b32 s72, s{sTQ}, 15
    s_add_u32 s72, s72, {QO}
    s_lshl_b32 s61, s{sJ}, 3""")
    for a_ in range(4):
        A(f"""v_add3_u32 v{vT0}, v{vHALF}, s61, {2*a_}
        v_mul_u32_u24 v{vT1}, 147, v{vT0}
        v_lshrrev_b32 v{vT1}, 10, v{vT1}
        v_add_u32 v{vT0}, v{vT0}, v{vT1}
        v_lshlrev_b32 v{vT0}, 8, v{vT0}
        v_lshl_add_u32 v{232+a_}, v{vT3}, 3, v{vT0}""")
    A(f"s_cmp_ge_u32 s{sJ}, 7\ns_cbranch_scc1 L_va\ns_lshl_b32 s61, s{sJ}, 4\ns_add_u32 s71, s71, {KG}")
    for i in range(8):
        A(f"""v_add3_u32 v{vT0}, v{vHALF}, s61, {2*i}
        v_mul_u32_u24 v{vT1}, 147, v{vT0}
        v_lshrrev_b32 v{vT1}, 10, v{vT1}
        v_mul_u32_u24 v{vT1}, {64*1792-7*256}, v{vT1}
        v_lshl_add_u32 v{vT0}, v{vT0}, 8, v{vT1}
        v_lshl_add_u32 v{224+i}, v{vT3}, 3, v{vT0}""")
    A(f"s_branch L_vb\nL_va:\ns_sub_u32 s61, s{sJ}, 7\ns_lshl_b32 s61, s61, 6\ns_add_u32 s71, s71, {VG}")
    for t in range(2):
        A(f"""v_add3_u32 v{vT0}, v{vT3}, s61, {32*t}
        v_lshrrev_b32 v{vT1}, 2, v{vT0}
        v_mul_u32_u24 v{vT1}, 147, v{vT1}
        v_lshrrev_b32 v{vT1}, 10, v{vT1}
        v_mul_u32_u24 v{vT1}, {64*1792-448}, v{vT1}
        v_lshl_add_u32 v{vT0}, v{vT0}, 4, v{vT1}
        v_mul_u32_u24 v{vT1}, 448, v{vHALF}
        v_add_u32 v{224+t}, v{vT0}, v{vT1}""")
    for i in range(2, 8): A(f"v_mov_b32 v{224+i}, 0")
    A("L_vb:")
    A(f"""v_and_b32 v{vT0}, 15, v{vL}
    v_lshlrev_b32 v{vT0}, 2, v{vT0}
    s_and_b32 s61, s{sTQ}, 7
    s_lshl_b32 s61, s61, 6
    s_add_u32 s61, s61, s{sCTL}
    s_add_u32 s61, s61, {C_FH}
    s_mul_i32 s62, s{sTQ}, 28672
    s_mul_i32 s73, s{sRBQ}, 14
    s_add_u32 s73, s73, s{sJ}
    s_lshl_b32 s73, s73, 7
    s_add_u32 s73, s73, {FKV}
    s_and_b32 s74, s{sRBQ}, 1
    s_lshl_b32 s74, s74, 4
    s_add_u32 s74, s74, s{sJ}
    s_lshl_b32 s74, s74, 2
    s_add_u32 s74, s74, s{sCTL}
    s_add_u32 s74, s74, {C_FQ}""")
    poll(vT0, "s61")
    stamp("S0b")
    th = []
    for s_ in range(28):
        th.append(VM(f"buffer_load_dwordx4 v[{4*s_}:{4*s_+3}], v{vL16}, {OUT}, s62 offen offset:{1024*(s_%4)} sc1"))
        if s_ % 4 == 3 and s_ < 27: A("s_add_u32 s62, s62, 4096")
    barrier()
    ACC = 112; WB = 160
    def kv_pass(vtype):
        lg.n = lg.done = 0
        sv = (vm.n, vm.done)
        tw = []
        def ld(s_):
            b = WB + 8 * (s_ % 4)
            for t in range(2):
                DS(f"ds_read_b64_tr_b16 v[{b+4*t}:{b+4*t+1}], v{vTN0-t} offset:{L_WKV+2048*s_}")
                k = DS(f"ds_read_b64_tr_b16 v[{b+4*t+2}:{b+4*t+3}], v{vTN0-t} offset:{L_WKV+2048*s_+512}")
            tw.append(k)
        for s_ in range(3): ld(s_)
        for s_ in range(28):
            vm.wait(th[s_]); lg.wait(tw[s_])
            b = WB + 8 * (s_ % 4)
            for t in range(2):
                wf, hf = v(b + 4 * t, 4), v(4 * s_, 4)
                c = "0" if s_ == 0 else None
                if vtype: mfma(v(ACC + 16 * t, 16), hf, wf, c)
                else: mfma(v(ACC + 16 * t, 16), wf, hf, c)
            if s_ + 3 < 28: ld(s_ + 3)
        tq = []
        def ldq(s_):
            b = WB + 4 * (s_ % 8)
            DS(f"ds_read_b64_tr_b16 v[{b}:{b+1}], v{vWQ} offset:{1024*s_}")
            tq.append(DS(f"ds_read_b64_tr_b16 v[{b+2}:{b+3}], v{vWQ} offset:{1024*s_+256}"))
        epi = []
        for t in range(2):
            P = 192 + 8 * t
            for d in range(8):
                epi.append(f"v_cvt_pk_bf16_f32 v{P+d}, v{ACC+16*t+2*d}, v{ACC+16*t+2*d+1}")
                if vtype and d % 4 == 3: epi.append(("st", f"buffer_store_dwordx4 v[{P+d-3}:{P+d}], v{224+t}, {WS}, s71 offen offset:{896*(d//4)} sc1"))
                if not vtype and d % 2 == 1: epi.append(("st", f"buffer_store_dwordx2 v[{P+d-1}:{P+d}], v{224+4*t+d//2}, {WS}, s71 offen sc1"))
        for s_ in range(4): ldq(s_)
        last = None
        for s_ in range(28):
            lg.wait(tq[s_])
            b = WB + 4 * (s_ % 8)
            mfma(v(ACC + 32, 16), v(b, 4), v(4 * s_, 4), "0" if s_ == 0 else None)
            if s_ + 4 < 28: ldq(s_ + 4)
            if s_ >= 1:
                for _ in range(3):
                    if epi:
                        e = epi.pop(0)
                        if isinstance(e, tuple): last = VM(e[1])
                        else: A(e)
        A(f"s_mov_b32 s61, {QSCALE:#x}")
        for d in range(8):
            A(f"v_mul_f32 v{ACC+32+2*d}, s61, v{ACC+32+2*d}\nv_mul_f32 v{ACC+33+2*d}, s61, v{ACC+33+2*d}\nv_cvt_pk_bf16_f32 v{208+d}, v{ACC+32+2*d}, v{ACC+33+2*d}")
            if d % 2 == 1: VM(f"buffer_store_dwordx2 v[{207+d}:{208+d}], v{232+d//2}, {WS}, s72 offen")
        vm.wait(last)
        vm.n, vm.done = sv
    A(f"s_cmp_ge_u32 s{sJ}, 7\ns_cbranch_scc1 L_kvV")
    kv_pass(False)
    A("s_branch L_kvE\nL_kvV:")
    kv_pass(True)
    A("L_kvE:")
    barrier()
    A(f"s_cmp_lg_u32 s{sW}, 0\ns_cbranch_scc1 L_nf1")
    flag(73, slow=True)
    A("L_nf1:")
    stamp("qkv")
    A(f"s_cmp_eq_u32 s{sW}, 0\ns_cbranch_scc1 L_w0a\ns_waitcnt vmcnt(0)\nL_w0a:\ns_waitcnt vmcnt(1)")
    barrier()
    A(f"s_cmp_lg_u32 s{sW}, 1\ns_cbranch_scc1 L_nf2")
    flag(74)
    A("L_nf2:")
    vm.n = vm.done = 0
    A(f"s_mul_i32 s61, s{sKH}, {224*128}\ns_add_u32 s61, s61, {L_B}\nv_add_u32 v{vT0}, s61, v{vTP0}\nv_add_u32 v{vT1}, s61, v{vTP1}")
    for hh in range(8):
        for s_ in range(2):
            for t in range(2):
                r = 128 + 16 * hh + 8 * s_ + 4 * t
                for p in range(2): A(f"ds_read_b64_tr_b16 a[{r+2*p}:{r+2*p+1}], v{vT0+t} offset:{3584*hh+2048*s_+1024*p}")
    A("s_waitcnt lgkmcnt(0)")
    barrier()
    def w2_src(u, sreg):
        q = u % 7
        A(f"s_mul_i32 s{sreg}, s{sW}, 7\ns_add_u32 s{sreg}, s{sreg}, {q}\ns_and_b32 s79, s{sreg}, 0xfe\ns_add_u32 s{sreg}, s{sreg}, s79")
        if u >= 7: A(f"s_add_u32 s{sreg}, s{sreg}, 2")
    def w2_dma(u0, n, lbase, per_wave):
        A(f"s_mul_i32 s63, s{sW}, {per_wave}\ns_add_u32 s63, s63, {lbase}\ns_lshl_b32 s64, s{sNB}, 7")
        tok = None
        for i in range(n):
            w2_src(u0 + i, 61)
            A(f"s_mul_i32 s61, s61, {32*896}\ns_add_u32 s61, s61, s64")
            tok = panel_dma(W2, vPAN, 896, 4, 61, 63)
            A("s_add_u32 s63, s63, 4096")
        return tok
    def w2_read(u0, n, lbase, per_wave):
        A(f"s_mul_i32 s61, s{sW}, {per_wave}\ns_add_u32 s61, s61, {lbase}\nv_add_u32 v{vT0}, s61, v{vTP0}\nv_add_u32 v{vT1}, s61, v{vTP1}")
        for i in range(n):
            for s_ in range(2):
                for t in range(2):
                    r = 16 * (u0 + i) + 8 * s_ + 4 * t
                    for p in range(2): DS(f"ds_read_b64_tr_b16 a[{r+2*p}:{r+2*p+1}], v{vT0+t} offset:{4096*i+2048*s_+1024*p}")
        lg.all()
    tk = w2_dma(0, 6, 0, 24576)
    A(f"""s_lshl_b32 s61, s{sW}, 6
    v_add_u32 v4, s61, v{vL}
    v_add_u32 v5, 256, v4
    v_min_u32 v5, 447, v5
    v_lshlrev_b32 v6, 3, v4
    v_lshlrev_b32 v7, 3, v5
    v_add_u32 v6, {L_VEC}, v6
    v_add_u32 v7, {L_VEC}, v7
    v_lshlrev_b32 v4, 4, v4
    v_lshlrev_b32 v5, 4, v5
    s_mov_b32 s60, 0
    s_mov_b32 s61, {NU}
    L_nu:
    buffer_load_dwordx4 v[8:11], v4, {WS}, s61 offen sc1
    buffer_load_dwordx4 v[12:15], v5, {WS}, s61 offen sc1
    s_add_u32 s60, s60, 1
    s_waitcnt vmcnt(0)
    v_cmp_ne_u32 vcc, s{sTAG}, v9
    v_cmp_ne_u32 s[62:63], s{sTAG}, v11
    v_cmp_ne_u32 s[64:65], s{sTAG}, v13
    v_cmp_ne_u32 s[76:77], s{sTAG}, v15
    s_or_b64 vcc, vcc, s[62:63]
    s_or_b64 s[64:65], s[64:65], s[76:77]
    s_or_b64 vcc, vcc, s[64:65]
    s_cbranch_vccz L_nud
    s_cmp_lt_u32 s60, {SPIN}
    s_cbranch_scc1 L_nu
    L_nud:
    v_mov_b32 v9, v10
    v_mov_b32 v13, v14
    ds_write_b64 v6, v[8:9]
    ds_write_b64 v7, v[12:13]""")
    vm.drained()
    w2_read(0, 6, 0, 24576)
    A("L_att:")
    if stop <= 2:
        finish(); return wrap(A, tail), names

    S = 0; QF = 144; KB = 152; OA = 184; VB = 200
    vKA, vVA, vVS = 216, 217, 218
    vm.n = vm.done = 0; lg.n = lg.done = 0
    A(f"""s_mul_i32 s61, s{sW}, 6144
    s_add_u32 s61, s61, {L_V}
    v_add_u32 v{vT0}, s61, v{vL16}
    v_mov_b32 v{KB}, 0x3f803f80
    v_mov_b32 v{KB+1}, 0x3f803f80
    v_mov_b32 v{KB+2}, 0x3f803f80
    v_mov_b32 v{KB+3}, 0x3f803f80
    s_mov_b32 exec_lo, 0xf0000000
    s_mov_b32 exec_hi, 0xf0000000""")
    for i in range(6): A(f"ds_write_b128 v{vT0}, v[{KB}:{KB+3}] offset:{1024*i}")
    A("s_mov_b64 exec, -1")
    A(f"v_and_b32 v{vT3}, 31, v{vL}\nv_lshlrev_b32 v{vT0}, 2, v{vHALF}\nv_sub_u32 v{vT0}, v{vT3}, v{vT0}\nv_mov_b32 v{vT1}, {NEG:#x}")
    A(f"s_cmp_ge_u32 s{sTA}, 8\ns_cselect_b32 s61, 0, {NEG:#x}\nv_mov_b32 v{vT2}, s61")
    for r in range(16):
        i0 = 8 * (r >> 2) + (r & 3)
        A(f"v_cmp_gt_i32 vcc, {i0}, v{vT0}\nv_cndmask_b32 v{S+r}, v{vT1}, v{vT2}, vcc\nv_cndmask_b32 v{S+128+r}, 0, v{vT1}, vcc")
    for n in range(1, 8):
        A(f"s_cmp_ge_u32 s{sTA}, {8-n}\ns_cselect_b32 s61, 0, {NEG:#x}")
        for r in range(16): A(f"v_mov_b32 v{S+16*n+r}, s61")
    A(f"""s_mul_i32 s61, s{sW}, 1792
    s_add_u32 s61, s61, {L_K}
    v_lshlrev_b32 v{vT0}, 9, v{vHALF}
    v_lshl_add_u32 v219, v{vT3}, 3, v{vT0}
    v_add_u32 v{vKA}, s61, v219
    v_lshlrev_b32 v220, 30, v{vHALF}
    v_add_u32 v220, v220, v219
    s_lshl_b32 s61, s{sW}, 11
    s_add_u32 s61, s61, {L_V}
    v_add_u32 v{vVA}, s61, v{vL16}
    v_mul_u32_u24 v{vVS}, 448, v{vHALF}
    v_lshl_add_u32 v{vVS}, v{vT3}, 4, v{vVS}
    s_lshl_b32 s75, s{sTA}, 4
    s_add_u32 s75, s75, s{sHEAD}
    s_lshl_b32 s75, s75, 11
    s_add_u32 s75, s75, {QO}
    s_lshl_b32 s61, s{sHEAD}, 4
    s_add_u32 s61, s61, s{sRB}
    s_mul_i32 s61, s61, 7168
    s_sub_u32 s61, s61, 14336
    s_min_u32 s78, s{sRB}, 2
    s_sub_u32 s78, 2, s78""")
    A(f"s_mul_i32 s76, s{sW}, 6\ns_mul_i32 s77, s78, 7")
    for q in range(6):
        A(f"""s_add_u32 s79, s76, {q}
        s_lshl_b32 s{62+q}, s79, 10
        s_add_u32 s{62+q}, s{62+q}, s61
        s_add_u32 s{62+q}, s{62+q}, {KG - 1024*(q%4)}
        s_cmp_lt_u32 s79, s77
        s_cselect_b32 s{62+q}, {OOB}, s{62+q}
        s_cmp_ge_u32 s79, 21
        s_cselect_b32 s{62+q}, {OOB}, s{62+q}""")
    A(f"s_mul_i32 s76, s{sW}, 3\ns_lshl_b32 s77, s78, 2")
    for q in range(3):
        A(f"""s_add_u32 s79, s76, {q}
        s_mul_i32 s{68+q}, s79, 1792
        s_add_u32 s{68+q}, s{68+q}, s61
        s_add_u32 s{68+q}, s{68+q}, {VG}
        s_cmp_lt_u32 s79, s77
        s_cselect_b32 s{68+q}, {OOB}, s{68+q}""")
    A(f"""v_min_u32 v{vT0}, 13, v{vL}
    v_and_b32 v{vT1}, 1, v{vT0}
    v_mul_u32_u24 v{vT1}, 27, v{vT1}
    s_mul_i32 s76, s{sHEAD}, 28
    v_add_u32 v{vT1}, s76, v{vT1}
    v_lshrrev_b32 v{vT2}, 6, v{vT1}
    v_bfe_u32 v221, v{vT0}, 1, 1
    v_mad_u32_u24 v{vT2}, v221, 7, v{vT2}
    v_lshrrev_b32 v221, 2, v{vT0}
    v_max_u32 v221, s78, v221
    s_sub_u32 s76, s{sRB}, 2
    v_add_u32 v221, s76, v221
    v_mad_u32_u24 v{vT2}, v221, 14, v{vT2}
    v_lshlrev_b32 v{vT2}, 7, v{vT2}
    v_add_u32 v{vT2}, {FKV}, v{vT2}
    v_lshrrev_b32 v{vT1}, 5, v{vT1}
    s_and_b32 s76, s{sRB}, 1
    s_lshl_b32 s76, s76, 6
    s_add_u32 s76, s76, s{sCTL}
    s_add_u32 s76, s76, {C_FQ}
    v_lshl_add_u32 v{vT1}, v{vT1}, 2, s76
    v_cmp_gt_u32 vcc, 12, v{vT0}
    v_cndmask_b32 v{vT0}, v{vT1}, v{vT2}, vcc
    s_mul_i32 s76, s{sW}, 6144
    s_add_u32 s77, s76, {L_V}
    s_add_u32 s76, s76, {L_K}""")
    stamp("pre1")
    poll(vT0, "0")
    stamp("S1")
    A("s_mov_b32 m0, s76")
    for q in range(6):
        if q == 4: A("s_add_u32 s76, s76, 4096\ns_mov_b32 m0, s76")
        VM(f"buffer_load_dwordx4 v{vL16}, {WS}, s{62+q} offen offset:{1024*(q%4)} sc1 lds")
    for i in range(4):
        tq = VM(f"buffer_load_dwordx2 v[{QF+2*i}:{QF+2*i+1}], v{220 if i == 3 else 219}, {WS}, s75 offen offset:{1024*(i>>1)+256*(i&1)} sc1")
    A("s_mov_b32 exec_lo, 0x0fffffff\ns_mov_b32 exec_hi, 0x0fffffff")
    for q in range(3):
        A("s_mov_b32 m0, s77\ns_add_u32 s77, s77, 2048")
        VM(f"buffer_load_dwordx4 v{vVS}, {WS}, s{68+q} offen sc1 lds")
        A(f"s_sub_u32 s{68+q}, s{68+q}, 128")
        tv = VM(f"buffer_load_dwordx4 v{vVS}, {WS}, s{68+q} offen offset:1024 sc1 lds")
    A("s_mov_b64 exec, -1")
    vm.wait(tq)
    A("s_waitcnt lgkmcnt(0)")
    barrier()
    stamp("Kin")
    panel_addr(222, 3584)
    A(f"s_cmp_ge_u32 s{sM}, 28\ns_cselect_b32 s65, {OOB}, 0")
    A(f"""s_lshl_b32 s61, s{sJ}, 8
    s_add_u32 s61, s61, s65
    s_mul_i32 s62, s{sW}, {112*3584}
    s_add_u32 s62, s62, s61
    s_mul_i32 s63, s{sW}, 14336""")
    panel_dma(W1, 222, 3584, 14, 62, 63)
    A(f"""s_mul_i32 s62, s{sW}, {88*3584}
    s_add_u32 s62, s62, s61
    s_add_u32 s62, s62, 128
    s_mul_i32 s63, s{sW}, 11264
    s_add_u32 s63, s63, 57344""")
    panel_dma(W1, 222, 3584, 11, 62, 63)
    tk = []
    def ldk(n):
        b = KB + 8 * (n % 4)
        for i in range(4): k = DS(f"ds_read_b64 v[{b+2*i}:{b+2*i+1}], v{vKA} offset:{1792*n+1024*(i>>1)+256*(i&1)}")
        tk.append(k)
    for n in range(3): ldk(n)
    vMX = 226
    def mx(n):
        for r in range(0, 16, 2):
            if n == 0 and r == 0: A(f"v_max_f32 v{vMX}, v{S}, v{S+1}")
            else: A(f"v_max3_f32 v{vMX}, v{vMX}, v{S+16*n+r}, v{S+16*n+r+1}")
    for n in range(9):
        lg.wait(tk[n])
        b = KB + 8 * (n % 4)
        mfma(v(S + 16 * n, 16), v(b, 4), v(QF, 4))
        if n + 3 < 9: ldk(n + 3)
        mfma(v(S + 16 * n, 16), v(b + 4, 4), v(QF + 4, 4))
        if n >= 2: mx(n - 2)
    vm.wait(tv)
    barrier()
    tvv = []
    def ldv(n):
        b = VB + 8 * (n % 2)
        DS(f"ds_read_b128 v[{b}:{b+3}], v{vVA} offset:{2048*n}")
        tvv.append(DS(f"ds_read_b128 v[{b+4}:{b+7}], v{vVA} offset:{2048*n+1024}"))
    ldv(0); ldv(1)
    mx(7); mx(8)
    A(f"v_mov_b32 v{vT0}, v{vMX}\nv_permlane32_swap_b32 v{vMX}, v{vT0}\nv_max_f32 v{vMX}, v{vMX}, v{vT0}")
    stamp("qk")
    def soft(n, s_):
        for e in range(0, 8, 2):
            r = S + 16 * n + 8 * s_ + e
            A(f"v_sub_f32 v{r}, v{r}, v{vMX}\nv_sub_f32 v{r+1}, v{r+1}, v{vMX}\nv_exp_f32 v{r}, v{r}\nv_exp_f32 v{r+1}, v{r+1}")
        for e in range(0, 8, 2):
            r = S + 16 * n + 8 * s_ + e
            A(f"v_cvt_pk_bf16_f32 v{S+16*n+8*s_+e//2}, v{r}, v{r+1}")
    soft(0, 0)
    for i in range(18):
        n, s_ = i >> 1, i & 1
        if i + 1 < 18: soft((i + 1) >> 1, (i + 1) & 1)
        if s_ == 0: lg.wait(tvv[n])
        mfma(v(OA, 16), v(VB + 8 * (n % 2) + 4 * s_, 4), v(S + 16 * n + 8 * s_, 4), "0" if i == 0 else None)
        if s_ == 1 and n + 2 < 9: ldv(n + 2)
    A(f"""s_and_b32 s61, s{sTA}, 7
    s_lshl_b32 s61, s61, 4
    s_add_u32 s61, s61, s{sHEAD}
    s_lshl_b32 s61, s61, 2
    s_add_u32 s61, s61, s{sCTL}
    s_add_u32 s66, s61, {C_FO}
    v_cmp_eq_u32 vcc, 0, v{vHALF}
    v_mov_b32 v{vT0}, v{OA+12}
    v_mov_b32 v{vT1}, v{OA+12}
    v_permlane32_swap_b32 v{vT0}, v{vT1}
    v_rcp_f32 v{vT1}, v{vT1}""")
    for d in range(8):
        A(f"v_mul_f32 v{OA+2*d}, v{OA+2*d}, v{vT1}\nv_mul_f32 v{OA+2*d+1}, v{OA+2*d+1}, v{vT1}\nv_cvt_pk_bf16_f32 v{KB+d}, v{OA+2*d}, v{OA+2*d+1}")
        if d >= 6: A(f"v_cndmask_b32 v{KB+d}, 0, v{KB+d}, vcc")
        if d % 4 == 3: to = VM(f"buffer_store_dwordx4 v[{KB+d-3}:{KB+d}], v{vL16}, {WS}, s75 offen offset:{1024*(d//4)}")
    stamp("att")
    vm.wait(to)
    flag(66)
    A(f"s_cmp_ge_u32 s{sM}, 28\ns_cbranch_scc1 L_fin")
    if stop <= 3:
        A("L_fin:"); finish(); return wrap(A, tail), names

    barrier()
    A(f"""s_cmp_lg_u32 s2, 7
    s_cbranch_scc1 L_noep
    s_cmp_lg_u32 s{sW}, 0
    s_cbranch_scc1 L_noep
    s_mov_b64 exec, 1
    buffer_store_dword v{vTAG}, off, {WS}, 0 sc1
    s_mov_b64 exec, -1
    L_noep:""")
    A(f"""s_lshl_b32 s61, s{sJ}, 8
    s_mul_i32 s62, s{sW}, {24*3584}
    s_add_u32 s62, s62, s61
    s_add_u32 s62, s62, {128+352*3584}
    s_mul_i32 s63, s{sW}, 3072
    s_add_u32 s63, s63, {57344+45056}""")
    panel_dma(W1, 222, 3584, 3, 62, 63)
    w2_dma(6, 2, L_EX, 8192)
    XR = 128; GA = 136; A2 = 152
    A(f"""v_and_b32 v{vT3}, 31, v{vL}
    v_mul_u32_u24 v236, 896, v{vT3}
    v_lshl_add_u32 v236, v{vHALF}, 4, v236
    s_mul_i32 s67, s{sTO}, 28672
    s_lshl_b32 s61, s{sNB}, 1
    s_add_u32 s68, s61, s{sKH}
    s_lshl_b32 s61, s68, 6
    s_add_u32 s78, s67, s61
    s_add_u32 s62, s61, {L_VEC}
    v_lshl_add_u32 v237, v{vHALF}, 3, s62""")
    VM(f"buffer_load_dwordx4 v[{XR}:{XR+3}], v236, {X}, s78 offen")
    VM(f"buffer_load_dwordx4 v[{XR+4}:{XR+7}], v236, {X}, s78 offen offset:32")
    lg.n = lg.done = 0
    for a_ in range(4):
        DS(f"ds_read_b64 v[{168+2*a_}:{169+2*a_}], v237 offset:{16*a_}")
        DS(f"ds_read_b64 v[{176+2*a_}:{177+2*a_}], v237 offset:{1792+16*a_}")
    lg.all()
    for d in range(8):
        A(f"v_lshlrev_b32 v{GA+2*d}, 16, v{168+d}\nv_and_b32 v{GA+2*d+1}, 0xffff0000, v{168+d}")
        A(f"v_lshlrev_b32 v{A2+2*d}, 16, v{176+d}\nv_and_b32 v{A2+2*d+1}, 0xffff0000, v{176+d}")
    A(f"""v_and_b32 v{vT2}, 7, v{vL}
    v_lshlrev_b32 v{vT2}, 2, v{vT2}
    s_and_b32 s61, s{sTO}, 7
    s_lshl_b32 s61, s61, 6
    s_add_u32 s61, s61, s{sCTL}
    s_lshl_b32 s62, s68, 2
    s_add_u32 s69, s61, s62
    s_add_u32 s69, s69, {C_FY}
    s_lshl_b32 s62, s{sKH}, 5
    s_add_u32 s61, s61, s62
    s_add_u32 s70, s61, {C_FO}
    s_lshl_b32 s62, s{sTO}, 1
    s_add_u32 s62, s62, s{sKH}
    s_lshl_b32 s62, s62, 14
    s_add_u32 s71, s62, {QO}""")
    stamp("pre2")
    poll(vT2, "s70")
    stamp("S2")
    to = []
    for i in range(16):
        to.append(VM(f"buffer_load_dwordx4 v[{4*i}:{4*i+3}], v{vL16}, {WS}, s71 offen offset:{1024*(i%4)} sc1"))
        if i % 4 == 3 and i < 15: A("s_add_u32 s71, s71, 4096")
    w2_read(6, 2, L_EX, 8192)
    A(f"v_permlane32_swap_b32 v{XR}, v{XR+2}\nv_permlane32_swap_b32 v{XR+1}, v{XR+3}\nv_permlane32_swap_b32 v{XR+4}, v{XR+6}\nv_permlane32_swap_b32 v{XR+5}, v{XR+7}")
    X1 = 168
    for d in range(8): A(f"v_lshlrev_b32 v{X1+2*d}, 16, v{XR+d}\nv_and_b32 v{X1+2*d+1}, 0xffff0000, v{XR+d}")
    A(f"""s_lshl_b32 s61, s{sW}, 13
    s_add_u32 s61, s61, {L_EX}
    v_add_u32 v{vT0}, s61, v{vL16}
    s_xor_b32 s61, s{sW}, 2
    s_lshl_b32 s61, s61, 13
    s_add_u32 s61, s61, {L_EX}
    v_add_u32 v{vT1}, s61, v{vL16}""")
    ACC = 64
    def oproj(kh):
        sv = (vm.n, vm.done)
        for i in range(16):
            vm.wait(to[i])
            for t in ((1 - kh, kh)):
                mfma(v(ACC + 16 * (t ^ kh), 16), a(128 + 8 * i + 4 * t, 4), v(4 * i, 4), "0" if i == 0 else None)
        vm.n, vm.done = sv
    A(f"s_cmp_eq_u32 s{sKH}, 1\ns_cbranch_scc1 L_op1")
    oproj(0)
    A("s_branch L_op2\nL_op1:")
    oproj(1)
    A("L_op2:")
    vm.drained()
    for q in range(4): A(f"ds_write_b128 v{vT0}, v[{ACC+16+4*q}:{ACC+19+4*q}] offset:{1024*q}")
    A("s_waitcnt lgkmcnt(0)")
    barrier()
    lg.n = lg.done = 0
    tk = [DS(f"ds_read_b128 v[{96+4*q}:{99+4*q}], v{vT1} offset:{1024*q}") for q in range(4)]
    A(f"""s_lshl_b32 s61, s68, 11
    s_add_u32 s67, s67, s61
    s_mul_i32 s62, s{sTO}, 3584
    s_lshl_b32 s61, s68, 8
    s_add_u32 s62, s62, s61
    s_add_u32 s62, s62, {STATS}
    v_lshlrev_b32 v{vT2}, 3, v{vL}""")
    for q in range(4):
        lg.wait(tk[q])
        for e in range(4):
            r = 4 * q + e
            A(f"v_add_f32 v{ACC+r}, v{ACC+r}, v{96+r}\nv_fmac_f32 v{X1+r}, v{ACC+r}, v{GA+r}\nv_mul_f32 v{ACC+r}, v{X1+r}, v{A2+r}")
        A(f"v_cvt_pk_bf16_f32 v{112+2*q}, v{ACC+4*q}, v{ACC+4*q+1}\nv_cvt_pk_bf16_f32 v{113+2*q}, v{ACC+4*q+2}, v{ACC+4*q+3}")
        if q % 2 == 1: VM(f"buffer_store_dwordx4 v[{110+2*q}:{113+2*q}], v{vL16}, {OUT}, s67 offen offset:{1024*(q//2)}")
    A(f"v_pk_add_f32 v[120:121], v[{X1}:{X1+1}], v[{X1+2}:{X1+3}]\nv_pk_mul_f32 v[122:123], v[{X1}:{X1+1}], v[{X1}:{X1+1}]")
    for d in range(1, 8):
        if d >= 2: A(f"v_pk_add_f32 v[120:121], v[120:121], v[{X1+2*d}:{X1+2*d+1}]")
        A(f"v_pk_fma_f32 v[122:123], v[{X1+2*d}:{X1+2*d+1}], v[{X1+2*d}:{X1+2*d+1}], v[122:123]")
    A(f"""v_add_f32 v120, v120, v121
    v_add_f32 v121, v122, v123
    v_mov_b32 v122, v120
    v_mov_b32 v123, v121
    v_permlane32_swap_b32 v120, v122
    v_permlane32_swap_b32 v121, v123
    v_add_f32 v120, v120, v122
    v_add_f32 v121, v121, v123
    s_mov_b32 exec_hi, 0""")
    ty = VM(f"buffer_store_dwordx2 v[120:121], v{vT2}, {WS}, s62 offen")
    A("s_mov_b64 exec, -1")
    for r in range(16): A(f"v_accvgpr_write_b32 a{224+r}, v{X1+r}")
    stamp("oproj")
    vm.wait(ty)
    flag(69)
    if stop <= 4:
        A("L_fin:"); finish(); return wrap(A, tail), names

    barrier()
    w2_dma(8, 2, L_EX, 8192)
    A(f"""s_lshl_b32 s61, s{sJ}, 2
    s_add_u32 s61, s61, s{sW}
    s_lshl_b32 s61, s61, 6
    v_lshl_add_u32 v{vT2}, v{vT3}, 1, s61""")
    tb = VM(f"global_load_ushort v130, v{vT2}, s[40:41]")
    A(f"""v_and_b32 v{vT0}, 1, v{vL}
    v_mul_u32_u24 v{vT0}, 896, v{vT0}
    v_lshlrev_b32 v{vT1}, 4, v{vHALF}
    v_sub_u32 v{vT0}, v{vT1}, v{vT0}
    v_add_u32 v{vT0}, {L_VEC+1792}, v{vT0}
    s_mul_i32 s61, s{sKH}, 57344
    s_lshl_b32 s62, s{sMH}, 6
    v_xor_b32 v{vT1}, s62, v{vTN0}
    v_add_u32 v{vT1}, s61, v{vT1}""")
    lg.n = lg.done = 0
    tu = []
    def ldu(s_):
        b = 8 * (s_ % 5)
        DS(f"ds_read_b128 v[{b}:{b+3}], v{vT0} offset:{32*s_}")
        DS(f"ds_read_b64_tr_b16 v[{b+4}:{b+5}], v{vT1} offset:{2048*s_}")
        tu.append(DS(f"ds_read_b64_tr_b16 v[{b+6}:{b+7}], v{vT1} offset:{2048*s_+512}"))
    for s_ in range(4): ldu(s_)
    for s_ in range(28):
        lg.wait(tu[s_])
        b = 8 * (s_ % 5)
        mfma(v(112, 16), v(b, 4), v(b + 4, 4), "0" if s_ == 0 else None)
        if s_ + 4 < 28: ldu(s_ + 4)
    vm.wait(tb)
    A(f"""v_lshlrev_b32 v130, 16, v130
    s_lshl_b32 s61, s{sW}, 10
    s_add_u32 s61, s61, {L_AUG}
    v_add_u32 v{vT2}, s61, v{vL16}
    v_cmp_eq_u32 vcc, 0, v{vHALF}
    v_add_f32 v113, v113, v130
    v_cvt_pk_bf16_f32 v133, v112, v113
    v_lshlrev_b32 v128, 16, v133
    v_and_b32 v129, 0xffff0000, v133
    v_sub_f32 v130, v112, v128
    v_sub_f32 v131, v113, v129
    v_cvt_pk_bf16_f32 v132, v128, v130
    v_cvt_pk_bf16_f32 v134, v131, v129
    v_cndmask_b32 v132, 0, v132, vcc
    v_cndmask_b32 v133, 0, v133, vcc
    v_cndmask_b32 v134, 0, v134, vcc
    v_mov_b32 v135, 0
    ds_write_b128 v{vT2}, v[132:135]""")
    w2_read(8, 2, L_EX, 8192)
    A(f"""v_min_u32 v{vT2}, 13, v{vL}
    v_lshlrev_b32 v{vT2}, 2, v{vT2}
    s_and_b32 s61, s{sTQ}, 7
    s_lshl_b32 s62, s61, 6
    s_add_u32 s62, s62, s{sCTL}
    s_add_u32 s70, s62, {C_FY}
    s_lshl_b32 s62, s61, 7
    s_add_u32 s62, s62, s{sCTL}
    s_lshl_b32 s61, s{sJ}, 2
    s_add_u32 s62, s62, s61
    s_add_u32 s72, s62, {C_FD}
    s_add_u32 s73, s72, 64
    s_mul_i32 s71, s{sTQ}, 28672
    s_mul_i32 s74, s{sTQ}, 3584
    s_add_u32 s74, s74, {STATS}
    s_mul_i32 s75, s{sTQ}, 114688
    s_lshl_b32 s61, s{sJ}, 13
    s_add_u32 s75, s75, s61
    s_add_u32 s75, s75, {HID}
    v_mul_u32_u24 v235, 1792, v{vHALF}
    v_lshl_add_u32 v235, v{vT3}, 3, v235
    v_add_u32 v234, {L_AUG}, v{vL16}
    v_add_u32 v233, 57344, v{vTP0}
    v_add_u32 v232, 57344, v{vTP1}""")
    barrier()
    stamp("pre3")
    poll(vT2, "s70")
    stamp("S3")
    ty = []
    for s_ in range(28):
        ty.append(VM(f"buffer_load_dwordx4 v[{4*s_}:{4*s_+3}], v{vL16}, {OUT}, s71 offen offset:{1024*(s_%4)} sc1"))
        if s_ % 4 == 3 and s_ < 27: A("s_add_u32 s71, s71, 4096")
        if s_ == 7:
            for i in range(7): ts = VM(f"buffer_load_dwordx2 v[{208+2*i}:{209+2*i}], v235, {WS}, s74 offen offset:{256*i} sc1")
    tw2 = w2_dma(10, 2, L_EX, 8192)
    ACC = 112; WB = 176; BA = 224; vRS = 228
    stat = f"""v_pk_add_f32 v[208:209], v[208:209], v[210:211]
    v_pk_add_f32 v[212:213], v[212:213], v[214:215]
    v_pk_add_f32 v[216:217], v[216:217], v[218:219]
    v_pk_add_f32 v[208:209], v[208:209], v[220:221]
    v_pk_add_f32 v[212:213], v[212:213], v[216:217]
    v_pk_add_f32 v[208:209], v[208:209], v[212:213]
    v_mov_b32 v210, v208
    v_mov_b32 v211, v209
    v_permlane32_swap_b32 v208, v210
    v_permlane32_swap_b32 v209, v211
    v_add_f32 v208, v208, v210
    v_add_f32 v209, v209, v211
    v_mul_f32 v208, 0xbb124925, v208
    v_mul_f32 v209, 0x3b124925, v209
    v_fma_f32 v209, -v208, v208, v209
    v_max_f32 v209, 0, v209
    v_add_f32 v209, 0x3727c5ac, v209
    v_sqrt_f32 v209, v209
    v_cvt_pk_bf16_f32 v{BA}, v208, v208
    v_rcp_f32 v{vRS}, v209
    v_cvt_pk_bf16_f32 v210, v209, v209
    v_and_b32 v211, 0xffff0000, v{BA}
    v_and_b32 v210, 0xffff0000, v210
    v_sub_f32 v211, v208, v211
    v_sub_f32 v212, v209, v210
    v_cvt_pk_bf16_f32 v{BA+1}, v211, v210
    v_cvt_pk_bf16_f32 v{BA+2}, v210, v212
    v_mov_b32 v{BA+3}, 0""".split("\n")
    hm = " sc1" if hid_slow else ""
    def epi_list(pn):
        e = []
        for t in range(2):
            c = ACC + 32 * pn + 16 * t
            for d in range(8):
                for r in (c + 2 * d, c + 2 * d + 1):
                    e += [f"v_mul_f32 v{r}, v{r}, v{vRS}", f"v_max_f32 v{r}, 0, v{r}", f"v_mul_f32 v{r}, v{r}, v{r}"]
                e.append(f"v_cvt_pk_bf16_f32 v{208+8*t+d}, v{c+2*d}, v{c+2*d+1}")
                if d % 4 == 3: e.append(("st", f"buffer_store_dwordx4 v[{205+8*t+d}:{208+8*t+d}], v{vL16}, {WS}, s75 offen offset:{2048*t+1024*(d//4)}{hm}"))
        return e
    lg.n = lg.done = 0
    tw = []
    def ld1(i):
        pn, s_ = divmod(i, 29)
        b = WB + 8 * (i % 4)
        for t in range(2):
            if s_ == 28: k = DS(f"ds_read_b128 v[{b+4*t}:{b+4*t+3}], v234 offset:{2048*pn+1024*t}")
            else:
                ad = (vTP0 - t) if pn == 0 else (233 - t)
                DS(f"ds_read_b64_tr_b16 v[{b+4*t}:{b+4*t+1}], v{ad} offset:{2048*s_}")
                k = DS(f"ds_read_b64_tr_b16 v[{b+4*t+2}:{b+4*t+3}], v{ad} offset:{2048*s_+1024}")
        tw.append(k)
    for i in range(3): ld1(i)
    side = []; last = None
    for i in range(58):
        pn, s_ = divmod(i, 29)
        if pn == 0 and s_ < 28: vm.wait(ty[s_])
        lg.wait(tw[i])
        if i == 9: side = list(stat)
        if i == 30: side = epi_list(0)
        b = WB + 8 * (i % 4)
        for t in range(2):
            mfma(v(ACC + 32 * pn + 16 * t, 16), v(b + 4 * t, 4), v(4 * s_, 4) if s_ < 28 else v(BA, 4), "0" if s_ == 0 else None)
            if t == 0 and i + 3 < 58: ld1(i + 3)
            for _ in range(2 if t == 0 else 4):
                if side:
                    e = side.pop(0)
                    if isinstance(e, tuple): last = VM(e[1])
                    else: A(e.strip())
        if i == 55:
            assert not side
            vm.wait(last); flag(72, slow=hid_slow)
    A("s_add_u32 s75, s75, 4096")
    for e in epi_list(1):
        if isinstance(e, tuple): last = VM(e[1])
        else: A(e)
    stamp("ffn1")
    w2_read(10, 2, L_EX, 8192)
    tk = w2_dma(12, 2, L_EX, 8192)
    vm.wait(last)
    flag(73, slow=hid_slow)
    if stop <= 5:
        A("L_fin:"); finish(); return wrap(A, tail), names

    ACC = 0; HB = 64; NB_ = 40
    A(f"""v_and_b32 v{vT2}, 15, v{vL}
    v_min_u32 v{vT2}, 13, v{vT2}
    v_lshlrev_b32 v{vT2}, 2, v{vT2}
    v_bfe_u32 v{vT1}, v{vL}, 4, 1
    v_lshl_add_u32 v231, v{vT1}, 7, v{vT2}
    s_and_b32 s61, s{sTO}, 6
    s_lshl_b32 s61, s61, 7
    s_add_u32 s61, s61, s{sCTL}
    s_add_u32 s70, s61, {C_FD}
    s_add_u32 s71, s70, 64
    s_and_b32 s61, s{sTO}, 0xfe
    s_mul_i32 s72, s61, 114688
    s_add_u32 s72, s72, {HID}
    v_add_u32 v230, 114688, v{vL16}
    s_lshl_b32 s61, s68, 6
    v_lshl_add_u32 v{vT0}, v{vHALF}, 3, s61""")
    for a_ in range(4): VM(f"global_load_dwordx2 v[{a_*2}:{a_*2+1}], v{vT0}, s[42:43] offset:{16*a_}")
    poll(231, "s70")
    stamp("S4a")
    for r in range(8): A(f"v_accvgpr_write_b32 a{240+r}, v{r}")
    th = {}
    def ldh(u):
        w2_src(u, 61)
        A("s_lshl_b32 s61, s61, 11\ns_add_u32 s61, s61, s72")
        for s_ in range(2):
            for mh in range(2):
                i = 4 * u + 2 * s_ + mh
                b = HB + 4 * (i % NB_)
                th[i] = VM(f"buffer_load_dwordx4 v[{b}:{b+3}], v{230 if mh else vL16}, {WS}, s61 offen offset:{1024*s_} sc1")
    for u in range(7): ldh(u)
    w2_read(12, 2, L_EX, 8192)
    def mm2(u):
        for s_ in range(2):
            for mh in range(2):
                i = 4 * u + 2 * s_ + mh
                vm.wait(th[i])
                for t in range(2):
                    mfma(v(ACC + 16 * (2 * t + mh), 16), a(16 * u + 8 * s_ + 4 * t, 4), v(HB + 4 * (i % NB_), 4), "0" if (u == 0 and s_ == 0) else None)
    for u in range(4): mm2(u)
    poll(231, "s71")
    stamp("S4b")
    for u in range(7, 14): ldh(u)
    for u in range(4, 14): mm2(u)
    stamp("ffn2")
    barrier()
    A(f"s_lshl_b32 s61, s{sW}, 12\nv_add_u32 v{vT0}, s61, v{vL16}\ns_lshl_b32 s61, s{sW}, 14\nv_add_u32 v{vT1}, s61, v{vL16}")
    for tl in range(4):
        for q in range(4): A(f"ds_write_b128 v{vT0}, v[{ACC+16*tl+4*q}:{ACC+16*tl+4*q+3}] offset:{16384*tl+1024*q}")
    lg.n = lg.done = 0
    for a_ in range(4): DS(f"ds_read_b64 v[{128+2*a_}:{129+2*a_}], v237 offset:{2688+16*a_}")
    for r in range(16): A(f"v_accvgpr_read_b32 v{144+r}, a{224+r}")
    for r in range(8): A(f"v_accvgpr_read_b32 v{136+r}, a{240+r}")
    lg.all()
    barrier()
    tk = {}
    for q in range(4):
        for sw in range(4): tk[q] = DS(f"ds_read_b128 v[{64+16*sw+4*q}:{67+16*sw+4*q}], v{vT1} offset:{4096*sw+1024*q}")
    for d in range(8):
        A(f"v_lshlrev_b32 v{160+2*d}, 16, v{128+d}\nv_and_b32 v{161+2*d}, 0xffff0000, v{128+d}")
        A(f"v_lshlrev_b32 v{176+2*d}, 16, v{136+d}\nv_and_b32 v{177+2*d}, 0xffff0000, v{136+d}")
    for q in range(4):
        lg.wait(tk[q])
        for e in range(0, 4, 2):
            r = 4 * q + e
            A(f"""v_pk_add_f32 v[{64+r}:{65+r}], v[{64+r}:{65+r}], v[{80+r}:{81+r}]
            v_pk_add_f32 v[{96+r}:{97+r}], v[{96+r}:{97+r}], v[{112+r}:{113+r}]
            v_pk_add_f32 v[{64+r}:{65+r}], v[{64+r}:{65+r}], v[{176+r}:{177+r}]
            v_pk_add_f32 v[{64+r}:{65+r}], v[{64+r}:{65+r}], v[{96+r}:{97+r}]
            v_pk_fma_f32 v[{144+r}:{145+r}], v[{64+r}:{65+r}], v[{160+r}:{161+r}], v[{144+r}:{145+r}]
            v_cvt_pk_bf16_f32 v{192+r//2}, v{144+r}, v{145+r}""")
        if q % 2 == 1:
            b = 192 + 2 * (q - 1)
            A(f"v_permlane32_swap_b32 v{b}, v{b+2}\nv_permlane32_swap_b32 v{b+1}, v{b+3}")
            VM(f"buffer_store_dwordx4 v[{b}:{b+3}], v236, {OUT}, s78 offen offset:{16*(q-1)}")
    stamp("done")
    A("L_fin:")
    finish()
    return wrap(A, tail), names

import struct
QSCALE = struct.unpack("<I", struct.pack("<f", 28 ** -0.5 * 1.4426950408889634))[0]

HEAD = open("adaLN_cond__sliding_block__dense_activation_squared_relu__prompt.s.ref").read().split("; Override launch")[0]
def wrap(A, tail):
    for t in tail: A(t)
    A("L_exit:\ns_endpgm")
    A.raw("CODE_END:")
    txt = HEAD + f"; @launch grid=(256,1,1) block=(256,1,1) lds={LDS_BYTES}\n.amdgcn_target \"amdgcn-amd-amdhsa--gfx950\"\n.text\n" + kernel_header(NAME) + A.text()
    txt += ".section .rodata,\"a\"\n.p2align 6\n" + kernel_desc(NAME, 512, 102, 256)
    return txt

if __name__ == "__main__":
    out = sys.argv[1]
    kw = eval("dict(" + (sys.argv[2] if len(sys.argv) > 2 else "") + ")")
    t, names = gen(**kw)
    open(out, "w").write(t)
    json.dump(names, open(out + ".json", "w"))
    print(out, len(t.split("\n")), "lines", names)
```

```python
import sys, json
from asmgen import *
NAME = "adaLN_cond__sliding_block__dense_activation_squared_relu__prompt_kernel"

CTL = 0x2000
C_S0A, C_FH, C_FQ, C_FO, C_FY, C_FD = 0, 0x1000, 0x1200, 0x1400, 0x1600, 0x1800
S0B = 0x12000
NU = 0x1A000
FKV = 0x1C000
STATS = 0x28000
QO = 0x100000
KG = 0x300000
VG = 0x500000
HID = 0x700000
STAMP = 0xF00000
WSZ = 0x1000000
OOB = 0x40000000
L_WKV, L_B, L_WQ = 0, 57344, 116736
L_K, L_V = 102400, 126976
L_W1 = 0
L_EX = 114688
L_MISC = 151552
L_X = L_MISC
L_AUG = L_MISC
L_VEC = L_MISC + 4096
L_SILU = L_MISC + 7168
L_MODV = L_MISC + 8192
LDS_BYTES = 163840
sW, sG, sM, sTAG, sUNI = 3, 4, 5, 6, 7
X, WQKV, WO, W1, W2, WMOD, OUT, WS = [f"s[{i}:{i+3}]" for i in (8, 12, 16, 20, 24, 28, 32, 36)]
sXCC, sCTL = 46, 47
sJ, sTQ, sHEAD, sRB, sTA, sNB, sTO, sKH, sMH, sRBQ, sPROD, sCH = 48, 49, 50, 51, 52, 53, 54, 55, 56, 57, 58, 59
ST0 = 80
vL, vL16, vTN0, vTN1, vTP0, vTP1 = 255, 254, 253, 252, 251, 250
vPAN = 246
vTAG, vHALF, vJUNK = 245, 244, 243
vT0, vT1, vT2, vT3 = 239, 240, 241, 242
NEG = 0xF149F2CA
SPIN_A, SPIN = 48, 60000

class Ctr:
    def __init__(s, A, name, mx): s.A, s.name, s.mx, s.n, s.done = A, name, mx, 0, 0
    def issue(s): s.n += 1; return s.n
    def wait(s, tok):
        if tok <= s.done: return
        k = s.n - tok
        if k > s.mx: k = s.mx
        s.A.e(f"s_waitcnt {s.name}({k})"); s.done = s.n - k
    def all(s): s.A.e(f"s_waitcnt {s.name}(0)"); s.done = s.n
    def drained(s): s.done = s.n

def gen(stop=99, stamps=False, hid_slow=False, force_slow=False, probe=None):
    A = Asm()
    vm = Ctr(A, "vmcnt", 63); lg = Ctr(A, "lgkmcnt", 15)
    tail = []
    nst = [0]; uid = [0]; names = []
    def U(p): uid[0] += 1; return f"L_{p}{uid[0]}"
    def stamp(nm):
        if not stamps: return
        i = nst[0]; nst[0] += 1; names.append(nm)
        r = ST0 + i // 2
        A("s_memrealtime s[100:101]\ns_waitcnt lgkmcnt(0)")
        A(f"s_pack_ll_b32_b16 s{r}, s{r}, s100" if i & 1 else f"s_pack_lh_b32_b16 s{r}, s100, s{r}"); lg.drained()
    def VM(t): A(t); return vm.issue()
    def DS(t): A(t); return lg.issue()
    def barrier(): A("s_barrier")
    def mfma(d, a_, b_, c=None): A(f"v_mfma_f32_32x32x16_bf16 {d}, {a_}, {b_}, {c if c is not None else d}")

    def flag(soff, slow=False):
        A("s_mov_b64 exec, 1")
        if slow:
            VM(f"buffer_store_dword v{vTAG}, off, {WS}, s{soff} sc1")
        else:
            ls, lj = U("fs"), U("fj")
            A(f"s_cmp_eq_u32 s{sUNI}, 0\ns_cbranch_scc1 {ls}")
            VM(f"buffer_store_dword v{vTAG}, off, {WS}, s{soff}")
            A(f"{lj}:")
            tail.append(f"{ls}:\nbuffer_wbl2 sc1\ns_waitcnt vmcnt(0)\nbuffer_store_dword v{vTAG}, off, {WS}, s{soff} sc1\ns_branch {lj}")
        A("s_mov_b64 exec, -1")
    def poll(vaddr, soff):
        lp, ld, li, lj = U("p"), U("pd"), U("pi"), U("pj")
        A(f"s_mov_b32 s60, 0\n{lp}:\nbuffer_load_dword v{vJUNK}, v{vaddr}, {WS}, {soff} offen sc1\ns_add_u32 s60, s60, 1\ns_waitcnt vmcnt(0)")
        A(f"v_cmp_ne_u32 vcc, s{sTAG}, v{vJUNK}\ns_cbranch_vccz {ld}\ns_cmp_lt_u32 s60, {SPIN}\ns_cbranch_scc1 {lp}\n{ld}:")
        vm.drained()
        A(f"s_cmp_eq_u32 s{sUNI}, 0\ns_cbranch_scc1 {li}\n{lj}:")
        tail.append(f"{li}:\nbuffer_inv sc1\ns_waitcnt vmcnt(0)\ns_branch {lj}")
    def panel_addr(dst, rs, swz="std"):
        A(f"v_lshrrev_b32 v{vT0}, 3, v{vL}\nv_and_b32 v{vT1}, 7, v{vL}")
        if swz == "std": A(f"v_bfe_u32 v{vT2}, v{vL}, 4, 1\nv_lshlrev_b32 v{vT2}, 2, v{vT2}")
        else: A(f"v_bfe_u32 v{vT2}, v{vL}, 4, 2\nv_lshlrev_b32 v{vT2}, 1, v{vT2}")
        A(f"v_xor_b32 v{vT1}, v{vT1}, v{vT2}\nv_mul_u32_u24 v{vT0}, {rs}, v{vT0}\nv_lshl_add_u32 v{dst}, v{vT1}, 4, v{vT0}")
        for i in range(1, 4): A(f"v_add_u32 v{dst+i}, {i*(8*rs-1024)}, v{dst}")
    def panel_dma(srd, vp, rs, n, ssrc, slds):
        tok = None
        for i in range(0, n, 4):
            A(f"s_mov_b32 m0, s{slds}")
            for q in range(min(4, n - i)):
                tok = VM(f"buffer_load_dwordx4 v{vp+q}, {srd}, s{ssrc} offen offset:{1024*q} lds")
            if i + 4 < n: A(f"s_add_u32 s{ssrc}, s{ssrc}, {32*rs}\ns_add_u32 s{slds}, s{slds}, 4096")
        return tok
    def finish():
        if stamps:
            A(f"v_mov_b32 v{vT0}, 0")
            for i in range(20): A(f"v_writelane_b32 v{vT0}, s{ST0+i}, {i}")
            A(f"v_writelane_b32 v{vT0}, s{sUNI}, 31")
            A(f"s_lshl_b32 s60, s2, 2\ns_add_u32 s60, s60, s{sW}\ns_lshl_b32 s60, s60, 7\ns_add_u32 s60, s60, {STAMP}\nv_lshlrev_b32 v{vT1}, 2, v{vL}")
            A(f"s_mov_b32 exec_hi, 0\nbuffer_store_dword v{vT0}, v{vT1}, {WS}, s60 offen")
        A("s_endpgm")

    A("s_cmp_ge_u32 s2, 256\ns_cbranch_scc1 L_exit")
    if stamps:
        for i in range(20): A(f"s_mov_b32 s{ST0+i}, 0")
    stamp("entry")
    for r, off in ((28, 72), (44, 64), (8, 0), (36, 96), (12, 8), (32, 80), (16, 16), (20, 32), (40, 40), (24, 48), (42, 56)):
        A(f"s_load_dwordx2 s[{r}:{r+1}], s[0:1], {off}")
    A(f"v_lshrrev_b32 v1, 6, v0\nv_and_b32 v{vL}, 63, v0\ns_and_b32 s{sG}, s2, 7\nv_readfirstlane_b32 s{sW}, v1\ns_lshr_b32 s{sM}, s2, 3")
    for r, n in ((8, 1835008), (12, 1204224), (16, 401408), (20, 1605632), (24, 1605632), (28, 2408448), (32, 1835008), (36, WSZ)):
        A(f"s_mov_b32 s{r+2}, {n}\ns_mov_b32 s{r+3}, 0x20000")
    A(f"v_lshlrev_b32 v{vL16}, 4, v{vL}\nv_lshrrev_b32 v{vHALF}, 5, v{vL}")
    A(f"s_getreg_b32 s{sXCC}, hwreg(HW_REG_XCC_ID, 0, 4)\ns_lshl_b32 s{sCTL}, s{sG}, 13\ns_add_u32 s{sCTL}, s{sCTL}, {CTL}\ns_mov_b32 s{sUNI}, 0")
    A(f"""s_cmp_ge_u32 s{sM}, 14
    s_cselect_b32 s60, 1, 0
    s_cselect_b32 s61, 14, 0
    s_sub_u32 s{sJ}, s{sM}, s61
    s_lshl_b32 s{sRBQ}, s{sG}, 1
    s_add_u32 s{sRBQ}, s{sRBQ}, s60
    s_lshl_b32 s{sTQ}, s{sRBQ}, 2
    s_add_u32 s{sTQ}, s{sTQ}, s{sW}
    s_and_b32 s{sHEAD}, s{sM}, 15
    s_lshr_b32 s60, s{sM}, 4
    s_lshl_b32 s{sRB}, s{sG}, 1
    s_add_u32 s{sRB}, s{sRB}, s60
    s_lshl_b32 s{sTA}, s{sRB}, 2
    s_add_u32 s{sTA}, s{sTA}, s{sW}
    s_mul_i32 s60, s{sM}, 37
    s_lshr_b32 s60, s60, 8
    s_mul_i32 s61, s60, 7
    s_sub_u32 s{sNB}, s{sM}, s61
    s_and_b32 s{sMH}, s{sW}, 1
    s_lshr_b32 s{sKH}, s{sW}, 1
    s_lshl_b32 s{sTO}, s{sG}, 2
    s_add_u32 s{sTO}, s{sTO}, s60
    s_lshl_b32 s{sTO}, s{sTO}, 1
    s_add_u32 s{sTO}, s{sTO}, s{sMH}""")
    A(f"""s_mov_b32 s{sPROD}, 0
    s_mov_b32 s{sCH}, s{sM}
    s_cmp_lt_u32 s{sM}, 14
    s_cbranch_scc0 L_r1
    s_mov_b32 s{sPROD}, 1
    L_r1:
    s_cmp_lt_u32 s{sM}, 28
    s_cbranch_scc1 L_r2
    s_cmp_eq_u32 s{sG}, 7
    s_cbranch_scc1 L_r2
    s_mov_b32 s{sPROD}, 2
    s_lshl_b32 s{sCH}, s{sG}, 2
    s_add_u32 s{sCH}, s{sCH}, s{sM}
    s_sub_u32 s{sCH}, s{sCH}, 14
    L_r2:""")
    panel_addr(4, 5376, "mod")
    A(f"v_min_u32 v2, 223, v0\nv_lshlrev_b32 v3, 2, v2")
    A("s_waitcnt lgkmcnt(0)")
    stamp("karg")
    A(f"s_load_dword s{sTAG}, s[36:37], 0")
    A(f"s_cmp_eq_u32 s{sPROD}, 0\ns_cbranch_scc1 L_noP1")
    A("global_load_dword v8, v3, s[44:45]")
    A(f"s_lshl_b32 s61, s{sCH}, 7\ns_mul_i32 s62, s{sW}, {112*5376}\ns_add_u32 s61, s61, s62\ns_mul_i32 s62, s{sW}, 14336\ns_add_u32 s62, s62, {L_B}")
    panel_dma(WMOD, 4, 5376, 14, 61, 62)
    A("L_noP1:")
    vm.n = 0; vm.done = 0
    A(f"""v_lshrrev_b32 v9, 3, v{vL}
    v_mul_u32_u24 v9, 896, v9
    v_and_b32 v10, 7, v{vL}
    v_lshl_add_u32 v9, v10, 4, v9
    s_lshl_b32 s61, s{sG}, 5
    s_add_u32 s61, s61, s{sM}
    s_mul_i32 s61, s61, 7168
    s_lshl_b32 s62, s{sW}, 7
    s_add_u32 s61, s61, s62
    s_lshl_b32 s62, s{sW}, 10
    s_add_u32 s62, s62, {L_X}
    s_mov_b32 m0, s62
    s_add_u32 s63, s61, 512
    s_cmp_eq_u32 s{sW}, 3
    s_cselect_b32 s63, s61, s63
    s_cselect_b32 s64, 0, 4096
    s_add_u32 s64, s64, s62""")
    VM(f"buffer_load_dwordx4 v9, {X}, s61 offen lds")
    A("s_mov_b32 m0, s64")
    tx = VM(f"buffer_load_dwordx4 v9, {X}, s63 offen lds")
    A(f"""v_lshlrev_b32 v10, 7, v{vL}
    s_cmp_eq_u32 s{sW}, 1
    s_cbranch_scc1 L_t1
    s_cmp_eq_u32 s{sW}, 2
    s_cbranch_scc1 L_t2
    s_cmp_eq_u32 s{sW}, 3
    s_cbranch_scc1 L_t3
    v_min_u32 v10, 55, v{vL}
    v_lshlrev_b32 v10, 9, v10
    s_lshr_b32 s61, s{sM}, 2
    s_lshl_b32 s62, s{sG}, 3
    s_add_u32 s61, s61, s62
    s_mul_i32 s61, s61, 28672
    s_and_b32 s62, s{sM}, 3
    s_lshl_b32 s62, s62, 7
    s_add_u32 s61, s61, s62
    buffer_load_dword v{vJUNK}, v10, {OUT}, s61 offen sc1
    s_branch L_t4
    L_t1:
    s_lshl_b32 s61, s{sG}, 5
    s_add_u32 s61, s61, s{sM}
    s_lshl_b32 s61, s61, 13
    s_add_u32 s61, s61, {QO}
    buffer_load_dword v{vJUNK}, v10, {WS}, s61 offen sc1
    s_branch L_t4
    L_t2:
    buffer_load_dword v{vJUNK}, v10, {WS}, s{sCTL} offen sc1
    s_branch L_t4
    L_t3:
    s_getpc_b64 s[62:63]
    s_and_b32 s61, s{sM}, 3
    s_lshl_b32 s61, s61, 13
    v_add_u32 v10, s61, v10
    v_min_u32 v10, CODE_END-L_t3-8, v10
    v_and_b32 v10, -4, v10
    global_load_dword v{vJUNK}, v10, s[62:63]
    L_t4:""")
    vm.issue()
    panel_addr(12, 2688)
    A(f"""v_lshrrev_b32 v16, 2, v{vL}
    v_mul_u32_u24 v16, 2688, v16
    v_and_b32 v17, 3, v{vL}
    v_lshl_add_u32 v16, v17, 4, v16""")
    for i in range(1, 4): A(f"v_add_u32 v{16+i}, {i*(16*2688-1024)}, v16")
    A(f"s_cmp_ge_u32 s{sM}, 28\ns_cselect_b32 s65, {OOB}, 0")
    A(f"s_lshl_b32 s61, s{sJ}, 7\ns_add_u32 s61, s61, 896\ns_mul_i32 s62, s{sW}, {112*2688}\ns_add_u32 s61, s61, s62\ns_add_u32 s61, s61, s65\ns_mul_i32 s63, s{sW}, 14336")
    panel_dma(WQKV, 12, 2688, 14, 61, 63)
    A(f"s_lshl_b32 s61, s{sJ}, 6\ns_add_u32 s61, s61, s62\ns_add_u32 s61, s61, s65\ns_mul_i32 s63, s{sW}, 7168\ns_add_u32 s63, s63, {L_WQ}")
    panel_dma(WQKV, 16, 2 * 2688, 7, 61, 63)
    panel_addr(vPAN, 896)
    A(f"""v_and_b32 v{vT0}, 3, v{vL}
    v_lshlrev_b32 v{vT0}, 3, v{vT0}
    v_bfe_u32 v{vT1}, v{vL}, 4, 1
    v_lshl_add_u32 v{vT0}, v{vT1}, 5, v{vT0}
    v_bfe_u32 v{vT1}, v{vL}, 2, 2
    v_lshl_add_u32 v20, v{vT1}, 6, v{vT0}
    v_lshl_add_u32 v20, v{vHALF}, 9, v20
    v_lshl_add_u32 v{vT0}, v{vT1}, 7, v{vT0}
    v_bfe_u32 v{vT1}, v{vL}, 3, 1
    v_lshl_add_u32 v{vT0}, v{vT1}, 6, v{vT0}
    v_lshl_add_u32 v{vTN0}, v{vHALF}, 10, v{vT0}
    v_lshl_add_u32 v{vTP0}, v{vHALF}, 9, v{vT0}
    v_xor_b32 v{vTN1}, 64, v{vTN0}
    v_xor_b32 v{vTP1}, 64, v{vTP0}
    v_add_u32 v238, {L_WQ}, v20""")
    vWQ = 238
    stamp("issued")
    A(f"s_cmp_eq_u32 s{sPROD}, 0\ns_cbranch_scc1 L_noP2")
    A(f"s_waitcnt vmcnt({14 + vm.n})")
    A(f"""v_lshlrev_b32 v20, 16, v8
    v_and_b32 v21, 0xffff0000, v8
    v_mul_f32 v22, 0xbfb8aa3b, v20
    v_mul_f32 v23, 0xbfb8aa3b, v21
    v_exp_f32 v22, v22
    v_exp_f32 v23, v23
    v_bfe_u32 v24, v2, 1, 2
    v_add_f32 v22, 1.0, v22
    v_add_f32 v23, 1.0, v23
    v_rcp_f32 v22, v22
    v_rcp_f32 v23, v23
    v_and_b32 v25, 0xf1, v2
    v_lshl_add_u32 v25, v24, 2, v25
    v_bfe_u32 v24, v2, 3, 1
    v_lshl_add_u32 v25, v24, 1, v25
    v_mul_f32 v20, v20, v22
    v_mul_f32 v21, v21, v23
    v_lshlrev_b32 v25, 2, v25
    v_add_u32 v25, {L_SILU}, v25
    v_cvt_pk_bf16_f32 v20, v20, v21
    ds_write_b32 v25, v20
    L_noP2:""")
    A("s_waitcnt lgkmcnt(0)")
    A(f"s_mul_i32 s{sTAG}, s{sTAG}, 0x9E3779B1\ns_add_u32 s{sTAG}, s{sTAG}, 0x7F4A7C15\nv_mov_b32 v{vTAG}, s{sTAG}")
    vm.wait(tx)
    barrier()
    stamp("B1")
    A(f"""s_lshl_b32 s66, s{sG}, 12
    s_add_u32 s66, s66, {S0B}
    s_cmp_lg_u32 s{sW}, 0
    s_cbranch_scc1 L_nox
    v_mov_b32 v20, s{sXCC}
    v_mov_b32 v21, s{sTAG}
    s_lshl_b32 s61, s{sM}, 3
    s_add_u32 s62, s61, s{sCTL}
    s_add_u32 s61, s61, s66
    s_mov_b64 exec, 1
    buffer_store_dwordx2 v[20:21], off, {WS}, s62 offset:3584
    buffer_store_dwordx2 v[20:21], off, {WS}, s61 offset:3584 sc1
    s_mov_b64 exec, -1
    L_nox:""")
    A(f"s_cmp_eq_u32 s{sPROD}, 0\ns_cbranch_scc1 L_noP3")
    A(f"""v_lshrrev_b32 v20, 2, v{vL}
    v_bfe_u32 v21, v{vL}, 3, 2
    v_xor_b32 v21, s{sW}, v21
    v_lshlrev_b32 v21, 5, v21
    v_lshl_add_u32 v20, v20, 7, v21
    v_and_b32 v21, 3, v{vL}
    v_lshl_add_u32 v20, v21, 3, v20
    v_add_u32 v20, {L_B}, v20
    v_lshrrev_b32 v21, 4, v{vL}
    v_lshlrev_b32 v21, 4, v21
    v_add_u32 v21, {L_SILU}, v21""")
    lg.n = lg.done = 0
    toks = []
    def gemv_ld(s_):
        b = 32 + 8 * s_
        DS(f"ds_read_b128 v[{b}:{b+3}], v21 offset:{64*s_}")
        DS(f"ds_read_b64_tr_b16 v[{b+4}:{b+5}], v20 offset:{4096*s_}")
        toks.append(DS(f"ds_read_b64_tr_b16 v[{b+6}:{b+7}], v20 offset:{4096*s_+2048}"))
    for s_ in range(4): gemv_ld(s_)
    for s_ in range(14):
        lg.wait(toks[s_])
        b = 32 + 8 * s_
        A(f"v_mfma_f32_16x16x32_bf16 v[24:27], v[{b}:{b+3}], v[{b+4}:{b+7}], {'0' if s_ == 0 else 'v[24:27]'}")
        if s_ + 4 < 14: gemv_ld(s_ + 4)
    A(f"""s_sub_u32 s61, s{sCH}, 7
    s_cmp_lt_u32 s61, 7
    s_cselect_b32 s62, 1.0, 0
    s_sub_u32 s61, s{sCH}, 28
    s_cmp_lt_u32 s61, 7
    s_cselect_b32 s62, 1.0, s62
    s_lshl_b32 s61, s{sCH}, 8
    s_lshl_b32 s63, s{sW}, 6
    s_add_u32 s67, s61, s63
    v_lshlrev_b32 v22, 2, v{vL}
    v_cvt_pk_bf16_f32 v24, v24, v24
    v_and_b32 v24, 0xffff0000, v24
    v_add_f32 v24, s62, v24
    v_mov_b32 v29, s{sTAG}
    v_mov_b32_dpp v25, v24 quad_perm:[1,0,3,2] row_mask:0xf bank_mask:0xf
    v_cvt_pk_bf16_f32 v28, v24, v25
    s_cmp_eq_u32 s{sPROD}, 2
    s_cbranch_scc1 L_noP3
    s_add_u32 s61, s67, s{sCTL}
    s_add_u32 s62, s67, s66
    s_mov_b64 exec, 0x5555
    buffer_store_dwordx2 v[28:29], v22, {WS}, s61 offen
    buffer_store_dwordx2 v[28:29], v22, {WS}, s62 offen sc1
    s_mov_b64 exec, -1
    L_noP3:""")
    stamp("gemv")
    lg.n = lg.done = 0
    A(f"""v_and_b32 v30, 7, v{vL}
    v_lshrrev_b32 v31, 3, v{vL}
    v_lshlrev_b32 v32, 7, v30
    v_lshl_add_u32 v32, v31, 4, v32
    v_add_u32 v32, {L_X}, v32
    s_lshl_b32 s61, s{sW}, 10
    v_add_u32 v33, s61, v32""")
    tk = [DS(f"ds_read_b128 v[{40+4*i}:{43+4*i}], v32 offset:{1024*i}") for i in range(7)]
    DS("ds_read_b128 v[68:71], v33"); town = DS("ds_read_b128 v[72:75], v33 offset:4096")
    for i in range(7):
        lg.wait(tk[i])
        for d in range(4):
            A(f"v_lshlrev_b32 v{80+8*i+2*d}, 16, v{40+4*i+d}\nv_and_b32 v{81+8*i+2*d}, 0xffff0000, v{40+4*i+d}")
    A("v_pk_add_f32 v[34:35], v[80:81], v[82:83]")
    for i in range(2, 28): A(f"v_pk_add_f32 v[34:35], v[34:35], v[{80+2*i}:{81+2*i}]")
    def red8(r):
        A(f"""v_add_f32_dpp v{r}, v{r}, v{r} row_ror:8 row_mask:0xf bank_mask:0xf
        v_mov_b32 v{vT0}, v{r}
        v_permlane16_swap_b32 v{r}, v{vT0}
        v_add_f32 v{r}, v{r}, v{vT0}
        v_mov_b32 v{vT0}, v{r}
        v_permlane32_swap_b32 v{r}, v{vT0}
        v_add_f32 v{r}, v{r}, v{vT0}""")
    A("v_add_f32 v34, v34, v35"); red8(34)
    A("v_mul_f32 v34, 0xbb124925, v34\nv_mov_b32 v35, v34")
    for i in range(28): A(f"v_pk_add_f32 v[{80+2*i}:{81+2*i}], v[{80+2*i}:{81+2*i}], v[34:35]")
    A("v_pk_mul_f32 v[36:37], v[80:81], v[80:81]")
    for i in range(1, 28): A(f"v_pk_fma_f32 v[36:37], v[{80+2*i}:{81+2*i}], v[{80+2*i}:{81+2*i}], v[36:37]")
    A("v_add_f32 v36, v36, v37"); red8(36)
    A("v_mov_b32 v37, 0x3727c5ac\nv_fmac_f32 v37, 0x3b124925, v36\nv_rsq_f32 v36, v37")
    lg.wait(town)
    for d in range(8):
        A(f"v_lshlrev_b32 v{40+2*d}, 16, v{68+d}\nv_and_b32 v{41+2*d}, 0xffff0000, v{68+d}")
    A("v_mov_b32 v37, v36")
    for d in range(8): A(f"v_pk_add_f32 v[{40+2*d}:{41+2*d}], v[{40+2*d}:{41+2*d}], v[34:35]")
    for d in range(8): A(f"v_pk_mul_f32 v[{40+2*d}:{41+2*d}], v[{40+2*d}:{41+2*d}], v[36:37]")
    A(f"""v_min_u32 v56, 239, v0
    v_lshlrev_b32 v56, 4, v56
    v_add_u32 v57, {L_MODV}, v56
    s_lshl_b32 s61, s{sW}, 8
    s_add_u32 s61, s61, {L_MODV}
    v_lshl_add_u32 v58, v31, 5, s61
    v_and_b32 v59, 31, v{vL}
    v_lshlrev_b32 v59, 3, v59
    v_add_u32 v59, {L_MODV+3584}, v59
    v_lshlrev_b32 v60, 9, v31
    v_lshl_add_u32 v60, v30, 4, v60
    s_lshr_b32 s61, s{sM}, 2
    s_lshl_b32 s62, s{sG}, 3
    s_add_u32 s61, s61, s62
    s_mul_i32 s68, s61, 28672
    s_and_b32 s62, s{sM}, 3
    s_lshl_b32 s62, s62, 7
    s_add_u32 s68, s68, s62
    s_lshl_b32 s62, s{sW}, 12
    s_add_u32 s68, s68, s62
    s_add_u32 s69, s68, 16384
    s_cmp_eq_u32 s{sW}, 3
    s_cselect_b32 s69, {OOB}, s69
    s_lshl_b32 s70, s{sM}, 2
    s_add_u32 s70, s70, s{sW}
    s_lshl_b32 s70, s70, 2
    s_add_u32 s70, s70, s{sCTL}
    s_add_u32 s70, s70, {C_FH}""")
    stamp("stats")
    A(f"""s_mov_b32 s60, 0
    s_mov_b32 s61, s{sCTL}
    L_s0:
    buffer_load_dwordx4 v[64:67], v56, {WS}, s61 offen sc1
    s_add_u32 s60, s60, 1
    s_cmp_eq_u32 s60, {SPIN_A}
    s_cselect_b32 s61, s66, s61
    s_waitcnt vmcnt(0)
    v_cmp_ne_u32 vcc, s{sTAG}, v65
    v_cmp_ne_u32 s[62:63], s{sTAG}, v67
    s_or_b64 vcc, vcc, s[62:63]
    s_cbranch_vccz L_s0d
    s_cmp_lt_u32 s60, {SPIN}
    s_cbranch_scc1 L_s0
    L_s0d:
    v_and_b32 v65, 0xffff0000, v64
    v_lshlrev_b32 v64, 16, v64
    v_and_b32 v67, 0xffff0000, v66
    v_lshlrev_b32 v66, 16, v66
    ds_write_b128 v57, v[64:67]
    s_waitcnt lgkmcnt(0)""")
    vm.drained()
    barrier()
    stamp("S0")
    lg.n = lg.done = 0
    t0 = []
    for p in range(2):
        for q in range(2):
            DS(f"ds_read_b128 v[{64+16*p+4*q}:{67+16*p+4*q}], v58 offset:{1792+1024*p+16*q}")
            t0.append(DS(f"ds_read_b128 v[{72+16*p+4*q}:{75+16*p+4*q}], v58 offset:{1024*p+16*q}"))
    txc = DS("ds_read_b32 v61, v59")
    for p in range(2):
        for q in range(2):
            lg.wait(t0[2 * p + q])
            for e in range(0, 4, 2):
                r = 40 + 8 * p + 4 * q + e
                A(f"v_pk_fma_f32 v[{r}:{r+1}], v[{r}:{r+1}], v[{64+16*p+4*q+e}:{65+16*p+4*q+e}], v[{72+16*p+4*q+e}:{73+16*p+4*q+e}]")
        for d in range(4): A(f"v_cvt_pk_bf16_f32 v{96+4*p+d}, v{40+8*p+2*d}, v{41+8*p+2*d}")
        th = VM(f"buffer_store_dwordx4 v[{96+4*p}:{99+4*p}], v60, {OUT}, s{68+p} offen")
    lg.wait(txc)
    A(f"s_lshl_b32 s61, s{sXCC}, 16\nv_cmp_ne_u32 vcc, s61, v61\ns_cmp_eq_u64 vcc, 0\ns_cselect_b32 s{sUNI}, {0 if force_slow else 1}, 0")
    vm.wait(th)
    flag(70)
    stamp("hpub")
    A(f"""s_cmp_lg_u32 s{sPROD}, 2
    s_cbranch_scc1 L_noP4
    s_add_u32 s61, s67, {NU - 14*256}
    s_mov_b64 exec, 0x5555
    buffer_store_dwordx2 v[28:29], v22, {WS}, s61 offen sc1
    s_mov_b64 exec, -1
    L_noP4:""")
    if stop <= 1:
        finish(); return wrap(A, tail), names

    A(f"s_cmp_ge_u32 s{sM}, 28\ns_cbranch_scc1 L_att")
    A(f"s_lshl_b32 s61, s{sNB}, 7\ns_mul_i32 s62, s{sW}, {112*896}\ns_add_u32 s61, s61, s62\ns_mul_i32 s63, s{sW}, 14336\ns_add_u32 s63, s63, {L_B}")
    panel_dma(WO, vPAN, 896, 15, 61, 63)
    A(f"""v_and_b32 v{vT3}, 31, v{vL}
    s_mul_i32 s71, s{sTQ}, 1792
    s_lshl_b32 s72, s{sTQ}, 15
    s_add_u32 s72, s72, {QO}
    s_lshl_b32 s61, s{sJ}, 3""")
    for a_ in range(4):
        A(f"""v_add3_u32 v{vT0}, v{vHALF}, s61, {2*a_}
        v_mul_u32_u24 v{vT1}, 147, v{vT0}
        v_lshrrev_b32 v{vT1}, 10, v{vT1}
        v_add_u32 v{vT0}, v{vT0}, v{vT1}
        v_lshlrev_b32 v{vT0}, 8, v{vT0}
        v_lshl_add_u32 v{232+a_}, v{vT3}, 3, v{vT0}""")
    A(f"s_cmp_ge_u32 s{sJ}, 7\ns_cbranch_scc1 L_va\ns_lshl_b32 s61, s{sJ}, 4\ns_add_u32 s71, s71, {KG}")
    for i in range(8):
        A(f"""v_add3_u32 v{vT0}, v{vHALF}, s61, {2*i}
        v_mul_u32_u24 v{vT1}, 147, v{vT0}
        v_lshrrev_b32 v{vT1}, 10, v{vT1}
        v_mul_u32_u24 v{vT1}, {64*1792-7*256}, v{vT1}
        v_lshl_add_u32 v{vT0}, v{vT0}, 8, v{vT1}
        v_lshl_add_u32 v{224+i}, v{vT3}, 3, v{vT0}""")
    A(f"s_branch L_vb\nL_va:\ns_sub_u32 s61, s{sJ}, 7\ns_lshl_b32 s61, s61, 6\ns_add_u32 s71, s71, {VG}")
    for t in range(2):
        A(f"""v_add3_u32 v{vT0}, v{vT3}, s61, {32*t}
        v_lshrrev_b32 v{vT1}, 2, v{vT0}
        v_mul_u32_u24 v{vT1}, 147, v{vT1}
        v_lshrrev_b32 v{vT1}, 10, v{vT1}
        v_mul_u32_u24 v{vT1}, {64*1792-448}, v{vT1}
        v_lshl_add_u32 v{vT0}, v{vT0}, 4, v{vT1}
        v_mul_u32_u24 v{vT1}, 448, v{vHALF}
        v_add_u32 v{224+t}, v{vT0}, v{vT1}""")
    for i in range(2, 8): A(f"v_mov_b32 v{224+i}, 0")
    A("L_vb:")
    A(f"""v_and_b32 v{vT0}, 15, v{vL}
    v_lshlrev_b32 v{vT0}, 2, v{vT0}
    s_and_b32 s61, s{sTQ}, 7
    s_lshl_b32 s61, s61, 6
    s_add_u32 s61, s61, s{sCTL}
    s_add_u32 s61, s61, {C_FH}
    s_mul_i32 s62, s{sTQ}, 28672
    s_mul_i32 s73, s{sRBQ}, 14
    s_add_u32 s73, s73, s{sJ}
    s_lshl_b32 s73, s73, 7
    s_add_u32 s73, s73, {FKV}
    s_and_b32 s74, s{sRBQ}, 1
    s_lshl_b32 s74, s74, 4
    s_add_u32 s74, s74, s{sJ}
    s_lshl_b32 s74, s74, 2
    s_add_u32 s74, s74, s{sCTL}
    s_add_u32 s74, s74, {C_FQ}""")
    poll(vT0, "s61")
    stamp("S0b")
    th = []
    for s_ in range(28):
        th.append(VM(f"buffer_load_dwordx4 v[{4*s_}:{4*s_+3}], v{vL16}, {OUT}, s62 offen offset:{1024*(s_%4)} sc1"))
        if s_ % 4 == 3 and s_ < 27: A("s_add_u32 s62, s62, 4096")
    barrier()
    ACC = 112; WB = 160
    def kv_pass(vtype):
        lg.n = lg.done = 0
        sv = (vm.n, vm.done)
        tw = []
        def ld(s_):
            b = WB + 8 * (s_ % 4)
            for t in range(2):
                DS(f"ds_read_b64_tr_b16 v[{b+4*t}:{b+4*t+1}], v{vTN0-t} offset:{L_WKV+2048*s_}")
                k = DS(f"ds_read_b64_tr_b16 v[{b+4*t+2}:{b+4*t+3}], v{vTN0-t} offset:{L_WKV+2048*s_+512}")
            tw.append(k)
        for s_ in range(3): ld(s_)
        for s_ in range(28):
            vm.wait(th[s_]); lg.wait(tw[s_])
            b = WB + 8 * (s_ % 4)
            for t in range(2):
                wf, hf = v(b + 4 * t, 4), v(4 * s_, 4)
                c = "0" if s_ == 0 else None
                if vtype: mfma(v(ACC + 16 * t, 16), hf, wf, c)
                else: mfma(v(ACC + 16 * t, 16), wf, hf, c)
            if s_ + 3 < 28: ld(s_ + 3)
        tq = []
        def ldq(s_):
            b = WB + 4 * (s_ % 8)
            DS(f"ds_read_b64_tr_b16 v[{b}:{b+1}], v{vWQ} offset:{1024*s_}")
            tq.append(DS(f"ds_read_b64_tr_b16 v[{b+2}:{b+3}], v{vWQ} offset:{1024*s_+256}"))
        epi = []
        for t in range(2):
            P = 192 + 8 * t
            for d in range(8):
                epi.append(f"v_cvt_pk_bf16_f32 v{P+d}, v{ACC+16*t+2*d}, v{ACC+16*t+2*d+1}")
                if vtype and d % 4 == 3: epi.append(("st", f"buffer_store_dwordx4 v[{P+d-3}:{P+d}], v{224+t}, {WS}, s71 offen offset:{896*(d//4)} sc1"))
                if not vtype and d % 2 == 1: epi.append(("st", f"buffer_store_dwordx2 v[{P+d-1}:{P+d}], v{224+4*t+d//2}, {WS}, s71 offen sc1"))
        for s_ in range(4): ldq(s_)
        last = None
        for s_ in range(28):
            lg.wait(tq[s_])
            b = WB + 4 * (s_ % 8)
            mfma(v(ACC + 32, 16), v(b, 4), v(4 * s_, 4), "0" if s_ == 0 else None)
            if s_ + 4 < 28: ldq(s_ + 4)
            if s_ >= 1:
                for _ in range(3):
                    if epi:
                        e = epi.pop(0)
                        if isinstance(e, tuple): last = VM(e[1])
                        else: A(e)
        A(f"s_mov_b32 s61, {QSCALE:#x}")
        for d in range(8):
            A(f"v_mul_f32 v{ACC+32+2*d}, s61, v{ACC+32+2*d}\nv_mul_f32 v{ACC+33+2*d}, s61, v{ACC+33+2*d}\nv_cvt_pk_bf16_f32 v{208+d}, v{ACC+32+2*d}, v{ACC+33+2*d}")
            if d % 2 == 1: VM(f"buffer_store_dwordx2 v[{207+d}:{208+d}], v{232+d//2}, {WS}, s72 offen")
        vm.wait(last)
        vm.n, vm.done = sv
    A(f"s_cmp_ge_u32 s{sJ}, 7\ns_cbranch_scc1 L_kvV")
    kv_pass(False)
    A("s_branch L_kvE\nL_kvV:")
    kv_pass(True)
    A("L_kvE:")
    barrier()
    A(f"s_cmp_lg_u32 s{sW}, 0\ns_cbranch_scc1 L_nf1")
    flag(73, slow=True)
    A("L_nf1:")
    stamp("qkv")
    A(f"s_cmp_eq_u32 s{sW}, 0\ns_cbranch_scc1 L_w0a\ns_waitcnt vmcnt(0)\nL_w0a:\ns_waitcnt vmcnt(1)")
    barrier()
    A(f"s_cmp_lg_u32 s{sW}, 1\ns_cbranch_scc1 L_nf2")
    flag(74)
    A("L_nf2:")
    vm.n = vm.done = 0
    A(f"s_mul_i32 s61, s{sKH}, {224*128}\ns_add_u32 s61, s61, {L_B}\nv_add_u32 v{vT0}, s61, v{vTP0}\nv_add_u32 v{vT1}, s61, v{vTP1}")
    for hh in range(8):
        for s_ in range(2):
            for t in range(2):
                r = 128 + 16 * hh + 8 * s_ + 4 * t
                for p in range(2): A(f"ds_read_b64_tr_b16 a[{r+2*p}:{r+2*p+1}], v{vT0+t} offset:{3584*hh+2048*s_+1024*p}")
    A("s_waitcnt lgkmcnt(0)")
    barrier()
    def w2_src(u, sreg):
        q = u % 7
        A(f"s_mul_i32 s{sreg}, s{sW}, 7\ns_add_u32 s{sreg}, s{sreg}, {q}\ns_and_b32 s79, s{sreg}, 0xfe\ns_add_u32 s{sreg}, s{sreg}, s79")
        if u >= 7: A(f"s_add_u32 s{sreg}, s{sreg}, 2")
    def w2_dma(u0, n, lbase, per_wave):
        A(f"s_mul_i32 s63, s{sW}, {per_wave}\ns_add_u32 s63, s63, {lbase}\ns_lshl_b32 s64, s{sNB}, 7")
        tok = None
        for i in range(n):
            w2_src(u0 + i, 61)
            A(f"s_mul_i32 s61, s61, {32*896}\ns_add_u32 s61, s61, s64")
            tok = panel_dma(W2, vPAN, 896, 4, 61, 63)
            A("s_add_u32 s63, s63, 4096")
        return tok
    def w2_read(u0, n, lbase, per_wave):
        A(f"s_mul_i32 s61, s{sW}, {per_wave}\ns_add_u32 s61, s61, {lbase}\nv_add_u32 v{vT0}, s61, v{vTP0}\nv_add_u32 v{vT1}, s61, v{vTP1}")
        for i in range(n):
            for s_ in range(2):
                for t in range(2):
                    r = 16 * (u0 + i) + 8 * s_ + 4 * t
                    for p in range(2): DS(f"ds_read_b64_tr_b16 a[{r+2*p}:{r+2*p+1}], v{vT0+t} offset:{4096*i+2048*s_+1024*p}")
        lg.all()
    tk = w2_dma(0, 6, 0, 24576)
    A(f"""s_lshl_b32 s61, s{sW}, 6
    v_add_u32 v4, s61, v{vL}
    v_add_u32 v5, 256, v4
    v_min_u32 v5, 447, v5
    v_lshlrev_b32 v6, 3, v4
    v_lshlrev_b32 v7, 3, v5
    v_add_u32 v6, {L_VEC}, v6
    v_add_u32 v7, {L_VEC}, v7
    v_lshlrev_b32 v4, 4, v4
    v_lshlrev_b32 v5, 4, v5
    s_mov_b32 s60, 0
    s_mov_b32 s61, {NU}
    L_nu:
    buffer_load_dwordx4 v[8:11], v4, {WS}, s61 offen sc1
    buffer_load_dwordx4 v[12:15], v5, {WS}, s61 offen sc1
    s_add_u32 s60, s60, 1
    s_waitcnt vmcnt(0)
    v_cmp_ne_u32 vcc, s{sTAG}, v9
    v_cmp_ne_u32 s[62:63], s{sTAG}, v11
    v_cmp_ne_u32 s[64:65], s{sTAG}, v13
    v_cmp_ne_u32 s[76:77], s{sTAG}, v15
    s_or_b64 vcc, vcc, s[62:63]
    s_or_b64 s[64:65], s[64:65], s[76:77]
    s_or_b64 vcc, vcc, s[64:65]
    s_cbranch_vccz L_nud
    s_cmp_lt_u32 s60, {SPIN}
    s_cbranch_scc1 L_nu
    L_nud:
    v_mov_b32 v9, v10
    v_mov_b32 v13, v14
    ds_write_b64 v6, v[8:9]
    ds_write_b64 v7, v[12:13]""")
    vm.drained()
    w2_read(0, 6, 0, 24576)
    A("L_att:")
    if stop <= 2:
        finish(); return wrap(A, tail), names

    S = 0; QF = 144; KB = 152; OA = 184; VB = 200
    vKA, vVA, vVS = 216, 217, 218
    vm.n = vm.done = 0; lg.n = lg.done = 0
    A(f"""s_mul_i32 s61, s{sW}, 6144
    s_add_u32 s61, s61, {L_V}
    v_add_u32 v{vT0}, s61, v{vL16}
    v_mov_b32 v{KB}, 0x3f803f80
    v_mov_b32 v{KB+1}, 0x3f803f80
    v_mov_b32 v{KB+2}, 0x3f803f80
    v_mov_b32 v{KB+3}, 0x3f803f80
    s_mov_b32 exec_lo, 0xf0000000
    s_mov_b32 exec_hi, 0xf0000000""")
    for i in range(6): A(f"ds_write_b128 v{vT0}, v[{KB}:{KB+3}] offset:{1024*i}")
    A("s_mov_b64 exec, -1")
    A(f"v_and_b32 v{vT3}, 31, v{vL}\nv_lshlrev_b32 v{vT0}, 2, v{vHALF}\nv_sub_u32 v{vT0}, v{vT3}, v{vT0}\nv_mov_b32 v{vT1}, {NEG:#x}")
    A(f"s_cmp_ge_u32 s{sTA}, 8\ns_cselect_b32 s61, 0, {NEG:#x}\nv_mov_b32 v{vT2}, s61")
    for r in range(16):
        i0 = 8 * (r >> 2) + (r & 3)
        A(f"v_cmp_gt_i32 vcc, {i0}, v{vT0}\nv_cndmask_b32 v{S+r}, v{vT1}, v{vT2}, vcc\nv_cndmask_b32 v{S+128+r}, 0, v{vT1}, vcc")
    for n in range(1, 8):
        A(f"s_cmp_ge_u32 s{sTA}, {8-n}\ns_cselect_b32 s61, 0, {NEG:#x}")
        for r in range(16): A(f"v_mov_b32 v{S+16*n+r}, s61")
    A(f"""s_mul_i32 s61, s{sW}, 1792
    s_add_u32 s61, s61, {L_K}
    v_lshlrev_b32 v{vT0}, 9, v{vHALF}
    v_lshl_add_u32 v219, v{vT3}, 3, v{vT0}
    v_add_u32 v{vKA}, s61, v219
    v_lshlrev_b32 v220, 30, v{vHALF}
    v_add_u32 v220, v220, v219
    s_lshl_b32 s61, s{sW}, 11
    s_add_u32 s61, s61, {L_V}
    v_add_u32 v{vVA}, s61, v{vL16}
    v_mul_u32_u24 v{vVS}, 448, v{vHALF}
    v_lshl_add_u32 v{vVS}, v{vT3}, 4, v{vVS}
    s_lshl_b32 s75, s{sTA}, 4
    s_add_u32 s75, s75, s{sHEAD}
    s_lshl_b32 s75, s75, 11
    s_add_u32 s75, s75, {QO}
    s_lshl_b32 s61, s{sHEAD}, 4
    s_add_u32 s61, s61, s{sRB}
    s_mul_i32 s61, s61, 7168
    s_sub_u32 s61, s61, 14336
    s_min_u32 s78, s{sRB}, 2
    s_sub_u32 s78, 2, s78""")
    A(f"s_mul_i32 s76, s{sW}, 6\ns_mul_i32 s77, s78, 7")
    for q in range(6):
        A(f"""s_add_u32 s79, s76, {q}
        s_lshl_b32 s{62+q}, s79, 10
        s_add_u32 s{62+q}, s{62+q}, s61
        s_add_u32 s{62+q}, s{62+q}, {KG - 1024*(q%4)}
        s_cmp_lt_u32 s79, s77
        s_cselect_b32 s{62+q}, {OOB}, s{62+q}
        s_cmp_ge_u32 s79, 21
        s_cselect_b32 s{62+q}, {OOB}, s{62+q}""")
    A(f"s_mul_i32 s76, s{sW}, 3\ns_lshl_b32 s77, s78, 2")
    for q in range(3):
        A(f"""s_add_u32 s79, s76, {q}
        s_mul_i32 s{68+q}, s79, 1792
        s_add_u32 s{68+q}, s{68+q}, s61
        s_add_u32 s{68+q}, s{68+q}, {VG}
        s_cmp_lt_u32 s79, s77
        s_cselect_b32 s{68+q}, {OOB}, s{68+q}""")
    A(f"""v_min_u32 v{vT0}, 13, v{vL}
    v_and_b32 v{vT1}, 1, v{vT0}
    v_mul_u32_u24 v{vT1}, 27, v{vT1}
    s_mul_i32 s76, s{sHEAD}, 28
    v_add_u32 v{vT1}, s76, v{vT1}
    v_lshrrev_b32 v{vT2}, 6, v{vT1}
    v_bfe_u32 v221, v{vT0}, 1, 1
    v_mad_u32_u24 v{vT2}, v221, 7, v{vT2}
    v_lshrrev_b32 v221, 2, v{vT0}
    v_max_u32 v221, s78, v221
    s_sub_u32 s76, s{sRB}, 2
    v_add_u32 v221, s76, v221
    v_mad_u32_u24 v{vT2}, v221, 14, v{vT2}
    v_lshlrev_b32 v{vT2}, 7, v{vT2}
    v_add_u32 v{vT2}, {FKV}, v{vT2}
    v_lshrrev_b32 v{vT1}, 5, v{vT1}
    s_and_b32 s76, s{sRB}, 1
    s_lshl_b32 s76, s76, 6
    s_add_u32 s76, s76, s{sCTL}
    s_add_u32 s76, s76, {C_FQ}
    v_lshl_add_u32 v{vT1}, v{vT1}, 2, s76
    v_cmp_gt_u32 vcc, 12, v{vT0}
    v_cndmask_b32 v{vT0}, v{vT1}, v{vT2}, vcc
    s_mul_i32 s76, s{sW}, 6144
    s_add_u32 s77, s76, {L_V}
    s_add_u32 s76, s76, {L_K}""")
    stamp("pre1")
    poll(vT0, "0")
    stamp("S1")
    A("s_mov_b32 m0, s76")
    for q in range(6):
        if q == 4: A("s_add_u32 s76, s76, 4096\ns_mov_b32 m0, s76")
        VM(f"buffer_load_dwordx4 v{vL16}, {WS}, s{62+q} offen offset:{1024*(q%4)} sc1 lds")
    for i in range(4):
        tq = VM(f"buffer_load_dwordx2 v[{QF+2*i}:{QF+2*i+1}], v{220 if i == 3 else 219}, {WS}, s75 offen offset:{1024*(i>>1)+256*(i&1)} sc1")
    A("s_mov_b32 exec_lo, 0x0fffffff\ns_mov_b32 exec_hi, 0x0fffffff")
    for q in range(3):
        A("s_mov_b32 m0, s77\ns_add_u32 s77, s77, 2048")
        VM(f"buffer_load_dwordx4 v{vVS}, {WS}, s{68+q} offen sc1 lds")
        A(f"s_sub_u32 s{68+q}, s{68+q}, 128")
        tv = VM(f"buffer_load_dwordx4 v{vVS}, {WS}, s{68+q} offen offset:1024 sc1 lds")
    A("s_mov_b64 exec, -1")
    vm.wait(tq)
    A("s_waitcnt lgkmcnt(0)")
    barrier()
    stamp("Kin")
    panel_addr(222, 3584)
    A(f"s_cmp_ge_u32 s{sM}, 28\ns_cselect_b32 s65, {OOB}, 0")
    A(f"""s_lshl_b32 s61, s{sJ}, 8
    s_add_u32 s61, s61, s65
    s_mul_i32 s62, s{sW}, {112*3584}
    s_add_u32 s62, s62, s61
    s_mul_i32 s63, s{sW}, 14336""")
    panel_dma(W1, 222, 3584, 14, 62, 63)
    A(f"""s_mul_i32 s62, s{sW}, {88*3584}
    s_add_u32 s62, s62, s61
    s_add_u32 s62, s62, 128
    s_mul_i32 s63, s{sW}, 11264
    s_add_u32 s63, s63, 57344""")
    panel_dma(W1, 222, 3584, 11, 62, 63)
    tk = []
    def ldk(n):
        b = KB + 8 * (n % 4)
        for i in range(4): k = DS(f"ds_read_b64 v[{b+2*i}:{b+2*i+1}], v{vKA} offset:{1792*n+1024*(i>>1)+256*(i&1)}")
        tk.append(k)
    for n in range(3): ldk(n)
    vMX = 226
    def mx(n):
        for r in range(0, 16, 2):
            if n == 0 and r == 0: A(f"v_max_f32 v{vMX}, v{S}, v{S+1}")
            else: A(f"v_max3_f32 v{vMX}, v{vMX}, v{S+16*n+r}, v{S+16*n+r+1}")
    for n in range(9):
        lg.wait(tk[n])
        b = KB + 8 * (n % 4)
        mfma(v(S + 16 * n, 16), v(b, 4), v(QF, 4))
        if n + 3 < 9: ldk(n + 3)
        mfma(v(S + 16 * n, 16), v(b + 4, 4), v(QF + 4, 4))
        if n >= 2: mx(n - 2)
    vm.wait(tv)
    barrier()
    tvv = []
    def ldv(n):
        b = VB + 8 * (n % 2)
        DS(f"ds_read_b128 v[{b}:{b+3}], v{vVA} offset:{2048*n}")
        tvv.append(DS(f"ds_read_b128 v[{b+4}:{b+7}], v{vVA} offset:{2048*n+1024}"))
    ldv(0); ldv(1)
    mx(7); mx(8)
    A(f"v_mov_b32 v{vT0}, v{vMX}\nv_permlane32_swap_b32 v{vMX}, v{vT0}\nv_max_f32 v{vMX}, v{vMX}, v{vT0}")
    stamp("qk")
    def soft(n, s_):
        for e in range(0, 8, 2):
            r = S + 16 * n + 8 * s_ + e
            A(f"v_sub_f32 v{r}, v{r}, v{vMX}\nv_sub_f32 v{r+1}, v{r+1}, v{vMX}\nv_exp_f32 v{r}, v{r}\nv_exp_f32 v{r+1}, v{r+1}")
        for e in range(0, 8, 2):
            r = S + 16 * n + 8 * s_ + e
            A(f"v_cvt_pk_bf16_f32 v{S+16*n+8*s_+e//2}, v{r}, v{r+1}")
    soft(0, 0)
    for i in range(18):
        n, s_ = i >> 1, i & 1
        if i + 1 < 18: soft((i + 1) >> 1, (i + 1) & 1)
        if s_ == 0: lg.wait(tvv[n])
        mfma(v(OA, 16), v(VB + 8 * (n % 2) + 4 * s_, 4), v(S + 16 * n + 8 * s_, 4), "0" if i == 0 else None)
        if s_ == 1 and n + 2 < 9: ldv(n + 2)
    A(f"""s_and_b32 s61, s{sTA}, 7
    s_lshl_b32 s61, s61, 4
    s_add_u32 s61, s61, s{sHEAD}
    s_lshl_b32 s61, s61, 2
    s_add_u32 s61, s61, s{sCTL}
    s_add_u32 s66, s61, {C_FO}
    v_cmp_eq_u32 vcc, 0, v{vHALF}
    v_mov_b32 v{vT0}, v{OA+12}
    v_mov_b32 v{vT1}, v{OA+12}
    v_permlane32_swap_b32 v{vT0}, v{vT1}
    v_rcp_f32 v{vT1}, v{vT1}""")
    for d in range(8):
        A(f"v_mul_f32 v{OA+2*d}, v{OA+2*d}, v{vT1}\nv_mul_f32 v{OA+2*d+1}, v{OA+2*d+1}, v{vT1}\nv_cvt_pk_bf16_f32 v{KB+d}, v{OA+2*d}, v{OA+2*d+1}")
        if d >= 6: A(f"v_cndmask_b32 v{KB+d}, 0, v{KB+d}, vcc")
        if d % 4 == 3: to = VM(f"buffer_store_dwordx4 v[{KB+d-3}:{KB+d}], v{vL16}, {WS}, s75 offen offset:{1024*(d//4)}")
    stamp("att")
    vm.wait(to)
    flag(66)
    A(f"s_cmp_ge_u32 s{sM}, 28\ns_cbranch_scc1 L_fin")
    if stop <= 3:
        A("L_fin:"); finish(); return wrap(A, tail), names

    barrier()
    A(f"""s_cmp_lg_u32 s2, 7
    s_cbranch_scc1 L_noep
    s_cmp_lg_u32 s{sW}, 0
    s_cbranch_scc1 L_noep
    s_mov_b64 exec, 1
    buffer_store_dword v{vTAG}, off, {WS}, 0 sc1
    s_mov_b64 exec, -1
    L_noep:""")
    A(f"""s_lshl_b32 s61, s{sJ}, 8
    s_mul_i32 s62, s{sW}, {24*3584}
    s_add_u32 s62, s62, s61
    s_add_u32 s62, s62, {128+352*3584}
    s_mul_i32 s63, s{sW}, 3072
    s_add_u32 s63, s63, {57344+45056}""")
    panel_dma(W1, 222, 3584, 3, 62, 63)
    w2_dma(6, 2, L_EX, 8192)
    XR = 128; GA = 136; A2 = 152
    A(f"""v_and_b32 v{vT3}, 31, v{vL}
    v_mul_u32_u24 v236, 896, v{vT3}
    v_lshl_add_u32 v236, v{vHALF}, 4, v236
    s_mul_i32 s67, s{sTO}, 28672
    s_lshl_b32 s61, s{sNB}, 1
    s_add_u32 s68, s61, s{sKH}
    s_lshl_b32 s61, s68, 6
    s_add_u32 s78, s67, s61
    s_add_u32 s62, s61, {L_VEC}
    v_lshl_add_u32 v237, v{vHALF}, 3, s62""")
    VM(f"buffer_load_dwordx4 v[{XR}:{XR+3}], v236, {X}, s78 offen")
    VM(f"buffer_load_dwordx4 v[{XR+4}:{XR+7}], v236, {X}, s78 offen offset:32")
    lg.n = lg.done = 0
    for a_ in range(4):
        DS(f"ds_read_b64 v[{168+2*a_}:{169+2*a_}], v237 offset:{16*a_}")
        DS(f"ds_read_b64 v[{176+2*a_}:{177+2*a_}], v237 offset:{1792+16*a_}")
    lg.all()
    for d in range(8):
        A(f"v_lshlrev_b32 v{GA+2*d}, 16, v{168+d}\nv_and_b32 v{GA+2*d+1}, 0xffff0000, v{168+d}")
        A(f"v_lshlrev_b32 v{A2+2*d}, 16, v{176+d}\nv_and_b32 v{A2+2*d+1}, 0xffff0000, v{176+d}")
    A(f"""v_and_b32 v{vT2}, 7, v{vL}
    v_lshlrev_b32 v{vT2}, 2, v{vT2}
    s_and_b32 s61, s{sTO}, 7
    s_lshl_b32 s61, s61, 6
    s_add_u32 s61, s61, s{sCTL}
    s_lshl_b32 s62, s68, 2
    s_add_u32 s69, s61, s62
    s_add_u32 s69, s69, {C_FY}
    s_lshl_b32 s62, s{sKH}, 5
    s_add_u32 s61, s61, s62
    s_add_u32 s70, s61, {C_FO}
    s_lshl_b32 s62, s{sTO}, 1
    s_add_u32 s62, s62, s{sKH}
    s_lshl_b32 s62, s62, 14
    s_add_u32 s71, s62, {QO}""")
    stamp("pre2")
    poll(vT2, "s70")
    stamp("S2")
    to = []
    for i in range(16):
        to.append(VM(f"buffer_load_dwordx4 v[{4*i}:{4*i+3}], v{vL16}, {WS}, s71 offen offset:{1024*(i%4)} sc1"))
        if i % 4 == 3 and i < 15: A("s_add_u32 s71, s71, 4096")
    w2_read(6, 2, L_EX, 8192)
    A(f"v_permlane32_swap_b32 v{XR}, v{XR+2}\nv_permlane32_swap_b32 v{XR+1}, v{XR+3}\nv_permlane32_swap_b32 v{XR+4}, v{XR+6}\nv_permlane32_swap_b32 v{XR+5}, v{XR+7}")
    X1 = 168
    for d in range(8): A(f"v_lshlrev_b32 v{X1+2*d}, 16, v{XR+d}\nv_and_b32 v{X1+2*d+1}, 0xffff0000, v{XR+d}")
    A(f"""s_lshl_b32 s61, s{sW}, 13
    s_add_u32 s61, s61, {L_EX}
    v_add_u32 v{vT0}, s61, v{vL16}
    s_xor_b32 s61, s{sW}, 2
    s_lshl_b32 s61, s61, 13
    s_add_u32 s61, s61, {L_EX}
    v_add_u32 v{vT1}, s61, v{vL16}""")
    ACC = 64
    def oproj(kh):
        sv = (vm.n, vm.done)
        for i in range(16):
            vm.wait(to[i])
            for t in ((1 - kh, kh)):
                mfma(v(ACC + 16 * (t ^ kh), 16), a(128 + 8 * i + 4 * t, 4), v(4 * i, 4), "0" if i == 0 else None)
        vm.n, vm.done = sv
    A(f"s_cmp_eq_u32 s{sKH}, 1\ns_cbranch_scc1 L_op1")
    oproj(0)
    A("s_branch L_op2\nL_op1:")
    oproj(1)
    A("L_op2:")
    vm.drained()
    for q in range(4): A(f"ds_write_b128 v{vT0}, v[{ACC+16+4*q}:{ACC+19+4*q}] offset:{1024*q}")
    A("s_waitcnt lgkmcnt(0)")
    barrier()
    lg.n = lg.done = 0
    tk = [DS(f"ds_read_b128 v[{96+4*q}:{99+4*q}], v{vT1} offset:{1024*q}") for q in range(4)]
    A(f"""s_lshl_b32 s61, s68, 11
    s_add_u32 s67, s67, s61
    s_mul_i32 s62, s{sTO}, 3584
    s_lshl_b32 s61, s68, 8
    s_add_u32 s62, s62, s61
    s_add_u32 s62, s62, {STATS}
    v_lshlrev_b32 v{vT2}, 3, v{vL}""")
    for q in range(4):
        lg.wait(tk[q])
        for e in range(4):
            r = 4 * q + e
            A(f"v_add_f32 v{ACC+r}, v{ACC+r}, v{96+r}\nv_fmac_f32 v{X1+r}, v{ACC+r}, v{GA+r}\nv_mul_f32 v{ACC+r}, v{X1+r}, v{A2+r}")
        A(f"v_cvt_pk_bf16_f32 v{112+2*q}, v{ACC+4*q}, v{ACC+4*q+1}\nv_cvt_pk_bf16_f32 v{113+2*q}, v{ACC+4*q+2}, v{ACC+4*q+3}")
        if q % 2 == 1: VM(f"buffer_store_dwordx4 v[{110+2*q}:{113+2*q}], v{vL16}, {OUT}, s67 offen offset:{1024*(q//2)}")
    A(f"v_pk_add_f32 v[120:121], v[{X1}:{X1+1}], v[{X1+2}:{X1+3}]\nv_pk_mul_f32 v[122:123], v[{X1}:{X1+1}], v[{X1}:{X1+1}]")
    for d in range(1, 8):
        if d >= 2: A(f"v_pk_add_f32 v[120:121], v[120:121], v[{X1+2*d}:{X1+2*d+1}]")
        A(f"v_pk_fma_f32 v[122:123], v[{X1+2*d}:{X1+2*d+1}], v[{X1+2*d}:{X1+2*d+1}], v[122:123]")
    A(f"""v_add_f32 v120, v120, v121
    v_add_f32 v121, v122, v123
    v_mov_b32 v122, v120
    v_mov_b32 v123, v121
    v_permlane32_swap_b32 v120, v122
    v_permlane32_swap_b32 v121, v123
    v_add_f32 v120, v120, v122
    v_add_f32 v121, v121, v123
    s_mov_b32 exec_hi, 0""")
    ty = VM(f"buffer_store_dwordx2 v[120:121], v{vT2}, {WS}, s62 offen")
    A("s_mov_b64 exec, -1")
    for r in range(16): A(f"v_accvgpr_write_b32 a{224+r}, v{X1+r}")
    stamp("oproj")
    vm.wait(ty)
    flag(69)
    if stop <= 4:
        A("L_fin:"); finish(); return wrap(A, tail), names

    barrier()
    w2_dma(8, 2, L_EX, 8192)
    A(f"""s_lshl_b32 s61, s{sJ}, 2
    s_add_u32 s61, s61, s{sW}
    s_lshl_b32 s61, s61, 6
    v_lshl_add_u32 v{vT2}, v{vT3}, 1, s61""")
    tb = VM(f"global_load_ushort v130, v{vT2}, s[40:41]")
    A(f"""v_and_b32 v{vT0}, 1, v{vL}
    v_mul_u32_u24 v{vT0}, 896, v{vT0}
    v_lshlrev_b32 v{vT1}, 4, v{vHALF}
    v_sub_u32 v{vT0}, v{vT1}, v{vT0}
    v_add_u32 v{vT0}, {L_VEC+1792}, v{vT0}
    s_mul_i32 s61, s{sKH}, 57344
    s_lshl_b32 s62, s{sMH}, 6
    v_xor_b32 v{vT1}, s62, v{vTN0}
    v_add_u32 v{vT1}, s61, v{vT1}""")
    lg.n = lg.done = 0
    tu = []
    def ldu(s_):
        b = 8 * (s_ % 5)
        DS(f"ds_read_b128 v[{b}:{b+3}], v{vT0} offset:{32*s_}")
        DS(f"ds_read_b64_tr_b16 v[{b+4}:{b+5}], v{vT1} offset:{2048*s_}")
        tu.append(DS(f"ds_read_b64_tr_b16 v[{b+6}:{b+7}], v{vT1} offset:{2048*s_+512}"))
    for s_ in range(4): ldu(s_)
    for s_ in range(28):
        lg.wait(tu[s_])
        b = 8 * (s_ % 5)
        mfma(v(112, 16), v(b, 4), v(b + 4, 4), "0" if s_ == 0 else None)
        if s_ + 4 < 28: ldu(s_ + 4)
    vm.wait(tb)
    A(f"""v_lshlrev_b32 v130, 16, v130
    s_lshl_b32 s61, s{sW}, 10
    s_add_u32 s61, s61, {L_AUG}
    v_add_u32 v{vT2}, s61, v{vL16}
    v_cmp_eq_u32 vcc, 0, v{vHALF}
    v_add_f32 v113, v113, v130
    v_cvt_pk_bf16_f32 v133, v112, v113
    v_lshlrev_b32 v128, 16, v133
    v_and_b32 v129, 0xffff0000, v133
    v_sub_f32 v130, v112, v128
    v_sub_f32 v131, v113, v129
    v_cvt_pk_bf16_f32 v132, v128, v130
    v_cvt_pk_bf16_f32 v134, v131, v129
    v_cndmask_b32 v132, 0, v132, vcc
    v_cndmask_b32 v133, 0, v133, vcc
    v_cndmask_b32 v134, 0, v134, vcc
    v_mov_b32 v135, 0
    ds_write_b128 v{vT2}, v[132:135]""")
    w2_read(8, 2, L_EX, 8192)
    A(f"""v_min_u32 v{vT2}, 13, v{vL}
    v_lshlrev_b32 v{vT2}, 2, v{vT2}
    s_and_b32 s61, s{sTQ}, 7
    s_lshl_b32 s62, s61, 6
    s_add_u32 s62, s62, s{sCTL}
    s_add_u32 s70, s62, {C_FY}
    s_lshl_b32 s62, s61, 7
    s_add_u32 s62, s62, s{sCTL}
    s_lshl_b32 s61, s{sJ}, 2
    s_add_u32 s62, s62, s61
    s_add_u32 s72, s62, {C_FD}
    s_add_u32 s73, s72, 64
    s_mul_i32 s71, s{sTQ}, 28672
    s_mul_i32 s74, s{sTQ}, 3584
    s_add_u32 s74, s74, {STATS}
    s_mul_i32 s75, s{sTQ}, 114688
    s_lshl_b32 s61, s{sJ}, 13
    s_add_u32 s75, s75, s61
    s_add_u32 s75, s75, {HID}
    v_mul_u32_u24 v235, 1792, v{vHALF}
    v_lshl_add_u32 v235, v{vT3}, 3, v235
    v_add_u32 v234, {L_AUG}, v{vL16}
    v_add_u32 v233, 57344, v{vTP0}
    v_add_u32 v232, 57344, v{vTP1}""")
    barrier()
    stamp("pre3")
    poll(vT2, "s70")
    stamp("S3")
    ty = []
    for s_ in range(28):
        ty.append(VM(f"buffer_load_dwordx4 v[{4*s_}:{4*s_+3}], v{vL16}, {OUT}, s71 offen offset:{1024*(s_%4)} sc1"))
        if s_ % 4 == 3 and s_ < 27: A("s_add_u32 s71, s71, 4096")
        if s_ == 7:
            for i in range(7): ts = VM(f"buffer_load_dwordx2 v[{208+2*i}:{209+2*i}], v235, {WS}, s74 offen offset:{256*i} sc1")
    tw2 = w2_dma(10, 2, L_EX, 8192)
    ACC = 112; WB = 176; BA = 224; vRS = 228
    stat = f"""v_pk_add_f32 v[208:209], v[208:209], v[210:211]
    v_pk_add_f32 v[212:213], v[212:213], v[214:215]
    v_pk_add_f32 v[216:217], v[216:217], v[218:219]
    v_pk_add_f32 v[208:209], v[208:209], v[220:221]
    v_pk_add_f32 v[212:213], v[212:213], v[216:217]
    v_pk_add_f32 v[208:209], v[208:209], v[212:213]
    v_mov_b32 v210, v208
    v_mov_b32 v211, v209
    v_permlane32_swap_b32 v208, v210
    v_permlane32_swap_b32 v209, v211
    v_add_f32 v208, v208, v210
    v_add_f32 v209, v209, v211
    v_mul_f32 v208, 0xbb124925, v208
    v_mul_f32 v209, 0x3b124925, v209
    v_fma_f32 v209, -v208, v208, v209
    v_max_f32 v209, 0, v209
    v_add_f32 v209, 0x3727c5ac, v209
    v_sqrt_f32 v209, v209
    v_cvt_pk_bf16_f32 v{BA}, v208, v208
    v_rcp_f32 v{vRS}, v209
    v_cvt_pk_bf16_f32 v210, v209, v209
    v_and_b32 v211, 0xffff0000, v{BA}
    v_and_b32 v210, 0xffff0000, v210
    v_sub_f32 v211, v208, v211
    v_sub_f32 v212, v209, v210
    v_cvt_pk_bf16_f32 v{BA+1}, v211, v210
    v_cvt_pk_bf16_f32 v{BA+2}, v210, v212
    v_mov_b32 v{BA+3}, 0""".split("\n")
    hm = " sc1" if hid_slow else ""
    def epi_list(pn):
        e = []
        for t in range(2):
            c = ACC + 32 * pn + 16 * t
            for d in range(8):
                for r in (c + 2 * d, c + 2 * d + 1):
                    e += [f"v_mul_f32 v{r}, v{r}, v{vRS}", f"v_max_f32 v{r}, 0, v{r}", f"v_mul_f32 v{r}, v{r}, v{r}"]
                e.append(f"v_cvt_pk_bf16_f32 v{208+8*t+d}, v{c+2*d}, v{c+2*d+1}")
                if d % 4 == 3: e.append(("st", f"buffer_store_dwordx4 v[{205+8*t+d}:{208+8*t+d}], v{vL16}, {WS}, s75 offen offset:{2048*t+1024*(d//4)}{hm}"))
        return e
    lg.n = lg.done = 0
    tw = []
    def ld1(i):
        pn, s_ = divmod(i, 29)
        b = WB + 8 * (i % 4)
        for t in range(2):
            if s_ == 28: k = DS(f"ds_read_b128 v[{b+4*t}:{b+4*t+3}], v234 offset:{2048*pn+1024*t}")
            else:
                ad = (vTP0 - t) if pn == 0 else (233 - t)
                DS(f"ds_read_b64_tr_b16 v[{b+4*t}:{b+4*t+1}], v{ad} offset:{2048*s_}")
                k = DS(f"ds_read_b64_tr_b16 v[{b+4*t+2}:{b+4*t+3}], v{ad} offset:{2048*s_+1024}")
        tw.append(k)
    for i in range(3): ld1(i)
    side = []; last = None
    for i in range(58):
        pn, s_ = divmod(i, 29)
        if pn == 0 and s_ < 28: vm.wait(ty[s_])
        lg.wait(tw[i])
        if i == 9: side = list(stat)
        if i == 30: side = epi_list(0)
        b = WB + 8 * (i % 4)
        for t in range(2):
            mfma(v(ACC + 32 * pn + 16 * t, 16), v(b + 4 * t, 4), v(4 * s_, 4) if s_ < 28 else v(BA, 4), "0" if s_ == 0 else None)
            if t == 0 and i + 3 < 58: ld1(i + 3)
            for _ in range(2 if t == 0 else 4):
                if side:
                    e = side.pop(0)
                    if isinstance(e, tuple): last = VM(e[1])
                    else: A(e.strip())
        if i == 55:
            assert not side
            vm.wait(last); flag(72, slow=hid_slow)
    A("s_add_u32 s75, s75, 4096")
    for e in epi_list(1):
        if isinstance(e, tuple): last = VM(e[1])
        else: A(e)
    stamp("ffn1")
    w2_read(10, 2, L_EX, 8192)
    tk = w2_dma(12, 2, L_EX, 8192)
    vm.wait(last)
    flag(73, slow=hid_slow)
    if stop <= 5:
        A("L_fin:"); finish(); return wrap(A, tail), names

    ACC = 0; HB = 64; NB_ = 40
    A(f"""v_and_b32 v{vT2}, 15, v{vL}
    v_min_u32 v{vT2}, 13, v{vT2}
    v_lshlrev_b32 v{vT2}, 2, v{vT2}
    v_bfe_u32 v{vT1}, v{vL}, 4, 1
    v_lshl_add_u32 v231, v{vT1}, 7, v{vT2}
    s_and_b32 s61, s{sTO}, 6
    s_lshl_b32 s61, s61, 7
    s_add_u32 s61, s61, s{sCTL}
    s_add_u32 s70, s61, {C_FD}
    s_add_u32 s71, s70, 64
    s_and_b32 s61, s{sTO}, 0xfe
    s_mul_i32 s72, s61, 114688
    s_add_u32 s72, s72, {HID}
    v_add_u32 v230, 114688, v{vL16}
    s_lshl_b32 s61, s68, 6
    v_lshl_add_u32 v{vT0}, v{vHALF}, 3, s61""")
    for a_ in range(4): VM(f"global_load_dwordx2 v[{a_*2}:{a_*2+1}], v{vT0}, s[42:43] offset:{16*a_}")
    poll(231, "s70")
    stamp("S4a")
    for r in range(8): A(f"v_accvgpr_write_b32 a{240+r}, v{r}")
    th = {}
    def ldh(u):
        w2_src(u, 61)
        A("s_lshl_b32 s61, s61, 11\ns_add_u32 s61, s61, s72")
        for s_ in range(2):
            for mh in range(2):
                i = 4 * u + 2 * s_ + mh
                b = HB + 4 * (i % NB_)
                th[i] = VM(f"buffer_load_dwordx4 v[{b}:{b+3}], v{230 if mh else vL16}, {WS}, s61 offen offset:{1024*s_} sc1")
    for u in range(7): ldh(u)
    w2_read(12, 2, L_EX, 8192)
    def mm2(u):
        for s_ in range(2):
            for mh in range(2):
                i = 4 * u + 2 * s_ + mh
                vm.wait(th[i])
                for t in range(2):
                    mfma(v(ACC + 16 * (2 * t + mh), 16), a(16 * u + 8 * s_ + 4 * t, 4), v(HB + 4 * (i % NB_), 4), "0" if (u == 0 and s_ == 0) else None)
    for u in range(4): mm2(u)
    poll(231, "s71")
    stamp("S4b")
    for u in range(7, 14): ldh(u)
    for u in range(4, 14): mm2(u)
    stamp("ffn2")
    barrier()
    A(f"s_lshl_b32 s61, s{sW}, 12\nv_add_u32 v{vT0}, s61, v{vL16}\ns_lshl_b32 s61, s{sW}, 14\nv_add_u32 v{vT1}, s61, v{vL16}")
    for tl in range(4):
        for q in range(4): A(f"ds_write_b128 v{vT0}, v[{ACC+16*tl+4*q}:{ACC+16*tl+4*q+3}] offset:{16384*tl+1024*q}")
    lg.n = lg.done = 0
    for a_ in range(4): DS(f"ds_read_b64 v[{128+2*a_}:{129+2*a_}], v237 offset:{2688+16*a_}")
    for r in range(16): A(f"v_accvgpr_read_b32 v{144+r}, a{224+r}")
    for r in range(8): A(f"v_accvgpr_read_b32 v{136+r}, a{240+r}")
    lg.all()
    barrier()
    tk = {}
    for q in range(4):
        for sw in range(4): tk[q] = DS(f"ds_read_b128 v[{64+16*sw+4*q}:{67+16*sw+4*q}], v{vT1} offset:{4096*sw+1024*q}")
    for d in range(8):
        A(f"v_lshlrev_b32 v{160+2*d}, 16, v{128+d}\nv_and_b32 v{161+2*d}, 0xffff0000, v{128+d}")
        A(f"v_lshlrev_b32 v{176+2*d}, 16, v{136+d}\nv_and_b32 v{177+2*d}, 0xffff0000, v{136+d}")
    for q in range(4):
        lg.wait(tk[q])
        for e in range(0, 4, 2):
            r = 4 * q + e
            A(f"""v_pk_add_f32 v[{64+r}:{65+r}], v[{64+r}:{65+r}], v[{80+r}:{81+r}]
            v_pk_add_f32 v[{96+r}:{97+r}], v[{96+r}:{97+r}], v[{112+r}:{113+r}]
            v_pk_add_f32 v[{64+r}:{65+r}], v[{64+r}:{65+r}], v[{176+r}:{177+r}]
            v_pk_add_f32 v[{64+r}:{65+r}], v[{64+r}:{65+r}], v[{96+r}:{97+r}]
            v_pk_fma_f32 v[{144+r}:{145+r}], v[{64+r}:{65+r}], v[{160+r}:{161+r}], v[{144+r}:{145+r}]
            v_cvt_pk_bf16_f32 v{192+r//2}, v{144+r}, v{145+r}""")
        if q % 2 == 1:
            b = 192 + 2 * (q - 1)
            A(f"v_permlane32_swap_b32 v{b}, v{b+2}\nv_permlane32_swap_b32 v{b+1}, v{b+3}")
            VM(f"buffer_store_dwordx4 v[{b}:{b+3}], v236, {OUT}, s78 offen offset:{16*(q-1)}")
    stamp("done")
    if probe:
        A(f"s_cmp_lg_u32 s2, 0\ns_cbranch_scc1 L_fin\ns_cmp_lg_u32 s{sW}, 0\ns_cbranch_scc1 L_fin")
        A(f"s_load_dwordx2 s[62:63], s[0:1], {probe[0]}\nv_mov_b32 v1, {probe[1]}\ns_mov_b32 s61, 0\ns_mov_b64 exec, 1\ns_waitcnt lgkmcnt(0)")
        A(f"L_pr:\nglobal_load_dword v2, v1, s[62:63]\nv_add_u32 v1, {probe[2]}, v1\ns_add_u32 s61, s61, 1\ns_waitcnt vmcnt(0)\ns_cmp_lt_u32 s61, 100\ns_cbranch_scc1 L_pr\ns_mov_b64 exec, -1")
        stamp("probe")
    A("L_fin:")
    finish()
    return wrap(A, tail), names

import struct
QSCALE = struct.unpack("<I", struct.pack("<f", 28 ** -0.5 * 1.4426950408889634))[0]

HEAD = open("adaLN_cond__sliding_block__dense_activation_squared_relu__prompt.s.ref").read().split("; Override launch")[0]
def wrap(A, tail):
    for t in tail: A(t)
    A("L_exit:\ns_endpgm")
    A.raw("CODE_END:")
    txt = HEAD + f"; @launch grid=(256,1,1) block=(256,1,1) lds={LDS_BYTES}\n.amdgcn_target \"amdgcn-amd-amdhsa--gfx950\"\n.text\n" + kernel_header(NAME) + A.text()
    txt += ".section .rodata,\"a\"\n.p2align 6\n" + kernel_desc(NAME, 512, 102, 256)
    return txt

if __name__ == "__main__":
    out = sys.argv[1]
    kw = eval("dict(" + (sys.argv[2] if len(sys.argv) > 2 else "") + ")")
    t, names = gen(**kw)
    open(out, "w").write(t)
    json.dump(names, open(out + ".json", "w"))
    print(out, len(t.split("\n")), "lines", names)
```

```python
import sys, json, struct
from asmgen import *
NAME = "adaLN_cond__sliding_block__dense_activation_squared_relu__prompt_kernel"
QSCALE = struct.unpack("<I", struct.pack("<f", 28 ** -0.5 * 1.4426950408889634))[0]

CTL = 0x4000
C_FH, C_FQ, C_FO, C_FY, C_FD = 0, 0x200, 0x400, 0x600, 0x800
S0U = 0x10000
XCCG = 0x14000
AUG = 0x1C000
STATS = 0x28000
NU = 0x70000
FKV = 0x72000
RS2 = 0x80000
QO = 0x100000
KG = 0x300000
VG = 0x500000
HID = 0x700000
STAMP = 0xF00000
WSZ = 0x1000000
OOB = 0x40000000
L_WKV, L_B, L_WQ = 0, 57344, 122880
L_K, L_V = 102400, 126976
L_WO = 0; L_SA = 58368
L_P0 = 58368; L_P1 = 0
L_EX = 115712
L_MISC = 151552
L_X = L_MISC; L_VEC = L_MISC; L_SILU = L_MISC + 7168; L_MODV = L_MISC + 8192
LDS_BYTES = 163840
sW, sG, sM, sTAG, sUNI = 3, 4, 5, 6, 7
X, WQKV, WO, W1, W2, WMOD, OUT, WS = [f"s[{i}:{i+3}]" for i in (8, 12, 16, 20, 24, 28, 32, 36)]
sXCC, sCTL = 46, 47
sJ, sTQ, sHEAD, sRB, sTA, sNB, sTO, sKH, sMH, sRBQ, sHI, sCOL = 48, 49, 50, 51, 52, 53, 54, 55, 56, 57, 58, 59
sCNT = 60
sSRC, sLDS = 67, 68
sFT = 70
sROW = 77; sEX = 78; sDL = 94; sDH = 95; sPSW = 96
vL, vL16, vTN0, vTN1, vTP0, vTP1 = 255, 254, 253, 252, 251, 250
vPAN = 246
vTAG, vHALF, vL31 = 245, 244, 243
vT0, vT1, vT2, vT3 = 239, 240, 241, 242
vJUNK, vST, vROW, vVEC = 238, 237, 236, 235
NEG = 0xF149F2CA
SPIN_A, SPIN = 48, 60000

class Ctr:
    def __init__(s, A, name, mx): s.A, s.name, s.mx, s.n, s.done = A, name, mx, 0, 0
    def issue(s): s.n += 1; return s.n
    def wait(s, tok):
        if tok <= s.done: return
        k = min(s.n - tok, s.mx)
        s.A.e(f"s_waitcnt {s.name}({k})"); s.done = s.n - k
    def all(s): s.A.e(f"s_waitcnt {s.name}(0)"); s.done = s.n
    def drained(s): s.done = s.n

def gen(stop=99, stamps=False, force_slow=False, n1=0, rot=True, PRO=10, LATE=8, LATW=10, only=None, dbg=(), hmod=' sc1', touch='B0', wq='h', n3=8, pollfirst=False, LFLAG=12):
    A = Asm()
    vm = Ctr(A, "vmcnt", 63); lg = Ctr(A, "lgkmcnt", 15)
    tail = []; nst = [0]; uid = [0]; names = []
    def U(p): uid[0] += 1; return f"L_{p}{uid[0]}"
    def stamp(nm):
        if not stamps or (only and nm not in only): return
        if nm in names: i = names.index(nm)
        else: i = len(names); names.append(nm)
        A(f"{'s_memtime' if stamps == 2 else 's_memrealtime'} s[100:101]\ns_waitcnt lgkmcnt(0)\nv_writelane_b32 v{vST}, s100, {i}"); lg.drained()
    def VM(t): A(t); return vm.issue()
    def DS(t): A(t); return lg.issue()
    def barrier(): A("s_barrier")
    def mfma(d, a_, b_, c=None): A(f"v_mfma_f32_32x32x16_bf16 {d}, {a_}, {b_}, {c if c is not None else d}")
    def run(q, n):
        for _ in range(n):
            if not q: return
            e = q.pop(0)
            if callable(e): e()
            else: A(e)
    def lines(t): return [x.strip() for x in t.strip().split("\n") if x.strip()]
    class Tok:
        t = None
    def jVM(text, tok=None, pre=None):
        def f():
            if pre: A(pre)
            k = VM(text)
            if tok is not None: tok.t = k
        return f
    def jDS(text, tok=None):
        def f():
            k = DS(text)
            if tok is not None: tok.t = k
        return f

    def flag(soff, slow=False):
        A("s_mov_b64 exec, 1")
        if slow: VM(f"buffer_store_dword v{vTAG}, off, {WS}, s{soff} sc1")
        else:
            ls, lj = U("fs"), U("fj")
            A(f"s_cmp_eq_u32 s{sUNI}, 0\ns_cbranch_scc1 {ls}")
            VM(f"buffer_store_dword v{vTAG}, off, {WS}, s{soff}")
            A(f"{lj}:")
            tail.append(f"{ls}:\nbuffer_wbl2 sc1\ns_waitcnt vmcnt(0)\nbuffer_store_dword v{vTAG}, off, {WS}, s{soff} sc1\ns_branch {lj}")
        A("s_mov_b64 exec, -1")
    def poll(vaddr, soff):
        lp, ld, li, lj = U("p"), U("pd"), U("pi"), U("pj")
        A(f"s_mov_b32 s{sCNT}, 0\n{lp}:\nbuffer_load_dword v{vJUNK}, v{vaddr}, {WS}, {soff} offen sc1\ns_add_u32 s{sCNT}, s{sCNT}, 1\ns_waitcnt vmcnt(0)")
        A(f"v_cmp_ne_u32 vcc, s{sTAG}, v{vJUNK}\ns_cbranch_vccz {ld}\ns_cmp_lt_u32 s{sCNT}, {SPIN}\ns_cbranch_scc1 {lp}\n{ld}:")
        vm.drained()
        A(f"s_cmp_eq_u32 s{sUNI}, 0\ns_cbranch_scc1 {li}\n{lj}:")
        tail.append(f"{li}:\nbuffer_inv sc1\ns_waitcnt vmcnt(0)\ns_branch {lj}")
    def panel_addr(dst, rs, swz="std"):
        t = f"v_lshrrev_b32 v{vT0}, 3, v{vL}\nv_and_b32 v{vT1}, 7, v{vL}\n"
        if swz == "std": t += f"v_bfe_u32 v{vT2}, v{vL}, 4, 1\nv_lshlrev_b32 v{vT2}, 2, v{vT2}\n"
        else: t += f"v_bfe_u32 v{vT2}, v{vL}, 4, 2\nv_lshlrev_b32 v{vT2}, 1, v{vT2}\n"
        t += f"v_xor_b32 v{vT1}, v{vT1}, v{vT2}\nv_mul_u32_u24 v{vT0}, {rs}, v{vT0}\nv_lshl_add_u32 v{dst}, v{vT1}, 4, v{vT0}\n"
        for i in range(1, 4): t += f"v_add_u32 v{dst+i}, {i*(8*rs-1024)}, v{dst}\n"
        return t
    def dma_jobs(srd, vp, rs, n, setup, tok=None):
        js = []
        if "nobulk" in dbg and srd in (W2, W1, WO) and vp != 4:
            def nop():
                if tok is not None: tok.t = 0
            return [nop] * n
        for i in range(n):
            q = i % 4
            pre = None
            if i == 0: pre = setup + f"\ns_mov_b32 m0, s{sLDS}"
            elif q == 0: pre = f"s_add_u32 s{sLDS}, s{sLDS}, 4096\ns_mov_b32 m0, s{sLDS}\ns_add_u32 s{sSRC}, s{sSRC}, {32*rs}"
            js.append(jVM(f"buffer_load_dwordx4 v{vp+q}, {srd}, s{sSRC} offen offset:{1024*q} lds", tok, pre))
        return js
    def w2_dma(u, lds_s, lds_off, tok=None):
        return dma_jobs(W2, vPAN, 896, 4, f"s_mul_i32 s{sSRC}, s{sFT+u%7}, {32*896}\ns_add_u32 s{sLDS}, s{lds_s}, {lds_off}\ns_add_u32 s{sSRC}, s{sSRC}, s{sDL if u >= 7 else sCOL}", tok)
    def w2_read(u, va, off, tok=None):
        js = []
        for s_ in range(2):
            for t in range(2):
                r = 16 * u + 8 * s_ + 4 * t
                for p in range(2): js.append(jDS(f"ds_read_b64_tr_b16 a[{r+2*p}:{r+2*p+1}], v{va+t} offset:{off+2048*s_+1024*p}", tok))
        return js
    def finish():
        if stamps:
            A(f"v_writelane_b32 v{vST}, s{sUNI}, 63")
            A(f"s_lshl_b32 s61, s2, 2\ns_add_u32 s61, s61, s{sW}\ns_lshl_b32 s61, s61, 8\ns_add_u32 s61, s61, {STAMP}\nv_lshlrev_b32 v{vT1}, 2, v{vL}")
            A(f"buffer_store_dword v{vST}, v{vT1}, {WS}, s61 offen")
        A("s_endpgm")
    def done():
        A("L_fin:"); finish(); return wrap(A, tail), names

    A("s_cmp_ge_u32 s2, 256\ns_cbranch_scc1 L_exit")
    if stamps: A(f"v_mov_b32 v{vST}, 0")
    stamp("entry")
    for r, off in ((8, 0), (12, 8), (32, 80), (28, 72), (44, 64), (36, 96)):
        A(f"s_load_dwordx2 s[{r}:{r+1}], s[0:1], {off}")
    A(f"""s_getpc_b64 s[62:63]
    L_pc:
    v_lshrrev_b32 v1, 6, v0
    v_and_b32 v{vL}, 63, v0
    s_lshr_b32 s{sM}, s2, 3
    v_lshl_add_u32 v11, s{sM}, 2, v1
    v_min_u32 v10, 2, v{vL}
    v_lshl_add_u32 v11, v10, 7, v11
    v_lshlrev_b32 v11, 7, v11
    v_min_u32 v11, CODE_END-L_pc-4, v11""")
    VM(f"global_load_dword v{vJUNK}, v11, s[62:63]")
    A(f"s_and_b32 s{sG}, s2, 7\nv_readfirstlane_b32 s{sW}, v1")
    for r, n in ((8, 1835008), (12, 1204224), (32, 1835008), (28, 2408448), (36, WSZ)):
        A(f"s_mov_b32 s{r+2}, {n}\ns_mov_b32 s{r+3}, 0x20000")
    A(f"""v_lshrrev_b32 v9, 3, v{vL}
    v_mul_u32_u24 v9, 896, v9
    v_and_b32 v10, 7, v{vL}
    v_lshl_add_u32 v9, v10, 4, v9
    s_lshl_b32 s61, s{sG}, 5
    s_add_u32 s93, s61, s{sM}
    s_mul_i32 s61, s93, 7168
    s_lshl_b32 s62, s{sW}, 7
    s_add_u32 s61, s61, s62
    s_lshl_b32 s62, s{sW}, 10
    s_add_u32 s62, s62, {L_X}
    s_add_u32 s63, s61, 512
    s_cmp_eq_u32 s{sW}, 3
    s_cselect_b32 s63, s61, s63
    s_cselect_b32 s64, 0, 4096
    s_add_u32 s64, s64, s62
    s_lshr_b32 s65, s93, 2
    s_mul_i32 s79, s65, 28672
    s_and_b32 s65, s{sM}, 3
    s_lshl_b32 s65, s65, 7
    s_add_u32 s79, s79, s65
    s_cmp_ge_u32 s{sM}, 28
    s_cbranch_scc1 L_h0""")
    xload = f"""s_mov_b32 m0, s62
    buffer_load_dwordx4 v9, {X}, s61 offen lds
    s_mov_b32 m0, s64
    buffer_load_dwordx4 v9, {X}, s63 offen lds"""
    late_args = f"s_load_dword s{sTAG}, s[36:37], 0\n" + "\n".join(f"s_load_dwordx2 s[{r}:{r+1}], s[0:1], {off}" for r, off in ((16, 16), (20, 32), (40, 40), (24, 48), (42, 56)))
    A(panel_addr(12, 2688))
    A(f"""s_cmp_ge_u32 s{sM}, 14
    s_cselect_b32 s65, 14, 0
    s_cselect_b32 s82, {14-n1 if rot else 0}, 0
    s_cselect_b32 s83, {0 if rot else n1}, {n1}
    s_sub_u32 s{sJ}, s{sM}, s65
    s_lshl_b32 s80, s{sJ}, 7
    s_add_u32 s80, s80, 896
    s_mul_i32 s65, s{sW}, {112*2688}
    s_add_u32 s80, s80, s65
    s_mul_i32 s81, s{sW}, 14336
    s_mov_b32 s{sHI}, 0""")
    def wkv_setup(r): return f"s_mul_i32 s{sSRC}, s{r}, {8*2688}\ns_add_u32 s{sSRC}, s{sSRC}, s80\ns_lshl_b32 s{sLDS}, s{r}, 10\ns_add_u32 s{sLDS}, s{sLDS}, s81"
    A(wkv_setup(82))
    A("s_waitcnt lgkmcnt(0)")
    stamp("karg")
    A(xload); vm.issue(); tx = vm.issue()
    run(dma_jobs(WQKV, 12, 2688, n1, ""), 99)
    A(late_args)
    A("v_mov_b32 v4, 0\nv_mov_b32 v5, 0\nv_mov_b32 v6, 0\nv_mov_b32 v7, 0")
    nwork = vm.n
    A("s_branch L_h1\nL_h0:")
    A(panel_addr(4, 5376, "mod"))
    A(f"""v_min_u32 v2, 223, v0
    v_lshlrev_b32 v3, 2, v2
    s_lshl_b32 s{sHI}, s{sG}, 2
    s_add_u32 s{sHI}, s{sHI}, s{sM}
    s_sub_u32 s{sHI}, s{sHI}, 28
    s_lshr_b32 s65, s{sHI}, 1
    s_lshl_b32 s65, s65, 7
    s_and_b32 s66, s{sHI}, 1
    s_lshl_b32 s66, s66, 2
    s_add_u32 s66, s66, s{sW}
    s_mul_i32 s66, s66, {56*5376}
    s_add_u32 s{sSRC}, s65, s66
    s_cmp_eq_u32 s{sG}, 7
    s_cselect_b32 s{sSRC}, {OOB}, s{sSRC}
    s_mul_i32 s{sLDS}, s{sW}, 7168
    s_add_u32 s{sLDS}, s{sLDS}, {L_B}
    s_mov_b32 s{sJ}, 0
    s_waitcnt lgkmcnt(0)""")
    stamp("karg")
    sv = (vm.n, vm.done); vm.n = 1; vm.done = 0
    tc = VM("global_load_dword v8, v3, s[44:45]")
    tm = Tok(); run(dma_jobs(WMOD, 4, 5376, 7, "", tm), 99)
    A(xload); vm.issue(); txh = vm.issue()
    A(late_args)
    A(f"""v_mov_b32 v12, 0
    v_mov_b32 v13, 0
    v_mov_b32 v14, 0
    v_mov_b32 v15, 0
    v_lshrrev_b32 v20, 2, v{vL}
    v_bfe_u32 v21, v{vL}, 3, 2
    v_xor_b32 v21, s{sW}, v21
    v_lshlrev_b32 v21, 5, v21
    v_lshl_add_u32 v20, v20, 7, v21
    v_and_b32 v21, 3, v{vL}
    v_lshl_add_u32 v20, v21, 3, v20
    v_add_u32 v20, {L_B}, v20
    v_and_b32 v22, 48, v{vL}
    s_and_b32 s61, s{sHI}, 1
    s_mul_i32 s62, s61, 448
    s_add_u32 s62, s62, {L_SILU}
    v_add_u32 v21, s62, v22
    s_mul_i32 s61, s61, 56
    s_lshr_b32 s62, s{sHI}, 1
    s_lshl_b32 s62, s62, 2
    s_add_u32 s61, s61, s62
    s_add_u32 s61, s61, s{sW}
    s_lshl_b32 s61, s61, 7
    s_add_u32 s84, s61, {S0U}
    s_cmp_eq_u32 s{sG}, 7
    s_cselect_b32 s84, {OOB}, s84
    v_bfe_u32 v24, v2, 1, 2
    v_and_b32 v25, 0xf1, v2
    v_lshl_add_u32 v25, v24, 2, v25
    v_bfe_u32 v24, v2, 3, 1
    v_lshl_add_u32 v25, v24, 1, v25
    v_lshlrev_b32 v25, 2, v25
    v_add_u32 v25, {L_SILU}, v25
    s_mov_b32 s86, 0x07060500
    s_mov_b32 s87, 0x07060501
    s_mov_b32 s88, 0x07060502
    s_mov_b32 s89, 0x07060503""")
    vm.wait(tc)
    A(f"""v_lshlrev_b32 v26, 16, v8
    v_and_b32 v27, 0xffff0000, v8
    v_mul_f32 v28, 0xbfb8aa3b, v26
    v_mul_f32 v29, 0xbfb8aa3b, v27
    v_exp_f32 v28, v28
    v_exp_f32 v29, v29
    v_add_f32 v28, 1.0, v28
    v_add_f32 v29, 1.0, v29
    v_rcp_f32 v28, v28
    v_rcp_f32 v29, v29
    v_mul_f32 v26, v26, v28
    v_mul_f32 v27, v27, v29
    v_cvt_pk_bf16_f32 v26, v26, v27
    ds_write_b32 v25, v26
    s_waitcnt lgkmcnt(0)
    s_mul_i32 s61, s{sTAG}, 0x9E3779B1
    s_add_u32 s61, s61, 0x7F4A7C15
    v_mov_b32 v{vTAG}, s61""")
    vm.wait(tm.t)
    barrier()
    stamp("B1")
    lg.n = lg.done = 0
    toks = []
    for s_ in range(7):
        DS(f"ds_read_b128 v[{140+4*s_}:{143+4*s_}], v21 offset:{64*s_}")
        DS(f"ds_read_b64_tr_b16 v[{168+4*s_}:{169+4*s_}], v20 offset:{4096*s_}")
        toks.append(DS(f"ds_read_b64_tr_b16 v[{170+4*s_}:{171+4*s_}], v20 offset:{4096*s_+2048}"))
    for s_ in range(7):
        lg.wait(toks[s_])
        A(f"v_mfma_f32_16x16x32_bf16 v[24:27], v[{168+4*s_}:{171+4*s_}], v[{140+4*s_}:{143+4*s_}], {'0' if s_ == 0 else 'v[24:27]'}")
    A(f"""s_mov_b32 exec_lo, 0x00010001
    s_mov_b32 exec_hi, 0x00010001
    v_perm_b32 v24, v24, v{vTAG}, s86
    v_perm_b32 v25, v25, v{vTAG}, s87
    v_perm_b32 v26, v26, v{vTAG}, s88
    v_perm_b32 v27, v27, v{vTAG}, s89""")
    VM(f"buffer_store_dwordx4 v[24:27], v22, {WS}, s84 offen sc1")
    A("s_mov_b64 exec, -1")
    stamp("gemv")
    A(f"""v_lshlrev_b32 v10, 7, v{vL}
    s_lshl_b32 s85, s{sHI}, 2
    s_add_u32 s85, s85, s{sW}
    s_lshl_b32 s61, s85, 8
    s_add_u32 s61, s61, {CTL}
    v_and_b32 v11, 0x80, v10""")
    VM(f"buffer_load_dword v{vJUNK}, v11, {WS}, s61 offen sc1")
    A(f"s_lshl_b32 s61, s85, 8\ns_add_u32 s61, s61, {FKV}")
    VM(f"buffer_load_dword v{vJUNK}, v11, {WS}, s61 offen sc1")
    vm.wait(txh)
    vm.n, vm.done = sv
    A("L_h1:")
    stamp("issued")
    for r, n in ((16, 401408), (20, 1605632), (24, 1605632)): A(f"s_mov_b32 s{r+2}, {n}\ns_mov_b32 s{r+3}, 0x20000")
    A(f"""v_lshlrev_b32 v{vL16}, 4, v{vL}
    v_lshrrev_b32 v{vHALF}, 5, v{vL}
    v_and_b32 v{vL31}, 31, v{vL}
    s_getreg_b32 s{sXCC}, hwreg(HW_REG_XCC_ID, 0, 4)
    s_mov_b32 s{sUNI}, 0
    s_lshl_b32 s{sCTL}, s{sG}, 12
    s_add_u32 s{sCTL}, s{sCTL}, {CTL}
    v_and_b32 v30, 7, v{vL}
    v_lshrrev_b32 v31, 3, v{vL}
    v_lshlrev_b32 v32, 7, v30
    v_lshl_add_u32 v32, v31, 4, v32
    v_add_u32 v32, {L_X}, v32
    s_lshl_b32 s61, s{sW}, 10
    v_add_u32 v33, s61, v32
    s_mov_b32 s86, 0x07060500
    s_mov_b32 s87, 0x07060501
    s_mov_b32 s88, 0x07060502
    s_mov_b32 s89, 0x07060503""")
    roles = lines(f"""s_cmp_ge_u32 s{sM}, 14
    s_cselect_b32 s61, 1, 0
    s_lshl_b32 s{sRBQ}, s{sG}, 1
    s_add_u32 s{sRBQ}, s{sRBQ}, s61
    s_lshl_b32 s{sTQ}, s{sRBQ}, 2
    s_add_u32 s{sTQ}, s{sTQ}, s{sW}
    s_and_b32 s{sHEAD}, s{sM}, 15
    s_lshr_b32 s61, s{sM}, 4
    s_lshl_b32 s{sRB}, s{sG}, 1
    s_add_u32 s{sRB}, s{sRB}, s61
    s_lshl_b32 s{sTA}, s{sRB}, 2
    s_add_u32 s{sTA}, s{sTA}, s{sW}
    s_mul_i32 s61, s{sM}, 37
    s_lshr_b32 s61, s61, 8
    s_mul_i32 s62, s61, 7
    s_sub_u32 s{sNB}, s{sM}, s62
    s_lshl_b32 s{sCOL}, s{sNB}, 7
    s_and_b32 s{sMH}, s{sW}, 1
    s_lshr_b32 s{sKH}, s{sW}, 1
    s_lshl_b32 s{sTO}, s{sG}, 2
    s_add_u32 s{sTO}, s{sTO}, s61
    s_lshl_b32 s{sTO}, s{sTO}, 1
    s_add_u32 s{sTO}, s{sTO}, s{sMH}
    s_mul_i32 s{sEX}, s{sW}, 8960
    s_add_u32 s{sEX}, s{sEX}, {L_EX}
    s_cmp_ge_u32 s{sM}, 14
    s_cselect_b32 s{sPSW}, 1, 0
    s_cselect_b32 s{sDH}, -1, 1
    s_mul_i32 s{sDL}, s{sDH}, {2*32*896}
    s_lshl_b32 s{sDH}, s{sDH}, 12
    s_add_u32 s{sDL}, s{sDL}, s{sCOL}
    s_lshl_b32 s66, s{sPSW}, 1
    s_lshl_b32 s62, s61, 1
    s_add_u32 s62, s62, s{sG}
    s_add_u32 s62, s62, s{sNB}
    s_mul_i32 s64, s62, 37
    s_lshr_b32 s64, s64, 8
    s_mul_i32 s64, s64, 7
    s_sub_u32 s62, s62, s64
    s_mul_i32 s63, s{sW}, 7""")
    if not rot: roles.append("s_mov_b32 s62, 0")
    for q in range(7):
        roles += lines(f"""s_add_u32 s64, s62, {q}
        s_cmp_ge_u32 s64, 7
        s_cselect_b32 s65, 7, 0
        s_sub_u32 s64, s64, s65
        s_add_u32 s64, s64, s63
        s_and_b32 s65, s64, 0xfe
        s_add_u32 s64, s64, s66
        s_add_u32 s{sFT+q}, s64, s65""")
    roles += lines(panel_addr(vPAN, 896))
    vWQ = 228; vPQ = 229; vR0 = 233
    roles += lines(f"""v_and_b32 v{vT0}, 3, v{vL}
    v_lshlrev_b32 v{vT0}, 3, v{vT0}
    v_bfe_u32 v{vT1}, v{vL}, 4, 1
    v_lshl_add_u32 v{vT0}, v{vT1}, 5, v{vT0}
    v_bfe_u32 v{vT1}, v{vL}, 2, 2
    v_lshl_add_u32 v16, v{vT1}, 6, v{vT0}
    v_lshl_add_u32 v16, v{vHALF}, 9, v16
    v_lshl_add_u32 v{vT0}, v{vT1}, 7, v{vT0}
    v_bfe_u32 v{vT1}, v{vL}, 3, 1
    v_lshl_add_u32 v{vT0}, v{vT1}, 6, v{vT0}
    v_lshl_add_u32 v{vTN0}, v{vHALF}, 10, v{vT0}
    v_lshl_add_u32 v{vTP0}, v{vHALF}, 9, v{vT0}
    v_xor_b32 v{vTN1}, 64, v{vTN0}
    v_xor_b32 v{vTP1}, 64, v{vTP0}
    v_add_u32 v{vWQ}, {L_WQ}, v16
    v_lshrrev_b32 v{vPQ}, 2, v{vL}
    v_mul_u32_u24 v{vPQ}, 2688, v{vPQ}
    v_and_b32 v17, 3, v{vL}
    v_lshl_add_u32 v{vPQ}, v17, 4, v{vPQ}""")
    for i in range(1, 4): roles.append(f"v_add_u32 v{vPQ+i}, {i*(16*2688-1024)}, v{vPQ}")
    run(roles, 999)
    A(f"""s_waitcnt lgkmcnt(0)
    s_mul_i32 s{sTAG}, s{sTAG}, 0x9E3779B1
    s_add_u32 s{sTAG}, s{sTAG}, 0x7F4A7C15
    v_mov_b32 v{vTAG}, s{sTAG}""")
    vm.wait(tx)
    barrier()
    stamp("B0")
    lg.n = lg.done = 0
    tk = [DS(f"ds_read_b128 v[{40+4*i}:{43+4*i}], v32 offset:{1024*i}") for i in range(7)]
    DS("ds_read_b128 v[68:71], v33"); town = DS("ds_read_b128 v[72:75], v33 offset:4096")
    A(f"""s_cmp_lg_u32 s{sW}, 0
    s_cbranch_scc1 L_nox
    s_add_u32 s61, s{sXCC}, 1
    v_cvt_f32_u32 v26, s61
    s_lshl_b32 s61, s93, 7
    s_add_u32 s61, s61, {XCCG}
    v_perm_b32 v136, v26, v{vTAG}, s86
    v_perm_b32 v137, v26, v{vTAG}, s87
    v_perm_b32 v138, v26, v{vTAG}, s88
    v_perm_b32 v139, v26, v{vTAG}, s89
    s_mov_b64 exec, 1
    buffer_store_dwordx4 v[136:139], off, {WS}, s61 sc1
    s_mov_b64 exec, -1
    L_nox:
    s_cmp_ge_u32 s{sM}, 28
    s_cbranch_scc1 L_t4""")
    touch_txt = f"""s_mul_i32 s61, s{sG}, 28
    s_add_u32 s61, s61, s{sM}
    v_min_u32 v11, 13, v{vL}
    s_cmp_eq_u32 s{sW}, 0
    s_cbranch_scc1 L_t0
    s_cmp_eq_u32 s{sW}, 1
    s_cbranch_scc1 L_t1
    v_min_u32 v11, 27, v{vL}
    v_lshlrev_b32 v11, 7, v11
    s_lshl_b32 s61, s61, 1
    s_add_u32 s61, s61, s{sW}
    s_sub_u32 s61, s61, 2
    s_mul_i32 s61, s61, 3584
    buffer_load_dword v{vJUNK}, v11, {W2}, s61 offen
    s_branch L_t3
    L_t0:
    v_lshlrev_b32 v11, 7, v11
    s_mul_i32 s61, s61, 1792
    buffer_load_dword v{vJUNK}, v11, {WO}, s61 offen
    s_branch L_t3
    L_t1:
    v_cmp_lt_u32 vcc, 6, v11
    v_lshlrev_b32 v11, 7, v11
    v_mov_b32 v10, 1792
    s_mul_i32 s61, s61, 5376
    v_cndmask_b32 v10, 0, v10, vcc
    v_add_u32 v11, v11, v10
    buffer_load_dword v{vJUNK}, v11, {WQKV}, s61 offen
    L_t3:"""
    wq_jobs = lambda: dma_jobs(WQKV, vPQ, 2 * 2688, 7, f"s_lshl_b32 s{sSRC}, s{sJ}, 6\ns_mul_i32 s62, s{sW}, {112*2688}\ns_add_u32 s{sSRC}, s{sSRC}, s62\ns_mul_i32 s{sLDS}, s{sW}, 7168\ns_add_u32 s{sLDS}, s{sLDS}, {L_WQ}")
    if touch == 'B0': A(touch_txt)
    wkv2 = dma_jobs(WQKV, 12, 2688, 14 - n1, wkv_setup(83))
    run(wkv2, n3)
    A("L_t4:")
    for i in range(7):
        lg.wait(tk[i])
        for d in range(4):
            A(f"v_lshlrev_b32 v{80+8*i+2*d}, 16, v{40+4*i+d}\nv_and_b32 v{81+8*i+2*d}, 0xffff0000, v{40+4*i+d}")
    A("v_pk_add_f32 v[34:35], v[80:81], v[82:83]")
    for i in range(2, 28): A(f"v_pk_add_f32 v[34:35], v[34:35], v[{80+2*i}:{81+2*i}]")
    def red8(r):
        A(f"""v_add_f32_dpp v{r}, v{r}, v{r} row_ror:8 row_mask:0xf bank_mask:0xf
        v_mov_b32 v{vT0}, v{r}
        v_permlane16_swap_b32 v{r}, v{vT0}
        v_add_f32 v{r}, v{r}, v{vT0}
        v_mov_b32 v{vT0}, v{r}
        v_permlane32_swap_b32 v{r}, v{vT0}
        v_add_f32 v{r}, v{r}, v{vT0}""")
    A("v_add_f32 v34, v34, v35"); red8(34)
    A("v_mul_f32 v34, 0xbb124925, v34\nv_mov_b32 v35, v34")
    for i in range(28): A(f"v_pk_add_f32 v[{80+2*i}:{81+2*i}], v[{80+2*i}:{81+2*i}], v[34:35]")
    A("v_pk_mul_f32 v[36:37], v[80:81], v[80:81]")
    for i in range(1, 28): A(f"v_pk_fma_f32 v[36:37], v[{80+2*i}:{81+2*i}], v[{80+2*i}:{81+2*i}], v[36:37]")
    A("v_add_f32 v36, v36, v37"); red8(36)
    A("v_mov_b32 v37, 0x3727c5ac\nv_fmac_f32 v37, 0x3b124925, v36\nv_rsq_f32 v36, v37")
    lg.wait(town)
    for d in range(8):
        A(f"v_lshlrev_b32 v{40+2*d}, 16, v{68+d}\nv_and_b32 v{41+2*d}, 0xffff0000, v{68+d}")
    A("v_mov_b32 v37, v36")
    for d in range(8): A(f"v_pk_add_f32 v[{40+2*d}:{41+2*d}], v[{40+2*d}:{41+2*d}], v[34:35]")
    for d in range(8): A(f"v_pk_mul_f32 v[{40+2*d}:{41+2*d}], v[{40+2*d}:{41+2*d}], v[36:37]")
    A(f"""v_lshrrev_b32 v62, 2, v0
    v_lshlrev_b32 v62, 7, v62
    v_and_b32 v56, 3, v0
    v_lshl_add_u32 v62, v56, 4, v62
    v_add_u32 v56, {56*128}, v62
    s_lshl_b32 s61, s{sG}, 12
    s_add_u32 s61, s61, {XCCG-S0U}
    v_lshl_add_u32 v57, v{vL31}, 7, s61
    v_cmp_gt_u32 vcc, 224, v0
    v_cndmask_b32 v62, v57, v62, vcc
    v_cndmask_b32 v56, v57, v56, vcc
    v_lshlrev_b32 v57, 4, v0
    v_add_u32 v57, {L_MODV}, v57
    v_cmp_le_u32 vcc, 112, v0
    v_cndmask_b32 v63, 0, 1.0, vcc
    s_lshl_b32 s61, s{sW}, 8
    s_add_u32 s61, s61, {L_MODV}
    v_lshl_add_u32 v58, v31, 5, s61
    v_lshlrev_b32 v59, 4, v{vL31}
    v_add_u32 v59, {L_MODV+3584}, v59
    v_lshlrev_b32 v60, 9, v31
    v_lshl_add_u32 v60, v30, 4, v60
    s_lshl_b32 s62, s{sW}, 12
    s_add_u32 s90, s79, s62
    s_add_u32 s91, s90, 16384
    s_cmp_eq_u32 s{sW}, 3
    s_cselect_b32 s91, {OOB}, s91
    s_lshl_b32 s92, s{sM}, 2
    s_add_u32 s92, s92, s{sW}
    s_lshl_b32 s92, s92, 2
    s_add_u32 s92, s92, s{sCTL}
    s_add_u32 s92, s92, {C_FH}
    s_mov_b32 s64, 0x0c0c0400
    s_mov_b32 s65, 0x05040100
    s_lshl_b32 s61, s{sXCC}, 1
    s_add_u32 s61, s61, 3
    v_cvt_f32_u32 v76, s61""")
    if wq == 's' or touch == 's':
        A(f"s_cmp_ge_u32 s{sM}, 28\ns_cbranch_scc1 L_t5")
        if wq == 's': run(wkv2, 99)
        if touch == 's': A(touch_txt)
        A("L_t5:")
    stamp("stats")
    A(f"""s_mov_b32 s{sCNT}, 0
    s_mov_b32 s61, {S0U}
    L_s0:
    buffer_load_dwordx4 v[64:67], v62, {WS}, s61 offen sc1
    buffer_load_dwordx4 v[68:71], v56, {WS}, s61 offen sc1
    s_add_u32 s{sCNT}, s{sCNT}, 1
    s_waitcnt vmcnt(1)
    v_perm_b32 v72, v65, v64, s64
    v_perm_b32 v73, v67, v66, s64
    v_perm_b32 v72, v73, v72, s65
    v_cmp_ne_u32 s[62:63], s{sTAG}, v72
    s_waitcnt vmcnt(0)
    v_perm_b32 v74, v69, v68, s64
    v_perm_b32 v75, v71, v70, s64
    v_perm_b32 v74, v75, v74, s65
    v_cmp_ne_u32 vcc, s{sTAG}, v74
    s_or_b64 vcc, vcc, s[62:63]
    s_cbranch_vccz L_s0d
    s_cmp_lt_u32 s{sCNT}, {SPIN}
    s_cbranch_scc1 L_s0
    L_s0d:""")
    for r in range(64, 72): A(f"v_and_b32 v{r}, 0xffffff00, v{r}")
    A(f"""v_pk_add_f32 v[64:65], v[64:65], v[68:69]
    v_pk_add_f32 v[66:67], v[66:67], v[70:71]
    v_cvt_pk_bf16_f32 v68, v64, v65
    v_cvt_pk_bf16_f32 v69, v66, v67
    v_lshlrev_b32 v64, 16, v68
    v_and_b32 v65, 0xffff0000, v68
    v_lshlrev_b32 v66, 16, v69
    v_and_b32 v67, 0xffff0000, v69
    v_add_f32 v64, v64, v63
    v_add_f32 v65, v65, v63
    v_add_f32 v66, v66, v63
    v_add_f32 v67, v67, v63
    v_cvt_pk_bf16_f32 v68, v64, v65
    v_cvt_pk_bf16_f32 v69, v66, v67
    v_lshlrev_b32 v64, 16, v68
    v_and_b32 v65, 0xffff0000, v68
    v_lshlrev_b32 v66, 16, v69
    v_and_b32 v67, 0xffff0000, v69
    ds_write_b128 v57, v[64:67]
    s_waitcnt lgkmcnt(0)""")
    vm.drained(); lg.drained()
    barrier()
    stamp("S0")
    t0 = []
    for p in range(2):
        for q in range(2):
            DS(f"ds_read_b128 v[{80+16*p+4*q}:{83+16*p+4*q}], v58 offset:{1792+1024*p+16*q}")
            t0.append(DS(f"ds_read_b128 v[{88+16*p+4*q}:{91+16*p+4*q}], v58 offset:{1024*p+16*q}"))
    txc = DS("ds_read_b32 v61, v59")
    for p in range(2):
        for q in range(2):
            lg.wait(t0[2 * p + q])
            for e in range(0, 4, 2):
                r = 40 + 8 * p + 4 * q + e
                A(f"v_pk_fma_f32 v[{r}:{r+1}], v[{r}:{r+1}], v[{80+16*p+4*q+e}:{81+16*p+4*q+e}], v[{88+16*p+4*q+e}:{89+16*p+4*q+e}]")
        for d in range(4): A(f"v_cvt_pk_bf16_f32 v{112+4*p+d}, v{40+8*p+2*d}, v{41+8*p+2*d}")
        th = VM(f"buffer_store_dwordx4 v[{112+4*p}:{115+4*p}], v60, {OUT}, s{90+p} offen{hmod}")
    lg.wait(txc)
    A(f"v_cmp_neq_f32 vcc, v76, v61\ns_cmp_eq_u64 vcc, 0\ns_cselect_b32 s{sUNI}, {0 if force_slow else 1}, 0")
    A(f"s_cmp_ge_u32 s{sM}, 28\ns_cbranch_scc1 L_help")

    pre = wkv2 + wq_jobs()
    run(pre, 9)
    vKS = 216; vQS = 224
    A(f"""v_and_b32 v{vT3}, 15, v{vL}
    v_lshlrev_b32 v{vT3}, 2, v{vT3}
    s_and_b32 s61, s{sTQ}, 7
    s_lshl_b32 s61, s61, 6
    s_add_u32 s61, s61, s{sCTL}
    s_add_u32 s85, s61, {C_FH}
    s_mul_i32 s82, s{sTQ}, 28672""")
    vm.wait(th)
    flag(92)
    stamp("hpub")
    if stop <= 1:
        A("L_help:"); return done()
    A(f"""s_mul_i32 s80, s{sTQ}, 1792
    s_lshl_b32 s81, s{sTQ}, 15
    s_add_u32 s81, s81, {QO}
    s_mul_i32 s83, s{sRBQ}, 14
    s_add_u32 s83, s83, s{sJ}
    s_lshl_b32 s83, s83, 7
    s_add_u32 s83, s83, {FKV}
    s_and_b32 s84, s{sRBQ}, 1
    s_lshl_b32 s84, s84, 4
    s_add_u32 s84, s84, s{sJ}
    s_lshl_b32 s84, s84, 2
    s_add_u32 s84, s84, s{sCTL}
    s_add_u32 s84, s84, {C_FQ}
    s_lshl_b32 s79, s{sW}, 14
    s_mul_i32 s97, s{sW}, 12288""")
    run(pre, 99)
    A(f"s_lshl_b32 s61, s{sJ}, 3")
    for a_ in range(4):
        A(f"""v_add3_u32 v{vT0}, v{vHALF}, s61, {2*a_}
        v_mul_u32_u24 v{vT1}, 147, v{vT0}
        v_lshrrev_b32 v{vT1}, 10, v{vT1}
        v_add_lshl_u32 v{vT0}, v{vT0}, v{vT1}, 8
        v_lshl_add_u32 v{vQS+a_}, v{vL31}, 3, v{vT0}""")
    poll(vT3, "s85")
    stamp("S0b")
    ACC = 112; WB = 160
    th = [Tok() for _ in range(28)]
    def hjobs(): return [jVM(f"buffer_load_dwordx4 v[{4*s_}:{4*s_+3}], v{vL16}, {OUT}, s82 offen offset:{1024*(s_%4)} sc1", th[s_], "s_add_u32 s82, s82, 4096" if (s_ % 4 == 0 and s_) else None) for s_ in range(28)]
    run(hjobs(), PRO)
    barrier()
    def kv_pass(vtype):
        lg.n = lg.done = 0
        sv = (vm.n, vm.done)
        if not vtype:
            adr = lines(f"s_lshl_b32 s61, s{sJ}, 4\ns_add_u32 s80, s80, {KG}")
            for i in range(8):
                adr += lines(f"""v_add3_u32 v{vT0}, v{vHALF}, s61, {2*i}
                v_mul_u32_u24 v{vT1}, 147, v{vT0}
                v_lshrrev_b32 v{vT1}, 10, v{vT1}
                v_mul_u32_u24 v{vT1}, {64*1792-7*256}, v{vT1}
                v_lshl_add_u32 v{vT0}, v{vT0}, 8, v{vT1}
                v_lshl_add_u32 v{vKS+i}, v{vL31}, 3, v{vT0}""")
        else:
            adr = lines(f"s_sub_u32 s61, s{sJ}, 7\ns_lshl_b32 s61, s61, 6\ns_add_u32 s80, s80, {VG}")
            for t in range(2):
                adr += lines(f"""v_add3_u32 v{vT0}, v{vL31}, s61, {32*t}
                v_lshrrev_b32 v{vT1}, 2, v{vT0}
                v_mul_u32_u24 v{vT1}, 147, v{vT1}
                v_lshrrev_b32 v{vT1}, 10, v{vT1}
                v_mul_u32_u24 v{vT1}, {64*1792-448}, v{vT1}
                v_lshl_add_u32 v{vT0}, v{vT0}, 4, v{vT1}
                v_mul_u32_u24 v{vT1}, 448, v{vHALF}
                v_add_u32 v{vKS+t}, v{vT0}, v{vT1}""")
        mem = hjobs()[PRO:]
        bulk = []
        for u in range(4): bulk += w2_dma(u, 79, L_B + 4096 * u)
        nb_kv = 8
        tw = {}
        def ld(s_):
            b = WB + 8 * (s_ % 4); js = []
            for t in range(2):
                tw[s_, t] = Tok()
                js.append(jDS(f"ds_read_b64_tr_b16 v[{b+4*t}:{b+4*t+1}], v{vTN0-t} offset:{L_WKV+2048*s_}"))
                js.append(jDS(f"ds_read_b64_tr_b16 v[{b+4*t+2}:{b+4*t+3}], v{vTN0-t} offset:{L_WKV+2048*s_+512}", tw[s_, t]))
            return js
        tq = {}
        def ldq(s_):
            b = WB + 4 * (s_ % 8); tq[s_] = Tok()
            return [jDS(f"ds_read_b64_tr_b16 v[{b}:{b+1}], v{vWQ} offset:{1024*s_}"), jDS(f"ds_read_b64_tr_b16 v[{b+2}:{b+3}], v{vWQ} offset:{1024*s_+256}", tq[s_])]
        for s_ in range(3): run(ld(s_), 4)
        for s_ in range(28):
            vm.wait(th[s_].t); lg.wait(tw[s_, 1].t)
            b = WB + 8 * (s_ % 4)
            nx = ld(s_ + 3) if s_ + 3 < 28 else (ldq(2 * (s_ - 26)) + ldq(2 * (s_ - 26) + 1) if s_ >= 26 else [])
            for t in range(2):
                wf, hf = v(b + 4 * t, 4), v(4 * s_, 4)
                c = "0" if s_ == 0 else None
                if vtype: mfma(v(ACC + 16 * t, 16), hf, wf, c)
                else: mfma(v(ACC + 16 * t, 16), wf, hf, c)
                if t == 0:
                    if mem: run(mem, 1)
                    elif nb_kv: run(bulk, 1); nb_kv -= 1
                    run(nx, 1)
                else: run(nx, 3); run(adr, 2)
            if 'fine' in dbg and s_ in (0, 9, 18): stamp(f'k{s_}')
        stamp("kv")
        epi = []; last = Tok()
        for t in range(2):
            P = 192 + 8 * t
            for d in range(8):
                epi.append(f"v_cvt_pk_bf16_f32 v{P+d}, v{ACC+16*t+2*d}, v{ACC+16*t+2*d+1}")
                if vtype and d % 4 == 3: epi.append(jVM(f"buffer_store_dwordx4 v[{P+d-3}:{P+d}], v{vKS+t}, {WS}, s80 offen offset:{896*(d//4)} sc1", last))
                if not vtype and d % 2 == 1: epi.append(jVM(f"buffer_store_dwordx2 v[{P+d-1}:{P+d}], v{vKS+4*t+d//2}, {WS}, s80 offen sc1", last))
        for s_ in range(28):
            lg.wait(tq[s_].t)
            b = WB + 4 * (s_ % 8)
            mfma(v(ACC + 32, 16), v(b, 4), v(4 * s_, 4), "0" if s_ == 0 else None)
            if s_ + 4 < 28: run(ldq(s_ + 4), 2)
            if epi:
                if s_ >= 1: run(epi, 6)
            elif s_ % 3 == 0: run(bulk, 1)
        assert not adr
        run(bulk, 99)
        A(f"s_mov_b32 s61, {QSCALE:#x}\ns_lshl_b32 s62, s{sKH}, 6\nv_xor_b32 v{vR0}, s62, v{vTP0}\nv_xor_b32 v{vR0+1}, s62, v{vTP1}\nv_add_u32 v{vT2}, s79, v{vR0}\nv_add_u32 v{vT3}, s79, v{vR0+1}")
        for d in range(8):
            A(f"v_mul_f32 v{ACC+32+2*d}, s61, v{ACC+32+2*d}\nv_mul_f32 v{ACC+33+2*d}, s61, v{ACC+33+2*d}\nv_cvt_pk_bf16_f32 v{208+d}, v{ACC+32+2*d}, v{ACC+33+2*d}")
            if d % 2 == 1: VM(f"buffer_store_dwordx2 v[{207+d}:{208+d}], v{vQS+d//2}, {WS}, s81 offen sc1")
        stamp("q")
        vm.wait(last.t)
        vm.n, vm.done = sv
    A(f"s_cmp_ge_u32 s{sJ}, 7\ns_cbranch_scc1 L_kvV")
    kv_pass(False)
    A("s_branch L_kvE\nL_kvV:")
    kv_pass(True)
    A("L_kvE:")
    barrier()
    A(f"s_cmp_lg_u32 s{sW}, 0\ns_cbranch_scc1 L_nf1")
    flag(83, slow=True)
    A("L_nf1:")
    stamp("kvpub")
    for u in range(4, 6): run(w2_dma(u, 97, 4096 * (u - 4)), 99)
    A(f"v_add_u32 v{vT0}, {L_B}, v{vT2}\nv_add_u32 v{vT1}, {L_B}, v{vT3}\nv_add_u32 v231, s97, v{vR0}\nv_add_u32 v232, s97, v{vR0+1}")
    A(f"s_cmp_eq_u32 s{sW}, 0\ns_cbranch_scc1 L_w0b\ns_waitcnt vmcnt(12)\nL_w0b:\ns_waitcnt vmcnt(13)")
    for u in range(4): run(w2_read(u, vT0, 4096 * u), 99)
    A(f"s_cmp_eq_u32 s{sW}, 0\ns_cbranch_scc1 L_w0a\ns_waitcnt vmcnt(8)\nL_w0a:\ns_waitcnt vmcnt(9)")
    barrier()
    A(f"s_cmp_lg_u32 s{sW}, 1\ns_cbranch_scc1 L_nf2")
    flag(84)
    A("L_nf2:")
    stamp("qpub")
    run(w2_dma(6, 97, 8192), 99)
    A("s_branch L_att")
    A("L_help:")
    A("s_waitcnt vmcnt(0)")
    flag(92)
    A(f"""v_lshlrev_b32 v10, 7, v{vL}
    s_lshl_b32 s85, s{sHI}, 2
    s_add_u32 s85, s85, s{sW}
    v_mov_b32 v231, 0
    v_mov_b32 v232, 0
    s_lshl_b32 s62, s{sKH}, 6
    v_xor_b32 v{vR0}, s62, v{vTP0}
    v_xor_b32 v{vR0+1}, s62, v{vTP1}
    s_cmp_eq_u32 s{sG}, 7
    s_cbranch_scc1 L_hn""")
    run(dma_jobs(WMOD, 4, 5376, 14, f"s_add_u32 s86, s{sHI}, 14\ns_lshl_b32 s{sSRC}, s86, 7\ns_mul_i32 s63, s{sW}, {112*5376}\ns_add_u32 s{sSRC}, s{sSRC}, s63\ns_mul_i32 s{sLDS}, s{sW}, 14336\ns_add_u32 s{sLDS}, s{sLDS}, {L_B}"), 99)
    A(panel_addr(4, 3584, "mod"))
    w1h = dma_jobs(W1, 4, 3584, 14, f"s_lshl_b32 s{sSRC}, s{sHI}, 7\ns_mul_i32 s63, s{sW}, {112*3584}\ns_add_u32 s{sSRC}, s{sSRC}, s63\ns_mul_i32 s{sLDS}, s{sW}, 14336")
    run(w1h, 8)
    A(f"v_add_u32 v21, {L_SILU}, v22\ns_waitcnt vmcnt(8)")
    barrier()
    def gemv14(va, vb):
        lg.n = lg.done = 0
        toks = []
        def gemv_ld(s_):
            b = 32 + 8 * s_
            DS(f"ds_read_b128 v[{b}:{b+3}], v{va} offset:{64*s_}")
            DS(f"ds_read_b64_tr_b16 v[{b+4}:{b+5}], v{vb} offset:{4096*s_}")
            toks.append(DS(f"ds_read_b64_tr_b16 v[{b+6}:{b+7}], v{vb} offset:{4096*s_+2048}"))
        for s_ in range(4): gemv_ld(s_)
        for s_ in range(14):
            lg.wait(toks[s_])
            b = 32 + 8 * s_
            A(f"v_mfma_f32_16x16x32_bf16 v[24:27], v[{b}:{b+3}], v[{b+4}:{b+7}], {'0' if s_ == 0 else 'v[24:27]'}")
            if s_ + 4 < 14: gemv_ld(s_ + 4)
    gemv14(21, 20)
    A(f"""s_sub_u32 s61, s{sHI}, 14
    s_cmp_lt_u32 s61, 7
    s_cselect_b32 s62, 1.0, 0
    s_lshl_b32 s61, s{sHI}, 8
    s_lshl_b32 s63, s{sW}, 6
    s_add_u32 s61, s61, s63
    s_add_u32 s61, s61, {NU}
    v_lshlrev_b32 v23, 2, v{vL}
    v_cvt_pk_bf16_f32 v24, v24, v24
    v_and_b32 v24, 0xffff0000, v24
    v_add_f32 v24, s62, v24
    v_mov_b32 v29, s{sTAG}
    v_mov_b32_dpp v25, v24 quad_perm:[1,0,3,2] row_mask:0xf bank_mask:0xf
    v_cvt_pk_bf16_f32 v28, v24, v25
    s_mov_b64 exec, 0x5555
    buffer_store_dwordx2 v[28:29], v23, {WS}, s61 offen sc1
    s_mov_b64 exec, -1""")
    run(w1h, 99)
    A(f"""L_hn:
    s_mul_i32 s61, s85, 1792
    s_add_u32 s61, s61, {STATS}
    v_min_u32 v11, 13, v{vL}
    v_lshlrev_b32 v11, 7, v11
    buffer_load_dword v{vJUNK}, v11, {WS}, s61 offen sc1""")
    A("L_att:")
    if stop <= 2: return done()

    S = 0; QF = 144; KB = 152; OA = 184; VB = 200
    vKA, vVA, vVS, vQA, vQB, vP1, vMX = 216, 217, 218, 219, 220, 222, 226
    vm.n = vm.done = 0; lg.n = lg.done = 0
    A(f"""s_mul_i32 s80, s{sW}, 6144
    s_add_u32 s81, s80, {L_V}
    s_add_u32 s80, s80, {L_K}
    v_add_u32 v{OA}, s81, v{vL16}
    v_mov_b32 v{KB}, 0x3f803f80
    v_mov_b32 v{KB+1}, 0x3f803f80
    v_mov_b32 v{KB+2}, 0x3f803f80
    v_mov_b32 v{KB+3}, 0x3f803f80
    v_lshl_add_u32 v{OA+1}, v{vL31}, 3, s80
    v_mov_b32 v{KB+5}, 0
    v_mov_b32 v{KB+7}, 0
    v_mov_b32 v{KB+9}, 0
    s_lshl_b32 s61, s{sHEAD}, 4
    s_add_u32 s61, s61, s{sRB}
    s_mul_i32 s61, s61, 7168
    s_sub_u32 s61, s61, 14336
    s_min_u32 s82, s{sRB}, 2
    s_sub_u32 s82, 2, s82
    s_mul_i32 s62, s{sW}, 3
    s_lshl_b32 s63, s82, 2""")
    for q in range(3):
        A(f"""s_add_u32 s64, s62, {q}
        s_mul_i32 s65, s64, 1792
        s_add_u32 s65, s65, s61
        s_add_u32 s{83+q}, s65, {KG}
        s_add_u32 s{86+q}, s65, {VG}
        s_cmp_lt_u32 s64, s63
        s_cselect_b32 s{83+q}, {OOB}, s{83+q}
        s_cselect_b32 s{86+q}, {OOB}, s{86+q}
        s_cselect_b32 s64, {NEG>>16:#x}, 0
        v_mov_b32 v{KB+4+2*q}, s64""")
    A("s_waitcnt lgkmcnt(0)")
    barrier()
    A("s_mov_b32 exec_hi, 0")
    for q in range(3): DS(f"ds_write_b64 v{OA+1}, v[{KB+4+2*q}:{KB+5+2*q}] offset:{2048*q+1792}")
    A("s_mov_b32 exec_lo, 0xf0000000\ns_mov_b32 exec_hi, 0xf0000000")
    for i in range(6): DS(f"ds_write_b128 v{OA}, v[{KB}:{KB+3}] offset:{1024*i}")
    A("s_mov_b64 exec, -1")
    A(f"""v_lshlrev_b32 v{vT0}, 9, v{vHALF}
    v_lshl_add_u32 v{vQA}, v{vL31}, 3, v{vT0}
    v_mul_u32_u24 v{vVS}, 448, v{vHALF}
    v_lshl_add_u32 v{vVS}, v{vL31}, 4, v{vVS}
    s_lshl_b32 s89, s{sTA}, 4
    s_add_u32 s89, s89, s{sHEAD}
    s_and_b32 s61, s89, 127
    s_lshl_b32 s61, s61, 2
    s_add_u32 s61, s61, s{sCTL}
    s_add_u32 s98, s61, {C_FO}
    s_lshl_b32 s89, s89, 11
    s_add_u32 s89, s89, {QO}
    v_min_u32 v{vT0}, 13, v{vL}
    v_and_b32 v{vT1}, 1, v{vT0}
    v_mul_u32_u24 v{vT1}, 27, v{vT1}
    s_mul_i32 s61, s{sHEAD}, 28
    v_add_u32 v{vT1}, s61, v{vT1}
    v_lshrrev_b32 v{vT2}, 6, v{vT1}
    v_bfe_u32 v{vT3}, v{vT0}, 1, 1
    v_mad_u32_u24 v{vT2}, v{vT3}, 7, v{vT2}
    v_lshrrev_b32 v{vT3}, 2, v{vT0}
    v_max_u32 v{vT3}, s82, v{vT3}
    s_sub_u32 s61, s{sRB}, 2
    v_add_u32 v{vT3}, s61, v{vT3}
    v_mad_u32_u24 v{vT2}, v{vT3}, 14, v{vT2}
    v_lshlrev_b32 v{vT2}, 7, v{vT2}
    v_add_u32 v{vT2}, {FKV}, v{vT2}
    v_lshrrev_b32 v{vT1}, 5, v{vT1}
    s_and_b32 s61, s{sRB}, 1
    s_lshl_b32 s61, s61, 6
    s_add_u32 s61, s61, s{sCTL}
    s_add_u32 s61, s61, {C_FQ}
    v_lshl_add_u32 v{vT1}, v{vT1}, 2, s61
    v_cmp_gt_u32 vcc, 12, v{vT0}
    v_cndmask_b32 v{vT0}, v{vT1}, v{vT2}, vcc""")
    stamp("pre1")
    poll(vT0, "0")
    stamp("S1")
    for q in range(3):
        A(f"s_add_u32 m0, s80, {2048*q}")
        VM(f"buffer_load_dwordx4 v{vL16}, {WS}, s{83+q} offen sc1 lds")
    A("s_mov_b32 exec_hi, 0xffff")
    for q in range(3):
        A(f"s_add_u32 m0, s80, {2048*q}")
        VM(f"buffer_load_dwordx4 v{vL16}, {WS}, s{83+q} offen offset:1024 sc1 lds")
    A("s_mov_b64 exec, -1")
    for i in range(4):
        tq = VM(f"buffer_load_dwordx2 v[{QF+2*i}:{QF+2*i+1}], v{vQA}, {WS}, s89 offen offset:{1024*(i>>1)+256*(i&1)} sc1")
    A(f"s_cmp_ge_u32 s{sM}, 28\ns_cbranch_scc1 L_nr1")
    for u in range(4, 7): run(w2_read(u, 231, 4096 * (u - 4)), 99)
    A("L_nr1:")
    A(f"v_lshlrev_b32 v{vT0}, 2, v{vHALF}\nv_sub_u32 v{vT0}, v{vL31}, v{vT0}\nv_mov_b32 v{vT1}, {NEG:#x}")
    for r in range(16):
        i0 = 8 * (r >> 2) + (r & 3)
        A(f"v_cmp_gt_i32 s[{(62,64,90,92)[r&3]}:{(63,65,91,93)[r&3]}], {i0}, v{vT0}")
        if r & 3 == 3:
            for q in range(4):
                A(f"v_cndmask_b32 v{S+128+r-3+q}, 0, v{vT1}, s[{(62,64,90,92)[q]}:{(63,65,91,93)[q]}]")
                A(f"v_cndmask_b32 v{S+r-3+q}, v{vT1}, 0, s[{(62,64,90,92)[q]}:{(63,65,91,93)[q]}]")
    vS0 = 231
    A(f"""s_lshl_b32 s61, s{sW}, 11
    s_add_u32 s62, s61, {L_K}
    v_add_u32 v{vKA}, s62, v{vQA}
    s_add_u32 s61, s61, {L_V}
    v_add_u32 v{vVA}, s61, v{vL16}
    v_mov_b32 v221, 0x3f80
    s_mul_i32 s79, s{sW}, 14336
    s_lshl_b32 s99, s{sJ}, 1
    s_add_u32 s99, s99, s{sPSW}
    s_lshl_b32 s99, s99, 7
    s_cmp_ge_u32 s{sM}, 28
    s_cselect_b32 s{sCOL}, {OOB}, s{sCOL}
    s_cselect_b32 s99, {OOB}, s99
    s_cselect_b32 s79, {L_P0}, s79""")
    A(panel_addr(vP1, 3584))
    A(f"v_cmp_eq_u32 vcc, 0, v{vHALF}")
    A("s_mov_b32 exec_lo, 0x0fffffff\ns_mov_b32 exec_hi, 0x0fffffff")
    for q in range(3):
        A(f"s_add_u32 m0, s81, {2048*q}")
        VM(f"buffer_load_dwordx4 v{vVS}, {WS}, s{86+q} offen sc1 lds")
        A(f"s_sub_u32 s{86+q}, s{86+q}, 128")
        tv = VM(f"buffer_load_dwordx4 v{vVS}, {WS}, s{86+q} offen offset:1024 sc1 lds")
    A("s_mov_b64 exec, -1")
    lg.all()
    A(f"v_add_u32 v{vS0}, s{sEX}, v{vR0}\nv_add_u32 v{vS0+1}, s{sEX}, v{vR0+1}")
    vm.wait(tq)
    A(f"v_cndmask_b32 v{QF+6}, v221, v{QF+6}, vcc\nv_cndmask_b32 v{QF+7}, 0, v{QF+7}, vcc")
    barrier()
    stamp("Kin")
    def w1_jobs(base, per, first, tok=None):
        return dma_jobs(W1, vP1, 3584, per, f"s_mul_i32 s{sSRC}, s{sW}, {per*8*3584}\ns_add_u32 s{sSRC}, s{sSRC}, s99\ns_add_u32 s{sSRC}, s{sSRC}, {first*8*3584}\ns_mul_i32 s{sLDS}, s{sW}, {per*1024}\ns_add_u32 s{sLDS}, s{sLDS}, {base+first*1024}", tok)
    mem1 = dma_jobs(WO, vPAN, 896, 15, f"s_mul_i32 s{sSRC}, s{sW}, {112*896}\ns_add_u32 s{sSRC}, s{sSRC}, s{sCOL}\ns_mov_b32 s{sLDS}, s79")
    mem1 += w1_jobs(L_P0, 10, 0) + w1_jobs(L_P0, 4, 40)
    tk = []
    def ldk(n):
        b = KB + 8 * (n % 4)
        for i in range(4): k = DS(f"ds_read_b64 v[{b+2*i}:{b+2*i+1}], v{vKA} offset:{2048*n+1024*(i>>1)+256*(i&1)}")
        tk.append(k)
    for n in range(3): ldk(n)
    run(mem1, 3)
    def mx(n):
        return [f"v_max_f32 v{vMX}, v{S}, v{S+1}" if (n == 0 and r == 0) else f"v_max3_f32 v{vMX}, v{vMX}, v{S+16*n+r}, v{S+16*n+r+1}" for r in range(0, 16, 2)]
    for n in range(9):
        lg.wait(tk[n])
        b = KB + 8 * (n % 4)
        m_ = mx(n - 2) if n >= 2 else []
        mfma(v(S + 16 * n, 16), v(b, 4), v(QF, 4), None if n in (0, 8) else "0")
        if n + 3 < 9: ldk(n + 3)
        else: run(mem1, 1)
        run(m_, 2)
        mfma(v(S + 16 * n, 16), v(b + 4, 4), v(QF + 4, 4))
        if n < 2: run(mem1, 1)
        run(m_, 6)
    vm.wait(tv)
    barrier()
    tvv = []
    def ldv(n):
        b = VB + 8 * (n % 2)
        DS(f"ds_read_b128 v[{b}:{b+3}], v{vVA} offset:{2048*n}")
        tvv.append(DS(f"ds_read_b128 v[{b+4}:{b+7}], v{vVA} offset:{2048*n+1024}"))
    ldv(0); ldv(1)
    run(mx(7), 9); run(mem1, 1); run(mx(8), 9)
    A(f"v_mov_b32 v{vT0}, v{vMX}\nv_permlane32_swap_b32 v{vMX}, v{vT0}\nv_max_f32 v{vMX}, v{vMX}, v{vT0}")
    stamp("qk")
    for i in range(72):
        A(f"v_pk_add_f32 v[{S+2*i}:{S+2*i+1}], v[{S+2*i}:{S+2*i+1}], v[{vMX}:{vMX+1}] op_sel_hi:[1,0] neg_lo:[0,1] neg_hi:[0,1]")
        if i % 24 == 23: run(mem1, 1)
    def soft(n, s_):
        r0 = S + 16 * n + 8 * s_
        for e in range(8): A(f"v_exp_f32 v{r0+e}, v{r0+e}")
        for e in range(4): A(f"v_cvt_pk_bf16_f32 v{r0+e}, v{r0+2*e}, v{r0+2*e+1}")
    soft(0, 0)
    for i in range(18):
        n, s_ = i >> 1, i & 1
        if i + 1 < 18: soft((i + 1) >> 1, (i + 1) & 1)
        if s_ == 0: lg.wait(tvv[n])
        mfma(v(OA, 16), v(VB + 8 * (n % 2) + 4 * s_, 4), v(S + 16 * n + 8 * s_, 4), "0" if i == 0 else None)
        if s_ == 1 and n + 2 < 9: ldv(n + 2)
        run(mem1, 2 if len(mem1) > 14 - i else 1)
    assert not mem1
    A(f"""v_cmp_eq_u32 vcc, 0, v{vHALF}
    v_mov_b32 v{vT0}, v{OA+12}
    v_mov_b32 v{vT1}, v{OA+12}
    v_permlane32_swap_b32 v{vT0}, v{vT1}
    v_rcp_f32 v{vT1}, v{vT1}""")
    for d in range(8):
        A(f"v_pk_mul_f32 v[{OA+2*d}:{OA+2*d+1}], v[{OA+2*d}:{OA+2*d+1}], v[{vT1}:{vT1+1}] op_sel_hi:[1,0]\nv_cvt_pk_bf16_f32 v{KB+d}, v{OA+2*d}, v{OA+2*d+1}")
        if d >= 6: A(f"v_cndmask_b32 v{KB+d}, 0, v{KB+d}, vcc")
        if d % 4 == 3: to = VM(f"buffer_store_dwordx4 v[{KB+d-3}:{KB+d}], v{vL16}, {WS}, s89 offen offset:{1024*(d//4)}")
    stamp("att")
    A(f"s_cmp_lt_u32 s{sM}, 28\ns_cbranch_scc1 L_opr")
    A("s_waitcnt vmcnt(0)")
    sv2 = (vm.n, vm.done, lg.n, lg.done); flag(98)
    A(f"""s_lshl_b32 s61, s{sW}, 6
    v_add_u32 v4, s61, v{vL}
    v_add_u32 v5, 256, v4
    v_min_u32 v5, 447, v5
    s_lshl_b32 s85, s{sHI}, 2
    s_add_u32 s85, s85, s{sW}
    s_min_u32 s62, s85, 111
    s_lshl_b32 s62, s62, 5
    v_and_b32 v16, 15, v{vL}
    v_lshl_add_u32 v17, v16, 1, s62
    global_load_ushort v18, v17, s[40:41]""")
    for r, d in ((4, 6), (5, 7)):
        A(f"""v_and_b32 v{d}, 0x1f8, v{r}
        v_and_b32 v{vT0}, 3, v{r}
        v_lshl_add_u32 v{d}, v{vT0}, 1, v{d}
        v_bfe_u32 v{vT0}, v{r}, 2, 1
        v_add_lshl_u32 v{d}, v{d}, v{vT0}, 3
        v_add_u32 v{d}, {L_VEC}, v{d}
        v_lshlrev_b32 v{r}, 4, v{r}""")
    A(f"""s_mov_b32 s{sCNT}, 0
    s_mov_b32 s61, {NU}
    L_nu:
    buffer_load_dwordx4 v[8:11], v4, {WS}, s61 offen sc1
    buffer_load_dwordx4 v[12:15], v5, {WS}, s61 offen sc1
    s_add_u32 s{sCNT}, s{sCNT}, 1
    s_waitcnt vmcnt(0)
    v_cmp_ne_u32 vcc, s{sTAG}, v9
    v_cmp_ne_u32 s[62:63], s{sTAG}, v11
    v_cmp_ne_u32 s[64:65], s{sTAG}, v13
    v_cmp_ne_u32 s[82:83], s{sTAG}, v15
    s_or_b64 vcc, vcc, s[62:63]
    s_or_b64 s[64:65], s[64:65], s[82:83]
    s_or_b64 vcc, vcc, s[64:65]
    s_cbranch_vccz L_nud
    s_cmp_lt_u32 s{sCNT}, {SPIN}
    s_cbranch_scc1 L_nu
    L_nud:
    v_mov_b32 v9, v10
    v_mov_b32 v13, v14
    ds_write_b64 v6, v[8:9]
    ds_write_b64 v7, v[12:13]
    v_lshrrev_b32 v20, 2, v{vL}
    v_bfe_u32 v21, v{vL}, 3, 2
    v_xor_b32 v21, s{sW}, v21
    v_lshlrev_b32 v21, 5, v21
    v_lshl_add_u32 v20, v20, 7, v21
    v_and_b32 v21, 3, v{vL}
    v_lshl_add_u32 v20, v21, 3, v20
    v_and_b32 v21, 1, v{vL}
    v_mul_u32_u24 v21, 896, v21
    v_and_b32 v22, 48, v{vL}
    v_sub_u32 v21, v22, v21
    v_add_u32 v21, {L_VEC+1792}, v21
    s_waitcnt lgkmcnt(0)""")
    barrier()
    A(f"""s_cmp_lg_u32 s{sG}, 7
    s_cbranch_scc1 L_hu
    s_cmp_lg_u32 s85, 112
    s_cbranch_scc1 L_fin
    s_mov_b64 exec, 1
    buffer_store_dword v{vTAG}, off, {WS}, 0 sc1
    s_mov_b64 exec, -1
    s_branch L_fin
    L_hu:""")
    gemv14(21, 20)
    A(f"""v_lshlrev_b32 v18, 16, v18
    s_lshl_b32 s61, s85, 8
    s_add_u32 s61, s61, {AUG}
    v_mov_b32 v31, s{sTAG}
    v_add_f32 v25, v25, v18
    v_cvt_pk_bf16_f32 v29, v24, v25
    v_lshlrev_b32 v26, 16, v29
    v_and_b32 v27, 0xffff0000, v29
    v_sub_f32 v24, v24, v26
    v_sub_f32 v25, v25, v27
    v_cvt_pk_bf16_f32 v28, v26, v24
    v_cvt_pk_bf16_f32 v30, v25, v27
    s_mov_b64 exec, 0xffff
    buffer_store_dwordx4 v[28:31], v{vL16}, {WS}, s61 offen sc1
    s_mov_b64 exec, -1
    s_branch L_fin
    L_opr:""")
    vm.n, vm.done, lg.n, lg.done = sv2

    XR = 128; GA = 136; A2 = 152; X1 = 168; WB = 184
    A(f"""v_mul_u32_u24 v{vROW}, 896, v{vL31}
    v_lshl_add_u32 v{vROW}, v{vHALF}, 4, v{vROW}
    s_mul_i32 s80, s{sTO}, 28672
    s_lshl_b32 s61, s{sNB}, 1
    s_add_u32 s69, s61, s{sKH}
    s_lshl_b32 s61, s69, 6
    s_add_u32 s{sROW}, s80, s61
    v_and_b32 v4, 7, v{vL}
    v_lshl_add_u32 v6, v4, 3, s61
    v_bfe_u32 v5, v{vL}, 3, 2
    v_min_u32 v5, 2, v5
    v_min_u32 v7, 1, v5
    v_add_u32 v5, v5, v7
    v_mul_u32_u24 v5, 1792, v5
    v_lshl_add_u32 v4, v4, 4, v5
    s_lshl_b32 s61, s69, 7
    s_add_u32 s85, s61, {NU}""")
    tnu = VM(f"buffer_load_dwordx4 v[8:11], v4, {WS}, s85 offen sc1")
    tb2 = VM(f"global_load_dwordx2 v[12:13], v6, s[42:43]")
    VM(f"buffer_load_dwordx4 v[{XR}:{XR+3}], v{vROW}, {X}, s{sROW} offen")
    VM(f"buffer_load_dwordx4 v[{XR+4}:{XR+7}], v{vROW}, {X}, s{sROW} offen offset:32")
    vIN, vOUTB, vWO = 229, 230, 227
    A(f"""s_lshl_b32 s61, s{sW}, 9
    s_add_u32 s61, s61, {L_VEC}
    v_lshl_add_u32 v7, v{vL31}, 4, s61
    v_lshl_add_u32 v{vVEC}, v{vHALF}, 4, s61
    v_and_b32 v{vT3}, 7, v{vL}
    v_lshlrev_b32 v{vT3}, 2, v{vT3}
    s_and_b32 s61, s{sTO}, 7
    s_lshl_b32 s61, s61, 6
    s_add_u32 s61, s61, s{sCTL}
    s_lshl_b32 s62, s69, 2
    s_add_u32 s81, s61, s62
    s_add_u32 s81, s81, {C_FY}
    s_lshl_b32 s62, s{sKH}, 5
    s_add_u32 s61, s61, s62
    s_add_u32 s82, s61, {C_FO}
    s_lshl_b32 s62, s{sTO}, 1
    s_add_u32 s62, s62, s{sKH}
    s_lshl_b32 s62, s62, 14
    s_add_u32 s83, s62, {QO}
    s_xor_b32 s99, s99, 128""")
    vm.wait(to)
    flag(98)
    stamp("opub")
    if stop <= 3: return done()
    barrier()
    run(w2_dma(7, sEX, 0), 99)
    stamp("pre2")
    poll(vT3, "s82")
    stamp("S2")
    to = [Tok() for _ in range(16)]
    mem = [jVM(f"buffer_load_dwordx4 v[{16+4*i}:{19+4*i}], v{vL16}, {WS}, s83 offen offset:{1024*(i%4)} sc1", to[i], "s_add_u32 s83, s83, 4096" if (i % 4 == 0 and i) else None) for i in range(16)]
    run(mem, PRO)
    A(f"""s_mul_i32 s61, s{sKH}, {224*128}
    v_add_u32 v{vWO}, s61, v{vR0}
    v_add_u32 v{vWO+1}, s61, v{vR0+1}""")
    order = [(i, t) for i in range(11) for t in (1, 0)] + [(i, 1) for i in range(11, 16)] + [(i, 0) for i in range(11, 16)]
    two = {}
    def ldo(k):
        i, t = order[k]; b = WB + 4 * (k % 8); two[k] = Tok(); off = L_WO + 3584 * (i >> 1) + 2048 * (i & 1)
        return [jDS(f"ds_read_b64_tr_b16 v[{b}:{b+1}], v{vWO+t} offset:{off}"), jDS(f"ds_read_b64_tr_b16 v[{b+2}:{b+3}], v{vWO+t} offset:{off+1024}", two[k])]
    for k in range(5): run(ldo(k), 2)
    A(f"""s_mov_b32 s{sCNT}, 0
    L_nv:
    v_cmp_ne_u32 vcc, s{sTAG}, v9
    v_cmp_ne_u32 s[62:63], s{sTAG}, v11
    s_or_b64 vcc, vcc, s[62:63]
    s_cbranch_vccnz L_nvr
    L_nvd:
    v_cmp_lt_u32 vcc, 23, v{vL31}
    v_cndmask_b32 v8, v8, v12, vcc
    v_cndmask_b32 v10, v10, v13, vcc
    v_and_b32 v9, 0xffff0000, v8
    v_lshlrev_b32 v8, 16, v8
    v_and_b32 v11, 0xffff0000, v10
    v_lshlrev_b32 v10, 16, v10""")
    tail.append(f"""L_nvr:
    s_add_u32 s{sCNT}, s{sCNT}, 1
    s_cmp_ge_u32 s{sCNT}, {SPIN}
    s_cbranch_scc1 L_nvd
    buffer_load_dwordx4 v[8:11], v4, {WS}, s85 offen sc1
    s_waitcnt vmcnt(0)
    s_branch L_nv""")
    DS("ds_write_b128 v7, v[8:11]")
    side = [f"v_permlane32_swap_b32 v{XR+a_}, v{XR+a_+2}" for a_ in (0, 1, 4, 5)]
    for d in range(8): side += [f"v_lshlrev_b32 v{X1+2*d}, 16, v{XR+d}", f"v_and_b32 v{X1+2*d+1}, 0xffff0000, v{XR+d}"]
    for a_ in range(4):
        side.append(jDS(f"ds_read_b128 v[{GA+4*a_}:{GA+4*a_+3}], v{vVEC} offset:{32*a_}"))
        side.append(jDS(f"ds_read_b128 v[{A2+4*a_}:{A2+4*a_+3}], v{vVEC} offset:{128+32*a_}"))
    side += lines(f"""    v_add_u32 v{vIN}, s{sEX}, v{vL16}
    s_xor_b32 s61, s{sW}, 2
    s_mul_i32 s61, s61, 8960
    s_add_u32 s61, s61, {L_EX}
    v_add_u32 v{vOUTB}, s61, v{vL16}
    s_lshl_b32 s61, s69, 11
    s_add_u32 s80, s80, s61
    s_mul_i32 s84, s{sTO}, 3584
    s_lshl_b32 s61, s{sNB}, 9
    s_add_u32 s84, s84, s61
    s_lshl_b32 s61, s{sKH}, 3
    s_add_u32 s84, s84, s61
    s_add_u32 s84, s84, {STATS}""")
    t7 = Tok(); t8 = Tok(); run(w2_read(7, vS0, 0, t7), 99)
    bulk = [lambda: lg.wait(t7.t)] + w2_dma(8, sEX, 0, t8)
    run(side, 20)
    ACC = 80
    wr = [jDS(f"ds_write_b128 v{vOUTB}, v[{ACC+16+4*q}:{ACC+19+4*q}] offset:{4096+1024*q}") for q in range(4)]
    for k, (i, t) in enumerate(order):
        vm.wait(to[i].t); lg.wait(two[k].t)
        mfma(v(ACC + 16 * t, 16), v(WB + 4 * (k % 8), 4), v(16 + 4 * i, 4), "0" if i == 0 else None)
        if k + 5 < 32: run(ldo(k + 5), 2)
        if k % 2 == 0:
            if mem: run(mem, 1)
            else: run(bulk, 1)
        else: run(side, 2)
        if k >= 29: run(wr, 2)
        if 'fine' in dbg and k in (0, 16, 31): stamp(f'o{k}')
    assert not side and not bulk
    lg.all()
    barrier()
    tk = [DS(f"ds_read_b128 v[{4*q}:{4*q+3}], v{vIN} offset:{4096+1024*q}") for q in range(4)]
    for q in range(4):
        lg.wait(tk[q])
        for e in range(0, 4, 2):
            r = 4 * q + e
            A(f"""v_pk_add_f32 v[{ACC+r}:{ACC+r+1}], v[{ACC+r}:{ACC+r+1}], v[{r}:{r+1}]
            v_pk_fma_f32 v[{X1+r}:{X1+r+1}], v[{ACC+r}:{ACC+r+1}], v[{GA+r}:{GA+r+1}], v[{X1+r}:{X1+r+1}]
            v_pk_mul_f32 v[{ACC+r}:{ACC+r+1}], v[{X1+r}:{X1+r+1}], v[{A2+r}:{A2+r+1}]
            v_cvt_pk_bf16_f32 v{112+r//2}, v{ACC+r}, v{ACC+r+1}""")
        if q % 2 == 1: VM(f"buffer_store_dwordx4 v[{110+2*q}:{113+2*q}], v{vL16}, {OUT}, s80 offen offset:{1024*(q//2)}")
    A(f"v_pk_add_f32 v[120:121], v[{X1}:{X1+1}], v[{X1+2}:{X1+3}]\nv_pk_mul_f32 v[122:123], v[{X1}:{X1+1}], v[{X1}:{X1+1}]")
    for d in range(1, 8):
        if d >= 2: A(f"v_pk_add_f32 v[120:121], v[120:121], v[{X1+2*d}:{X1+2*d+1}]")
        A(f"v_pk_fma_f32 v[122:123], v[{X1+2*d}:{X1+2*d+1}], v[{X1+2*d}:{X1+2*d+1}], v[122:123]")
    A(f"""v_add_f32 v120, v120, v121
    v_add_f32 v121, v122, v123
    v_mov_b32 v122, v120
    v_mov_b32 v123, v121
    v_permlane32_swap_b32 v120, v122
    v_permlane32_swap_b32 v121, v123
    v_add_f32 v120, v120, v122
    v_add_f32 v121, v121, v123
    s_mov_b32 exec_hi, 0""")
    ty = VM(f"buffer_store_dwordx2 v[120:121], v{vL16}, {WS}, s84 offen")
    A("s_mov_b64 exec, -1")
    stamp("oproj")

    tp1 = Tok()
    run(w1_jobs(L_P1, 8, 0), 99)
    bulk = w1_jobs(L_P1, 6, 32, tp1)
    vSTA, vW1 = 229, 228
    for r in range(16): A(f"v_accvgpr_write_b32 a{224+r}, v{X1+r}")
    fd = f"""s_lshl_b32 s62, s61, 7
        s_add_u32 s62, s62, s{sCTL}
        s_lshl_b32 s63, s{sJ}, 2
        s_add_u32 s62, s62, s63
        s_add_u32 s85, s62, {C_FD}
        s_add_u32 s86, s85, 64
        s_mul_i32 s84, s{sTQ}, 14
        s_add_u32 s84, s84, s{sJ}
        s_lshl_b32 s84, s84, 7
        s_add_u32 s84, s84, {RS2}"""
    A(f"""v_min_u32 v{vT3}, 13, v{vL}
    v_lshlrev_b32 v{vT3}, 2, v{vT3}
    s_and_b32 s61, s{sTQ}, 7
    s_lshl_b32 s62, s61, 6
    s_add_u32 s62, s62, s{sCTL}
    s_add_u32 s82, s62, {C_FY}
    {fd}
    s_mul_i32 s83, s{sTQ}, 28672
    s_mul_i32 s87, s{sTQ}, 3584
    s_add_u32 s87, s87, {STATS}
    s_mul_i32 s88, s{sTQ}, 114688
    s_lshl_b32 s61, s{sJ}, 1
    s_add_u32 s61, s61, s{sPSW}
    s_lshl_b32 s62, s61, 12
    s_add_u32 s88, s88, s62
    s_add_u32 s88, s88, {HID}
    s_lshl_b32 s61, s61, 10
    s_add_u32 s89, s61, {AUG}
    s_xor_b32 s61, s61, 1024
    s_add_u32 s92, s61, {AUG}
    v_lshlrev_b32 v{vSTA}, 11, v{vHALF}
    v_lshl_add_u32 v{vSTA}, v{vL31}, 4, v{vSTA}
    v_lshlrev_b32 v{vSTA+1}, 30, v{vHALF}
    v_add_u32 v{vSTA+1}, v{vSTA+1}, v{vSTA}
    v_add_u32 v{vW1}, {L_P0}, v{vTP0}
    v_add_u32 v{vW1-1}, {L_P0}, v{vTP1}""")
    vm.wait(ty); flag(81); stamp("ypub")
    if stop <= 4: return done()
    VM(f"buffer_load_dwordx4 v[144:147], v{vL16}, {WS}, s89 offen sc1")
    VM(f"buffer_load_dwordx4 v[148:151], v{vL16}, {WS}, s92 offen sc1")
    run(w2_read(8, vS0, 0), 99)
    poll(vT3, "s82")
    stamp("S3")
    ty = [Tok() for _ in range(28)]; ts = Tok()
    mem = [jVM(f"buffer_load_dwordx4 v[{4*s_}:{4*s_+3}], v{vL16}, {OUT}, s83 offen offset:{1024*(s_%4)} sc1", ty[s_], "s_add_u32 s83, s83, 4096" if (s_ % 4 == 0 and s_) else None) for s_ in range(28)]
    stl = [jVM(f"buffer_load_dwordx4 v[{160+4*i}:{163+4*i}], v{vSTA+(i==3)}, {WS}, s87 offen offset:{512*i} sc1", ts) for i in range(4)]
    run(mem, PRO)
    ACC = 112; WB = 176; vRS = 226; AU = 248; BA = 240
    tw = {}
    def ld1(i):
        pn, s_ = divmod(i, 28)
        b = WB + 8 * (i % 4); js = []; tw[i] = Tok()
        for t in range(2):
            ad = (vW1 - t) if pn == 0 else (vTP0 - t)
            js.append(jDS(f"ds_read_b64_tr_b16 v[{b+4*t}:{b+4*t+1}], v{ad} offset:{2048*s_}"))
            js.append(jDS(f"ds_read_b64_tr_b16 v[{b+4*t+2}:{b+4*t+3}], v{ad} offset:{2048*s_+1024}", tw[i]))
        return js
    for i in range(3): run(ld1(i), 4)
    A(f"""s_mov_b32 s{sCNT}, 0
    L_au:
    v_cmp_ne_u32 vcc, s{sTAG}, v147
    v_cmp_ne_u32 s[62:63], s{sTAG}, v151
    s_or_b64 vcc, vcc, s[62:63]
    s_cbranch_vccnz L_aur
    L_aud:""")
    tail.append(f"""L_aur:
    s_add_u32 s{sCNT}, s{sCNT}, 1
    s_cmp_ge_u32 s{sCNT}, {SPIN}
    s_cbranch_scc1 L_aud
    buffer_load_dwordx4 v[144:147], v{vL16}, {WS}, s89 offen sc1
    buffer_load_dwordx4 v[148:151], v{vL16}, {WS}, s92 offen sc1
    s_waitcnt vmcnt(0)
    s_branch L_au""")
    for r in range(8): A(f"v_accvgpr_write_b32 a{AU+r}, {'0' if r % 4 == 3 else 'v%d' % (144 + r)}")
    A(f"v_accvgpr_write_b32 a{BA+3}, 0\nv_accvgpr_write_b32 a{BA+7}, 0\nv_cmp_eq_u32 s[90:91], 0, v{vHALF}")
    stat = lines(f"""v_add_f32 v208, v160, v162
    v_add_f32 v209, v161, v163
    v_add_f32 v210, v164, v166
    v_add_f32 v211, v165, v167
    v_add_f32 v212, v168, v170
    v_add_f32 v213, v169, v171
    v_add_f32 v214, v172, v174
    v_add_f32 v215, v173, v175
    v_add_f32 v208, v208, v210
    v_add_f32 v209, v209, v211
    v_add_f32 v212, v212, v214
    v_add_f32 v213, v213, v215
    v_add_f32 v208, v208, v212
    v_add_f32 v209, v209, v213
    v_mov_b32 v210, v208
    v_mov_b32 v211, v209
    v_permlane32_swap_b32 v208, v210
    v_permlane32_swap_b32 v209, v211
    v_add_f32 v208, v208, v210
    v_add_f32 v209, v209, v211
    v_mul_f32 v208, 0xbb124925, v208
    v_mul_f32 v209, 0x3b124925, v209
    v_fma_f32 v209, -v208, v208, v209
    v_max_f32 v209, 0, v209
    v_add_f32 v209, 0x3727c5ac, v209
    v_rcp_f32 v{vRS}, v209
    v_sqrt_f32 v209, v209
    v_cvt_pk_bf16_f32 v213, v208, v208
    v_cvt_pk_bf16_f32 v210, v209, v209
    v_and_b32 v211, 0xffff0000, v213
    v_and_b32 v210, 0xffff0000, v210
    v_sub_f32 v211, v208, v211
    v_sub_f32 v212, v209, v210
    v_cvt_pk_bf16_f32 v214, v211, v210
    v_cvt_pk_bf16_f32 v215, v210, v212""")
    for r in range(3):
        stat += [f"v_cndmask_b32 v{216+r}, 0, v{213+r}, s[90:91]", f"v_cndmask_b32 v{219+r}, v{213+r}, 0, s[90:91]"]
    for r in range(3): stat += [f"v_accvgpr_write_b32 a{BA+r}, v{216+r}", f"v_accvgpr_write_b32 a{BA+4+r}, v{219+r}"]
    def epi_list(pn, last):
        e = []
        for t in range(2):
            c = ACC + 32 * pn + 16 * t
            for d in range(8):
                r = c + 2 * d; p = 208 + 8 * t + d
                e += [f"v_mul_f32 v{r}, v{r}, abs(v{r})", f"v_mul_f32 v{r+1}, v{r+1}, abs(v{r+1})", f"v_cvt_pk_bf16_f32 v{p}, v{r}, v{r+1}", f"v_pk_max_i16 v{p}, v{p}, 0"]
                if d % 4 == 3: e.append(jVM(f"buffer_store_dwordx4 v[{205+8*t+d}:{208+8*t+d}], v{vL16}, {WS}, s88 offen offset:{2048*t+1024*(d//4)} sc1", last))
        return e
    mem = mem + stl + bulk
    tA = Tok(); last0 = Tok(); last1 = Tok()
    side = []
    def aug(pn):
        for t in range(2): mfma(v(ACC + 32 * pn + 16 * t, 16), a(AU + 4 * pn, 4), a(BA + 4 * t, 4))
    AUG0 = 35
    for i in range(56):
        pn, s_ = divmod(i, 28)
        if pn == 0: vm.wait(ty[s_].t)
        lg.wait(tw[i].t)
        if i == 24: barrier()
        if i == 26: vm.wait(ts.t); side = list(stat) + [f"v_lshlrev_b32 v{vT2}, 2, v{vL31}"]
        if i == 28:
            assert not mem
            mem = w2_dma(9, sEX, 0) + w2_dma(10, sEX, 4096)
        if i == AUG0:
            assert not side
            vm.wait(tp1.t); barrier()
            aug(0)
            A(f"s_mul_i32 s79, s{sW}, 14336\ns_add_u32 s79, s79, {L_P0}\nv_add_u32 v{vT0}, s79, v{vR0}\nv_add_u32 v{vT1}, s79, v{vR0+1}")
            VM(f"buffer_store_dword v{vRS}, v{vT2}, {WS}, s84 offen sc1")
        if i == AUG0 + 1: side = epi_list(0, last0)
        if i == AUG0 + 9:
            for k in range(3): mem += w2_dma(11 + k, 79, 4096 * k, tA)
        b = WB + 8 * (i % 4)
        nx = ld1(i + 3) if i + 3 < 56 else []
        for t in range(2):
            mfma(v(ACC + 32 * pn + 16 * t, 16), v(b + 4 * t, 4), v(4 * s_, 4), "0" if s_ == 0 else None)
            if t == 0:
                if mem: run(mem, 1); run(nx, 1); run(side, 2)
                else: run(nx, 2); run(side, 3)
            else:
                run(nx, 3); run(side, 4 if i < AUG0 else 3)
        if i == 27: stamp("f1a")
        if 'fine' in dbg and i in (0, 9, 18, 34, 44, 55): stamp(f'f{i}')
    assert not mem and not side
    aug(1)
    vm.wait(last0.t); flag(85)
    A(f"s_add_u32 s88, s88, s{sDH}")
    e1 = epi_list(1, last1)
    late_st = [e for e in e1 if callable(e)] if pollfirst else []
    run([e for e in e1 if e not in late_st], 999)
    stamp("ffn1")

    ACC = 0; HB = 64; NB_ = 40
    vH0, vH1, vFD = 224, 225, 226
    A(f"""v_and_b32 v{vT2}, 3, v{vL}
    v_lshlrev_b32 v{vT2}, 2, v{vT2}
    v_bfe_u32 v{vT3}, v{vL}, 2, 1
    v_lshl_add_u32 v{vFD}, v{vT3}, 7, v{vT2}
    s_and_b32 s61, s{sTO}, 6
    s_lshl_b32 s61, s61, 7
    s_add_u32 s61, s61, s{sCTL}
    s_mul_i32 s62, s{sW}, 7
    s_lshr_b32 s62, s62, 1
    s_mul_i32 s82, s{sTO}, 14
    s_add_u32 s82, s82, s62
    s_lshl_b32 s82, s82, 7
    s_add_u32 s82, s82, {RS2}
    s_lshl_b32 s62, s62, 2
    s_add_u32 s61, s61, s62
    s_add_u32 s80, s61, {C_FD}
    s_add_u32 s81, s80, 64
    v_lshlrev_b32 v{vT2}, 2, v{vL31}""")
    A(f"""s_mul_i32 s61, s{sTO}, 114688
    s_add_u32 s61, s61, {HID}
    v_add_u32 v{vH0}, s61, v{vL16}
    s_xor_b32 s61, s{sTO}, 1
    s_mul_i32 s61, s61, 114688
    s_add_u32 s61, s61, {HID}
    v_add_u32 v{vH1}, s61, v{vL16}""")
    for q in range(7): A(f"s_lshl_b32 s{sFT+q}, s{sFT+q}, 11")
    if stop <= 5:
        vm.wait(last1.t); return done()
    poll(vFD, "s80")
    stamp("S4a")
    seq = list(range(40)) + list(range(41, 56, 2)) + list(range(40, 56, 2))
    th = [Tok() for _ in range(56)]
    bumped = set()
    def hj(p):
        i = seq[p]; u, s_, mh = i >> 2, (i >> 1) & 1, i & 1
        b = HB + 4 * (p % NB_)
        pre = None
        if u >= 7 and u not in bumped: bumped.add(u); pre = f"s_add_u32 s{sFT+u%7}, s{sFT+u%7}, s{sDH}"
        return jVM(f"buffer_load_dwordx4 v[{b}:{b+3}], v{vH1 if mh else vH0}, {WS}, s{sFT+u%7} offen offset:{1024*s_} sc1", th[p], pre)
    mem = [hj(i) for i in range(28)]
    if not pollfirst: flag(86)
    run(mem, PRO - len(late_st) // 2)
    run(late_st, 4)
    trs = Tok(); mem.append(jVM(f"buffer_load_dword v{vT3}, v{vT2}, {WS}, s82 offen sc1", trs))
    vRW, vRR = 227, 230
    for k in range(1, 4):
        A(f"s_xor_b32 s61, s{sW}, {k}\ns_mul_i32 s61, s61, 12288\ns_add_u32 s61, s61, {4096*(k-1)}\nv_add_u32 v{vRW+k-1}, s61, v{vL16}")
    A(f"s_mul_i32 s61, s{sW}, 12288\nv_add_u32 v{vRR}, s61, v{vL16}")
    trd = Tok()
    rds = w2_read(9, vS0, 0) + w2_read(10, vS0, 4096) + w2_read(11, vT0, 0) + w2_read(12, vT0, 4096) + w2_read(13, vT0, 8192, trd)
    run(rds, 16)
    def mm(p, t):
        i = seq[p]; u, s_, mh = i >> 2, (i >> 1) & 1, i & 1
        vm.wait(th[p].t)
        mfma(v(ACC + 16 * (2 * t + mh), 16), a(16 * u + 8 * s_ + 4 * t, 4), v(HB + 4 * (p % NB_), 4), "0" if i < 2 else None)
    side = []
    tgb = Tok()
    for a_ in range(4):
        side.append(jDS(f"ds_read_b128 v[{160+4*a_}:{163+4*a_}], v{vVEC} offset:{256+32*a_}"))
        side.append(jDS(f"ds_read_b128 v[{176+4*a_}:{179+4*a_}], v{vVEC} offset:{384+32*a_}", tgb))
    side += [f"v_accvgpr_read_b32 v{144+r}, a{224+r}" for r in range(16)]
    side.append(lambda: lg.wait(tgb.t))
    for r in range(16): side.append(f"v_fmac_f32 v{144+r}, v{160+r}, v{176+r}")
    for r in range(16): side.append(f"v_mul_f32 v{160+r}, v{160+r}, v{vT3}")
    tpl = Tok()
    for i in range(48):
        if pollfirst and i == LFLAG: vm.wait(last1.t); flag(86)
        if i == LATE:
            jVM(f"buffer_load_dword v{vJUNK}, v{vFD}, {WS}, s81 offen sc1", tpl)()
        if i == LATE + LATW:
            lr, lj = U("lr"), U("lj")
            vm.wait(tpl.t)
            A(f"v_cmp_ne_u32 vcc, s{sTAG}, v{vJUNK}\ns_cmp_eq_u32 s{sUNI}, 0\ns_cbranch_scc1 {lr}\ns_cbranch_vccnz {lr}\n{lj}:")
            tail.append(f"""{lr}:
            s_mov_b32 s{sCNT}, 0
            {lr}a:
            buffer_load_dword v{vJUNK}, v{vFD}, {WS}, s81 offen sc1
            s_add_u32 s{sCNT}, s{sCNT}, 1
            s_waitcnt vmcnt(0)
            v_cmp_ne_u32 vcc, s{sTAG}, v{vJUNK}
            s_cbranch_vccz {lr}b
            s_cmp_lt_u32 s{sCNT}, {SPIN}
            s_cbranch_scc1 {lr}a
            {lr}b:
            s_cmp_eq_u32 s{sUNI}, 1
            s_cbranch_scc1 {lj}
            buffer_inv sc1
            s_waitcnt vmcnt(0)
            s_branch {lj}""")
            stamp("S4b")
            mem += [hj(k) for k in range(28, 56)]
            run(mem, max(0, len(mem) - 28 + min(PRO, i + PRO - 28)) if i + PRO > 29 else 0)
        if i == 20: barrier()
        if i == 24: lg.wait(trd.t)
        mm(i, 0); run(mem, 1); mm(i, 1); run(rds, 3)
        if i >= 33: run(side, 4)
        if 'fine' in dbg and i in (0, 8, 16, 28, 36): stamp(f'g{i}')
    assert not mem and not side
    wrj = lambda k: [jDS(f"ds_write_b128 v{vRW+k-1}, v[{ACC+16*k+4*q}:{ACC+16*k+4*q+3}] offset:{1024*q}") for q in range(4)]
    wr = wrj(1) + wrj(3)
    tailo = [(48, 1), (48, 0), (49, 1), (49, 0), (50, 1), (50, 0), (51, 1), (52, 1), (53, 1), (54, 1), (55, 1), (51, 0), (52, 0), (53, 0), (54, 0), (55, 0)]
    for n, (p, t) in enumerate(tailo):
        mm(p, t)
        if n == 12: wr += wrj(2)
        if n >= 2 and n % 3 != 1: run(wr, 1)
    run(wr, 99)
    stamp("ffn2")
    lg.all()
    barrier()
    tk = {}
    for q in range(4):
        for k in range(3): tk[q] = DS(f"ds_read_b128 v[{64+16*k+4*q}:{67+16*k+4*q}], v{vRR} offset:{4096*k+1024*q}")
    for q in range(4):
        lg.wait(tk[q])
        for e in range(0, 4, 2):
            r = 4 * q + e
            A(f"""v_pk_add_f32 v[{64+r}:{65+r}], v[{64+r}:{65+r}], v[{80+r}:{81+r}]
            v_pk_add_f32 v[{96+r}:{97+r}], v[{96+r}:{97+r}], v[{r}:{r+1}]
            v_pk_add_f32 v[{64+r}:{65+r}], v[{64+r}:{65+r}], v[{96+r}:{97+r}]
            v_pk_fma_f32 v[{144+r}:{145+r}], v[{64+r}:{65+r}], v[{160+r}:{161+r}], v[{144+r}:{145+r}]
            v_cvt_pk_bf16_f32 v{192+r//2}, v{144+r}, v{145+r}""")
        if q % 2 == 1:
            b = 192 + 2 * (q - 1)
            A(f"v_permlane32_swap_b32 v{b}, v{b+2}\nv_permlane32_swap_b32 v{b+1}, v{b+3}")
            VM(f"buffer_store_dwordx4 v[{b}:{b+3}], v{vROW}, {OUT}, s{sROW} offen offset:{16*(q-1)}")
    stamp("done")
    return done()

HEAD = open("adaLN_cond__sliding_block__dense_activation_squared_relu__prompt.s.ref").read().split("; Override launch")[0]
def wrap(A, tail):
    for t in tail: A(t)
    A("L_exit:\ns_endpgm")
    A.raw("CODE_END:")
    txt = HEAD + f"; @launch grid=(256,1,1) block=(256,1,1) lds={LDS_BYTES}\n.amdgcn_target \"amdgcn-amd-amdhsa--gfx950\"\n.text\n" + kernel_header(NAME) + A.text()
    txt += ".section .rodata,\"a\"\n.p2align 6\n" + kernel_desc(NAME, 512, 102, 256)
    return txt

if __name__ == "__main__":
    out = sys.argv[1]
    kw = eval("dict(" + (sys.argv[2] if len(sys.argv) > 2 else "") + ")")
    t, names = gen(**kw)
    open(out, "w").write(t)
    if names: json.dump(names, open(out + ".json", "w"))
    print(out, len(t.split("\n")), "lines", len(names), "stamps")
```

```python
import sys, json, struct
from asmgen import *
NAME = "adaLN_cond__sliding_block__dense_activation_squared_relu__prompt_kernel"
QSCALE = struct.unpack("<I", struct.pack("<f", 28 ** -0.5 * 1.4426950408889634))[0]

CTL = 0x4000
C_FH, C_FQ, C_FO, C_FY, C_FD = 0, 0x200, 0x400, 0x600, 0x800
S0U = 0x10000
XCCG = 0x14000
AUG = 0x1C000
STATS = 0x28000
NU = 0x70000
FKV = 0x72000
RS2 = 0x80000
QO = 0x100000
KG = 0x300000
VG = 0x500000
HID = 0x700000
STAMP = 0xF00000
WSZ = 0x1000000
OOB = 0x40000000
L_WKV, L_B, L_WQ = 0, 57344, 122880
L_K, L_V = 102400, 126976
L_WO = 0; L_SA = 58368
L_P0 = 58368; L_P1 = 0
L_EX = 115712
L_MISC = 151552
L_X = L_MISC; L_VEC = L_MISC; L_SILU = L_MISC + 7168; L_MODV = L_MISC + 8192
LDS_BYTES = 163840
sW, sG, sM, sTAG, sUNI = 3, 4, 5, 6, 7
X, WQKV, WO, W1, W2, WMOD, OUT, WS = [f"s[{i}:{i+3}]" for i in (8, 12, 16, 20, 24, 28, 32, 36)]
sXCC, sCTL = 46, 47
sJ, sTQ, sHEAD, sRB, sTA, sNB, sTO, sKH, sMH, sRBQ, sHI, sCOL = 48, 49, 50, 51, 52, 53, 54, 55, 56, 57, 58, 59
sCNT = 60
sSRC, sLDS = 67, 68
sFT = 70
sROW = 77; sEX = 78; sDL = 94; sDH = 95; sPSW = 96
vL, vL16, vTN0, vTN1, vTP0, vTP1 = 255, 254, 253, 252, 251, 250
vPAN = 246
vTAG, vHALF, vL31 = 245, 244, 243
vT0, vT1, vT2, vT3 = 239, 240, 241, 242
vJUNK, vST, vROW, vVEC = 238, 237, 236, 235
NEG = 0xF149F2CA
SPIN_A, SPIN = 48, 60000

class Ctr:
    def __init__(s, A, name, mx): s.A, s.name, s.mx, s.n, s.done = A, name, mx, 0, 0
    def issue(s): s.n += 1; return s.n
    def wait(s, tok):
        if tok <= s.done: return
        k = min(s.n - tok, s.mx)
        s.A.e(f"s_waitcnt {s.name}({k})"); s.done = s.n - k
    def all(s): s.A.e(f"s_waitcnt {s.name}(0)"); s.done = s.n
    def drained(s): s.done = s.n

def gen(stop=99, stamps=False, force_slow=False, n1=0, rot=True, PRO=10, LATE=8, LATW=10, only=None, meas=None, dbg=(), hmod=' sc1', touch='B0', wq='h', n3=8, pollfirst=False, LFLAG=12):
    A = Asm()
    vm = Ctr(A, "vmcnt", 63); lg = Ctr(A, "lgkmcnt", 15)
    tail = []; nst = [0]; uid = [0]; names = []
    def U(p): uid[0] += 1; return f"L_{p}{uid[0]}"
    def stamp(nm):
        if meas and nm in meas[:2]:
            A(f"s_memrealtime s[100:101]\ns_waitcnt lgkmcnt(0)\nv_writelane_b32 v{vST}, s100, {meas.index(nm)}"); lg.drained()
        if not stamps or (only and nm not in only): return
        if nm in names: i = names.index(nm)
        else: i = len(names); names.append(nm)
        A(f"{'s_memtime' if stamps == 2 else 's_memrealtime'} s[100:101]\ns_waitcnt lgkmcnt(0)\nv_writelane_b32 v{vST}, s100, {i}"); lg.drained()
    def VM(t): A(t); return vm.issue()
    def DS(t): A(t); return lg.issue()
    def barrier(): A("s_barrier")
    def mfma(d, a_, b_, c=None): A(f"v_mfma_f32_32x32x16_bf16 {d}, {a_}, {b_}, {c if c is not None else d}")
    def run(q, n):
        for _ in range(n):
            if not q: return
            e = q.pop(0)
            if callable(e): e()
            else: A(e)
    def lines(t): return [x.strip() for x in t.strip().split("\n") if x.strip()]
    class Tok:
        t = None
    def jVM(text, tok=None, pre=None):
        def f():
            if pre: A(pre)
            k = VM(text)
            if tok is not None: tok.t = k
        return f
    def jDS(text, tok=None):
        def f():
            k = DS(text)
            if tok is not None: tok.t = k
        return f

    def flag(soff, slow=False):
        A("s_mov_b64 exec, 1")
        if slow: VM(f"buffer_store_dword v{vTAG}, off, {WS}, s{soff} sc1")
        else:
            ls, lj = U("fs"), U("fj")
            A(f"s_cmp_eq_u32 s{sUNI}, 0\ns_cbranch_scc1 {ls}")
            VM(f"buffer_store_dword v{vTAG}, off, {WS}, s{soff}")
            A(f"{lj}:")
            tail.append(f"{ls}:\nbuffer_wbl2 sc1\ns_waitcnt vmcnt(0)\nbuffer_store_dword v{vTAG}, off, {WS}, s{soff} sc1\ns_branch {lj}")
        A("s_mov_b64 exec, -1")
    def poll(vaddr, soff):
        lp, ld, li, lj = U("p"), U("pd"), U("pi"), U("pj")
        A(f"s_mov_b32 s{sCNT}, 0\n{lp}:\nbuffer_load_dword v{vJUNK}, v{vaddr}, {WS}, {soff} offen sc1\ns_add_u32 s{sCNT}, s{sCNT}, 1\ns_waitcnt vmcnt(0)")
        A(f"v_cmp_ne_u32 vcc, s{sTAG}, v{vJUNK}\ns_cbranch_vccz {ld}\ns_cmp_lt_u32 s{sCNT}, {SPIN}\ns_cbranch_scc1 {lp}\n{ld}:")
        vm.drained()
        A(f"s_cmp_eq_u32 s{sUNI}, 0\ns_cbranch_scc1 {li}\n{lj}:")
        tail.append(f"{li}:\nbuffer_inv sc1\ns_waitcnt vmcnt(0)\ns_branch {lj}")
    def panel_addr(dst, rs, swz="std"):
        t = f"v_lshrrev_b32 v{vT0}, 3, v{vL}\nv_and_b32 v{vT1}, 7, v{vL}\n"
        if swz == "std": t += f"v_bfe_u32 v{vT2}, v{vL}, 4, 1\nv_lshlrev_b32 v{vT2}, 2, v{vT2}\n"
        else: t += f"v_bfe_u32 v{vT2}, v{vL}, 4, 2\nv_lshlrev_b32 v{vT2}, 1, v{vT2}\n"
        t += f"v_xor_b32 v{vT1}, v{vT1}, v{vT2}\nv_mul_u32_u24 v{vT0}, {rs}, v{vT0}\nv_lshl_add_u32 v{dst}, v{vT1}, 4, v{vT0}\n"
        for i in range(1, 4): t += f"v_add_u32 v{dst+i}, {i*(8*rs-1024)}, v{dst}\n"
        return t
    def dma_jobs(srd, vp, rs, n, setup, tok=None):
        js = []
        if "nobulk" in dbg and srd in (W2, W1, WO) and vp != 4:
            def nop():
                if tok is not None: tok.t = 0
            return [nop] * n
        for i in range(n):
            q = i % 4
            pre = None
            if i == 0: pre = setup + f"\ns_mov_b32 m0, s{sLDS}"
            elif q == 0: pre = f"s_add_u32 s{sLDS}, s{sLDS}, 4096\ns_mov_b32 m0, s{sLDS}\ns_add_u32 s{sSRC}, s{sSRC}, {32*rs}"
            js.append(jVM(f"buffer_load_dwordx4 v{vp+q}, {srd}, s{sSRC} offen offset:{1024*q} lds", tok, pre))
        return js
    def w2_dma(u, lds_s, lds_off, tok=None):
        return dma_jobs(W2, vPAN, 896, 4, f"s_mul_i32 s{sSRC}, s{sFT+u%7}, {32*896}\ns_add_u32 s{sLDS}, s{lds_s}, {lds_off}\ns_add_u32 s{sSRC}, s{sSRC}, s{sDL if u >= 7 else sCOL}", tok)
    def w2_read(u, va, off, tok=None):
        js = []
        for s_ in range(2):
            for t in range(2):
                r = 16 * u + 8 * s_ + 4 * t
                for p in range(2): js.append(jDS(f"ds_read_b64_tr_b16 a[{r+2*p}:{r+2*p+1}], v{va+t} offset:{off+2048*s_+1024*p}", tok))
        return js
    def finish():
        if stamps:
            A(f"v_writelane_b32 v{vST}, s{sUNI}, 63")
            A(f"s_lshl_b32 s61, s2, 2\ns_add_u32 s61, s61, s{sW}\ns_lshl_b32 s61, s61, 8\ns_add_u32 s61, s61, {STAMP}\nv_lshlrev_b32 v{vT1}, 2, v{vL}")
            A(f"buffer_store_dword v{vST}, v{vT1}, {WS}, s61 offen")
        A("s_endpgm")
    def done():
        A("L_fin:"); finish(); return wrap(A, tail), names

    A("s_cmp_ge_u32 s2, 256\ns_cbranch_scc1 L_exit")
    if stamps: A(f"v_mov_b32 v{vST}, 0")
    stamp("entry")
    for r, off in ((8, 0), (12, 8), (32, 80), (28, 72), (44, 64), (36, 96)):
        A(f"s_load_dwordx2 s[{r}:{r+1}], s[0:1], {off}")
    A(f"""s_getpc_b64 s[62:63]
    L_pc:
    v_lshrrev_b32 v1, 6, v0
    v_and_b32 v{vL}, 63, v0
    s_lshr_b32 s{sM}, s2, 3
    v_lshl_add_u32 v11, s{sM}, 2, v1
    v_min_u32 v10, 2, v{vL}
    v_lshl_add_u32 v11, v10, 7, v11
    v_lshlrev_b32 v11, 7, v11
    v_min_u32 v11, CODE_END-L_pc-4, v11""")
    VM(f"global_load_dword v{vJUNK}, v11, s[62:63]")
    A(f"s_and_b32 s{sG}, s2, 7\nv_readfirstlane_b32 s{sW}, v1")
    for r, n in ((8, 1835008), (12, 1204224), (32, 1835008), (28, 2408448), (36, WSZ)):
        A(f"s_mov_b32 s{r+2}, {n}\ns_mov_b32 s{r+3}, 0x20000")
    A(f"""v_lshrrev_b32 v9, 3, v{vL}
    v_mul_u32_u24 v9, 896, v9
    v_and_b32 v10, 7, v{vL}
    v_lshl_add_u32 v9, v10, 4, v9
    s_lshl_b32 s61, s{sG}, 5
    s_add_u32 s93, s61, s{sM}
    s_mul_i32 s61, s93, 7168
    s_lshl_b32 s62, s{sW}, 7
    s_add_u32 s61, s61, s62
    s_lshl_b32 s62, s{sW}, 10
    s_add_u32 s62, s62, {L_X}
    s_add_u32 s63, s61, 512
    s_cmp_eq_u32 s{sW}, 3
    s_cselect_b32 s63, s61, s63
    s_cselect_b32 s64, 0, 4096
    s_add_u32 s64, s64, s62
    s_lshr_b32 s65, s93, 2
    s_mul_i32 s79, s65, 28672
    s_and_b32 s65, s{sM}, 3
    s_lshl_b32 s65, s65, 7
    s_add_u32 s79, s79, s65
    s_cmp_ge_u32 s{sM}, 28
    s_cbranch_scc1 L_h0""")
    xload = f"""s_mov_b32 m0, s62
    buffer_load_dwordx4 v9, {X}, s61 offen lds
    s_mov_b32 m0, s64
    buffer_load_dwordx4 v9, {X}, s63 offen lds"""
    late_args = f"s_load_dword s{sTAG}, s[36:37], 0\n" + "\n".join(f"s_load_dwordx2 s[{r}:{r+1}], s[0:1], {off}" for r, off in ((16, 16), (20, 32), (40, 40), (24, 48), (42, 56)))
    A(panel_addr(12, 2688))
    A(f"""s_cmp_ge_u32 s{sM}, 14
    s_cselect_b32 s65, 14, 0
    s_cselect_b32 s82, {14-n1 if rot else 0}, 0
    s_cselect_b32 s83, {0 if rot else n1}, {n1}
    s_sub_u32 s{sJ}, s{sM}, s65
    s_lshl_b32 s80, s{sJ}, 7
    s_add_u32 s80, s80, 896
    s_mul_i32 s65, s{sW}, {112*2688}
    s_add_u32 s80, s80, s65
    s_mul_i32 s81, s{sW}, 14336
    s_mov_b32 s{sHI}, 0""")
    def wkv_setup(r): return f"s_mul_i32 s{sSRC}, s{r}, {8*2688}\ns_add_u32 s{sSRC}, s{sSRC}, s80\ns_lshl_b32 s{sLDS}, s{r}, 10\ns_add_u32 s{sLDS}, s{sLDS}, s81"
    A(wkv_setup(82))
    A("s_waitcnt lgkmcnt(0)")
    stamp("karg")
    A(xload); vm.issue(); tx = vm.issue()
    run(dma_jobs(WQKV, 12, 2688, n1, ""), 99)
    A(late_args)
    A("v_mov_b32 v4, 0\nv_mov_b32 v5, 0\nv_mov_b32 v6, 0\nv_mov_b32 v7, 0")
    nwork = vm.n
    A("s_branch L_h1\nL_h0:")
    A(panel_addr(4, 5376, "mod"))
    A(f"""v_min_u32 v2, 223, v0
    v_lshlrev_b32 v3, 2, v2
    s_lshl_b32 s{sHI}, s{sG}, 2
    s_add_u32 s{sHI}, s{sHI}, s{sM}
    s_sub_u32 s{sHI}, s{sHI}, 28
    s_lshr_b32 s65, s{sHI}, 1
    s_lshl_b32 s65, s65, 7
    s_and_b32 s66, s{sHI}, 1
    s_lshl_b32 s66, s66, 2
    s_add_u32 s66, s66, s{sW}
    s_mul_i32 s66, s66, {56*5376}
    s_add_u32 s{sSRC}, s65, s66
    s_cmp_eq_u32 s{sG}, 7
    s_cselect_b32 s{sSRC}, {OOB}, s{sSRC}
    s_mul_i32 s{sLDS}, s{sW}, 7168
    s_add_u32 s{sLDS}, s{sLDS}, {L_B}
    s_mov_b32 s{sJ}, 0
    s_waitcnt lgkmcnt(0)""")
    stamp("karg")
    sv = (vm.n, vm.done); vm.n = 1; vm.done = 0
    tc = VM("global_load_dword v8, v3, s[44:45]")
    tm = Tok(); run(dma_jobs(WMOD, 4, 5376, 7, "", tm), 99)
    A(xload); vm.issue(); txh = vm.issue()
    A(late_args)
    A(f"""v_mov_b32 v12, 0
    v_mov_b32 v13, 0
    v_mov_b32 v14, 0
    v_mov_b32 v15, 0
    v_lshrrev_b32 v20, 2, v{vL}
    v_bfe_u32 v21, v{vL}, 3, 2
    v_xor_b32 v21, s{sW}, v21
    v_lshlrev_b32 v21, 5, v21
    v_lshl_add_u32 v20, v20, 7, v21
    v_and_b32 v21, 3, v{vL}
    v_lshl_add_u32 v20, v21, 3, v20
    v_add_u32 v20, {L_B}, v20
    v_and_b32 v22, 48, v{vL}
    s_and_b32 s61, s{sHI}, 1
    s_mul_i32 s62, s61, 448
    s_add_u32 s62, s62, {L_SILU}
    v_add_u32 v21, s62, v22
    s_mul_i32 s61, s61, 56
    s_lshr_b32 s62, s{sHI}, 1
    s_lshl_b32 s62, s62, 2
    s_add_u32 s61, s61, s62
    s_add_u32 s61, s61, s{sW}
    s_lshl_b32 s61, s61, 7
    s_add_u32 s84, s61, {S0U}
    s_cmp_eq_u32 s{sG}, 7
    s_cselect_b32 s84, {OOB}, s84
    v_bfe_u32 v24, v2, 1, 2
    v_and_b32 v25, 0xf1, v2
    v_lshl_add_u32 v25, v24, 2, v25
    v_bfe_u32 v24, v2, 3, 1
    v_lshl_add_u32 v25, v24, 1, v25
    v_lshlrev_b32 v25, 2, v25
    v_add_u32 v25, {L_SILU}, v25
    s_mov_b32 s86, 0x07060500
    s_mov_b32 s87, 0x07060501
    s_mov_b32 s88, 0x07060502
    s_mov_b32 s89, 0x07060503""")
    vm.wait(tc)
    A(f"""v_lshlrev_b32 v26, 16, v8
    v_and_b32 v27, 0xffff0000, v8
    v_mul_f32 v28, 0xbfb8aa3b, v26
    v_mul_f32 v29, 0xbfb8aa3b, v27
    v_exp_f32 v28, v28
    v_exp_f32 v29, v29
    v_add_f32 v28, 1.0, v28
    v_add_f32 v29, 1.0, v29
    v_rcp_f32 v28, v28
    v_rcp_f32 v29, v29
    v_mul_f32 v26, v26, v28
    v_mul_f32 v27, v27, v29
    v_cvt_pk_bf16_f32 v26, v26, v27
    ds_write_b32 v25, v26
    s_waitcnt lgkmcnt(0)
    s_mul_i32 s61, s{sTAG}, 0x9E3779B1
    s_add_u32 s61, s61, 0x7F4A7C15
    v_mov_b32 v{vTAG}, s61""")
    vm.wait(tm.t)
    barrier()
    stamp("B1")
    lg.n = lg.done = 0
    toks = []
    for s_ in range(7):
        DS(f"ds_read_b128 v[{140+4*s_}:{143+4*s_}], v21 offset:{64*s_}")
        DS(f"ds_read_b64_tr_b16 v[{168+4*s_}:{169+4*s_}], v20 offset:{4096*s_}")
        toks.append(DS(f"ds_read_b64_tr_b16 v[{170+4*s_}:{171+4*s_}], v20 offset:{4096*s_+2048}"))
    for s_ in range(7):
        lg.wait(toks[s_])
        A(f"v_mfma_f32_16x16x32_bf16 v[24:27], v[{168+4*s_}:{171+4*s_}], v[{140+4*s_}:{143+4*s_}], {'0' if s_ == 0 else 'v[24:27]'}")
    A(f"""s_mov_b32 exec_lo, 0x00010001
    s_mov_b32 exec_hi, 0x00010001
    v_perm_b32 v24, v24, v{vTAG}, s86
    v_perm_b32 v25, v25, v{vTAG}, s87
    v_perm_b32 v26, v26, v{vTAG}, s88
    v_perm_b32 v27, v27, v{vTAG}, s89""")
    VM(f"buffer_store_dwordx4 v[24:27], v22, {WS}, s84 offen sc1")
    A("s_mov_b64 exec, -1")
    stamp("gemv")
    A(f"""v_lshlrev_b32 v10, 7, v{vL}
    s_lshl_b32 s85, s{sHI}, 2
    s_add_u32 s85, s85, s{sW}
    s_lshl_b32 s61, s85, 8
    s_add_u32 s61, s61, {CTL}
    v_and_b32 v11, 0x80, v10""")
    VM(f"buffer_load_dword v{vJUNK}, v11, {WS}, s61 offen sc1")
    A(f"s_lshl_b32 s61, s85, 8\ns_add_u32 s61, s61, {FKV}")
    VM(f"buffer_load_dword v{vJUNK}, v11, {WS}, s61 offen sc1")
    vm.wait(txh)
    vm.n, vm.done = sv
    A("L_h1:")
    stamp("issued")
    for r, n in ((16, 401408), (20, 1605632), (24, 1605632)): A(f"s_mov_b32 s{r+2}, {n}\ns_mov_b32 s{r+3}, 0x20000")
    A(f"""v_lshlrev_b32 v{vL16}, 4, v{vL}
    v_lshrrev_b32 v{vHALF}, 5, v{vL}
    v_and_b32 v{vL31}, 31, v{vL}
    s_getreg_b32 s{sXCC}, hwreg(HW_REG_XCC_ID, 0, 4)
    s_mov_b32 s{sUNI}, 0
    s_lshl_b32 s{sCTL}, s{sG}, 12
    s_add_u32 s{sCTL}, s{sCTL}, {CTL}
    v_and_b32 v30, 7, v{vL}
    v_lshrrev_b32 v31, 3, v{vL}
    v_lshlrev_b32 v32, 7, v30
    v_lshl_add_u32 v32, v31, 4, v32
    v_add_u32 v32, {L_X}, v32
    s_lshl_b32 s61, s{sW}, 10
    v_add_u32 v33, s61, v32
    s_mov_b32 s86, 0x07060500
    s_mov_b32 s87, 0x07060501
    s_mov_b32 s88, 0x07060502
    s_mov_b32 s89, 0x07060503""")
    roles = lines(f"""s_cmp_ge_u32 s{sM}, 14
    s_cselect_b32 s61, 1, 0
    s_lshl_b32 s{sRBQ}, s{sG}, 1
    s_add_u32 s{sRBQ}, s{sRBQ}, s61
    s_lshl_b32 s{sTQ}, s{sRBQ}, 2
    s_add_u32 s{sTQ}, s{sTQ}, s{sW}
    s_and_b32 s{sHEAD}, s{sM}, 15
    s_lshr_b32 s61, s{sM}, 4
    s_lshl_b32 s{sRB}, s{sG}, 1
    s_add_u32 s{sRB}, s{sRB}, s61
    s_lshl_b32 s{sTA}, s{sRB}, 2
    s_add_u32 s{sTA}, s{sTA}, s{sW}
    s_mul_i32 s61, s{sM}, 37
    s_lshr_b32 s61, s61, 8
    s_mul_i32 s62, s61, 7
    s_sub_u32 s{sNB}, s{sM}, s62
    s_lshl_b32 s{sCOL}, s{sNB}, 7
    s_and_b32 s{sMH}, s{sW}, 1
    s_lshr_b32 s{sKH}, s{sW}, 1
    s_lshl_b32 s{sTO}, s{sG}, 2
    s_add_u32 s{sTO}, s{sTO}, s61
    s_lshl_b32 s{sTO}, s{sTO}, 1
    s_add_u32 s{sTO}, s{sTO}, s{sMH}
    s_mul_i32 s{sEX}, s{sW}, 8960
    s_add_u32 s{sEX}, s{sEX}, {L_EX}
    s_cmp_ge_u32 s{sM}, 14
    s_cselect_b32 s{sPSW}, 1, 0
    s_cselect_b32 s{sDH}, -1, 1
    s_mul_i32 s{sDL}, s{sDH}, {2*32*896}
    s_lshl_b32 s{sDH}, s{sDH}, 12
    s_add_u32 s{sDL}, s{sDL}, s{sCOL}
    s_lshl_b32 s66, s{sPSW}, 1
    s_lshl_b32 s62, s61, 1
    s_add_u32 s62, s62, s{sG}
    s_add_u32 s62, s62, s{sNB}
    s_mul_i32 s64, s62, 37
    s_lshr_b32 s64, s64, 8
    s_mul_i32 s64, s64, 7
    s_sub_u32 s62, s62, s64
    s_mul_i32 s63, s{sW}, 7""")
    if not rot: roles.append("s_mov_b32 s62, 0")
    for q in range(7):
        roles += lines(f"""s_add_u32 s64, s62, {q}
        s_cmp_ge_u32 s64, 7
        s_cselect_b32 s65, 7, 0
        s_sub_u32 s64, s64, s65
        s_add_u32 s64, s64, s63
        s_and_b32 s65, s64, 0xfe
        s_add_u32 s64, s64, s66
        s_add_u32 s{sFT+q}, s64, s65""")
    roles += lines(panel_addr(vPAN, 896))
    vWQ = 228; vPQ = 229; vR0 = 233
    roles += lines(f"""v_and_b32 v{vT0}, 3, v{vL}
    v_lshlrev_b32 v{vT0}, 3, v{vT0}
    v_bfe_u32 v{vT1}, v{vL}, 4, 1
    v_lshl_add_u32 v{vT0}, v{vT1}, 5, v{vT0}
    v_bfe_u32 v{vT1}, v{vL}, 2, 2
    v_lshl_add_u32 v16, v{vT1}, 6, v{vT0}
    v_lshl_add_u32 v16, v{vHALF}, 9, v16
    v_lshl_add_u32 v{vT0}, v{vT1}, 7, v{vT0}
    v_bfe_u32 v{vT1}, v{vL}, 3, 1
    v_lshl_add_u32 v{vT0}, v{vT1}, 6, v{vT0}
    v_lshl_add_u32 v{vTN0}, v{vHALF}, 10, v{vT0}
    v_lshl_add_u32 v{vTP0}, v{vHALF}, 9, v{vT0}
    v_xor_b32 v{vTN1}, 64, v{vTN0}
    v_xor_b32 v{vTP1}, 64, v{vTP0}
    v_add_u32 v{vWQ}, {L_WQ}, v16
    v_lshrrev_b32 v{vPQ}, 2, v{vL}
    v_mul_u32_u24 v{vPQ}, 2688, v{vPQ}
    v_and_b32 v17, 3, v{vL}
    v_lshl_add_u32 v{vPQ}, v17, 4, v{vPQ}""")
    for i in range(1, 4): roles.append(f"v_add_u32 v{vPQ+i}, {i*(16*2688-1024)}, v{vPQ}")
    run(roles, 999)
    A(f"""s_waitcnt lgkmcnt(0)
    s_mul_i32 s{sTAG}, s{sTAG}, 0x9E3779B1
    s_add_u32 s{sTAG}, s{sTAG}, 0x7F4A7C15
    v_mov_b32 v{vTAG}, s{sTAG}""")
    vm.wait(tx)
    barrier()
    stamp("B0")
    lg.n = lg.done = 0
    tk = [DS(f"ds_read_b128 v[{40+4*i}:{43+4*i}], v32 offset:{1024*i}") for i in range(7)]
    DS("ds_read_b128 v[68:71], v33"); town = DS("ds_read_b128 v[72:75], v33 offset:4096")
    A(f"""s_cmp_lg_u32 s{sW}, 0
    s_cbranch_scc1 L_nox
    s_add_u32 s61, s{sXCC}, 1
    v_cvt_f32_u32 v26, s61
    s_lshl_b32 s61, s93, 7
    s_add_u32 s61, s61, {XCCG}
    v_perm_b32 v136, v26, v{vTAG}, s86
    v_perm_b32 v137, v26, v{vTAG}, s87
    v_perm_b32 v138, v26, v{vTAG}, s88
    v_perm_b32 v139, v26, v{vTAG}, s89
    s_mov_b64 exec, 1
    buffer_store_dwordx4 v[136:139], off, {WS}, s61 sc1
    s_mov_b64 exec, -1
    L_nox:
    s_cmp_ge_u32 s{sM}, 28
    s_cbranch_scc1 L_t4""")
    touch_txt = f"""s_mul_i32 s61, s{sG}, 28
    s_add_u32 s61, s61, s{sM}
    v_min_u32 v11, 13, v{vL}
    s_cmp_eq_u32 s{sW}, 0
    s_cbranch_scc1 L_t0
    s_cmp_eq_u32 s{sW}, 1
    s_cbranch_scc1 L_t1
    v_min_u32 v11, 27, v{vL}
    v_lshlrev_b32 v11, 7, v11
    s_lshl_b32 s61, s61, 1
    s_add_u32 s61, s61, s{sW}
    s_sub_u32 s61, s61, 2
    s_mul_i32 s61, s61, 3584
    buffer_load_dword v{vJUNK}, v11, {W2}, s61 offen
    s_branch L_t3
    L_t0:
    v_lshlrev_b32 v11, 7, v11
    s_mul_i32 s61, s61, 1792
    buffer_load_dword v{vJUNK}, v11, {WO}, s61 offen
    s_branch L_t3
    L_t1:
    v_cmp_lt_u32 vcc, 6, v11
    v_lshlrev_b32 v11, 7, v11
    v_mov_b32 v10, 1792
    s_mul_i32 s61, s61, 5376
    v_cndmask_b32 v10, 0, v10, vcc
    v_add_u32 v11, v11, v10
    buffer_load_dword v{vJUNK}, v11, {WQKV}, s61 offen
    L_t3:"""
    wq_jobs = lambda: dma_jobs(WQKV, vPQ, 2 * 2688, 7, f"s_lshl_b32 s{sSRC}, s{sJ}, 6\ns_mul_i32 s62, s{sW}, {112*2688}\ns_add_u32 s{sSRC}, s{sSRC}, s62\ns_mul_i32 s{sLDS}, s{sW}, 7168\ns_add_u32 s{sLDS}, s{sLDS}, {L_WQ}")
    if touch == 'B0': A(touch_txt)
    wkv2 = dma_jobs(WQKV, 12, 2688, 14 - n1, wkv_setup(83))
    run(wkv2, n3)
    A("L_t4:")
    for i in range(7):
        lg.wait(tk[i])
        for d in range(4):
            A(f"v_lshlrev_b32 v{80+8*i+2*d}, 16, v{40+4*i+d}\nv_and_b32 v{81+8*i+2*d}, 0xffff0000, v{40+4*i+d}")
    A("v_pk_add_f32 v[34:35], v[80:81], v[82:83]")
    for i in range(2, 28): A(f"v_pk_add_f32 v[34:35], v[34:35], v[{80+2*i}:{81+2*i}]")
    def red8(r):
        A(f"""v_add_f32_dpp v{r}, v{r}, v{r} row_ror:8 row_mask:0xf bank_mask:0xf
        v_mov_b32 v{vT0}, v{r}
        v_permlane16_swap_b32 v{r}, v{vT0}
        v_add_f32 v{r}, v{r}, v{vT0}
        v_mov_b32 v{vT0}, v{r}
        v_permlane32_swap_b32 v{r}, v{vT0}
        v_add_f32 v{r}, v{r}, v{vT0}""")
    A("v_add_f32 v34, v34, v35"); red8(34)
    A("v_mul_f32 v34, 0xbb124925, v34\nv_mov_b32 v35, v34")
    for i in range(28): A(f"v_pk_add_f32 v[{80+2*i}:{81+2*i}], v[{80+2*i}:{81+2*i}], v[34:35]")
    A("v_pk_mul_f32 v[36:37], v[80:81], v[80:81]")
    for i in range(1, 28): A(f"v_pk_fma_f32 v[36:37], v[{80+2*i}:{81+2*i}], v[{80+2*i}:{81+2*i}], v[36:37]")
    A("v_add_f32 v36, v36, v37"); red8(36)
    A("v_mov_b32 v37, 0x3727c5ac\nv_fmac_f32 v37, 0x3b124925, v36\nv_rsq_f32 v36, v37")
    lg.wait(town)
    for d in range(8):
        A(f"v_lshlrev_b32 v{40+2*d}, 16, v{68+d}\nv_and_b32 v{41+2*d}, 0xffff0000, v{68+d}")
    A("v_mov_b32 v37, v36")
    for d in range(8): A(f"v_pk_add_f32 v[{40+2*d}:{41+2*d}], v[{40+2*d}:{41+2*d}], v[34:35]")
    for d in range(8): A(f"v_pk_mul_f32 v[{40+2*d}:{41+2*d}], v[{40+2*d}:{41+2*d}], v[36:37]")
    A(f"""v_lshrrev_b32 v62, 2, v0
    v_lshlrev_b32 v62, 7, v62
    v_and_b32 v56, 3, v0
    v_lshl_add_u32 v62, v56, 4, v62
    v_add_u32 v56, {56*128}, v62
    s_lshl_b32 s61, s{sG}, 12
    s_add_u32 s61, s61, {XCCG-S0U}
    v_lshl_add_u32 v57, v{vL31}, 7, s61
    v_cmp_gt_u32 vcc, 224, v0
    v_cndmask_b32 v62, v57, v62, vcc
    v_cndmask_b32 v56, v57, v56, vcc
    v_lshlrev_b32 v57, 4, v0
    v_add_u32 v57, {L_MODV}, v57
    v_cmp_le_u32 vcc, 112, v0
    v_cndmask_b32 v63, 0, 1.0, vcc
    s_lshl_b32 s61, s{sW}, 8
    s_add_u32 s61, s61, {L_MODV}
    v_lshl_add_u32 v58, v31, 5, s61
    v_lshlrev_b32 v59, 4, v{vL31}
    v_add_u32 v59, {L_MODV+3584}, v59
    v_lshlrev_b32 v60, 9, v31
    v_lshl_add_u32 v60, v30, 4, v60
    s_lshl_b32 s62, s{sW}, 12
    s_add_u32 s90, s79, s62
    s_add_u32 s91, s90, 16384
    s_cmp_eq_u32 s{sW}, 3
    s_cselect_b32 s91, {OOB}, s91
    s_lshl_b32 s92, s{sM}, 2
    s_add_u32 s92, s92, s{sW}
    s_lshl_b32 s92, s92, 2
    s_add_u32 s92, s92, s{sCTL}
    s_add_u32 s92, s92, {C_FH}
    s_mov_b32 s64, 0x0c0c0400
    s_mov_b32 s65, 0x05040100
    s_lshl_b32 s61, s{sXCC}, 1
    s_add_u32 s61, s61, 3
    v_cvt_f32_u32 v76, s61""")
    if wq == 's' or touch == 's':
        A(f"s_cmp_ge_u32 s{sM}, 28\ns_cbranch_scc1 L_t5")
        if wq == 's': run(wkv2, 99)
        if touch == 's': A(touch_txt)
        A("L_t5:")
    stamp("stats")
    A(f"""s_mov_b32 s{sCNT}, 0
    s_mov_b32 s61, {S0U}
    L_s0:
    buffer_load_dwordx4 v[64:67], v62, {WS}, s61 offen sc1
    buffer_load_dwordx4 v[68:71], v56, {WS}, s61 offen sc1
    s_add_u32 s{sCNT}, s{sCNT}, 1
    s_waitcnt vmcnt(1)
    v_perm_b32 v72, v65, v64, s64
    v_perm_b32 v73, v67, v66, s64
    v_perm_b32 v72, v73, v72, s65
    v_cmp_ne_u32 s[62:63], s{sTAG}, v72
    s_waitcnt vmcnt(0)
    v_perm_b32 v74, v69, v68, s64
    v_perm_b32 v75, v71, v70, s64
    v_perm_b32 v74, v75, v74, s65
    v_cmp_ne_u32 vcc, s{sTAG}, v74
    s_or_b64 vcc, vcc, s[62:63]
    s_cbranch_vccz L_s0d
    s_cmp_lt_u32 s{sCNT}, {SPIN}
    s_cbranch_scc1 L_s0
    L_s0d:""")
    for r in range(64, 72): A(f"v_and_b32 v{r}, 0xffffff00, v{r}")
    A(f"""v_pk_add_f32 v[64:65], v[64:65], v[68:69]
    v_pk_add_f32 v[66:67], v[66:67], v[70:71]
    v_cvt_pk_bf16_f32 v68, v64, v65
    v_cvt_pk_bf16_f32 v69, v66, v67
    v_lshlrev_b32 v64, 16, v68
    v_and_b32 v65, 0xffff0000, v68
    v_lshlrev_b32 v66, 16, v69
    v_and_b32 v67, 0xffff0000, v69
    v_add_f32 v64, v64, v63
    v_add_f32 v65, v65, v63
    v_add_f32 v66, v66, v63
    v_add_f32 v67, v67, v63
    v_cvt_pk_bf16_f32 v68, v64, v65
    v_cvt_pk_bf16_f32 v69, v66, v67
    v_lshlrev_b32 v64, 16, v68
    v_and_b32 v65, 0xffff0000, v68
    v_lshlrev_b32 v66, 16, v69
    v_and_b32 v67, 0xffff0000, v69
    ds_write_b128 v57, v[64:67]
    s_waitcnt lgkmcnt(0)""")
    vm.drained(); lg.drained()
    barrier()
    stamp("S0")
    t0 = []
    for p in range(2):
        for q in range(2):
            DS(f"ds_read_b128 v[{80+16*p+4*q}:{83+16*p+4*q}], v58 offset:{1792+1024*p+16*q}")
            t0.append(DS(f"ds_read_b128 v[{88+16*p+4*q}:{91+16*p+4*q}], v58 offset:{1024*p+16*q}"))
    txc = DS("ds_read_b32 v61, v59")
    for p in range(2):
        for q in range(2):
            lg.wait(t0[2 * p + q])
            for e in range(0, 4, 2):
                r = 40 + 8 * p + 4 * q + e
                A(f"v_pk_fma_f32 v[{r}:{r+1}], v[{r}:{r+1}], v[{80+16*p+4*q+e}:{81+16*p+4*q+e}], v[{88+16*p+4*q+e}:{89+16*p+4*q+e}]")
        for d in range(4): A(f"v_cvt_pk_bf16_f32 v{112+4*p+d}, v{40+8*p+2*d}, v{41+8*p+2*d}")
        th = VM(f"buffer_store_dwordx4 v[{112+4*p}:{115+4*p}], v60, {OUT}, s{90+p} offen{hmod}")
    lg.wait(txc)
    A(f"v_cmp_neq_f32 vcc, v76, v61\ns_cmp_eq_u64 vcc, 0\ns_cselect_b32 s{sUNI}, {0 if force_slow else 1}, 0")
    A(f"s_cmp_ge_u32 s{sM}, 28\ns_cbranch_scc1 L_help")

    pre = wkv2 + wq_jobs()
    run(pre, 9)
    vKS = 216; vQS = 224
    A(f"""v_and_b32 v{vT3}, 15, v{vL}
    v_lshlrev_b32 v{vT3}, 2, v{vT3}
    s_and_b32 s61, s{sTQ}, 7
    s_lshl_b32 s61, s61, 6
    s_add_u32 s61, s61, s{sCTL}
    s_add_u32 s85, s61, {C_FH}
    s_mul_i32 s82, s{sTQ}, 28672""")
    vm.wait(th)
    flag(92)
    stamp("hpub")
    if stop <= 1:
        A("L_help:"); return done()
    A(f"""s_mul_i32 s80, s{sTQ}, 1792
    s_lshl_b32 s81, s{sTQ}, 15
    s_add_u32 s81, s81, {QO}
    s_mul_i32 s83, s{sRBQ}, 14
    s_add_u32 s83, s83, s{sJ}
    s_lshl_b32 s83, s83, 7
    s_add_u32 s83, s83, {FKV}
    s_and_b32 s84, s{sRBQ}, 1
    s_lshl_b32 s84, s84, 4
    s_add_u32 s84, s84, s{sJ}
    s_lshl_b32 s84, s84, 2
    s_add_u32 s84, s84, s{sCTL}
    s_add_u32 s84, s84, {C_FQ}
    s_lshl_b32 s79, s{sW}, 14
    s_mul_i32 s97, s{sW}, 12288""")
    run(pre, 99)
    A(f"s_lshl_b32 s61, s{sJ}, 3")
    for a_ in range(4):
        A(f"""v_add3_u32 v{vT0}, v{vHALF}, s61, {2*a_}
        v_mul_u32_u24 v{vT1}, 147, v{vT0}
        v_lshrrev_b32 v{vT1}, 10, v{vT1}
        v_add_lshl_u32 v{vT0}, v{vT0}, v{vT1}, 8
        v_lshl_add_u32 v{vQS+a_}, v{vL31}, 3, v{vT0}""")
    poll(vT3, "s85")
    stamp("S0b")
    ACC = 112; WB = 160
    th = [Tok() for _ in range(28)]
    def hjobs(): return [jVM(f"buffer_load_dwordx4 v[{4*s_}:{4*s_+3}], v{vL16}, {OUT}, s82 offen offset:{1024*(s_%4)} sc1", th[s_], "s_add_u32 s82, s82, 4096" if (s_ % 4 == 0 and s_) else None) for s_ in range(28)]
    run(hjobs(), PRO)
    barrier()
    def kv_pass(vtype):
        lg.n = lg.done = 0
        sv = (vm.n, vm.done)
        if not vtype:
            adr = lines(f"s_lshl_b32 s61, s{sJ}, 4\ns_add_u32 s80, s80, {KG}")
            for i in range(8):
                adr += lines(f"""v_add3_u32 v{vT0}, v{vHALF}, s61, {2*i}
                v_mul_u32_u24 v{vT1}, 147, v{vT0}
                v_lshrrev_b32 v{vT1}, 10, v{vT1}
                v_mul_u32_u24 v{vT1}, {64*1792-7*256}, v{vT1}
                v_lshl_add_u32 v{vT0}, v{vT0}, 8, v{vT1}
                v_lshl_add_u32 v{vKS+i}, v{vL31}, 3, v{vT0}""")
        else:
            adr = lines(f"s_sub_u32 s61, s{sJ}, 7\ns_lshl_b32 s61, s61, 6\ns_add_u32 s80, s80, {VG}")
            for t in range(2):
                adr += lines(f"""v_add3_u32 v{vT0}, v{vL31}, s61, {32*t}
                v_lshrrev_b32 v{vT1}, 2, v{vT0}
                v_mul_u32_u24 v{vT1}, 147, v{vT1}
                v_lshrrev_b32 v{vT1}, 10, v{vT1}
                v_mul_u32_u24 v{vT1}, {64*1792-448}, v{vT1}
                v_lshl_add_u32 v{vT0}, v{vT0}, 4, v{vT1}
                v_mul_u32_u24 v{vT1}, 448, v{vHALF}
                v_add_u32 v{vKS+t}, v{vT0}, v{vT1}""")
        mem = hjobs()[PRO:]
        bulk = []
        for u in range(4): bulk += w2_dma(u, 79, L_B + 4096 * u)
        nb_kv = 8
        tw = {}
        def ld(s_):
            b = WB + 8 * (s_ % 4); js = []
            for t in range(2):
                tw[s_, t] = Tok()
                js.append(jDS(f"ds_read_b64_tr_b16 v[{b+4*t}:{b+4*t+1}], v{vTN0-t} offset:{L_WKV+2048*s_}"))
                js.append(jDS(f"ds_read_b64_tr_b16 v[{b+4*t+2}:{b+4*t+3}], v{vTN0-t} offset:{L_WKV+2048*s_+512}", tw[s_, t]))
            return js
        tq = {}
        def ldq(s_):
            b = WB + 4 * (s_ % 8); tq[s_] = Tok()
            return [jDS(f"ds_read_b64_tr_b16 v[{b}:{b+1}], v{vWQ} offset:{1024*s_}"), jDS(f"ds_read_b64_tr_b16 v[{b+2}:{b+3}], v{vWQ} offset:{1024*s_+256}", tq[s_])]
        for s_ in range(3): run(ld(s_), 4)
        for s_ in range(28):
            vm.wait(th[s_].t); lg.wait(tw[s_, 1].t)
            b = WB + 8 * (s_ % 4)
            nx = ld(s_ + 3) if s_ + 3 < 28 else (ldq(2 * (s_ - 26)) + ldq(2 * (s_ - 26) + 1) if s_ >= 26 else [])
            for t in range(2):
                wf, hf = v(b + 4 * t, 4), v(4 * s_, 4)
                c = "0" if s_ == 0 else None
                if vtype: mfma(v(ACC + 16 * t, 16), hf, wf, c)
                else: mfma(v(ACC + 16 * t, 16), wf, hf, c)
                if t == 0:
                    if mem: run(mem, 1)
                    elif nb_kv: run(bulk, 1); nb_kv -= 1
                    run(nx, 1)
                else: run(nx, 3); run(adr, 2)
            if 'fine' in dbg and s_ in (0, 9, 18): stamp(f'k{s_}')
        stamp("kv")
        epi = []; last = Tok()
        for t in range(2):
            P = 192 + 8 * t
            for d in range(8):
                epi.append(f"v_cvt_pk_bf16_f32 v{P+d}, v{ACC+16*t+2*d}, v{ACC+16*t+2*d+1}")
                if vtype and d % 4 == 3: epi.append(jVM(f"buffer_store_dwordx4 v[{P+d-3}:{P+d}], v{vKS+t}, {WS}, s80 offen offset:{896*(d//4)} sc1", last))
                if not vtype and d % 2 == 1: epi.append(jVM(f"buffer_store_dwordx2 v[{P+d-1}:{P+d}], v{vKS+4*t+d//2}, {WS}, s80 offen sc1", last))
        for s_ in range(28):
            lg.wait(tq[s_].t)
            b = WB + 4 * (s_ % 8)
            mfma(v(ACC + 32, 16), v(b, 4), v(4 * s_, 4), "0" if s_ == 0 else None)
            if s_ + 4 < 28: run(ldq(s_ + 4), 2)
            if epi:
                if s_ >= 1: run(epi, 6)
            elif s_ % 3 == 0: run(bulk, 1)
        assert not adr
        run(bulk, 99)
        A(f"s_mov_b32 s61, {QSCALE:#x}\ns_lshl_b32 s62, s{sKH}, 6\nv_xor_b32 v{vR0}, s62, v{vTP0}\nv_xor_b32 v{vR0+1}, s62, v{vTP1}\nv_add_u32 v{vT2}, s79, v{vR0}\nv_add_u32 v{vT3}, s79, v{vR0+1}")
        for d in range(8):
            A(f"v_mul_f32 v{ACC+32+2*d}, s61, v{ACC+32+2*d}\nv_mul_f32 v{ACC+33+2*d}, s61, v{ACC+33+2*d}\nv_cvt_pk_bf16_f32 v{208+d}, v{ACC+32+2*d}, v{ACC+33+2*d}")
            if d % 2 == 1: VM(f"buffer_store_dwordx2 v[{207+d}:{208+d}], v{vQS+d//2}, {WS}, s81 offen sc1")
        stamp("q")
        vm.wait(last.t)
        vm.n, vm.done = sv
    A(f"s_cmp_ge_u32 s{sJ}, 7\ns_cbranch_scc1 L_kvV")
    kv_pass(False)
    A("s_branch L_kvE\nL_kvV:")
    kv_pass(True)
    A("L_kvE:")
    barrier()
    A(f"s_cmp_lg_u32 s{sW}, 0\ns_cbranch_scc1 L_nf1")
    flag(83, slow=True)
    A("L_nf1:")
    stamp("kvpub")
    for u in range(4, 6): run(w2_dma(u, 97, 4096 * (u - 4)), 99)
    A(f"v_add_u32 v{vT0}, {L_B}, v{vT2}\nv_add_u32 v{vT1}, {L_B}, v{vT3}\nv_add_u32 v231, s97, v{vR0}\nv_add_u32 v232, s97, v{vR0+1}")
    A(f"s_cmp_eq_u32 s{sW}, 0\ns_cbranch_scc1 L_w0b\ns_waitcnt vmcnt(12)\nL_w0b:\ns_waitcnt vmcnt(13)")
    for u in range(4): run(w2_read(u, vT0, 4096 * u), 99)
    A(f"s_cmp_eq_u32 s{sW}, 0\ns_cbranch_scc1 L_w0a\ns_waitcnt vmcnt(8)\nL_w0a:\ns_waitcnt vmcnt(9)")
    barrier()
    A(f"s_cmp_lg_u32 s{sW}, 1\ns_cbranch_scc1 L_nf2")
    flag(84)
    A("L_nf2:")
    stamp("qpub")
    run(w2_dma(6, 97, 8192), 99)
    A("s_branch L_att")
    A("L_help:")
    A("s_waitcnt vmcnt(0)")
    flag(92)
    A(f"""v_lshlrev_b32 v10, 7, v{vL}
    s_lshl_b32 s85, s{sHI}, 2
    s_add_u32 s85, s85, s{sW}
    v_mov_b32 v231, 0
    v_mov_b32 v232, 0
    s_lshl_b32 s62, s{sKH}, 6
    v_xor_b32 v{vR0}, s62, v{vTP0}
    v_xor_b32 v{vR0+1}, s62, v{vTP1}
    s_cmp_eq_u32 s{sG}, 7
    s_cbranch_scc1 L_hn""")
    run(dma_jobs(WMOD, 4, 5376, 14, f"s_add_u32 s86, s{sHI}, 14\ns_lshl_b32 s{sSRC}, s86, 7\ns_mul_i32 s63, s{sW}, {112*5376}\ns_add_u32 s{sSRC}, s{sSRC}, s63\ns_mul_i32 s{sLDS}, s{sW}, 14336\ns_add_u32 s{sLDS}, s{sLDS}, {L_B}"), 99)
    A(panel_addr(4, 3584, "mod"))
    w1h = dma_jobs(W1, 4, 3584, 14, f"s_lshl_b32 s{sSRC}, s{sHI}, 7\ns_mul_i32 s63, s{sW}, {112*3584}\ns_add_u32 s{sSRC}, s{sSRC}, s63\ns_mul_i32 s{sLDS}, s{sW}, 14336")
    run(w1h, 8)
    A(f"v_add_u32 v21, {L_SILU}, v22\ns_waitcnt vmcnt(8)")
    barrier()
    def gemv14(va, vb):
        lg.n = lg.done = 0
        toks = []
        def gemv_ld(s_):
            b = 32 + 8 * s_
            DS(f"ds_read_b128 v[{b}:{b+3}], v{va} offset:{64*s_}")
            DS(f"ds_read_b64_tr_b16 v[{b+4}:{b+5}], v{vb} offset:{4096*s_}")
            toks.append(DS(f"ds_read_b64_tr_b16 v[{b+6}:{b+7}], v{vb} offset:{4096*s_+2048}"))
        for s_ in range(4): gemv_ld(s_)
        for s_ in range(14):
            lg.wait(toks[s_])
            b = 32 + 8 * s_
            A(f"v_mfma_f32_16x16x32_bf16 v[24:27], v[{b}:{b+3}], v[{b+4}:{b+7}], {'0' if s_ == 0 else 'v[24:27]'}")
            if s_ + 4 < 14: gemv_ld(s_ + 4)
    gemv14(21, 20)
    A(f"""s_sub_u32 s61, s{sHI}, 14
    s_cmp_lt_u32 s61, 7
    s_cselect_b32 s62, 1.0, 0
    s_lshl_b32 s61, s{sHI}, 8
    s_lshl_b32 s63, s{sW}, 6
    s_add_u32 s61, s61, s63
    s_add_u32 s61, s61, {NU}
    v_lshlrev_b32 v23, 2, v{vL}
    v_cvt_pk_bf16_f32 v24, v24, v24
    v_and_b32 v24, 0xffff0000, v24
    v_add_f32 v24, s62, v24
    v_mov_b32 v29, s{sTAG}
    v_mov_b32_dpp v25, v24 quad_perm:[1,0,3,2] row_mask:0xf bank_mask:0xf
    v_cvt_pk_bf16_f32 v28, v24, v25
    s_mov_b64 exec, 0x5555
    buffer_store_dwordx2 v[28:29], v23, {WS}, s61 offen sc1
    s_mov_b64 exec, -1""")
    run(w1h, 99)
    A(f"""L_hn:
    s_mul_i32 s61, s85, 1792
    s_add_u32 s61, s61, {STATS}
    v_min_u32 v11, 13, v{vL}
    v_lshlrev_b32 v11, 7, v11
    buffer_load_dword v{vJUNK}, v11, {WS}, s61 offen sc1""")
    A("L_att:")
    if stop <= 2: return done()

    S = 0; QF = 144; KB = 152; OA = 184; VB = 200
    vKA, vVA, vVS, vQA, vQB, vP1, vMX = 216, 217, 218, 219, 220, 222, 226
    vm.n = vm.done = 0; lg.n = lg.done = 0
    A(f"""s_mul_i32 s80, s{sW}, 6144
    s_add_u32 s81, s80, {L_V}
    s_add_u32 s80, s80, {L_K}
    v_add_u32 v{OA}, s81, v{vL16}
    v_mov_b32 v{KB}, 0x3f803f80
    v_mov_b32 v{KB+1}, 0x3f803f80
    v_mov_b32 v{KB+2}, 0x3f803f80
    v_mov_b32 v{KB+3}, 0x3f803f80
    v_lshl_add_u32 v{OA+1}, v{vL31}, 3, s80
    v_mov_b32 v{KB+5}, 0
    v_mov_b32 v{KB+7}, 0
    v_mov_b32 v{KB+9}, 0
    s_lshl_b32 s61, s{sHEAD}, 4
    s_add_u32 s61, s61, s{sRB}
    s_mul_i32 s61, s61, 7168
    s_sub_u32 s61, s61, 14336
    s_min_u32 s82, s{sRB}, 2
    s_sub_u32 s82, 2, s82
    s_mul_i32 s62, s{sW}, 3
    s_lshl_b32 s63, s82, 2""")
    for q in range(3):
        A(f"""s_add_u32 s64, s62, {q}
        s_mul_i32 s65, s64, 1792
        s_add_u32 s65, s65, s61
        s_add_u32 s{83+q}, s65, {KG}
        s_add_u32 s{86+q}, s65, {VG}
        s_cmp_lt_u32 s64, s63
        s_cselect_b32 s{83+q}, {OOB}, s{83+q}
        s_cselect_b32 s{86+q}, {OOB}, s{86+q}
        s_cselect_b32 s64, {NEG>>16:#x}, 0
        v_mov_b32 v{KB+4+2*q}, s64""")
    A("s_waitcnt lgkmcnt(0)")
    barrier()
    A("s_mov_b32 exec_hi, 0")
    for q in range(3): DS(f"ds_write_b64 v{OA+1}, v[{KB+4+2*q}:{KB+5+2*q}] offset:{2048*q+1792}")
    A("s_mov_b32 exec_lo, 0xf0000000\ns_mov_b32 exec_hi, 0xf0000000")
    for i in range(6): DS(f"ds_write_b128 v{OA}, v[{KB}:{KB+3}] offset:{1024*i}")
    A("s_mov_b64 exec, -1")
    A(f"""v_lshlrev_b32 v{vT0}, 9, v{vHALF}
    v_lshl_add_u32 v{vQA}, v{vL31}, 3, v{vT0}
    v_mul_u32_u24 v{vVS}, 448, v{vHALF}
    v_lshl_add_u32 v{vVS}, v{vL31}, 4, v{vVS}
    s_lshl_b32 s89, s{sTA}, 4
    s_add_u32 s89, s89, s{sHEAD}
    s_and_b32 s61, s89, 127
    s_lshl_b32 s61, s61, 2
    s_add_u32 s61, s61, s{sCTL}
    s_add_u32 s98, s61, {C_FO}
    s_lshl_b32 s89, s89, 11
    s_add_u32 s89, s89, {QO}
    v_min_u32 v{vT0}, 13, v{vL}
    v_and_b32 v{vT1}, 1, v{vT0}
    v_mul_u32_u24 v{vT1}, 27, v{vT1}
    s_mul_i32 s61, s{sHEAD}, 28
    v_add_u32 v{vT1}, s61, v{vT1}
    v_lshrrev_b32 v{vT2}, 6, v{vT1}
    v_bfe_u32 v{vT3}, v{vT0}, 1, 1
    v_mad_u32_u24 v{vT2}, v{vT3}, 7, v{vT2}
    v_lshrrev_b32 v{vT3}, 2, v{vT0}
    v_max_u32 v{vT3}, s82, v{vT3}
    s_sub_u32 s61, s{sRB}, 2
    v_add_u32 v{vT3}, s61, v{vT3}
    v_mad_u32_u24 v{vT2}, v{vT3}, 14, v{vT2}
    v_lshlrev_b32 v{vT2}, 7, v{vT2}
    v_add_u32 v{vT2}, {FKV}, v{vT2}
    v_lshrrev_b32 v{vT1}, 5, v{vT1}
    s_and_b32 s61, s{sRB}, 1
    s_lshl_b32 s61, s61, 6
    s_add_u32 s61, s61, s{sCTL}
    s_add_u32 s61, s61, {C_FQ}
    v_lshl_add_u32 v{vT1}, v{vT1}, 2, s61
    v_cmp_gt_u32 vcc, 12, v{vT0}
    v_cndmask_b32 v{vT0}, v{vT1}, v{vT2}, vcc""")
    stamp("pre1")
    poll(vT0, "0")
    stamp("S1")
    for q in range(3):
        A(f"s_add_u32 m0, s80, {2048*q}")
        VM(f"buffer_load_dwordx4 v{vL16}, {WS}, s{83+q} offen sc1 lds")
    A("s_mov_b32 exec_hi, 0xffff")
    for q in range(3):
        A(f"s_add_u32 m0, s80, {2048*q}")
        VM(f"buffer_load_dwordx4 v{vL16}, {WS}, s{83+q} offen offset:1024 sc1 lds")
    A("s_mov_b64 exec, -1")
    for i in range(4):
        tq = VM(f"buffer_load_dwordx2 v[{QF+2*i}:{QF+2*i+1}], v{vQA}, {WS}, s89 offen offset:{1024*(i>>1)+256*(i&1)} sc1")
    A(f"s_cmp_ge_u32 s{sM}, 28\ns_cbranch_scc1 L_nr1")
    for u in range(4, 7): run(w2_read(u, 231, 4096 * (u - 4)), 99)
    A("L_nr1:")
    A(f"v_lshlrev_b32 v{vT0}, 2, v{vHALF}\nv_sub_u32 v{vT0}, v{vL31}, v{vT0}\nv_mov_b32 v{vT1}, {NEG:#x}")
    for r in range(16):
        i0 = 8 * (r >> 2) + (r & 3)
        A(f"v_cmp_gt_i32 s[{(62,64,90,92)[r&3]}:{(63,65,91,93)[r&3]}], {i0}, v{vT0}")
        if r & 3 == 3:
            for q in range(4):
                A(f"v_cndmask_b32 v{S+128+r-3+q}, 0, v{vT1}, s[{(62,64,90,92)[q]}:{(63,65,91,93)[q]}]")
                A(f"v_cndmask_b32 v{S+r-3+q}, v{vT1}, 0, s[{(62,64,90,92)[q]}:{(63,65,91,93)[q]}]")
    vS0 = 231
    A(f"""s_lshl_b32 s61, s{sW}, 11
    s_add_u32 s62, s61, {L_K}
    v_add_u32 v{vKA}, s62, v{vQA}
    s_add_u32 s61, s61, {L_V}
    v_add_u32 v{vVA}, s61, v{vL16}
    v_mov_b32 v221, 0x3f80
    s_mul_i32 s79, s{sW}, 14336
    s_lshl_b32 s99, s{sJ}, 1
    s_add_u32 s99, s99, s{sPSW}
    s_lshl_b32 s99, s99, 7
    s_cmp_ge_u32 s{sM}, 28
    s_cselect_b32 s{sCOL}, {OOB}, s{sCOL}
    s_cselect_b32 s99, {OOB}, s99
    s_cselect_b32 s79, {L_P0}, s79""")
    A(panel_addr(vP1, 3584))
    A(f"v_cmp_eq_u32 vcc, 0, v{vHALF}")
    A("s_mov_b32 exec_lo, 0x0fffffff\ns_mov_b32 exec_hi, 0x0fffffff")
    for q in range(3):
        A(f"s_add_u32 m0, s81, {2048*q}")
        VM(f"buffer_load_dwordx4 v{vVS}, {WS}, s{86+q} offen sc1 lds")
        A(f"s_sub_u32 s{86+q}, s{86+q}, 128")
        tv = VM(f"buffer_load_dwordx4 v{vVS}, {WS}, s{86+q} offen offset:1024 sc1 lds")
    A("s_mov_b64 exec, -1")
    lg.all()
    A(f"v_add_u32 v{vS0}, s{sEX}, v{vR0}\nv_add_u32 v{vS0+1}, s{sEX}, v{vR0+1}")
    vm.wait(tq)
    A(f"v_cndmask_b32 v{QF+6}, v221, v{QF+6}, vcc\nv_cndmask_b32 v{QF+7}, 0, v{QF+7}, vcc")
    barrier()
    stamp("Kin")
    def w1_jobs(base, per, first, tok=None):
        return dma_jobs(W1, vP1, 3584, per, f"s_mul_i32 s{sSRC}, s{sW}, {per*8*3584}\ns_add_u32 s{sSRC}, s{sSRC}, s99\ns_add_u32 s{sSRC}, s{sSRC}, {first*8*3584}\ns_mul_i32 s{sLDS}, s{sW}, {per*1024}\ns_add_u32 s{sLDS}, s{sLDS}, {base+first*1024}", tok)
    mem1 = dma_jobs(WO, vPAN, 896, 15, f"s_mul_i32 s{sSRC}, s{sW}, {112*896}\ns_add_u32 s{sSRC}, s{sSRC}, s{sCOL}\ns_mov_b32 s{sLDS}, s79")
    mem1 += w1_jobs(L_P0, 10, 0) + w1_jobs(L_P0, 4, 40)
    tk = []
    def ldk(n):
        b = KB + 8 * (n % 4)
        for i in range(4): k = DS(f"ds_read_b64 v[{b+2*i}:{b+2*i+1}], v{vKA} offset:{2048*n+1024*(i>>1)+256*(i&1)}")
        tk.append(k)
    for n in range(3): ldk(n)
    run(mem1, 3)
    def mx(n):
        return [f"v_max_f32 v{vMX}, v{S}, v{S+1}" if (n == 0 and r == 0) else f"v_max3_f32 v{vMX}, v{vMX}, v{S+16*n+r}, v{S+16*n+r+1}" for r in range(0, 16, 2)]
    for n in range(9):
        lg.wait(tk[n])
        b = KB + 8 * (n % 4)
        m_ = mx(n - 2) if n >= 2 else []
        mfma(v(S + 16 * n, 16), v(b, 4), v(QF, 4), None if n in (0, 8) else "0")
        if n + 3 < 9: ldk(n + 3)
        else: run(mem1, 1)
        run(m_, 2)
        mfma(v(S + 16 * n, 16), v(b + 4, 4), v(QF + 4, 4))
        if n < 2: run(mem1, 1)
        run(m_, 6)
    vm.wait(tv)
    barrier()
    tvv = []
    def ldv(n):
        b = VB + 8 * (n % 2)
        DS(f"ds_read_b128 v[{b}:{b+3}], v{vVA} offset:{2048*n}")
        tvv.append(DS(f"ds_read_b128 v[{b+4}:{b+7}], v{vVA} offset:{2048*n+1024}"))
    ldv(0); ldv(1)
    run(mx(7), 9); run(mem1, 1); run(mx(8), 9)
    A(f"v_mov_b32 v{vT0}, v{vMX}\nv_permlane32_swap_b32 v{vMX}, v{vT0}\nv_max_f32 v{vMX}, v{vMX}, v{vT0}")
    stamp("qk")
    for i in range(72):
        A(f"v_pk_add_f32 v[{S+2*i}:{S+2*i+1}], v[{S+2*i}:{S+2*i+1}], v[{vMX}:{vMX+1}] op_sel_hi:[1,0] neg_lo:[0,1] neg_hi:[0,1]")
        if i % 24 == 23: run(mem1, 1)
    def soft(n, s_):
        r0 = S + 16 * n + 8 * s_
        for e in range(8): A(f"v_exp_f32 v{r0+e}, v{r0+e}")
        for e in range(4): A(f"v_cvt_pk_bf16_f32 v{r0+e}, v{r0+2*e}, v{r0+2*e+1}")
    soft(0, 0)
    for i in range(18):
        n, s_ = i >> 1, i & 1
        if i + 1 < 18: soft((i + 1) >> 1, (i + 1) & 1)
        if s_ == 0: lg.wait(tvv[n])
        mfma(v(OA, 16), v(VB + 8 * (n % 2) + 4 * s_, 4), v(S + 16 * n + 8 * s_, 4), "0" if i == 0 else None)
        if s_ == 1 and n + 2 < 9: ldv(n + 2)
        run(mem1, 2 if len(mem1) > 14 - i else 1)
    assert not mem1
    A(f"""v_cmp_eq_u32 vcc, 0, v{vHALF}
    v_mov_b32 v{vT0}, v{OA+12}
    v_mov_b32 v{vT1}, v{OA+12}
    v_permlane32_swap_b32 v{vT0}, v{vT1}
    v_rcp_f32 v{vT1}, v{vT1}""")
    for d in range(8):
        A(f"v_pk_mul_f32 v[{OA+2*d}:{OA+2*d+1}], v[{OA+2*d}:{OA+2*d+1}], v[{vT1}:{vT1+1}] op_sel_hi:[1,0]\nv_cvt_pk_bf16_f32 v{KB+d}, v{OA+2*d}, v{OA+2*d+1}")
        if d >= 6: A(f"v_cndmask_b32 v{KB+d}, 0, v{KB+d}, vcc")
        if d % 4 == 3: to = VM(f"buffer_store_dwordx4 v[{KB+d-3}:{KB+d}], v{vL16}, {WS}, s89 offen offset:{1024*(d//4)}")
    stamp("att")
    A(f"s_cmp_lt_u32 s{sM}, 28\ns_cbranch_scc1 L_opr")
    A("s_waitcnt vmcnt(0)")
    sv2 = (vm.n, vm.done, lg.n, lg.done); flag(98)
    A(f"""s_lshl_b32 s61, s{sW}, 6
    v_add_u32 v4, s61, v{vL}
    v_add_u32 v5, 256, v4
    v_min_u32 v5, 447, v5
    s_lshl_b32 s85, s{sHI}, 2
    s_add_u32 s85, s85, s{sW}
    s_min_u32 s62, s85, 111
    s_lshl_b32 s62, s62, 5
    v_and_b32 v16, 15, v{vL}
    v_lshl_add_u32 v17, v16, 1, s62
    global_load_ushort v18, v17, s[40:41]""")
    for r, d in ((4, 6), (5, 7)):
        A(f"""v_and_b32 v{d}, 0x1f8, v{r}
        v_and_b32 v{vT0}, 3, v{r}
        v_lshl_add_u32 v{d}, v{vT0}, 1, v{d}
        v_bfe_u32 v{vT0}, v{r}, 2, 1
        v_add_lshl_u32 v{d}, v{d}, v{vT0}, 3
        v_add_u32 v{d}, {L_VEC}, v{d}
        v_lshlrev_b32 v{r}, 4, v{r}""")
    A(f"""s_mov_b32 s{sCNT}, 0
    s_mov_b32 s61, {NU}
    L_nu:
    buffer_load_dwordx4 v[8:11], v4, {WS}, s61 offen sc1
    buffer_load_dwordx4 v[12:15], v5, {WS}, s61 offen sc1
    s_add_u32 s{sCNT}, s{sCNT}, 1
    s_waitcnt vmcnt(0)
    v_cmp_ne_u32 vcc, s{sTAG}, v9
    v_cmp_ne_u32 s[62:63], s{sTAG}, v11
    v_cmp_ne_u32 s[64:65], s{sTAG}, v13
    v_cmp_ne_u32 s[82:83], s{sTAG}, v15
    s_or_b64 vcc, vcc, s[62:63]
    s_or_b64 s[64:65], s[64:65], s[82:83]
    s_or_b64 vcc, vcc, s[64:65]
    s_cbranch_vccz L_nud
    s_cmp_lt_u32 s{sCNT}, {SPIN}
    s_cbranch_scc1 L_nu
    L_nud:
    v_mov_b32 v9, v10
    v_mov_b32 v13, v14
    ds_write_b64 v6, v[8:9]
    ds_write_b64 v7, v[12:13]
    v_lshrrev_b32 v20, 2, v{vL}
    v_bfe_u32 v21, v{vL}, 3, 2
    v_xor_b32 v21, s{sW}, v21
    v_lshlrev_b32 v21, 5, v21
    v_lshl_add_u32 v20, v20, 7, v21
    v_and_b32 v21, 3, v{vL}
    v_lshl_add_u32 v20, v21, 3, v20
    v_and_b32 v21, 1, v{vL}
    v_mul_u32_u24 v21, 896, v21
    v_and_b32 v22, 48, v{vL}
    v_sub_u32 v21, v22, v21
    v_add_u32 v21, {L_VEC+1792}, v21
    s_waitcnt lgkmcnt(0)""")
    barrier()
    A(f"""s_cmp_lg_u32 s{sG}, 7
    s_cbranch_scc1 L_hu
    s_cmp_lg_u32 s85, 112
    s_cbranch_scc1 L_fin
    s_mov_b64 exec, 1
    buffer_store_dword v{vTAG}, off, {WS}, 0 sc1
    s_mov_b64 exec, -1
    s_branch L_fin
    L_hu:""")
    gemv14(21, 20)
    A(f"""v_lshlrev_b32 v18, 16, v18
    s_lshl_b32 s61, s85, 8
    s_add_u32 s61, s61, {AUG}
    v_mov_b32 v31, s{sTAG}
    v_add_f32 v25, v25, v18
    v_cvt_pk_bf16_f32 v29, v24, v25
    v_lshlrev_b32 v26, 16, v29
    v_and_b32 v27, 0xffff0000, v29
    v_sub_f32 v24, v24, v26
    v_sub_f32 v25, v25, v27
    v_cvt_pk_bf16_f32 v28, v26, v24
    v_cvt_pk_bf16_f32 v30, v25, v27
    s_mov_b64 exec, 0xffff
    buffer_store_dwordx4 v[28:31], v{vL16}, {WS}, s61 offen sc1
    s_mov_b64 exec, -1
    s_branch L_fin
    L_opr:""")
    vm.n, vm.done, lg.n, lg.done = sv2

    XR = 128; GA = 136; A2 = 152; X1 = 168; WB = 184
    A(f"""v_mul_u32_u24 v{vROW}, 896, v{vL31}
    v_lshl_add_u32 v{vROW}, v{vHALF}, 4, v{vROW}
    s_mul_i32 s80, s{sTO}, 28672
    s_lshl_b32 s61, s{sNB}, 1
    s_add_u32 s69, s61, s{sKH}
    s_lshl_b32 s61, s69, 6
    s_add_u32 s{sROW}, s80, s61
    v_and_b32 v4, 7, v{vL}
    v_lshl_add_u32 v6, v4, 3, s61
    v_bfe_u32 v5, v{vL}, 3, 2
    v_min_u32 v5, 2, v5
    v_min_u32 v7, 1, v5
    v_add_u32 v5, v5, v7
    v_mul_u32_u24 v5, 1792, v5
    v_lshl_add_u32 v4, v4, 4, v5
    s_lshl_b32 s61, s69, 7
    s_add_u32 s85, s61, {NU}""")
    tnu = VM(f"buffer_load_dwordx4 v[8:11], v4, {WS}, s85 offen sc1")
    tb2 = VM(f"global_load_dwordx2 v[12:13], v6, s[42:43]")
    VM(f"buffer_load_dwordx4 v[{XR}:{XR+3}], v{vROW}, {X}, s{sROW} offen")
    VM(f"buffer_load_dwordx4 v[{XR+4}:{XR+7}], v{vROW}, {X}, s{sROW} offen offset:32")
    vIN, vOUTB, vWO = 229, 230, 227
    A(f"""s_lshl_b32 s61, s{sW}, 9
    s_add_u32 s61, s61, {L_VEC}
    v_lshl_add_u32 v7, v{vL31}, 4, s61
    v_lshl_add_u32 v{vVEC}, v{vHALF}, 4, s61
    v_and_b32 v{vT3}, 7, v{vL}
    v_lshlrev_b32 v{vT3}, 2, v{vT3}
    s_and_b32 s61, s{sTO}, 7
    s_lshl_b32 s61, s61, 6
    s_add_u32 s61, s61, s{sCTL}
    s_lshl_b32 s62, s69, 2
    s_add_u32 s81, s61, s62
    s_add_u32 s81, s81, {C_FY}
    s_lshl_b32 s62, s{sKH}, 5
    s_add_u32 s61, s61, s62
    s_add_u32 s82, s61, {C_FO}
    s_lshl_b32 s62, s{sTO}, 1
    s_add_u32 s62, s62, s{sKH}
    s_lshl_b32 s62, s62, 14
    s_add_u32 s83, s62, {QO}
    s_xor_b32 s99, s99, 128""")
    vm.wait(to)
    flag(98)
    stamp("opub")
    if stop <= 3: return done()
    barrier()
    run(w2_dma(7, sEX, 0), 99)
    stamp("pre2")
    poll(vT3, "s82")
    stamp("S2")
    to = [Tok() for _ in range(16)]
    mem = [jVM(f"buffer_load_dwordx4 v[{16+4*i}:{19+4*i}], v{vL16}, {WS}, s83 offen offset:{1024*(i%4)} sc1", to[i], "s_add_u32 s83, s83, 4096" if (i % 4 == 0 and i) else None) for i in range(16)]
    run(mem, PRO)
    A(f"""s_mul_i32 s61, s{sKH}, {224*128}
    v_add_u32 v{vWO}, s61, v{vR0}
    v_add_u32 v{vWO+1}, s61, v{vR0+1}""")
    order = [(i, t) for i in range(11) for t in (1, 0)] + [(i, 1) for i in range(11, 16)] + [(i, 0) for i in range(11, 16)]
    two = {}
    def ldo(k):
        i, t = order[k]; b = WB + 4 * (k % 8); two[k] = Tok(); off = L_WO + 3584 * (i >> 1) + 2048 * (i & 1)
        return [jDS(f"ds_read_b64_tr_b16 v[{b}:{b+1}], v{vWO+t} offset:{off}"), jDS(f"ds_read_b64_tr_b16 v[{b+2}:{b+3}], v{vWO+t} offset:{off+1024}", two[k])]
    for k in range(5): run(ldo(k), 2)
    A(f"""s_mov_b32 s{sCNT}, 0
    L_nv:
    v_cmp_ne_u32 vcc, s{sTAG}, v9
    v_cmp_ne_u32 s[62:63], s{sTAG}, v11
    s_or_b64 vcc, vcc, s[62:63]
    s_cbranch_vccnz L_nvr
    L_nvd:
    v_cmp_lt_u32 vcc, 23, v{vL31}
    v_cndmask_b32 v8, v8, v12, vcc
    v_cndmask_b32 v10, v10, v13, vcc
    v_and_b32 v9, 0xffff0000, v8
    v_lshlrev_b32 v8, 16, v8
    v_and_b32 v11, 0xffff0000, v10
    v_lshlrev_b32 v10, 16, v10""")
    tail.append(f"""L_nvr:
    s_add_u32 s{sCNT}, s{sCNT}, 1
    s_cmp_ge_u32 s{sCNT}, {SPIN}
    s_cbranch_scc1 L_nvd
    buffer_load_dwordx4 v[8:11], v4, {WS}, s85 offen sc1
    s_waitcnt vmcnt(0)
    s_branch L_nv""")
    DS("ds_write_b128 v7, v[8:11]")
    side = [f"v_permlane32_swap_b32 v{XR+a_}, v{XR+a_+2}" for a_ in (0, 1, 4, 5)]
    for d in range(8): side += [f"v_lshlrev_b32 v{X1+2*d}, 16, v{XR+d}", f"v_and_b32 v{X1+2*d+1}, 0xffff0000, v{XR+d}"]
    for a_ in range(4):
        side.append(jDS(f"ds_read_b128 v[{GA+4*a_}:{GA+4*a_+3}], v{vVEC} offset:{32*a_}"))
        side.append(jDS(f"ds_read_b128 v[{A2+4*a_}:{A2+4*a_+3}], v{vVEC} offset:{128+32*a_}"))
    side += lines(f"""    v_add_u32 v{vIN}, s{sEX}, v{vL16}
    s_xor_b32 s61, s{sW}, 2
    s_mul_i32 s61, s61, 8960
    s_add_u32 s61, s61, {L_EX}
    v_add_u32 v{vOUTB}, s61, v{vL16}
    s_lshl_b32 s61, s69, 11
    s_add_u32 s80, s80, s61
    s_mul_i32 s84, s{sTO}, 3584
    s_lshl_b32 s61, s{sNB}, 9
    s_add_u32 s84, s84, s61
    s_lshl_b32 s61, s{sKH}, 3
    s_add_u32 s84, s84, s61
    s_add_u32 s84, s84, {STATS}""")
    t7 = Tok(); t8 = Tok(); run(w2_read(7, vS0, 0, t7), 99)
    bulk = [lambda: lg.wait(t7.t)] + w2_dma(8, sEX, 0, t8)
    run(side, 20)
    ACC = 80
    wr = [jDS(f"ds_write_b128 v{vOUTB}, v[{ACC+16+4*q}:{ACC+19+4*q}] offset:{4096+1024*q}") for q in range(4)]
    for k, (i, t) in enumerate(order):
        vm.wait(to[i].t); lg.wait(two[k].t)
        mfma(v(ACC + 16 * t, 16), v(WB + 4 * (k % 8), 4), v(16 + 4 * i, 4), "0" if i == 0 else None)
        if k + 5 < 32: run(ldo(k + 5), 2)
        if k % 2 == 0:
            if mem: run(mem, 1)
            else: run(bulk, 1)
        else: run(side, 2)
        if k >= 29: run(wr, 2)
        if 'fine' in dbg and k in (0, 16, 31): stamp(f'o{k}')
    assert not side and not bulk
    lg.all()
    barrier()
    tk = [DS(f"ds_read_b128 v[{4*q}:{4*q+3}], v{vIN} offset:{4096+1024*q}") for q in range(4)]
    for q in range(4):
        lg.wait(tk[q])
        for e in range(0, 4, 2):
            r = 4 * q + e
            A(f"""v_pk_add_f32 v[{ACC+r}:{ACC+r+1}], v[{ACC+r}:{ACC+r+1}], v[{r}:{r+1}]
            v_pk_fma_f32 v[{X1+r}:{X1+r+1}], v[{ACC+r}:{ACC+r+1}], v[{GA+r}:{GA+r+1}], v[{X1+r}:{X1+r+1}]
            v_pk_mul_f32 v[{ACC+r}:{ACC+r+1}], v[{X1+r}:{X1+r+1}], v[{A2+r}:{A2+r+1}]
            v_cvt_pk_bf16_f32 v{112+r//2}, v{ACC+r}, v{ACC+r+1}""")
        if q % 2 == 1: VM(f"buffer_store_dwordx4 v[{110+2*q}:{113+2*q}], v{vL16}, {OUT}, s80 offen offset:{1024*(q//2)}")
    A(f"v_pk_add_f32 v[120:121], v[{X1}:{X1+1}], v[{X1+2}:{X1+3}]\nv_pk_mul_f32 v[122:123], v[{X1}:{X1+1}], v[{X1}:{X1+1}]")
    for d in range(1, 8):
        if d >= 2: A(f"v_pk_add_f32 v[120:121], v[120:121], v[{X1+2*d}:{X1+2*d+1}]")
        A(f"v_pk_fma_f32 v[122:123], v[{X1+2*d}:{X1+2*d+1}], v[{X1+2*d}:{X1+2*d+1}], v[122:123]")
    A(f"""v_add_f32 v120, v120, v121
    v_add_f32 v121, v122, v123
    v_mov_b32 v122, v120
    v_mov_b32 v123, v121
    v_permlane32_swap_b32 v120, v122
    v_permlane32_swap_b32 v121, v123
    v_add_f32 v120, v120, v122
    v_add_f32 v121, v121, v123
    s_mov_b32 exec_hi, 0""")
    ty = VM(f"buffer_store_dwordx2 v[120:121], v{vL16}, {WS}, s84 offen")
    A("s_mov_b64 exec, -1")
    stamp("oproj")

    tp1 = Tok()
    run(w1_jobs(L_P1, 8, 0), 99)
    bulk = w1_jobs(L_P1, 6, 32, tp1)
    vSTA, vW1 = 229, 228
    for r in range(16): A(f"v_accvgpr_write_b32 a{224+r}, v{X1+r}")
    fd = f"""s_lshl_b32 s62, s61, 7
        s_add_u32 s62, s62, s{sCTL}
        s_lshl_b32 s63, s{sJ}, 2
        s_add_u32 s62, s62, s63
        s_add_u32 s85, s62, {C_FD}
        s_add_u32 s86, s85, 64
        s_mul_i32 s84, s{sTQ}, 14
        s_add_u32 s84, s84, s{sJ}
        s_lshl_b32 s84, s84, 7
        s_add_u32 s84, s84, {RS2}"""
    A(f"""v_min_u32 v{vT3}, 13, v{vL}
    v_lshlrev_b32 v{vT3}, 2, v{vT3}
    s_and_b32 s61, s{sTQ}, 7
    s_lshl_b32 s62, s61, 6
    s_add_u32 s62, s62, s{sCTL}
    s_add_u32 s82, s62, {C_FY}
    {fd}
    s_mul_i32 s83, s{sTQ}, 28672
    s_mul_i32 s87, s{sTQ}, 3584
    s_add_u32 s87, s87, {STATS}
    s_mul_i32 s88, s{sTQ}, 114688
    s_lshl_b32 s61, s{sJ}, 1
    s_add_u32 s61, s61, s{sPSW}
    s_lshl_b32 s62, s61, 12
    s_add_u32 s88, s88, s62
    s_add_u32 s88, s88, {HID}
    s_lshl_b32 s61, s61, 10
    s_add_u32 s89, s61, {AUG}
    s_xor_b32 s61, s61, 1024
    s_add_u32 s92, s61, {AUG}
    v_lshlrev_b32 v{vSTA}, 11, v{vHALF}
    v_lshl_add_u32 v{vSTA}, v{vL31}, 4, v{vSTA}
    v_lshlrev_b32 v{vSTA+1}, 30, v{vHALF}
    v_add_u32 v{vSTA+1}, v{vSTA+1}, v{vSTA}
    v_add_u32 v{vW1}, {L_P0}, v{vTP0}
    v_add_u32 v{vW1-1}, {L_P0}, v{vTP1}""")
    vm.wait(ty); flag(81); stamp("ypub")
    if stop <= 4: return done()
    VM(f"buffer_load_dwordx4 v[144:147], v{vL16}, {WS}, s89 offen sc1")
    VM(f"buffer_load_dwordx4 v[148:151], v{vL16}, {WS}, s92 offen sc1")
    run(w2_read(8, vS0, 0), 99)
    poll(vT3, "s82")
    stamp("S3")
    ty = [Tok() for _ in range(28)]; ts = Tok()
    mem = [jVM(f"buffer_load_dwordx4 v[{4*s_}:{4*s_+3}], v{vL16}, {OUT}, s83 offen offset:{1024*(s_%4)} sc1", ty[s_], "s_add_u32 s83, s83, 4096" if (s_ % 4 == 0 and s_) else None) for s_ in range(28)]
    stl = [jVM(f"buffer_load_dwordx4 v[{160+4*i}:{163+4*i}], v{vSTA+(i==3)}, {WS}, s87 offen offset:{512*i} sc1", ts) for i in range(4)]
    run(mem, PRO)
    ACC = 112; WB = 176; vRS = 226; AU = 248; BA = 240
    tw = {}
    def ld1(i):
        pn, s_ = divmod(i, 28)
        b = WB + 8 * (i % 4); js = []; tw[i] = Tok()
        for t in range(2):
            ad = (vW1 - t) if pn == 0 else (vTP0 - t)
            js.append(jDS(f"ds_read_b64_tr_b16 v[{b+4*t}:{b+4*t+1}], v{ad} offset:{2048*s_}"))
            js.append(jDS(f"ds_read_b64_tr_b16 v[{b+4*t+2}:{b+4*t+3}], v{ad} offset:{2048*s_+1024}", tw[i]))
        return js
    for i in range(3): run(ld1(i), 4)
    A(f"""s_mov_b32 s{sCNT}, 0
    L_au:
    v_cmp_ne_u32 vcc, s{sTAG}, v147
    v_cmp_ne_u32 s[62:63], s{sTAG}, v151
    s_or_b64 vcc, vcc, s[62:63]
    s_cbranch_vccnz L_aur
    L_aud:""")
    tail.append(f"""L_aur:
    s_add_u32 s{sCNT}, s{sCNT}, 1
    s_cmp_ge_u32 s{sCNT}, {SPIN}
    s_cbranch_scc1 L_aud
    buffer_load_dwordx4 v[144:147], v{vL16}, {WS}, s89 offen sc1
    buffer_load_dwordx4 v[148:151], v{vL16}, {WS}, s92 offen sc1
    s_waitcnt vmcnt(0)
    s_branch L_au""")
    for r in range(8): A(f"v_accvgpr_write_b32 a{AU+r}, {'0' if r % 4 == 3 else 'v%d' % (144 + r)}")
    A(f"v_accvgpr_write_b32 a{BA+3}, 0\nv_accvgpr_write_b32 a{BA+7}, 0\nv_cmp_eq_u32 s[90:91], 0, v{vHALF}")
    stat = lines(f"""v_add_f32 v208, v160, v162
    v_add_f32 v209, v161, v163
    v_add_f32 v210, v164, v166
    v_add_f32 v211, v165, v167
    v_add_f32 v212, v168, v170
    v_add_f32 v213, v169, v171
    v_add_f32 v214, v172, v174
    v_add_f32 v215, v173, v175
    v_add_f32 v208, v208, v210
    v_add_f32 v209, v209, v211
    v_add_f32 v212, v212, v214
    v_add_f32 v213, v213, v215
    v_add_f32 v208, v208, v212
    v_add_f32 v209, v209, v213
    v_mov_b32 v210, v208
    v_mov_b32 v211, v209
    v_permlane32_swap_b32 v208, v210
    v_permlane32_swap_b32 v209, v211
    v_add_f32 v208, v208, v210
    v_add_f32 v209, v209, v211
    v_mul_f32 v208, 0xbb124925, v208
    v_mul_f32 v209, 0x3b124925, v209
    v_fma_f32 v209, -v208, v208, v209
    v_max_f32 v209, 0, v209
    v_add_f32 v209, 0x3727c5ac, v209
    v_rcp_f32 v{vRS}, v209
    v_sqrt_f32 v209, v209
    v_cvt_pk_bf16_f32 v213, v208, v208
    v_cvt_pk_bf16_f32 v210, v209, v209
    v_and_b32 v211, 0xffff0000, v213
    v_and_b32 v210, 0xffff0000, v210
    v_sub_f32 v211, v208, v211
    v_sub_f32 v212, v209, v210
    v_cvt_pk_bf16_f32 v214, v211, v210
    v_cvt_pk_bf16_f32 v215, v210, v212""")
    for r in range(3):
        stat += [f"v_cndmask_b32 v{216+r}, 0, v{213+r}, s[90:91]", f"v_cndmask_b32 v{219+r}, v{213+r}, 0, s[90:91]"]
    for r in range(3): stat += [f"v_accvgpr_write_b32 a{BA+r}, v{216+r}", f"v_accvgpr_write_b32 a{BA+4+r}, v{219+r}"]
    def epi_list(pn, last):
        e = []
        for t in range(2):
            c = ACC + 32 * pn + 16 * t
            for d in range(8):
                r = c + 2 * d; p = 208 + 8 * t + d
                e += [f"v_mul_f32 v{r}, v{r}, abs(v{r})", f"v_mul_f32 v{r+1}, v{r+1}, abs(v{r+1})", f"v_cvt_pk_bf16_f32 v{p}, v{r}, v{r+1}", f"v_pk_max_i16 v{p}, v{p}, 0"]
                if d % 4 == 3: e.append(jVM(f"buffer_store_dwordx4 v[{205+8*t+d}:{208+8*t+d}], v{vL16}, {WS}, s88 offen offset:{2048*t+1024*(d//4)} sc1", last))
        return e
    mem = mem + stl + bulk
    tA = Tok(); last0 = Tok(); last1 = Tok()
    side = []
    def aug(pn):
        for t in range(2): mfma(v(ACC + 32 * pn + 16 * t, 16), a(AU + 4 * pn, 4), a(BA + 4 * t, 4))
    AUG0 = 35
    for i in range(56):
        pn, s_ = divmod(i, 28)
        if pn == 0: vm.wait(ty[s_].t)
        lg.wait(tw[i].t)
        if i == 24: barrier()
        if i == 26: vm.wait(ts.t); side = list(stat) + [f"v_lshlrev_b32 v{vT2}, 2, v{vL31}"]
        if i == 28:
            assert not mem
            mem = w2_dma(9, sEX, 0) + w2_dma(10, sEX, 4096)
        if i == AUG0:
            assert not side
            vm.wait(tp1.t); barrier()
            aug(0)
            A(f"s_mul_i32 s79, s{sW}, 14336\ns_add_u32 s79, s79, {L_P0}\nv_add_u32 v{vT0}, s79, v{vR0}\nv_add_u32 v{vT1}, s79, v{vR0+1}")
            VM(f"buffer_store_dword v{vRS}, v{vT2}, {WS}, s84 offen sc1")
        if i == AUG0 + 1: side = epi_list(0, last0)
        if i == AUG0 + 9:
            for k in range(3): mem += w2_dma(11 + k, 79, 4096 * k, tA)
        b = WB + 8 * (i % 4)
        nx = ld1(i + 3) if i + 3 < 56 else []
        for t in range(2):
            mfma(v(ACC + 32 * pn + 16 * t, 16), v(b + 4 * t, 4), v(4 * s_, 4), "0" if s_ == 0 else None)
            if t == 0:
                if mem: run(mem, 1); run(nx, 1); run(side, 2)
                else: run(nx, 2); run(side, 3)
            else:
                run(nx, 3); run(side, 4 if i < AUG0 else 3)
        if i == 27: stamp("f1a")
        if 'fine' in dbg and i in (0, 9, 18, 34, 44, 55): stamp(f'f{i}')
    assert not mem and not side
    aug(1)
    vm.wait(last0.t); flag(85)
    A(f"s_add_u32 s88, s88, s{sDH}")
    e1 = epi_list(1, last1)
    late_st = [e for e in e1 if callable(e)] if pollfirst else []
    run([e for e in e1 if e not in late_st], 999)
    stamp("ffn1")

    ACC = 0; HB = 64; NB_ = 40
    vH0, vH1, vFD = 224, 225, 226
    A(f"""v_and_b32 v{vT2}, 3, v{vL}
    v_lshlrev_b32 v{vT2}, 2, v{vT2}
    v_bfe_u32 v{vT3}, v{vL}, 2, 1
    v_lshl_add_u32 v{vFD}, v{vT3}, 7, v{vT2}
    s_and_b32 s61, s{sTO}, 6
    s_lshl_b32 s61, s61, 7
    s_add_u32 s61, s61, s{sCTL}
    s_mul_i32 s62, s{sW}, 7
    s_lshr_b32 s62, s62, 1
    s_mul_i32 s82, s{sTO}, 14
    s_add_u32 s82, s82, s62
    s_lshl_b32 s82, s82, 7
    s_add_u32 s82, s82, {RS2}
    s_lshl_b32 s62, s62, 2
    s_add_u32 s61, s61, s62
    s_add_u32 s80, s61, {C_FD}
    s_add_u32 s81, s80, 64
    v_lshlrev_b32 v{vT2}, 2, v{vL31}""")
    A(f"""s_mul_i32 s61, s{sTO}, 114688
    s_add_u32 s61, s61, {HID}
    v_add_u32 v{vH0}, s61, v{vL16}
    s_xor_b32 s61, s{sTO}, 1
    s_mul_i32 s61, s61, 114688
    s_add_u32 s61, s61, {HID}
    v_add_u32 v{vH1}, s61, v{vL16}""")
    for q in range(7): A(f"s_lshl_b32 s{sFT+q}, s{sFT+q}, 11")
    if stop <= 5:
        vm.wait(last1.t); return done()
    poll(vFD, "s80")
    stamp("S4a")
    seq = list(range(40)) + list(range(41, 56, 2)) + list(range(40, 56, 2))
    th = [Tok() for _ in range(56)]
    bumped = set()
    def hj(p):
        i = seq[p]; u, s_, mh = i >> 2, (i >> 1) & 1, i & 1
        b = HB + 4 * (p % NB_)
        pre = None
        if u >= 7 and u not in bumped: bumped.add(u); pre = f"s_add_u32 s{sFT+u%7}, s{sFT+u%7}, s{sDH}"
        return jVM(f"buffer_load_dwordx4 v[{b}:{b+3}], v{vH1 if mh else vH0}, {WS}, s{sFT+u%7} offen offset:{1024*s_} sc1", th[p], pre)
    mem = [hj(i) for i in range(28)]
    if not pollfirst: flag(86)
    run(mem, PRO - len(late_st) // 2)
    run(late_st, 4)
    trs = Tok(); mem.append(jVM(f"buffer_load_dword v{vT3}, v{vT2}, {WS}, s82 offen sc1", trs))
    vRW, vRR = 227, 230
    for k in range(1, 4):
        A(f"s_xor_b32 s61, s{sW}, {k}\ns_mul_i32 s61, s61, 12288\ns_add_u32 s61, s61, {4096*(k-1)}\nv_add_u32 v{vRW+k-1}, s61, v{vL16}")
    A(f"s_mul_i32 s61, s{sW}, 12288\nv_add_u32 v{vRR}, s61, v{vL16}")
    trd = Tok()
    rds = w2_read(9, vS0, 0) + w2_read(10, vS0, 4096) + w2_read(11, vT0, 0) + w2_read(12, vT0, 4096) + w2_read(13, vT0, 8192, trd)
    run(rds, 16)
    def mm(p, t):
        i = seq[p]; u, s_, mh = i >> 2, (i >> 1) & 1, i & 1
        vm.wait(th[p].t)
        mfma(v(ACC + 16 * (2 * t + mh), 16), a(16 * u + 8 * s_ + 4 * t, 4), v(HB + 4 * (p % NB_), 4), "0" if i < 2 else None)
    side = []
    tgb = Tok()
    for a_ in range(4):
        side.append(jDS(f"ds_read_b128 v[{160+4*a_}:{163+4*a_}], v{vVEC} offset:{256+32*a_}"))
        side.append(jDS(f"ds_read_b128 v[{176+4*a_}:{179+4*a_}], v{vVEC} offset:{384+32*a_}", tgb))
    side += [f"v_accvgpr_read_b32 v{144+r}, a{224+r}" for r in range(16)]
    side.append(lambda: lg.wait(tgb.t))
    for r in range(16): side.append(f"v_fmac_f32 v{144+r}, v{160+r}, v{176+r}")
    for r in range(16): side.append(f"v_mul_f32 v{160+r}, v{160+r}, v{vT3}")
    tpl = Tok()
    for i in range(48):
        if pollfirst and i == LFLAG: vm.wait(last1.t); flag(86)
        if i == LATE:
            jVM(f"buffer_load_dword v{vJUNK}, v{vFD}, {WS}, s81 offen sc1", tpl)()
        if i == LATE + LATW:
            lr, lj = U("lr"), U("lj")
            vm.wait(tpl.t)
            A(f"v_cmp_ne_u32 vcc, s{sTAG}, v{vJUNK}\ns_cmp_eq_u32 s{sUNI}, 0\ns_cbranch_scc1 {lr}\ns_cbranch_vccnz {lr}\n{lj}:")
            tail.append(f"""{lr}:
            s_mov_b32 s{sCNT}, 0
            {lr}a:
            buffer_load_dword v{vJUNK}, v{vFD}, {WS}, s81 offen sc1
            s_add_u32 s{sCNT}, s{sCNT}, 1
            s_waitcnt vmcnt(0)
            v_cmp_ne_u32 vcc, s{sTAG}, v{vJUNK}
            s_cbranch_vccz {lr}b
            s_cmp_lt_u32 s{sCNT}, {SPIN}
            s_cbranch_scc1 {lr}a
            {lr}b:
            s_cmp_eq_u32 s{sUNI}, 1
            s_cbranch_scc1 {lj}
            buffer_inv sc1
            s_waitcnt vmcnt(0)
            s_branch {lj}""")
            stamp("S4b")
            mem += [hj(k) for k in range(28, 56)]
            run(mem, max(0, len(mem) - 28 + min(PRO, i + PRO - 28)) if i + PRO > 29 else 0)
        if i == 20: barrier()
        if i == 24: lg.wait(trd.t)
        mm(i, 0); run(mem, 1); mm(i, 1); run(rds, 3)
        if i >= 33: run(side, 4)
        if 'fine' in dbg and i in (0, 8, 16, 28, 36): stamp(f'g{i}')
    assert not mem and not side
    wrj = lambda k: [jDS(f"ds_write_b128 v{vRW+k-1}, v[{ACC+16*k+4*q}:{ACC+16*k+4*q+3}] offset:{1024*q}") for q in range(4)]
    wr = wrj(1) + wrj(3)
    tailo = [(48, 1), (48, 0), (49, 1), (49, 0), (50, 1), (50, 0), (51, 1), (52, 1), (53, 1), (54, 1), (55, 1), (51, 0), (52, 0), (53, 0), (54, 0), (55, 0)]
    for n, (p, t) in enumerate(tailo):
        mm(p, t)
        if n == 12: wr += wrj(2)
        if n >= 2 and n % 3 != 1: run(wr, 1)
    run(wr, 99)
    stamp("ffn2")
    lg.all()
    barrier()
    tk = {}
    for q in range(4):
        for k in range(3): tk[q] = DS(f"ds_read_b128 v[{64+16*k+4*q}:{67+16*k+4*q}], v{vRR} offset:{4096*k+1024*q}")
    for q in range(4):
        lg.wait(tk[q])
        for e in range(0, 4, 2):
            r = 4 * q + e
            A(f"""v_pk_add_f32 v[{64+r}:{65+r}], v[{64+r}:{65+r}], v[{80+r}:{81+r}]
            v_pk_add_f32 v[{96+r}:{97+r}], v[{96+r}:{97+r}], v[{r}:{r+1}]
            v_pk_add_f32 v[{64+r}:{65+r}], v[{64+r}:{65+r}], v[{96+r}:{97+r}]
            v_pk_fma_f32 v[{144+r}:{145+r}], v[{64+r}:{65+r}], v[{160+r}:{161+r}], v[{144+r}:{145+r}]
            v_cvt_pk_bf16_f32 v{192+r//2}, v{144+r}, v{145+r}""")
        if q % 2 == 1:
            b = 192 + 2 * (q - 1)
            A(f"v_permlane32_swap_b32 v{b}, v{b+2}\nv_permlane32_swap_b32 v{b+1}, v{b+3}")
            VM(f"buffer_store_dwordx4 v[{b}:{b+3}], v{vROW}, {OUT}, s{sROW} offen offset:{16*(q-1)}")
    stamp("done")
    if meas:
        A(f"""s_cmp_lg_u32 s2, {meas[3]}
        s_cbranch_scc1 L_fin
        v_readlane_b32 s61, v{vST}, 0
        v_readlane_b32 s62, v{vST}, 1
        s_memrealtime s[100:101]
        s_sub_u32 s61, s62, s61
        s_mul_i32 s61, s61, {meas[2]}
        s_min_u32 s61, s61, 100000
        s_waitcnt lgkmcnt(0)
        s_mov_b32 s63, s100
        L_ms:
        s_memrealtime s[100:101]
        s_waitcnt lgkmcnt(0)
        s_sub_u32 s62, s100, s63
        s_cmp_lt_u32 s62, s61
        s_cbranch_scc1 L_ms""")
    return done()

HEAD = open("adaLN_cond__sliding_block__dense_activation_squared_relu__prompt.s.ref").read().split("; Override launch")[0]
def wrap(A, tail):
    for t in tail: A(t)
    A("L_exit:\ns_endpgm")
    A.raw("CODE_END:")
    txt = HEAD + f"; @launch grid=(256,1,1) block=(256,1,1) lds={LDS_BYTES}\n.amdgcn_target \"amdgcn-amd-amdhsa--gfx950\"\n.text\n" + kernel_header(NAME) + A.text()
    txt += ".section .rodata,\"a\"\n.p2align 6\n" + kernel_desc(NAME, 512, 102, 256)
    return txt

if __name__ == "__main__":
    out = sys.argv[1]
    kw = eval("dict(" + (sys.argv[2] if len(sys.argv) > 2 else "") + ")")
    t, names = gen(**kw)
    open(out, "w").write(t)
    if names: json.dump(names, open(out + ".json", "w"))
    print(out, len(t.split("\n")), "lines", len(names), "stamps")
```

```python
import sys, json, struct
from asmgen import *
NAME = "adaLN_cond__sliding_block__dense_activation_squared_relu__prompt_kernel"
QSCALE = struct.unpack("<I", struct.pack("<f", 28 ** -0.5 * 1.4426950408889634))[0]

CTL = 0x4000
C_FH, C_FQ, C_FO, C_FY, C_FD = 0, 0x200, 0x400, 0x600, 0x800
S0U = 0x10000
XCCG = 0x14000
AUG = 0x1C000
STATS = 0x28000
NU = 0x70000
FKV = 0x72000
RS2 = 0x80000
QO = 0x100000
KG = 0x300000
VG = 0x500000
HID = 0x700000
STAMP = 0xF00000
WSZ = 0x1000000
OOB = 0x40000000
L_WKV, L_B, L_WQ = 0, 57344, 122880
L_K, L_V = 102400, 126976
L_WO = 0; L_SA = 58368
L_P0 = 58368; L_P1 = 0
L_EX = 115712
L_MISC = 151552
L_X = L_MISC; L_VEC = L_MISC; L_SILU = L_MISC + 7168; L_MODV = L_MISC + 8192
LDS_BYTES = 163840
sW, sG, sM, sTAG, sUNI = 3, 4, 5, 6, 7
X, WQKV, WO, W1, W2, WMOD, OUT, WS = [f"s[{i}:{i+3}]" for i in (8, 12, 16, 20, 24, 28, 32, 36)]
sXCC, sCTL = 46, 47
sJ, sTQ, sHEAD, sRB, sTA, sNB, sTO, sKH, sMH, sRBQ, sHI, sCOL = 48, 49, 50, 51, 52, 53, 54, 55, 56, 57, 58, 59
sCNT = 60
sSRC, sLDS = 67, 68
sFT = 70
sROW = 77; sEX = 78; sDL = 94; sDH = 95; sPSW = 96
vL, vL16, vTN0, vTN1, vTP0, vTP1 = 255, 254, 253, 252, 251, 250
vPAN = 246
vTAG, vHALF, vL31 = 245, 244, 243
vT0, vT1, vT2, vT3 = 239, 240, 241, 242
vJUNK, vST, vROW, vVEC = 238, 237, 236, 235
NEG = 0xF149F2CA
SPIN_A, SPIN = 48, 60000

class Ctr:
    def __init__(s, A, name, mx): s.A, s.name, s.mx, s.n, s.done = A, name, mx, 0, 0
    def issue(s): s.n += 1; return s.n
    def wait(s, tok):
        if tok <= s.done: return
        k = min(s.n - tok, s.mx)
        s.A.e(f"s_waitcnt {s.name}({k})"); s.done = s.n - k
    def all(s): s.A.e(f"s_waitcnt {s.name}(0)"); s.done = s.n
    def drained(s): s.done = s.n

def gen(stop=99, stamps=False, force_slow=False, n1=0, rot=True, PRO=10, LATE=8, LATW=10, only=None, meas=None, dbg=(), hmod=' sc1', touch='B0', wq='h', n3=8, pollfirst=False, omod='', lst=None, LFLAG=12):
    A = Asm()
    vm = Ctr(A, "vmcnt", 63); lg = Ctr(A, "lgkmcnt", 15)
    tail = []; nst = [0]; uid = [0]; names = []
    def U(p): uid[0] += 1; return f"L_{p}{uid[0]}"
    def stamp(nm):
        if meas and nm in meas[:2]:
            A(f"s_memrealtime s[100:101]\ns_waitcnt lgkmcnt(0)\nv_writelane_b32 v{vST}, s100, {meas.index(nm)}"); lg.drained()
        if not stamps or (only and nm not in only): return
        if nm in names: i = names.index(nm)
        else: i = len(names); names.append(nm)
        A(f"{'s_memtime' if stamps == 2 else 's_memrealtime'} s[100:101]\ns_waitcnt lgkmcnt(0)\nv_writelane_b32 v{vST}, s100, {i}"); lg.drained()
    def VM(t): A(t); return vm.issue()
    def DS(t): A(t); return lg.issue()
    def barrier(): A("s_barrier")
    def mfma(d, a_, b_, c=None): A(f"v_mfma_f32_32x32x16_bf16 {d}, {a_}, {b_}, {c if c is not None else d}")
    def run(q, n):
        for _ in range(n):
            if not q: return
            e = q.pop(0)
            if callable(e): e()
            else: A(e)
    def lines(t): return [x.strip() for x in t.strip().split("\n") if x.strip()]
    class Tok:
        t = None
    def jVM(text, tok=None, pre=None):
        def f():
            if pre: A(pre)
            k = VM(text)
            if tok is not None: tok.t = k
        return f
    def jDS(text, tok=None):
        def f():
            k = DS(text)
            if tok is not None: tok.t = k
        return f

    def flag(soff, slow=False):
        A("s_mov_b64 exec, 1")
        if slow: VM(f"buffer_store_dword v{vTAG}, off, {WS}, s{soff} sc1")
        else:
            ls, lj = U("fs"), U("fj")
            A(f"s_cmp_eq_u32 s{sUNI}, 0\ns_cbranch_scc1 {ls}")
            VM(f"buffer_store_dword v{vTAG}, off, {WS}, s{soff}")
            A(f"{lj}:")
            tail.append(f"{ls}:\nbuffer_wbl2 sc1\ns_waitcnt vmcnt(0)\nbuffer_store_dword v{vTAG}, off, {WS}, s{soff} sc1\ns_branch {lj}")
        A("s_mov_b64 exec, -1")
    def poll(vaddr, soff):
        lp, ld, li, lj = U("p"), U("pd"), U("pi"), U("pj")
        A(f"s_mov_b32 s{sCNT}, 0\n{lp}:\nbuffer_load_dword v{vJUNK}, v{vaddr}, {WS}, {soff} offen sc1\ns_add_u32 s{sCNT}, s{sCNT}, 1\ns_waitcnt vmcnt(0)")
        A(f"v_cmp_ne_u32 vcc, s{sTAG}, v{vJUNK}\ns_cbranch_vccz {ld}\ns_cmp_lt_u32 s{sCNT}, {SPIN}\ns_cbranch_scc1 {lp}\n{ld}:")
        vm.drained()
        A(f"s_cmp_eq_u32 s{sUNI}, 0\ns_cbranch_scc1 {li}\n{lj}:")
        tail.append(f"{li}:\nbuffer_inv sc1\ns_waitcnt vmcnt(0)\ns_branch {lj}")
    def panel_addr(dst, rs, swz="std"):
        t = f"v_lshrrev_b32 v{vT0}, 3, v{vL}\nv_and_b32 v{vT1}, 7, v{vL}\n"
        if swz == "std": t += f"v_bfe_u32 v{vT2}, v{vL}, 4, 1\nv_lshlrev_b32 v{vT2}, 2, v{vT2}\n"
        else: t += f"v_bfe_u32 v{vT2}, v{vL}, 4, 2\nv_lshlrev_b32 v{vT2}, 1, v{vT2}\n"
        t += f"v_xor_b32 v{vT1}, v{vT1}, v{vT2}\nv_mul_u32_u24 v{vT0}, {rs}, v{vT0}\nv_lshl_add_u32 v{dst}, v{vT1}, 4, v{vT0}\n"
        for i in range(1, 4): t += f"v_add_u32 v{dst+i}, {i*(8*rs-1024)}, v{dst}\n"
        return t
    def dma_jobs(srd, vp, rs, n, setup, tok=None):
        js = []
        if "nobulk" in dbg and srd in (W2, W1, WO) and vp != 4:
            def nop():
                if tok is not None: tok.t = 0
            return [nop] * n
        for i in range(n):
            q = i % 4
            pre = None
            if i == 0: pre = setup + f"\ns_mov_b32 m0, s{sLDS}"
            elif q == 0: pre = f"s_add_u32 s{sLDS}, s{sLDS}, 4096\ns_mov_b32 m0, s{sLDS}\ns_add_u32 s{sSRC}, s{sSRC}, {32*rs}"
            js.append(jVM(f"buffer_load_dwordx4 v{vp+q}, {srd}, s{sSRC} offen offset:{1024*q} lds", tok, pre))
        return js
    def w2_dma(u, lds_s, lds_off, tok=None):
        return dma_jobs(W2, vPAN, 896, 4, f"s_mul_i32 s{sSRC}, s{sFT+u%7}, {32*896}\ns_add_u32 s{sLDS}, s{lds_s}, {lds_off}\ns_add_u32 s{sSRC}, s{sSRC}, s{sDL if u >= 7 else sCOL}", tok)
    def w2_read(u, va, off, tok=None):
        js = []
        for s_ in range(2):
            for t in range(2):
                r = 16 * u + 8 * s_ + 4 * t
                for p in range(2): js.append(jDS(f"ds_read_b64_tr_b16 a[{r+2*p}:{r+2*p+1}], v{va+t} offset:{off+2048*s_+1024*p}", tok))
        return js
    def finish():
        if stamps:
            A(f"v_writelane_b32 v{vST}, s{sUNI}, 63")
            A(f"s_lshl_b32 s61, s2, 2\ns_add_u32 s61, s61, s{sW}\ns_lshl_b32 s61, s61, 8\ns_add_u32 s61, s61, {STAMP}\nv_lshlrev_b32 v{vT1}, 2, v{vL}")
            A(f"buffer_store_dword v{vST}, v{vT1}, {WS}, s61 offen")
        A("s_endpgm")
    def done():
        A("L_fin:"); finish(); return wrap(A, tail, lst), names

    A("s_cmp_ge_u32 s2, 256\ns_cbranch_scc1 L_exit")
    if stamps: A(f"v_mov_b32 v{vST}, 0")
    stamp("entry")
    for r, off in ((8, 0), (12, 8), (32, 80), (28, 72), (44, 64), (36, 96)):
        A(f"s_load_dwordx2 s[{r}:{r+1}], s[0:1], {off}")
    A(f"""s_getpc_b64 s[62:63]
    L_pc:
    v_lshrrev_b32 v1, 6, v0
    v_and_b32 v{vL}, 63, v0
    s_lshr_b32 s{sM}, s2, 3
    v_lshl_add_u32 v11, s{sM}, 2, v1
    v_min_u32 v10, 2, v{vL}
    v_lshl_add_u32 v11, v10, 7, v11
    v_lshlrev_b32 v11, 7, v11
    v_min_u32 v11, CODE_END-L_pc-4, v11""")
    VM(f"global_load_dword v{vJUNK}, v11, s[62:63]")
    A(f"s_and_b32 s{sG}, s2, 7\nv_readfirstlane_b32 s{sW}, v1")
    for r, n in ((8, 1835008), (12, 1204224), (32, 1835008), (28, 2408448), (36, WSZ)):
        A(f"s_mov_b32 s{r+2}, {n}\ns_mov_b32 s{r+3}, 0x20000")
    A(f"""v_lshrrev_b32 v9, 3, v{vL}
    v_mul_u32_u24 v9, 896, v9
    v_and_b32 v10, 7, v{vL}
    v_lshl_add_u32 v9, v10, 4, v9
    s_lshl_b32 s61, s{sG}, 5
    s_add_u32 s93, s61, s{sM}
    s_mul_i32 s61, s93, 7168
    s_lshl_b32 s62, s{sW}, 7
    s_add_u32 s61, s61, s62
    s_lshl_b32 s62, s{sW}, 10
    s_add_u32 s62, s62, {L_X}
    s_add_u32 s63, s61, 512
    s_cmp_eq_u32 s{sW}, 3
    s_cselect_b32 s63, s61, s63
    s_cselect_b32 s64, 0, 4096
    s_add_u32 s64, s64, s62
    s_lshr_b32 s65, s93, 2
    s_mul_i32 s79, s65, 28672
    s_and_b32 s65, s{sM}, 3
    s_lshl_b32 s65, s65, 7
    s_add_u32 s79, s79, s65
    s_cmp_ge_u32 s{sM}, 28
    s_cbranch_scc1 L_h0""")
    xload = f"""s_mov_b32 m0, s62
    buffer_load_dwordx4 v9, {X}, s61 offen lds
    s_mov_b32 m0, s64
    buffer_load_dwordx4 v9, {X}, s63 offen lds"""
    late_args = f"s_load_dword s{sTAG}, s[36:37], 0\n" + "\n".join(f"s_load_dwordx2 s[{r}:{r+1}], s[0:1], {off}" for r, off in ((16, 16), (20, 32), (40, 40), (24, 48), (42, 56)))
    A(panel_addr(12, 2688))
    A(f"""s_cmp_ge_u32 s{sM}, 14
    s_cselect_b32 s65, 14, 0
    s_cselect_b32 s82, {14-n1 if rot else 0}, 0
    s_cselect_b32 s83, {0 if rot else n1}, {n1}
    s_sub_u32 s{sJ}, s{sM}, s65
    s_lshl_b32 s80, s{sJ}, 7
    s_add_u32 s80, s80, 896
    s_mul_i32 s65, s{sW}, {112*2688}
    s_add_u32 s80, s80, s65
    s_mul_i32 s81, s{sW}, 14336
    s_mov_b32 s{sHI}, 0""")
    def wkv_setup(r): return f"s_mul_i32 s{sSRC}, s{r}, {8*2688}\ns_add_u32 s{sSRC}, s{sSRC}, s80\ns_lshl_b32 s{sLDS}, s{r}, 10\ns_add_u32 s{sLDS}, s{sLDS}, s81"
    A(wkv_setup(82))
    A("s_waitcnt lgkmcnt(0)")
    stamp("karg")
    A(xload); vm.issue(); tx = vm.issue()
    run(dma_jobs(WQKV, 12, 2688, n1, ""), 99)
    A(late_args)
    A("v_mov_b32 v4, 0\nv_mov_b32 v5, 0\nv_mov_b32 v6, 0\nv_mov_b32 v7, 0")
    nwork = vm.n
    A("s_branch L_h1\nL_h0:")
    A(panel_addr(4, 5376, "mod"))
    A(f"""v_min_u32 v2, 223, v0
    v_lshlrev_b32 v3, 2, v2
    s_lshl_b32 s{sHI}, s{sG}, 2
    s_add_u32 s{sHI}, s{sHI}, s{sM}
    s_sub_u32 s{sHI}, s{sHI}, 28
    s_lshr_b32 s65, s{sHI}, 1
    s_lshl_b32 s65, s65, 7
    s_and_b32 s66, s{sHI}, 1
    s_lshl_b32 s66, s66, 2
    s_add_u32 s66, s66, s{sW}
    s_mul_i32 s66, s66, {56*5376}
    s_add_u32 s{sSRC}, s65, s66
    s_cmp_eq_u32 s{sG}, 7
    s_cselect_b32 s{sSRC}, {OOB}, s{sSRC}
    s_mul_i32 s{sLDS}, s{sW}, 7168
    s_add_u32 s{sLDS}, s{sLDS}, {L_B}
    s_mov_b32 s{sJ}, 0
    s_waitcnt lgkmcnt(0)""")
    stamp("karg")
    sv = (vm.n, vm.done); vm.n = 1; vm.done = 0
    tc = VM("global_load_dword v8, v3, s[44:45]")
    tm = Tok(); run(dma_jobs(WMOD, 4, 5376, 7, "", tm), 99)
    A(xload); vm.issue(); txh = vm.issue()
    A(late_args)
    A(f"""v_mov_b32 v12, 0
    v_mov_b32 v13, 0
    v_mov_b32 v14, 0
    v_mov_b32 v15, 0
    v_lshrrev_b32 v20, 2, v{vL}
    v_bfe_u32 v21, v{vL}, 3, 2
    v_xor_b32 v21, s{sW}, v21
    v_lshlrev_b32 v21, 5, v21
    v_lshl_add_u32 v20, v20, 7, v21
    v_and_b32 v21, 3, v{vL}
    v_lshl_add_u32 v20, v21, 3, v20
    v_add_u32 v20, {L_B}, v20
    v_and_b32 v22, 48, v{vL}
    s_and_b32 s61, s{sHI}, 1
    s_mul_i32 s62, s61, 448
    s_add_u32 s62, s62, {L_SILU}
    v_add_u32 v21, s62, v22
    s_mul_i32 s61, s61, 56
    s_lshr_b32 s62, s{sHI}, 1
    s_lshl_b32 s62, s62, 2
    s_add_u32 s61, s61, s62
    s_add_u32 s61, s61, s{sW}
    s_lshl_b32 s61, s61, 7
    s_add_u32 s84, s61, {S0U}
    s_cmp_eq_u32 s{sG}, 7
    s_cselect_b32 s84, {OOB}, s84
    v_bfe_u32 v24, v2, 1, 2
    v_and_b32 v25, 0xf1, v2
    v_lshl_add_u32 v25, v24, 2, v25
    v_bfe_u32 v24, v2, 3, 1
    v_lshl_add_u32 v25, v24, 1, v25
    v_lshlrev_b32 v25, 2, v25
    v_add_u32 v25, {L_SILU}, v25
    s_mov_b32 s86, 0x07060500
    s_mov_b32 s87, 0x07060501
    s_mov_b32 s88, 0x07060502
    s_mov_b32 s89, 0x07060503""")
    vm.wait(tc)
    A(f"""v_lshlrev_b32 v26, 16, v8
    v_and_b32 v27, 0xffff0000, v8
    v_mul_f32 v28, 0xbfb8aa3b, v26
    v_mul_f32 v29, 0xbfb8aa3b, v27
    v_exp_f32 v28, v28
    v_exp_f32 v29, v29
    v_add_f32 v28, 1.0, v28
    v_add_f32 v29, 1.0, v29
    v_rcp_f32 v28, v28
    v_rcp_f32 v29, v29
    v_mul_f32 v26, v26, v28
    v_mul_f32 v27, v27, v29
    v_cvt_pk_bf16_f32 v26, v26, v27
    ds_write_b32 v25, v26
    s_waitcnt lgkmcnt(0)
    s_mul_i32 s61, s{sTAG}, 0x9E3779B1
    s_add_u32 s61, s61, 0x7F4A7C15
    v_mov_b32 v{vTAG}, s61""")
    vm.wait(tm.t)
    barrier()
    stamp("B1")
    lg.n = lg.done = 0
    toks = []
    for s_ in range(7):
        DS(f"ds_read_b128 v[{140+4*s_}:{143+4*s_}], v21 offset:{64*s_}")
        DS(f"ds_read_b64_tr_b16 v[{168+4*s_}:{169+4*s_}], v20 offset:{4096*s_}")
        toks.append(DS(f"ds_read_b64_tr_b16 v[{170+4*s_}:{171+4*s_}], v20 offset:{4096*s_+2048}"))
    for s_ in range(7):
        lg.wait(toks[s_])
        A(f"v_mfma_f32_16x16x32_bf16 v[24:27], v[{168+4*s_}:{171+4*s_}], v[{140+4*s_}:{143+4*s_}], {'0' if s_ == 0 else 'v[24:27]'}")
    A(f"""s_mov_b32 exec_lo, 0x00010001
    s_mov_b32 exec_hi, 0x00010001
    v_perm_b32 v24, v24, v{vTAG}, s86
    v_perm_b32 v25, v25, v{vTAG}, s87
    v_perm_b32 v26, v26, v{vTAG}, s88
    v_perm_b32 v27, v27, v{vTAG}, s89""")
    VM(f"buffer_store_dwordx4 v[24:27], v22, {WS}, s84 offen sc1")
    A("s_mov_b64 exec, -1")
    stamp("gemv")
    A(f"""v_lshlrev_b32 v10, 7, v{vL}
    s_lshl_b32 s85, s{sHI}, 2
    s_add_u32 s85, s85, s{sW}
    s_lshl_b32 s61, s85, 8
    s_add_u32 s61, s61, {CTL}
    v_and_b32 v11, 0x80, v10""")
    VM(f"buffer_load_dword v{vJUNK}, v11, {WS}, s61 offen sc1")
    A(f"s_lshl_b32 s61, s85, 8\ns_add_u32 s61, s61, {FKV}")
    VM(f"buffer_load_dword v{vJUNK}, v11, {WS}, s61 offen sc1")
    vm.wait(txh)
    vm.n, vm.done = sv
    A("L_h1:")
    stamp("issued")
    for r, n in ((16, 401408), (20, 1605632), (24, 1605632)): A(f"s_mov_b32 s{r+2}, {n}\ns_mov_b32 s{r+3}, 0x20000")
    A(f"""v_lshlrev_b32 v{vL16}, 4, v{vL}
    v_lshrrev_b32 v{vHALF}, 5, v{vL}
    v_and_b32 v{vL31}, 31, v{vL}
    s_getreg_b32 s{sXCC}, hwreg(HW_REG_XCC_ID, 0, 4)
    s_mov_b32 s{sUNI}, 0
    s_lshl_b32 s{sCTL}, s{sG}, 12
    s_add_u32 s{sCTL}, s{sCTL}, {CTL}
    v_and_b32 v30, 7, v{vL}
    v_lshrrev_b32 v31, 3, v{vL}
    v_lshlrev_b32 v32, 7, v30
    v_lshl_add_u32 v32, v31, 4, v32
    v_add_u32 v32, {L_X}, v32
    s_lshl_b32 s61, s{sW}, 10
    v_add_u32 v33, s61, v32
    s_mov_b32 s86, 0x07060500
    s_mov_b32 s87, 0x07060501
    s_mov_b32 s88, 0x07060502
    s_mov_b32 s89, 0x07060503""")
    roles = lines(f"""s_cmp_ge_u32 s{sM}, 14
    s_cselect_b32 s61, 1, 0
    s_lshl_b32 s{sRBQ}, s{sG}, 1
    s_add_u32 s{sRBQ}, s{sRBQ}, s61
    s_lshl_b32 s{sTQ}, s{sRBQ}, 2
    s_add_u32 s{sTQ}, s{sTQ}, s{sW}
    s_and_b32 s{sHEAD}, s{sM}, 15
    s_lshr_b32 s61, s{sM}, 4
    s_lshl_b32 s{sRB}, s{sG}, 1
    s_add_u32 s{sRB}, s{sRB}, s61
    s_lshl_b32 s{sTA}, s{sRB}, 2
    s_add_u32 s{sTA}, s{sTA}, s{sW}
    s_mul_i32 s61, s{sM}, 37
    s_lshr_b32 s61, s61, 8
    s_mul_i32 s62, s61, 7
    s_sub_u32 s{sNB}, s{sM}, s62
    s_lshl_b32 s{sCOL}, s{sNB}, 7
    s_and_b32 s{sMH}, s{sW}, 1
    s_lshr_b32 s{sKH}, s{sW}, 1
    s_lshl_b32 s{sTO}, s{sG}, 2
    s_add_u32 s{sTO}, s{sTO}, s61
    s_lshl_b32 s{sTO}, s{sTO}, 1
    s_add_u32 s{sTO}, s{sTO}, s{sMH}
    s_mul_i32 s{sEX}, s{sW}, 8960
    s_add_u32 s{sEX}, s{sEX}, {L_EX}
    s_cmp_ge_u32 s{sM}, 14
    s_cselect_b32 s{sPSW}, 1, 0
    s_cselect_b32 s{sDH}, -1, 1
    s_mul_i32 s{sDL}, s{sDH}, {2*32*896}
    s_lshl_b32 s{sDH}, s{sDH}, 12
    s_add_u32 s{sDL}, s{sDL}, s{sCOL}
    s_lshl_b32 s66, s{sPSW}, 1
    s_lshl_b32 s62, s61, 1
    s_add_u32 s62, s62, s{sG}
    s_add_u32 s62, s62, s{sNB}
    s_mul_i32 s64, s62, 37
    s_lshr_b32 s64, s64, 8
    s_mul_i32 s64, s64, 7
    s_sub_u32 s62, s62, s64
    s_mul_i32 s63, s{sW}, 7""")
    if not rot: roles.append("s_mov_b32 s62, 0")
    for q in range(7):
        roles += lines(f"""s_add_u32 s64, s62, {q}
        s_cmp_ge_u32 s64, 7
        s_cselect_b32 s65, 7, 0
        s_sub_u32 s64, s64, s65
        s_add_u32 s64, s64, s63
        s_and_b32 s65, s64, 0xfe
        s_add_u32 s64, s64, s66
        s_add_u32 s{sFT+q}, s64, s65""")
    roles += lines(panel_addr(vPAN, 896))
    vWQ = 228; vPQ = 229; vR0 = 233
    roles += lines(f"""v_and_b32 v{vT0}, 3, v{vL}
    v_lshlrev_b32 v{vT0}, 3, v{vT0}
    v_bfe_u32 v{vT1}, v{vL}, 4, 1
    v_lshl_add_u32 v{vT0}, v{vT1}, 5, v{vT0}
    v_bfe_u32 v{vT1}, v{vL}, 2, 2
    v_lshl_add_u32 v16, v{vT1}, 6, v{vT0}
    v_lshl_add_u32 v16, v{vHALF}, 9, v16
    v_lshl_add_u32 v{vT0}, v{vT1}, 7, v{vT0}
    v_bfe_u32 v{vT1}, v{vL}, 3, 1
    v_lshl_add_u32 v{vT0}, v{vT1}, 6, v{vT0}
    v_lshl_add_u32 v{vTN0}, v{vHALF}, 10, v{vT0}
    v_lshl_add_u32 v{vTP0}, v{vHALF}, 9, v{vT0}
    v_xor_b32 v{vTN1}, 64, v{vTN0}
    v_xor_b32 v{vTP1}, 64, v{vTP0}
    v_add_u32 v{vWQ}, {L_WQ}, v16
    v_lshrrev_b32 v{vPQ}, 2, v{vL}
    v_mul_u32_u24 v{vPQ}, 2688, v{vPQ}
    v_and_b32 v17, 3, v{vL}
    v_lshl_add_u32 v{vPQ}, v17, 4, v{vPQ}""")
    for i in range(1, 4): roles.append(f"v_add_u32 v{vPQ+i}, {i*(16*2688-1024)}, v{vPQ}")
    run(roles, 999)
    A(f"""s_waitcnt lgkmcnt(0)
    s_mul_i32 s{sTAG}, s{sTAG}, 0x9E3779B1
    s_add_u32 s{sTAG}, s{sTAG}, 0x7F4A7C15
    v_mov_b32 v{vTAG}, s{sTAG}""")
    vm.wait(tx)
    barrier()
    stamp("B0")
    lg.n = lg.done = 0
    tk = [DS(f"ds_read_b128 v[{40+4*i}:{43+4*i}], v32 offset:{1024*i}") for i in range(7)]
    DS("ds_read_b128 v[68:71], v33"); town = DS("ds_read_b128 v[72:75], v33 offset:4096")
    A(f"""s_cmp_lg_u32 s{sW}, 0
    s_cbranch_scc1 L_nox
    s_add_u32 s61, s{sXCC}, 1
    v_cvt_f32_u32 v26, s61
    s_lshl_b32 s61, s93, 7
    s_add_u32 s61, s61, {XCCG}
    v_perm_b32 v136, v26, v{vTAG}, s86
    v_perm_b32 v137, v26, v{vTAG}, s87
    v_perm_b32 v138, v26, v{vTAG}, s88
    v_perm_b32 v139, v26, v{vTAG}, s89
    s_mov_b64 exec, 1
    buffer_store_dwordx4 v[136:139], off, {WS}, s61 sc1
    s_mov_b64 exec, -1
    L_nox:
    s_cmp_ge_u32 s{sM}, 28
    s_cbranch_scc1 L_t4""")
    touch_txt = f"""s_mul_i32 s61, s{sG}, 28
    s_add_u32 s61, s61, s{sM}
    v_min_u32 v11, 13, v{vL}
    s_cmp_eq_u32 s{sW}, 0
    s_cbranch_scc1 L_t0
    s_cmp_eq_u32 s{sW}, 1
    s_cbranch_scc1 L_t1
    v_min_u32 v11, 27, v{vL}
    v_lshlrev_b32 v11, 7, v11
    s_lshl_b32 s61, s61, 1
    s_add_u32 s61, s61, s{sW}
    s_sub_u32 s61, s61, 2
    s_mul_i32 s61, s61, 3584
    buffer_load_dword v{vJUNK}, v11, {W2}, s61 offen
    s_branch L_t3
    L_t0:
    v_lshlrev_b32 v11, 7, v11
    s_mul_i32 s61, s61, 1792
    buffer_load_dword v{vJUNK}, v11, {WO}, s61 offen
    s_branch L_t3
    L_t1:
    v_cmp_lt_u32 vcc, 6, v11
    v_lshlrev_b32 v11, 7, v11
    v_mov_b32 v10, 1792
    s_mul_i32 s61, s61, 5376
    v_cndmask_b32 v10, 0, v10, vcc
    v_add_u32 v11, v11, v10
    buffer_load_dword v{vJUNK}, v11, {WQKV}, s61 offen
    L_t3:"""
    wq_jobs = lambda: dma_jobs(WQKV, vPQ, 2 * 2688, 7, f"s_lshl_b32 s{sSRC}, s{sJ}, 6\ns_mul_i32 s62, s{sW}, {112*2688}\ns_add_u32 s{sSRC}, s{sSRC}, s62\ns_mul_i32 s{sLDS}, s{sW}, 7168\ns_add_u32 s{sLDS}, s{sLDS}, {L_WQ}")
    if touch == 'B0': A(touch_txt)
    wkv2 = dma_jobs(WQKV, 12, 2688, 14 - n1, wkv_setup(83))
    run(wkv2, n3)
    A("L_t4:")
    for i in range(7):
        lg.wait(tk[i])
        for d in range(4):
            A(f"v_lshlrev_b32 v{80+8*i+2*d}, 16, v{40+4*i+d}\nv_and_b32 v{81+8*i+2*d}, 0xffff0000, v{40+4*i+d}")
    A("v_pk_add_f32 v[34:35], v[80:81], v[82:83]")
    for i in range(2, 28): A(f"v_pk_add_f32 v[34:35], v[34:35], v[{80+2*i}:{81+2*i}]")
    def red8(r):
        A(f"""v_add_f32_dpp v{r}, v{r}, v{r} row_ror:8 row_mask:0xf bank_mask:0xf
        v_mov_b32 v{vT0}, v{r}
        v_permlane16_swap_b32 v{r}, v{vT0}
        v_add_f32 v{r}, v{r}, v{vT0}
        v_mov_b32 v{vT0}, v{r}
        v_permlane32_swap_b32 v{r}, v{vT0}
        v_add_f32 v{r}, v{r}, v{vT0}""")
    A("v_add_f32 v34, v34, v35"); red8(34)
    A("v_mul_f32 v34, 0xbb124925, v34\nv_mov_b32 v35, v34")
    for i in range(28): A(f"v_pk_add_f32 v[{80+2*i}:{81+2*i}], v[{80+2*i}:{81+2*i}], v[34:35]")
    A("v_pk_mul_f32 v[36:37], v[80:81], v[80:81]")
    for i in range(1, 28): A(f"v_pk_fma_f32 v[36:37], v[{80+2*i}:{81+2*i}], v[{80+2*i}:{81+2*i}], v[36:37]")
    A("v_add_f32 v36, v36, v37"); red8(36)
    A("v_mov_b32 v37, 0x3727c5ac\nv_fmac_f32 v37, 0x3b124925, v36\nv_rsq_f32 v36, v37")
    lg.wait(town)
    for d in range(8):
        A(f"v_lshlrev_b32 v{40+2*d}, 16, v{68+d}\nv_and_b32 v{41+2*d}, 0xffff0000, v{68+d}")
    A("v_mov_b32 v37, v36")
    for d in range(8): A(f"v_pk_add_f32 v[{40+2*d}:{41+2*d}], v[{40+2*d}:{41+2*d}], v[34:35]")
    for d in range(8): A(f"v_pk_mul_f32 v[{40+2*d}:{41+2*d}], v[{40+2*d}:{41+2*d}], v[36:37]")
    A(f"""v_lshrrev_b32 v62, 2, v0
    v_lshlrev_b32 v62, 7, v62
    v_and_b32 v56, 3, v0
    v_lshl_add_u32 v62, v56, 4, v62
    v_add_u32 v56, {56*128}, v62
    s_lshl_b32 s61, s{sG}, 12
    s_add_u32 s61, s61, {XCCG-S0U}
    v_lshl_add_u32 v57, v{vL31}, 7, s61
    v_cmp_gt_u32 vcc, 224, v0
    v_cndmask_b32 v62, v57, v62, vcc
    v_cndmask_b32 v56, v57, v56, vcc
    v_lshlrev_b32 v57, 4, v0
    v_add_u32 v57, {L_MODV}, v57
    v_cmp_le_u32 vcc, 112, v0
    v_cndmask_b32 v63, 0, 1.0, vcc
    s_lshl_b32 s61, s{sW}, 8
    s_add_u32 s61, s61, {L_MODV}
    v_lshl_add_u32 v58, v31, 5, s61
    v_lshlrev_b32 v59, 4, v{vL31}
    v_add_u32 v59, {L_MODV+3584}, v59
    v_lshlrev_b32 v60, 9, v31
    v_lshl_add_u32 v60, v30, 4, v60
    s_lshl_b32 s62, s{sW}, 12
    s_add_u32 s90, s79, s62
    s_add_u32 s91, s90, 16384
    s_cmp_eq_u32 s{sW}, 3
    s_cselect_b32 s91, {OOB}, s91
    s_lshl_b32 s92, s{sM}, 2
    s_add_u32 s92, s92, s{sW}
    s_lshl_b32 s92, s92, 2
    s_add_u32 s92, s92, s{sCTL}
    s_add_u32 s92, s92, {C_FH}
    s_mov_b32 s64, 0x0c0c0400
    s_mov_b32 s65, 0x05040100
    s_lshl_b32 s61, s{sXCC}, 1
    s_add_u32 s61, s61, 3
    v_cvt_f32_u32 v76, s61""")
    if wq == 's' or touch == 's':
        A(f"s_cmp_ge_u32 s{sM}, 28\ns_cbranch_scc1 L_t5")
        if wq == 's': run(wkv2, 99)
        if touch == 's': A(touch_txt)
        A("L_t5:")
    stamp("stats")
    A(f"""s_mov_b32 s{sCNT}, 0
    s_mov_b32 s61, {S0U}
    L_s0:
    buffer_load_dwordx4 v[64:67], v62, {WS}, s61 offen sc1
    buffer_load_dwordx4 v[68:71], v56, {WS}, s61 offen sc1
    s_add_u32 s{sCNT}, s{sCNT}, 1
    s_waitcnt vmcnt(1)
    v_perm_b32 v72, v65, v64, s64
    v_perm_b32 v73, v67, v66, s64
    v_perm_b32 v72, v73, v72, s65
    v_cmp_ne_u32 s[62:63], s{sTAG}, v72
    s_waitcnt vmcnt(0)
    v_perm_b32 v74, v69, v68, s64
    v_perm_b32 v75, v71, v70, s64
    v_perm_b32 v74, v75, v74, s65
    v_cmp_ne_u32 vcc, s{sTAG}, v74
    s_or_b64 vcc, vcc, s[62:63]
    s_cbranch_vccz L_s0d
    s_cmp_lt_u32 s{sCNT}, {SPIN}
    s_cbranch_scc1 L_s0
    L_s0d:""")
    for r in range(64, 72): A(f"v_and_b32 v{r}, 0xffffff00, v{r}")
    A(f"""v_pk_add_f32 v[64:65], v[64:65], v[68:69]
    v_pk_add_f32 v[66:67], v[66:67], v[70:71]
    v_cvt_pk_bf16_f32 v68, v64, v65
    v_cvt_pk_bf16_f32 v69, v66, v67
    v_lshlrev_b32 v64, 16, v68
    v_and_b32 v65, 0xffff0000, v68
    v_lshlrev_b32 v66, 16, v69
    v_and_b32 v67, 0xffff0000, v69
    v_add_f32 v64, v64, v63
    v_add_f32 v65, v65, v63
    v_add_f32 v66, v66, v63
    v_add_f32 v67, v67, v63
    v_cvt_pk_bf16_f32 v68, v64, v65
    v_cvt_pk_bf16_f32 v69, v66, v67
    v_lshlrev_b32 v64, 16, v68
    v_and_b32 v65, 0xffff0000, v68
    v_lshlrev_b32 v66, 16, v69
    v_and_b32 v67, 0xffff0000, v69
    ds_write_b128 v57, v[64:67]
    s_waitcnt lgkmcnt(0)""")
    vm.drained(); lg.drained()
    barrier()
    stamp("S0")
    t0 = []
    for p in range(2):
        for q in range(2):
            DS(f"ds_read_b128 v[{80+16*p+4*q}:{83+16*p+4*q}], v58 offset:{1792+1024*p+16*q}")
            t0.append(DS(f"ds_read_b128 v[{88+16*p+4*q}:{91+16*p+4*q}], v58 offset:{1024*p+16*q}"))
    txc = DS("ds_read_b32 v61, v59")
    for p in range(2):
        for q in range(2):
            lg.wait(t0[2 * p + q])
            for e in range(0, 4, 2):
                r = 40 + 8 * p + 4 * q + e
                A(f"v_pk_fma_f32 v[{r}:{r+1}], v[{r}:{r+1}], v[{80+16*p+4*q+e}:{81+16*p+4*q+e}], v[{88+16*p+4*q+e}:{89+16*p+4*q+e}]")
        for d in range(4): A(f"v_cvt_pk_bf16_f32 v{112+4*p+d}, v{40+8*p+2*d}, v{41+8*p+2*d}")
        th = VM(f"buffer_store_dwordx4 v[{112+4*p}:{115+4*p}], v60, {OUT}, s{90+p} offen{hmod}")
    lg.wait(txc)
    A(f"v_cmp_neq_f32 vcc, v76, v61\ns_cmp_eq_u64 vcc, 0\ns_cselect_b32 s{sUNI}, {0 if force_slow else 1}, 0")
    A(f"s_cmp_ge_u32 s{sM}, 28\ns_cbranch_scc1 L_help")

    pre = wkv2 + wq_jobs()
    run(pre, 9)
    vKS = 216; vQS = 224
    A(f"""v_and_b32 v{vT3}, 15, v{vL}
    v_lshlrev_b32 v{vT3}, 2, v{vT3}
    s_and_b32 s61, s{sTQ}, 7
    s_lshl_b32 s61, s61, 6
    s_add_u32 s61, s61, s{sCTL}
    s_add_u32 s85, s61, {C_FH}
    s_mul_i32 s82, s{sTQ}, 28672""")
    vm.wait(th)
    flag(92)
    stamp("hpub")
    if stop <= 1:
        A("L_help:"); return done()
    A(f"""s_mul_i32 s80, s{sTQ}, 1792
    s_lshl_b32 s81, s{sTQ}, 15
    s_add_u32 s81, s81, {QO}
    s_mul_i32 s83, s{sRBQ}, 14
    s_add_u32 s83, s83, s{sJ}
    s_lshl_b32 s83, s83, 7
    s_add_u32 s83, s83, {FKV}
    s_and_b32 s84, s{sRBQ}, 1
    s_lshl_b32 s84, s84, 4
    s_add_u32 s84, s84, s{sJ}
    s_lshl_b32 s84, s84, 2
    s_add_u32 s84, s84, s{sCTL}
    s_add_u32 s84, s84, {C_FQ}
    s_lshl_b32 s79, s{sW}, 14
    s_mul_i32 s97, s{sW}, 12288""")
    run(pre, 99)
    A(f"s_lshl_b32 s61, s{sJ}, 3")
    for a_ in range(4):
        A(f"""v_add3_u32 v{vT0}, v{vHALF}, s61, {2*a_}
        v_mul_u32_u24 v{vT1}, 147, v{vT0}
        v_lshrrev_b32 v{vT1}, 10, v{vT1}
        v_add_lshl_u32 v{vT0}, v{vT0}, v{vT1}, 8
        v_lshl_add_u32 v{vQS+a_}, v{vL31}, 3, v{vT0}""")
    poll(vT3, "s85")
    stamp("S0b")
    ACC = 112; WB = 160
    th = [Tok() for _ in range(28)]
    def hjobs(): return [jVM(f"buffer_load_dwordx4 v[{4*s_}:{4*s_+3}], v{vL16}, {OUT}, s82 offen offset:{1024*(s_%4)} sc1", th[s_], "s_add_u32 s82, s82, 4096" if (s_ % 4 == 0 and s_) else None) for s_ in range(28)]
    run(hjobs(), PRO)
    barrier()
    def kv_pass(vtype):
        lg.n = lg.done = 0
        sv = (vm.n, vm.done)
        if not vtype:
            adr = lines(f"s_lshl_b32 s61, s{sJ}, 4\ns_add_u32 s80, s80, {KG}")
            for i in range(8):
                adr += lines(f"""v_add3_u32 v{vT0}, v{vHALF}, s61, {2*i}
                v_mul_u32_u24 v{vT1}, 147, v{vT0}
                v_lshrrev_b32 v{vT1}, 10, v{vT1}
                v_mul_u32_u24 v{vT1}, {64*1792-7*256}, v{vT1}
                v_lshl_add_u32 v{vT0}, v{vT0}, 8, v{vT1}
                v_lshl_add_u32 v{vKS+i}, v{vL31}, 3, v{vT0}""")
        else:
            adr = lines(f"s_sub_u32 s61, s{sJ}, 7\ns_lshl_b32 s61, s61, 6\ns_add_u32 s80, s80, {VG}")
            for t in range(2):
                adr += lines(f"""v_add3_u32 v{vT0}, v{vL31}, s61, {32*t}
                v_lshrrev_b32 v{vT1}, 2, v{vT0}
                v_mul_u32_u24 v{vT1}, 147, v{vT1}
                v_lshrrev_b32 v{vT1}, 10, v{vT1}
                v_mul_u32_u24 v{vT1}, {64*1792-448}, v{vT1}
                v_lshl_add_u32 v{vT0}, v{vT0}, 4, v{vT1}
                v_mul_u32_u24 v{vT1}, 448, v{vHALF}
                v_add_u32 v{vKS+t}, v{vT0}, v{vT1}""")
        mem = hjobs()[PRO:]
        bulk = []
        for u in range(4): bulk += w2_dma(u, 79, L_B + 4096 * u)
        nb_kv = 8
        tw = {}
        def ld(s_):
            b = WB + 8 * (s_ % 4); js = []
            for t in range(2):
                tw[s_, t] = Tok()
                js.append(jDS(f"ds_read_b64_tr_b16 v[{b+4*t}:{b+4*t+1}], v{vTN0-t} offset:{L_WKV+2048*s_}"))
                js.append(jDS(f"ds_read_b64_tr_b16 v[{b+4*t+2}:{b+4*t+3}], v{vTN0-t} offset:{L_WKV+2048*s_+512}", tw[s_, t]))
            return js
        tq = {}
        def ldq(s_):
            b = WB + 4 * (s_ % 8); tq[s_] = Tok()
            return [jDS(f"ds_read_b64_tr_b16 v[{b}:{b+1}], v{vWQ} offset:{1024*s_}"), jDS(f"ds_read_b64_tr_b16 v[{b+2}:{b+3}], v{vWQ} offset:{1024*s_+256}", tq[s_])]
        for s_ in range(3): run(ld(s_), 4)
        for s_ in range(28):
            vm.wait(th[s_].t); lg.wait(tw[s_, 1].t)
            b = WB + 8 * (s_ % 4)
            nx = ld(s_ + 3) if s_ + 3 < 28 else (ldq(2 * (s_ - 26)) + ldq(2 * (s_ - 26) + 1) if s_ >= 26 else [])
            for t in range(2):
                wf, hf = v(b + 4 * t, 4), v(4 * s_, 4)
                c = "0" if s_ == 0 else None
                if vtype: mfma(v(ACC + 16 * t, 16), hf, wf, c)
                else: mfma(v(ACC + 16 * t, 16), wf, hf, c)
                if t == 0:
                    if mem: run(mem, 1)
                    elif nb_kv: run(bulk, 1); nb_kv -= 1
                    run(nx, 1)
                else: run(nx, 3); run(adr, 2)
            if 'fine' in dbg and s_ in (0, 9, 18): stamp(f'k{s_}')
        stamp("kv")
        epi = []; last = Tok()
        for t in range(2):
            P = 192 + 8 * t
            for d in range(8):
                epi.append(f"v_cvt_pk_bf16_f32 v{P+d}, v{ACC+16*t+2*d}, v{ACC+16*t+2*d+1}")
                if vtype and d % 4 == 3: epi.append(jVM(f"buffer_store_dwordx4 v[{P+d-3}:{P+d}], v{vKS+t}, {WS}, s80 offen offset:{896*(d//4)} sc1", last))
                if not vtype and d % 2 == 1: epi.append(jVM(f"buffer_store_dwordx2 v[{P+d-1}:{P+d}], v{vKS+4*t+d//2}, {WS}, s80 offen sc1", last))
        for s_ in range(28):
            lg.wait(tq[s_].t)
            b = WB + 4 * (s_ % 8)
            mfma(v(ACC + 32, 16), v(b, 4), v(4 * s_, 4), "0" if s_ == 0 else None)
            if s_ + 4 < 28: run(ldq(s_ + 4), 2)
            if epi:
                if s_ >= 1: run(epi, 6)
            elif s_ % 3 == 0: run(bulk, 1)
        assert not adr
        run(bulk, 99)
        A(f"s_mov_b32 s61, {QSCALE:#x}\ns_lshl_b32 s62, s{sKH}, 6\nv_xor_b32 v{vR0}, s62, v{vTP0}\nv_xor_b32 v{vR0+1}, s62, v{vTP1}\nv_add_u32 v{vT2}, s79, v{vR0}\nv_add_u32 v{vT3}, s79, v{vR0+1}")
        for d in range(8):
            A(f"v_mul_f32 v{ACC+32+2*d}, s61, v{ACC+32+2*d}\nv_mul_f32 v{ACC+33+2*d}, s61, v{ACC+33+2*d}\nv_cvt_pk_bf16_f32 v{208+d}, v{ACC+32+2*d}, v{ACC+33+2*d}")
            if d % 2 == 1: VM(f"buffer_store_dwordx2 v[{207+d}:{208+d}], v{vQS+d//2}, {WS}, s81 offen sc1")
        stamp("q")
        vm.wait(last.t)
        vm.n, vm.done = sv
    A(f"s_cmp_ge_u32 s{sJ}, 7\ns_cbranch_scc1 L_kvV")
    kv_pass(False)
    A("s_branch L_kvE\nL_kvV:")
    kv_pass(True)
    A("L_kvE:")
    barrier()
    A(f"s_cmp_lg_u32 s{sW}, 0\ns_cbranch_scc1 L_nf1")
    flag(83, slow=True)
    A("L_nf1:")
    stamp("kvpub")
    for u in range(4, 6): run(w2_dma(u, 97, 4096 * (u - 4)), 99)
    A(f"v_add_u32 v{vT0}, {L_B}, v{vT2}\nv_add_u32 v{vT1}, {L_B}, v{vT3}\nv_add_u32 v231, s97, v{vR0}\nv_add_u32 v232, s97, v{vR0+1}")
    A(f"s_cmp_eq_u32 s{sW}, 0\ns_cbranch_scc1 L_w0b\ns_waitcnt vmcnt(12)\nL_w0b:\ns_waitcnt vmcnt(13)")
    for u in range(4): run(w2_read(u, vT0, 4096 * u), 99)
    A(f"s_cmp_eq_u32 s{sW}, 0\ns_cbranch_scc1 L_w0a\ns_waitcnt vmcnt(8)\nL_w0a:\ns_waitcnt vmcnt(9)")
    barrier()
    A(f"s_cmp_lg_u32 s{sW}, 1\ns_cbranch_scc1 L_nf2")
    flag(84)
    A("L_nf2:")
    stamp("qpub")
    run(w2_dma(6, 97, 8192), 99)
    A("s_branch L_att")
    A("L_help:")
    A("s_waitcnt vmcnt(0)")
    flag(92)
    A(f"""v_lshlrev_b32 v10, 7, v{vL}
    s_lshl_b32 s85, s{sHI}, 2
    s_add_u32 s85, s85, s{sW}
    v_mov_b32 v231, 0
    v_mov_b32 v232, 0
    s_lshl_b32 s62, s{sKH}, 6
    v_xor_b32 v{vR0}, s62, v{vTP0}
    v_xor_b32 v{vR0+1}, s62, v{vTP1}
    s_cmp_eq_u32 s{sG}, 7
    s_cbranch_scc1 L_hn""")
    run(dma_jobs(WMOD, 4, 5376, 14, f"s_add_u32 s86, s{sHI}, 14\ns_lshl_b32 s{sSRC}, s86, 7\ns_mul_i32 s63, s{sW}, {112*5376}\ns_add_u32 s{sSRC}, s{sSRC}, s63\ns_mul_i32 s{sLDS}, s{sW}, 14336\ns_add_u32 s{sLDS}, s{sLDS}, {L_B}"), 99)
    A(panel_addr(4, 3584, "mod"))
    w1h = dma_jobs(W1, 4, 3584, 14, f"s_lshl_b32 s{sSRC}, s{sHI}, 7\ns_mul_i32 s63, s{sW}, {112*3584}\ns_add_u32 s{sSRC}, s{sSRC}, s63\ns_mul_i32 s{sLDS}, s{sW}, 14336")
    run(w1h, 8)
    A(f"v_add_u32 v21, {L_SILU}, v22\ns_waitcnt vmcnt(8)")
    barrier()
    def gemv14(va, vb):
        lg.n = lg.done = 0
        toks = []
        def gemv_ld(s_):
            b = 32 + 8 * s_
            DS(f"ds_read_b128 v[{b}:{b+3}], v{va} offset:{64*s_}")
            DS(f"ds_read_b64_tr_b16 v[{b+4}:{b+5}], v{vb} offset:{4096*s_}")
            toks.append(DS(f"ds_read_b64_tr_b16 v[{b+6}:{b+7}], v{vb} offset:{4096*s_+2048}"))
        for s_ in range(4): gemv_ld(s_)
        for s_ in range(14):
            lg.wait(toks[s_])
            b = 32 + 8 * s_
            A(f"v_mfma_f32_16x16x32_bf16 v[24:27], v[{b}:{b+3}], v[{b+4}:{b+7}], {'0' if s_ == 0 else 'v[24:27]'}")
            if s_ + 4 < 14: gemv_ld(s_ + 4)
    gemv14(21, 20)
    A(f"""s_sub_u32 s61, s{sHI}, 14
    s_cmp_lt_u32 s61, 7
    s_cselect_b32 s62, 1.0, 0
    s_lshl_b32 s61, s{sHI}, 8
    s_lshl_b32 s63, s{sW}, 6
    s_add_u32 s61, s61, s63
    s_add_u32 s61, s61, {NU}
    v_lshlrev_b32 v23, 2, v{vL}
    v_cvt_pk_bf16_f32 v24, v24, v24
    v_and_b32 v24, 0xffff0000, v24
    v_add_f32 v24, s62, v24
    v_mov_b32 v29, s{sTAG}
    v_mov_b32_dpp v25, v24 quad_perm:[1,0,3,2] row_mask:0xf bank_mask:0xf
    v_cvt_pk_bf16_f32 v28, v24, v25
    s_mov_b64 exec, 0x5555
    buffer_store_dwordx2 v[28:29], v23, {WS}, s61 offen sc1
    s_mov_b64 exec, -1""")
    run(w1h, 99)
    A(f"""L_hn:
    s_mul_i32 s61, s85, 1792
    s_add_u32 s61, s61, {STATS}
    v_min_u32 v11, 13, v{vL}
    v_lshlrev_b32 v11, 7, v11
    buffer_load_dword v{vJUNK}, v11, {WS}, s61 offen sc1""")
    A("L_att:")
    if stop <= 2: return done()

    S = 0; QF = 144; KB = 152; OA = 184; VB = 200
    vKA, vVA, vVS, vQA, vQB, vP1, vMX = 216, 217, 218, 219, 220, 222, 226
    vm.n = vm.done = 0; lg.n = lg.done = 0
    A(f"""s_mul_i32 s80, s{sW}, 6144
    s_add_u32 s81, s80, {L_V}
    s_add_u32 s80, s80, {L_K}
    v_add_u32 v{OA}, s81, v{vL16}
    v_mov_b32 v{KB}, 0x3f803f80
    v_mov_b32 v{KB+1}, 0x3f803f80
    v_mov_b32 v{KB+2}, 0x3f803f80
    v_mov_b32 v{KB+3}, 0x3f803f80
    v_lshl_add_u32 v{OA+1}, v{vL31}, 3, s80
    v_mov_b32 v{KB+5}, 0
    v_mov_b32 v{KB+7}, 0
    v_mov_b32 v{KB+9}, 0
    s_lshl_b32 s61, s{sHEAD}, 4
    s_add_u32 s61, s61, s{sRB}
    s_mul_i32 s61, s61, 7168
    s_sub_u32 s61, s61, 14336
    s_min_u32 s82, s{sRB}, 2
    s_sub_u32 s82, 2, s82
    s_mul_i32 s62, s{sW}, 3
    s_lshl_b32 s63, s82, 2""")
    for q in range(3):
        A(f"""s_add_u32 s64, s62, {q}
        s_mul_i32 s65, s64, 1792
        s_add_u32 s65, s65, s61
        s_add_u32 s{83+q}, s65, {KG}
        s_add_u32 s{86+q}, s65, {VG}
        s_cmp_lt_u32 s64, s63
        s_cselect_b32 s{83+q}, {OOB}, s{83+q}
        s_cselect_b32 s{86+q}, {OOB}, s{86+q}
        s_cselect_b32 s64, {NEG>>16:#x}, 0
        v_mov_b32 v{KB+4+2*q}, s64""")
    A("s_waitcnt lgkmcnt(0)")
    barrier()
    A("s_mov_b32 exec_hi, 0")
    for q in range(3): DS(f"ds_write_b64 v{OA+1}, v[{KB+4+2*q}:{KB+5+2*q}] offset:{2048*q+1792}")
    A("s_mov_b32 exec_lo, 0xf0000000\ns_mov_b32 exec_hi, 0xf0000000")
    for i in range(6): DS(f"ds_write_b128 v{OA}, v[{KB}:{KB+3}] offset:{1024*i}")
    A("s_mov_b64 exec, -1")
    A(f"""v_lshlrev_b32 v{vT0}, 9, v{vHALF}
    v_lshl_add_u32 v{vQA}, v{vL31}, 3, v{vT0}
    v_mul_u32_u24 v{vVS}, 448, v{vHALF}
    v_lshl_add_u32 v{vVS}, v{vL31}, 4, v{vVS}
    s_lshl_b32 s89, s{sTA}, 4
    s_add_u32 s89, s89, s{sHEAD}
    s_and_b32 s61, s89, 127
    s_lshl_b32 s61, s61, 2
    s_add_u32 s61, s61, s{sCTL}
    s_add_u32 s98, s61, {C_FO}
    s_lshl_b32 s89, s89, 11
    s_add_u32 s89, s89, {QO}
    v_min_u32 v{vT0}, 13, v{vL}
    v_and_b32 v{vT1}, 1, v{vT0}
    v_mul_u32_u24 v{vT1}, 27, v{vT1}
    s_mul_i32 s61, s{sHEAD}, 28
    v_add_u32 v{vT1}, s61, v{vT1}
    v_lshrrev_b32 v{vT2}, 6, v{vT1}
    v_bfe_u32 v{vT3}, v{vT0}, 1, 1
    v_mad_u32_u24 v{vT2}, v{vT3}, 7, v{vT2}
    v_lshrrev_b32 v{vT3}, 2, v{vT0}
    v_max_u32 v{vT3}, s82, v{vT3}
    s_sub_u32 s61, s{sRB}, 2
    v_add_u32 v{vT3}, s61, v{vT3}
    v_mad_u32_u24 v{vT2}, v{vT3}, 14, v{vT2}
    v_lshlrev_b32 v{vT2}, 7, v{vT2}
    v_add_u32 v{vT2}, {FKV}, v{vT2}
    v_lshrrev_b32 v{vT1}, 5, v{vT1}
    s_and_b32 s61, s{sRB}, 1
    s_lshl_b32 s61, s61, 6
    s_add_u32 s61, s61, s{sCTL}
    s_add_u32 s61, s61, {C_FQ}
    v_lshl_add_u32 v{vT1}, v{vT1}, 2, s61
    v_cmp_gt_u32 vcc, 12, v{vT0}
    v_cndmask_b32 v{vT0}, v{vT1}, v{vT2}, vcc""")
    stamp("pre1")
    poll(vT0, "0")
    stamp("S1")
    for q in range(3):
        A(f"s_add_u32 m0, s80, {2048*q}")
        VM(f"buffer_load_dwordx4 v{vL16}, {WS}, s{83+q} offen sc1 lds")
    A("s_mov_b32 exec_hi, 0xffff")
    for q in range(3):
        A(f"s_add_u32 m0, s80, {2048*q}")
        VM(f"buffer_load_dwordx4 v{vL16}, {WS}, s{83+q} offen offset:1024 sc1 lds")
    A("s_mov_b64 exec, -1")
    for i in range(4):
        tq = VM(f"buffer_load_dwordx2 v[{QF+2*i}:{QF+2*i+1}], v{vQA}, {WS}, s89 offen offset:{1024*(i>>1)+256*(i&1)} sc1")
    A(f"s_cmp_ge_u32 s{sM}, 28\ns_cbranch_scc1 L_nr1")
    for u in range(4, 7): run(w2_read(u, 231, 4096 * (u - 4)), 99)
    A("L_nr1:")
    A(f"v_lshlrev_b32 v{vT0}, 2, v{vHALF}\nv_sub_u32 v{vT0}, v{vL31}, v{vT0}\nv_mov_b32 v{vT1}, {NEG:#x}")
    for r in range(16):
        i0 = 8 * (r >> 2) + (r & 3)
        A(f"v_cmp_gt_i32 s[{(62,64,90,92)[r&3]}:{(63,65,91,93)[r&3]}], {i0}, v{vT0}")
        if r & 3 == 3:
            for q in range(4):
                A(f"v_cndmask_b32 v{S+128+r-3+q}, 0, v{vT1}, s[{(62,64,90,92)[q]}:{(63,65,91,93)[q]}]")
                A(f"v_cndmask_b32 v{S+r-3+q}, v{vT1}, 0, s[{(62,64,90,92)[q]}:{(63,65,91,93)[q]}]")
    vS0 = 231
    A(f"""s_lshl_b32 s61, s{sW}, 11
    s_add_u32 s62, s61, {L_K}
    v_add_u32 v{vKA}, s62, v{vQA}
    s_add_u32 s61, s61, {L_V}
    v_add_u32 v{vVA}, s61, v{vL16}
    v_mov_b32 v221, 0x3f80
    s_mul_i32 s79, s{sW}, 14336
    s_lshl_b32 s99, s{sJ}, 1
    s_add_u32 s99, s99, s{sPSW}
    s_lshl_b32 s99, s99, 7
    s_cmp_ge_u32 s{sM}, 28
    s_cselect_b32 s{sCOL}, {OOB}, s{sCOL}
    s_cselect_b32 s99, {OOB}, s99
    s_cselect_b32 s79, {L_P0}, s79""")
    A(panel_addr(vP1, 3584))
    A(f"v_cmp_eq_u32 vcc, 0, v{vHALF}")
    A("s_mov_b32 exec_lo, 0x0fffffff\ns_mov_b32 exec_hi, 0x0fffffff")
    for q in range(3):
        A(f"s_add_u32 m0, s81, {2048*q}")
        VM(f"buffer_load_dwordx4 v{vVS}, {WS}, s{86+q} offen sc1 lds")
        A(f"s_sub_u32 s{86+q}, s{86+q}, 128")
        tv = VM(f"buffer_load_dwordx4 v{vVS}, {WS}, s{86+q} offen offset:1024 sc1 lds")
    A("s_mov_b64 exec, -1")
    lg.all()
    A(f"v_add_u32 v{vS0}, s{sEX}, v{vR0}\nv_add_u32 v{vS0+1}, s{sEX}, v{vR0+1}")
    vm.wait(tq)
    A(f"v_cndmask_b32 v{QF+6}, v221, v{QF+6}, vcc\nv_cndmask_b32 v{QF+7}, 0, v{QF+7}, vcc")
    barrier()
    stamp("Kin")
    def w1_jobs(base, per, first, tok=None):
        return dma_jobs(W1, vP1, 3584, per, f"s_mul_i32 s{sSRC}, s{sW}, {per*8*3584}\ns_add_u32 s{sSRC}, s{sSRC}, s99\ns_add_u32 s{sSRC}, s{sSRC}, {first*8*3584}\ns_mul_i32 s{sLDS}, s{sW}, {per*1024}\ns_add_u32 s{sLDS}, s{sLDS}, {base+first*1024}", tok)
    mem1 = dma_jobs(WO, vPAN, 896, 15, f"s_mul_i32 s{sSRC}, s{sW}, {112*896}\ns_add_u32 s{sSRC}, s{sSRC}, s{sCOL}\ns_mov_b32 s{sLDS}, s79")
    mem1 += w1_jobs(L_P0, 10, 0) + w1_jobs(L_P0, 4, 40)
    tk = []
    def ldk(n):
        b = KB + 8 * (n % 4)
        for i in range(4): k = DS(f"ds_read_b64 v[{b+2*i}:{b+2*i+1}], v{vKA} offset:{2048*n+1024*(i>>1)+256*(i&1)}")
        tk.append(k)
    for n in range(3): ldk(n)
    run(mem1, 3)
    def mx(n):
        return [f"v_max_f32 v{vMX}, v{S}, v{S+1}" if (n == 0 and r == 0) else f"v_max3_f32 v{vMX}, v{vMX}, v{S+16*n+r}, v{S+16*n+r+1}" for r in range(0, 16, 2)]
    for n in range(9):
        lg.wait(tk[n])
        b = KB + 8 * (n % 4)
        m_ = mx(n - 2) if n >= 2 else []
        mfma(v(S + 16 * n, 16), v(b, 4), v(QF, 4), None if n in (0, 8) else "0")
        if n + 3 < 9: ldk(n + 3)
        else: run(mem1, 1)
        run(m_, 2)
        mfma(v(S + 16 * n, 16), v(b + 4, 4), v(QF + 4, 4))
        if n < 2: run(mem1, 1)
        run(m_, 6)
    vm.wait(tv)
    barrier()
    tvv = []
    def ldv(n):
        b = VB + 8 * (n % 2)
        DS(f"ds_read_b128 v[{b}:{b+3}], v{vVA} offset:{2048*n}")
        tvv.append(DS(f"ds_read_b128 v[{b+4}:{b+7}], v{vVA} offset:{2048*n+1024}"))
    ldv(0); ldv(1)
    run(mx(7), 9); run(mem1, 1); run(mx(8), 9)
    A(f"v_mov_b32 v{vT0}, v{vMX}\nv_permlane32_swap_b32 v{vMX}, v{vT0}\nv_max_f32 v{vMX}, v{vMX}, v{vT0}")
    stamp("qk")
    for i in range(72):
        A(f"v_pk_add_f32 v[{S+2*i}:{S+2*i+1}], v[{S+2*i}:{S+2*i+1}], v[{vMX}:{vMX+1}] op_sel_hi:[1,0] neg_lo:[0,1] neg_hi:[0,1]")
        if i % 24 == 23: run(mem1, 1)
    def soft(n, s_):
        r0 = S + 16 * n + 8 * s_
        for e in range(8): A(f"v_exp_f32 v{r0+e}, v{r0+e}")
        for e in range(4): A(f"v_cvt_pk_bf16_f32 v{r0+e}, v{r0+2*e}, v{r0+2*e+1}")
    soft(0, 0)
    for i in range(18):
        n, s_ = i >> 1, i & 1
        if i + 1 < 18: soft((i + 1) >> 1, (i + 1) & 1)
        if s_ == 0: lg.wait(tvv[n])
        mfma(v(OA, 16), v(VB + 8 * (n % 2) + 4 * s_, 4), v(S + 16 * n + 8 * s_, 4), "0" if i == 0 else None)
        if s_ == 1 and n + 2 < 9: ldv(n + 2)
        run(mem1, 2 if len(mem1) > 14 - i else 1)
    assert not mem1
    A(f"""v_cmp_eq_u32 vcc, 0, v{vHALF}
    v_mov_b32 v{vT0}, v{OA+12}
    v_mov_b32 v{vT1}, v{OA+12}
    v_permlane32_swap_b32 v{vT0}, v{vT1}
    v_rcp_f32 v{vT1}, v{vT1}""")
    for d in range(8):
        A(f"v_pk_mul_f32 v[{OA+2*d}:{OA+2*d+1}], v[{OA+2*d}:{OA+2*d+1}], v[{vT1}:{vT1+1}] op_sel_hi:[1,0]\nv_cvt_pk_bf16_f32 v{KB+d}, v{OA+2*d}, v{OA+2*d+1}")
        if d >= 6: A(f"v_cndmask_b32 v{KB+d}, 0, v{KB+d}, vcc")
        if d % 4 == 3: to = VM(f"buffer_store_dwordx4 v[{KB+d-3}:{KB+d}], v{vL16}, {WS}, s89 offen offset:{1024*(d//4)}")
    stamp("att")
    A(f"s_cmp_lt_u32 s{sM}, 28\ns_cbranch_scc1 L_opr")
    A("s_waitcnt vmcnt(0)")
    sv2 = (vm.n, vm.done, lg.n, lg.done); flag(98)
    A(f"""s_lshl_b32 s61, s{sW}, 6
    v_add_u32 v4, s61, v{vL}
    v_add_u32 v5, 256, v4
    v_min_u32 v5, 447, v5
    s_lshl_b32 s85, s{sHI}, 2
    s_add_u32 s85, s85, s{sW}
    s_min_u32 s62, s85, 111
    s_lshl_b32 s62, s62, 5
    v_and_b32 v16, 15, v{vL}
    v_lshl_add_u32 v17, v16, 1, s62
    global_load_ushort v18, v17, s[40:41]""")
    for r, d in ((4, 6), (5, 7)):
        A(f"""v_and_b32 v{d}, 0x1f8, v{r}
        v_and_b32 v{vT0}, 3, v{r}
        v_lshl_add_u32 v{d}, v{vT0}, 1, v{d}
        v_bfe_u32 v{vT0}, v{r}, 2, 1
        v_add_lshl_u32 v{d}, v{d}, v{vT0}, 3
        v_add_u32 v{d}, {L_VEC}, v{d}
        v_lshlrev_b32 v{r}, 4, v{r}""")
    A(f"""s_mov_b32 s{sCNT}, 0
    s_mov_b32 s61, {NU}
    L_nu:
    buffer_load_dwordx4 v[8:11], v4, {WS}, s61 offen sc1
    buffer_load_dwordx4 v[12:15], v5, {WS}, s61 offen sc1
    s_add_u32 s{sCNT}, s{sCNT}, 1
    s_waitcnt vmcnt(0)
    v_cmp_ne_u32 vcc, s{sTAG}, v9
    v_cmp_ne_u32 s[62:63], s{sTAG}, v11
    v_cmp_ne_u32 s[64:65], s{sTAG}, v13
    v_cmp_ne_u32 s[82:83], s{sTAG}, v15
    s_or_b64 vcc, vcc, s[62:63]
    s_or_b64 s[64:65], s[64:65], s[82:83]
    s_or_b64 vcc, vcc, s[64:65]
    s_cbranch_vccz L_nud
    s_cmp_lt_u32 s{sCNT}, {SPIN}
    s_cbranch_scc1 L_nu
    L_nud:
    v_mov_b32 v9, v10
    v_mov_b32 v13, v14
    ds_write_b64 v6, v[8:9]
    ds_write_b64 v7, v[12:13]
    v_lshrrev_b32 v20, 2, v{vL}
    v_bfe_u32 v21, v{vL}, 3, 2
    v_xor_b32 v21, s{sW}, v21
    v_lshlrev_b32 v21, 5, v21
    v_lshl_add_u32 v20, v20, 7, v21
    v_and_b32 v21, 3, v{vL}
    v_lshl_add_u32 v20, v21, 3, v20
    v_and_b32 v21, 1, v{vL}
    v_mul_u32_u24 v21, 896, v21
    v_and_b32 v22, 48, v{vL}
    v_sub_u32 v21, v22, v21
    v_add_u32 v21, {L_VEC+1792}, v21
    s_waitcnt lgkmcnt(0)""")
    barrier()
    A(f"""s_cmp_lg_u32 s{sG}, 7
    s_cbranch_scc1 L_hu
    s_cmp_lg_u32 s85, 112
    s_cbranch_scc1 L_fin
    s_mov_b64 exec, 1
    buffer_store_dword v{vTAG}, off, {WS}, 0 sc1
    s_mov_b64 exec, -1
    s_branch L_fin
    L_hu:""")
    gemv14(21, 20)
    A(f"""v_lshlrev_b32 v18, 16, v18
    s_lshl_b32 s61, s85, 8
    s_add_u32 s61, s61, {AUG}
    v_mov_b32 v31, s{sTAG}
    v_add_f32 v25, v25, v18
    v_cvt_pk_bf16_f32 v29, v24, v25
    v_lshlrev_b32 v26, 16, v29
    v_and_b32 v27, 0xffff0000, v29
    v_sub_f32 v24, v24, v26
    v_sub_f32 v25, v25, v27
    v_cvt_pk_bf16_f32 v28, v26, v24
    v_cvt_pk_bf16_f32 v30, v25, v27
    s_mov_b64 exec, 0xffff
    buffer_store_dwordx4 v[28:31], v{vL16}, {WS}, s61 offen sc1
    s_mov_b64 exec, -1
    s_branch L_fin
    L_opr:""")
    vm.n, vm.done, lg.n, lg.done = sv2

    XR = 128; GA = 136; A2 = 152; X1 = 168; WB = 184
    A(f"""v_mul_u32_u24 v{vROW}, 896, v{vL31}
    v_lshl_add_u32 v{vROW}, v{vHALF}, 4, v{vROW}
    s_mul_i32 s80, s{sTO}, 28672
    s_lshl_b32 s61, s{sNB}, 1
    s_add_u32 s69, s61, s{sKH}
    s_lshl_b32 s61, s69, 6
    s_add_u32 s{sROW}, s80, s61
    v_and_b32 v4, 7, v{vL}
    v_lshl_add_u32 v6, v4, 3, s61
    v_bfe_u32 v5, v{vL}, 3, 2
    v_min_u32 v5, 2, v5
    v_min_u32 v7, 1, v5
    v_add_u32 v5, v5, v7
    v_mul_u32_u24 v5, 1792, v5
    v_lshl_add_u32 v4, v4, 4, v5
    s_lshl_b32 s61, s69, 7
    s_add_u32 s85, s61, {NU}""")
    tnu = VM(f"buffer_load_dwordx4 v[8:11], v4, {WS}, s85 offen sc1")
    tb2 = VM(f"global_load_dwordx2 v[12:13], v6, s[42:43]")
    VM(f"buffer_load_dwordx4 v[{XR}:{XR+3}], v{vROW}, {X}, s{sROW} offen")
    VM(f"buffer_load_dwordx4 v[{XR+4}:{XR+7}], v{vROW}, {X}, s{sROW} offen offset:32")
    vIN, vOUTB, vWO = 229, 230, 227
    A(f"""s_lshl_b32 s61, s{sW}, 9
    s_add_u32 s61, s61, {L_VEC}
    v_lshl_add_u32 v7, v{vL31}, 4, s61
    v_lshl_add_u32 v{vVEC}, v{vHALF}, 4, s61
    v_and_b32 v{vT3}, 7, v{vL}
    v_lshlrev_b32 v{vT3}, 2, v{vT3}
    s_and_b32 s61, s{sTO}, 7
    s_lshl_b32 s61, s61, 6
    s_add_u32 s61, s61, s{sCTL}
    s_lshl_b32 s62, s69, 2
    s_add_u32 s81, s61, s62
    s_add_u32 s81, s81, {C_FY}
    s_lshl_b32 s62, s{sKH}, 5
    s_add_u32 s61, s61, s62
    s_add_u32 s82, s61, {C_FO}
    s_lshl_b32 s62, s{sTO}, 1
    s_add_u32 s62, s62, s{sKH}
    s_lshl_b32 s62, s62, 14
    s_add_u32 s83, s62, {QO}
    s_xor_b32 s99, s99, 128""")
    vm.wait(to)
    flag(98)
    stamp("opub")
    if stop <= 3: return done()
    barrier()
    run(w2_dma(7, sEX, 0), 99)
    stamp("pre2")
    poll(vT3, "s82")
    stamp("S2")
    to = [Tok() for _ in range(16)]
    mem = [jVM(f"buffer_load_dwordx4 v[{16+4*i}:{19+4*i}], v{vL16}, {WS}, s83 offen offset:{1024*(i%4)} sc1", to[i], "s_add_u32 s83, s83, 4096" if (i % 4 == 0 and i) else None) for i in range(16)]
    run(mem, PRO)
    A(f"""s_mul_i32 s61, s{sKH}, {224*128}
    v_add_u32 v{vWO}, s61, v{vR0}
    v_add_u32 v{vWO+1}, s61, v{vR0+1}""")
    order = [(i, t) for i in range(11) for t in (1, 0)] + [(i, 1) for i in range(11, 16)] + [(i, 0) for i in range(11, 16)]
    two = {}
    def ldo(k):
        i, t = order[k]; b = WB + 4 * (k % 8); two[k] = Tok(); off = L_WO + 3584 * (i >> 1) + 2048 * (i & 1)
        return [jDS(f"ds_read_b64_tr_b16 v[{b}:{b+1}], v{vWO+t} offset:{off}"), jDS(f"ds_read_b64_tr_b16 v[{b+2}:{b+3}], v{vWO+t} offset:{off+1024}", two[k])]
    for k in range(5): run(ldo(k), 2)
    A(f"""s_mov_b32 s{sCNT}, 0
    L_nv:
    v_cmp_ne_u32 vcc, s{sTAG}, v9
    v_cmp_ne_u32 s[62:63], s{sTAG}, v11
    s_or_b64 vcc, vcc, s[62:63]
    s_cbranch_vccnz L_nvr
    L_nvd:
    v_cmp_lt_u32 vcc, 23, v{vL31}
    v_cndmask_b32 v8, v8, v12, vcc
    v_cndmask_b32 v10, v10, v13, vcc
    v_and_b32 v9, 0xffff0000, v8
    v_lshlrev_b32 v8, 16, v8
    v_and_b32 v11, 0xffff0000, v10
    v_lshlrev_b32 v10, 16, v10""")
    tail.append(f"""L_nvr:
    s_add_u32 s{sCNT}, s{sCNT}, 1
    s_cmp_ge_u32 s{sCNT}, {SPIN}
    s_cbranch_scc1 L_nvd
    buffer_load_dwordx4 v[8:11], v4, {WS}, s85 offen sc1
    s_waitcnt vmcnt(0)
    s_branch L_nv""")
    DS("ds_write_b128 v7, v[8:11]")
    side = [f"v_permlane32_swap_b32 v{XR+a_}, v{XR+a_+2}" for a_ in (0, 1, 4, 5)]
    for d in range(8): side += [f"v_lshlrev_b32 v{X1+2*d}, 16, v{XR+d}", f"v_and_b32 v{X1+2*d+1}, 0xffff0000, v{XR+d}"]
    for a_ in range(4):
        side.append(jDS(f"ds_read_b128 v[{GA+4*a_}:{GA+4*a_+3}], v{vVEC} offset:{32*a_}"))
        side.append(jDS(f"ds_read_b128 v[{A2+4*a_}:{A2+4*a_+3}], v{vVEC} offset:{128+32*a_}"))
    side += lines(f"""    v_add_u32 v{vIN}, s{sEX}, v{vL16}
    s_xor_b32 s61, s{sW}, 2
    s_mul_i32 s61, s61, 8960
    s_add_u32 s61, s61, {L_EX}
    v_add_u32 v{vOUTB}, s61, v{vL16}
    s_lshl_b32 s61, s69, 11
    s_add_u32 s80, s80, s61
    s_mul_i32 s84, s{sTO}, 3584
    s_lshl_b32 s61, s{sNB}, 9
    s_add_u32 s84, s84, s61
    s_lshl_b32 s61, s{sKH}, 3
    s_add_u32 s84, s84, s61
    s_add_u32 s84, s84, {STATS}""")
    t7 = Tok(); t8 = Tok(); run(w2_read(7, vS0, 0, t7), 99)
    bulk = [lambda: lg.wait(t7.t)] + w2_dma(8, sEX, 0, t8)
    run(side, 20)
    ACC = 80
    wr = [jDS(f"ds_write_b128 v{vOUTB}, v[{ACC+16+4*q}:{ACC+19+4*q}] offset:{4096+1024*q}") for q in range(4)]
    for k, (i, t) in enumerate(order):
        vm.wait(to[i].t); lg.wait(two[k].t)
        mfma(v(ACC + 16 * t, 16), v(WB + 4 * (k % 8), 4), v(16 + 4 * i, 4), "0" if i == 0 else None)
        if k + 5 < 32: run(ldo(k + 5), 2)
        if k % 2 == 0:
            if mem: run(mem, 1)
            else: run(bulk, 1)
        else: run(side, 2)
        if k >= 29: run(wr, 2)
        if 'fine' in dbg and k in (0, 16, 31): stamp(f'o{k}')
    assert not side and not bulk
    lg.all()
    barrier()
    tk = [DS(f"ds_read_b128 v[{4*q}:{4*q+3}], v{vIN} offset:{4096+1024*q}") for q in range(4)]
    for q in range(4):
        lg.wait(tk[q])
        for e in range(0, 4, 2):
            r = 4 * q + e
            A(f"""v_pk_add_f32 v[{ACC+r}:{ACC+r+1}], v[{ACC+r}:{ACC+r+1}], v[{r}:{r+1}]
            v_pk_fma_f32 v[{X1+r}:{X1+r+1}], v[{ACC+r}:{ACC+r+1}], v[{GA+r}:{GA+r+1}], v[{X1+r}:{X1+r+1}]
            v_pk_mul_f32 v[{ACC+r}:{ACC+r+1}], v[{X1+r}:{X1+r+1}], v[{A2+r}:{A2+r+1}]
            v_cvt_pk_bf16_f32 v{112+r//2}, v{ACC+r}, v{ACC+r+1}""")
        if q % 2 == 1: VM(f"buffer_store_dwordx4 v[{110+2*q}:{113+2*q}], v{vL16}, {OUT}, s80 offen offset:{1024*(q//2)}")
    A(f"v_pk_add_f32 v[120:121], v[{X1}:{X1+1}], v[{X1+2}:{X1+3}]\nv_pk_mul_f32 v[122:123], v[{X1}:{X1+1}], v[{X1}:{X1+1}]")
    for d in range(1, 8):
        if d >= 2: A(f"v_pk_add_f32 v[120:121], v[120:121], v[{X1+2*d}:{X1+2*d+1}]")
        A(f"v_pk_fma_f32 v[122:123], v[{X1+2*d}:{X1+2*d+1}], v[{X1+2*d}:{X1+2*d+1}], v[122:123]")
    A(f"""v_add_f32 v120, v120, v121
    v_add_f32 v121, v122, v123
    v_mov_b32 v122, v120
    v_mov_b32 v123, v121
    v_permlane32_swap_b32 v120, v122
    v_permlane32_swap_b32 v121, v123
    v_add_f32 v120, v120, v122
    v_add_f32 v121, v121, v123
    s_mov_b32 exec_hi, 0""")
    ty = VM(f"buffer_store_dwordx2 v[120:121], v{vL16}, {WS}, s84 offen")
    A("s_mov_b64 exec, -1")
    stamp("oproj")

    tp1 = Tok()
    run(w1_jobs(L_P1, 8, 0), 99)
    bulk = w1_jobs(L_P1, 6, 32, tp1)
    vSTA, vW1 = 229, 228
    for r in range(16): A(f"v_accvgpr_write_b32 a{224+r}, v{X1+r}")
    fd = f"""s_lshl_b32 s62, s61, 7
        s_add_u32 s62, s62, s{sCTL}
        s_lshl_b32 s63, s{sJ}, 2
        s_add_u32 s62, s62, s63
        s_add_u32 s85, s62, {C_FD}
        s_add_u32 s86, s85, 64
        s_mul_i32 s84, s{sTQ}, 14
        s_add_u32 s84, s84, s{sJ}
        s_lshl_b32 s84, s84, 7
        s_add_u32 s84, s84, {RS2}"""
    A(f"""v_min_u32 v{vT3}, 13, v{vL}
    v_lshlrev_b32 v{vT3}, 2, v{vT3}
    s_and_b32 s61, s{sTQ}, 7
    s_lshl_b32 s62, s61, 6
    s_add_u32 s62, s62, s{sCTL}
    s_add_u32 s82, s62, {C_FY}
    {fd}
    s_mul_i32 s83, s{sTQ}, 28672
    s_mul_i32 s87, s{sTQ}, 3584
    s_add_u32 s87, s87, {STATS}
    s_mul_i32 s88, s{sTQ}, 114688
    s_lshl_b32 s61, s{sJ}, 1
    s_add_u32 s61, s61, s{sPSW}
    s_lshl_b32 s62, s61, 12
    s_add_u32 s88, s88, s62
    s_add_u32 s88, s88, {HID}
    s_lshl_b32 s61, s61, 10
    s_add_u32 s89, s61, {AUG}
    s_xor_b32 s61, s61, 1024
    s_add_u32 s92, s61, {AUG}
    v_lshlrev_b32 v{vSTA}, 11, v{vHALF}
    v_lshl_add_u32 v{vSTA}, v{vL31}, 4, v{vSTA}
    v_lshlrev_b32 v{vSTA+1}, 30, v{vHALF}
    v_add_u32 v{vSTA+1}, v{vSTA+1}, v{vSTA}
    v_add_u32 v{vW1}, {L_P0}, v{vTP0}
    v_add_u32 v{vW1-1}, {L_P0}, v{vTP1}""")
    vm.wait(ty); flag(81); stamp("ypub")
    if stop <= 4: return done()
    VM(f"buffer_load_dwordx4 v[144:147], v{vL16}, {WS}, s89 offen sc1")
    VM(f"buffer_load_dwordx4 v[148:151], v{vL16}, {WS}, s92 offen sc1")
    run(w2_read(8, vS0, 0), 99)
    poll(vT3, "s82")
    stamp("S3")
    ty = [Tok() for _ in range(28)]; ts = Tok()
    mem = [jVM(f"buffer_load_dwordx4 v[{4*s_}:{4*s_+3}], v{vL16}, {OUT}, s83 offen offset:{1024*(s_%4)} sc1", ty[s_], "s_add_u32 s83, s83, 4096" if (s_ % 4 == 0 and s_) else None) for s_ in range(28)]
    stl = [jVM(f"buffer_load_dwordx4 v[{160+4*i}:{163+4*i}], v{vSTA+(i==3)}, {WS}, s87 offen offset:{512*i} sc1", ts) for i in range(4)]
    run(mem, PRO)
    ACC = 112; WB = 176; vRS = 226; AU = 248; BA = 240
    tw = {}
    def ld1(i):
        pn, s_ = divmod(i, 28)
        b = WB + 8 * (i % 4); js = []; tw[i] = Tok()
        for t in range(2):
            ad = (vW1 - t) if pn == 0 else (vTP0 - t)
            js.append(jDS(f"ds_read_b64_tr_b16 v[{b+4*t}:{b+4*t+1}], v{ad} offset:{2048*s_}"))
            js.append(jDS(f"ds_read_b64_tr_b16 v[{b+4*t+2}:{b+4*t+3}], v{ad} offset:{2048*s_+1024}", tw[i]))
        return js
    for i in range(3): run(ld1(i), 4)
    A(f"""s_mov_b32 s{sCNT}, 0
    L_au:
    v_cmp_ne_u32 vcc, s{sTAG}, v147
    v_cmp_ne_u32 s[62:63], s{sTAG}, v151
    s_or_b64 vcc, vcc, s[62:63]
    s_cbranch_vccnz L_aur
    L_aud:""")
    tail.append(f"""L_aur:
    s_add_u32 s{sCNT}, s{sCNT}, 1
    s_cmp_ge_u32 s{sCNT}, {SPIN}
    s_cbranch_scc1 L_aud
    buffer_load_dwordx4 v[144:147], v{vL16}, {WS}, s89 offen sc1
    buffer_load_dwordx4 v[148:151], v{vL16}, {WS}, s92 offen sc1
    s_waitcnt vmcnt(0)
    s_branch L_au""")
    for r in range(8): A(f"v_accvgpr_write_b32 a{AU+r}, {'0' if r % 4 == 3 else 'v%d' % (144 + r)}")
    A(f"v_accvgpr_write_b32 a{BA+3}, 0\nv_accvgpr_write_b32 a{BA+7}, 0\nv_cmp_eq_u32 s[90:91], 0, v{vHALF}")
    stat = lines(f"""v_add_f32 v208, v160, v162
    v_add_f32 v209, v161, v163
    v_add_f32 v210, v164, v166
    v_add_f32 v211, v165, v167
    v_add_f32 v212, v168, v170
    v_add_f32 v213, v169, v171
    v_add_f32 v214, v172, v174
    v_add_f32 v215, v173, v175
    v_add_f32 v208, v208, v210
    v_add_f32 v209, v209, v211
    v_add_f32 v212, v212, v214
    v_add_f32 v213, v213, v215
    v_add_f32 v208, v208, v212
    v_add_f32 v209, v209, v213
    v_mov_b32 v210, v208
    v_mov_b32 v211, v209
    v_permlane32_swap_b32 v208, v210
    v_permlane32_swap_b32 v209, v211
    v_add_f32 v208, v208, v210
    v_add_f32 v209, v209, v211
    v_mul_f32 v208, 0xbb124925, v208
    v_mul_f32 v209, 0x3b124925, v209
    v_fma_f32 v209, -v208, v208, v209
    v_max_f32 v209, 0, v209
    v_add_f32 v209, 0x3727c5ac, v209
    v_rcp_f32 v{vRS}, v209
    v_sqrt_f32 v209, v209
    v_cvt_pk_bf16_f32 v213, v208, v208
    v_cvt_pk_bf16_f32 v210, v209, v209
    v_and_b32 v211, 0xffff0000, v213
    v_and_b32 v210, 0xffff0000, v210
    v_sub_f32 v211, v208, v211
    v_sub_f32 v212, v209, v210
    v_cvt_pk_bf16_f32 v214, v211, v210
    v_cvt_pk_bf16_f32 v215, v210, v212""")
    for r in range(3):
        stat += [f"v_cndmask_b32 v{216+r}, 0, v{213+r}, s[90:91]", f"v_cndmask_b32 v{219+r}, v{213+r}, 0, s[90:91]"]
    for r in range(3): stat += [f"v_accvgpr_write_b32 a{BA+r}, v{216+r}", f"v_accvgpr_write_b32 a{BA+4+r}, v{219+r}"]
    def epi_list(pn, last):
        e = []
        for t in range(2):
            c = ACC + 32 * pn + 16 * t
            for d in range(8):
                r = c + 2 * d; p = 208 + 8 * t + d
                e += [f"v_mul_f32 v{r}, v{r}, abs(v{r})", f"v_mul_f32 v{r+1}, v{r+1}, abs(v{r+1})", f"v_cvt_pk_bf16_f32 v{p}, v{r}, v{r+1}", f"v_pk_max_i16 v{p}, v{p}, 0"]
                if d % 4 == 3: e.append(jVM(f"buffer_store_dwordx4 v[{205+8*t+d}:{208+8*t+d}], v{vL16}, {WS}, s88 offen offset:{2048*t+1024*(d//4)} sc1", last))
        return e
    mem = mem + stl + bulk
    tA = Tok(); last0 = Tok(); last1 = Tok()
    side = []
    def aug(pn):
        for t in range(2): mfma(v(ACC + 32 * pn + 16 * t, 16), a(AU + 4 * pn, 4), a(BA + 4 * t, 4))
    AUG0 = 35
    for i in range(56):
        pn, s_ = divmod(i, 28)
        if pn == 0: vm.wait(ty[s_].t)
        lg.wait(tw[i].t)
        if i == 24: barrier()
        if i == 26: vm.wait(ts.t); side = list(stat) + [f"v_lshlrev_b32 v{vT2}, 2, v{vL31}"]
        if i == 28:
            assert not mem
            mem = w2_dma(9, sEX, 0) + w2_dma(10, sEX, 4096)
        if i == AUG0:
            assert not side
            vm.wait(tp1.t); barrier()
            aug(0)
            A(f"s_mul_i32 s79, s{sW}, 14336\ns_add_u32 s79, s79, {L_P0}\nv_add_u32 v{vT0}, s79, v{vR0}\nv_add_u32 v{vT1}, s79, v{vR0+1}")
            VM(f"buffer_store_dword v{vRS}, v{vT2}, {WS}, s84 offen sc1")
        if i == AUG0 + 1: side = epi_list(0, last0)
        if i == AUG0 + 9:
            for k in range(3): mem += w2_dma(11 + k, 79, 4096 * k, tA)
        b = WB + 8 * (i % 4)
        nx = ld1(i + 3) if i + 3 < 56 else []
        for t in range(2):
            mfma(v(ACC + 32 * pn + 16 * t, 16), v(b + 4 * t, 4), v(4 * s_, 4), "0" if s_ == 0 else None)
            if t == 0:
                if mem: run(mem, 1); run(nx, 1); run(side, 2)
                else: run(nx, 2); run(side, 3)
            else:
                run(nx, 3); run(side, 4 if i < AUG0 else 3)
        if i == 27: stamp("f1a")
        if 'fine' in dbg and i in (0, 9, 18, 34, 44, 55): stamp(f'f{i}')
    assert not mem and not side
    aug(1)
    vm.wait(last0.t); flag(85)
    A(f"s_add_u32 s88, s88, s{sDH}")
    e1 = epi_list(1, last1)
    late_st = [e for e in e1 if callable(e)] if pollfirst else []
    run([e for e in e1 if e not in late_st], 999)
    stamp("ffn1")

    ACC = 0; HB = 64; NB_ = 40
    vH0, vH1, vFD = 224, 225, 226
    A(f"""v_and_b32 v{vT2}, 3, v{vL}
    v_lshlrev_b32 v{vT2}, 2, v{vT2}
    v_bfe_u32 v{vT3}, v{vL}, 2, 1
    v_lshl_add_u32 v{vFD}, v{vT3}, 7, v{vT2}
    s_and_b32 s61, s{sTO}, 6
    s_lshl_b32 s61, s61, 7
    s_add_u32 s61, s61, s{sCTL}
    s_mul_i32 s62, s{sW}, 7
    s_lshr_b32 s62, s62, 1
    s_mul_i32 s82, s{sTO}, 14
    s_add_u32 s82, s82, s62
    s_lshl_b32 s82, s82, 7
    s_add_u32 s82, s82, {RS2}
    s_lshl_b32 s62, s62, 2
    s_add_u32 s61, s61, s62
    s_add_u32 s80, s61, {C_FD}
    s_add_u32 s81, s80, 64
    v_lshlrev_b32 v{vT2}, 2, v{vL31}""")
    A(f"""s_mul_i32 s61, s{sTO}, 114688
    s_add_u32 s61, s61, {HID}
    v_add_u32 v{vH0}, s61, v{vL16}
    s_xor_b32 s61, s{sTO}, 1
    s_mul_i32 s61, s61, 114688
    s_add_u32 s61, s61, {HID}
    v_add_u32 v{vH1}, s61, v{vL16}""")
    for q in range(7): A(f"s_lshl_b32 s{sFT+q}, s{sFT+q}, 11")
    if stop <= 5:
        vm.wait(last1.t); return done()
    poll(vFD, "s80")
    stamp("S4a")
    seq = list(range(40)) + list(range(41, 56, 2)) + list(range(40, 56, 2))
    th = [Tok() for _ in range(56)]
    bumped = set()
    def hj(p):
        i = seq[p]; u, s_, mh = i >> 2, (i >> 1) & 1, i & 1
        b = HB + 4 * (p % NB_)
        pre = None
        if u >= 7 and u not in bumped: bumped.add(u); pre = f"s_add_u32 s{sFT+u%7}, s{sFT+u%7}, s{sDH}"
        return jVM(f"buffer_load_dwordx4 v[{b}:{b+3}], v{vH1 if mh else vH0}, {WS}, s{sFT+u%7} offen offset:{1024*s_} sc1", th[p], pre)
    mem = [hj(i) for i in range(28)]
    if not pollfirst: flag(86)
    run(mem, PRO - len(late_st) // 2)
    run(late_st, 4)
    trs = Tok(); mem.append(jVM(f"buffer_load_dword v{vT3}, v{vT2}, {WS}, s82 offen sc1", trs))
    vRW, vRR = 227, 230
    for k in range(1, 4):
        A(f"s_xor_b32 s61, s{sW}, {k}\ns_mul_i32 s61, s61, 12288\ns_add_u32 s61, s61, {4096*(k-1)}\nv_add_u32 v{vRW+k-1}, s61, v{vL16}")
    A(f"s_mul_i32 s61, s{sW}, 12288\nv_add_u32 v{vRR}, s61, v{vL16}")
    trd = Tok()
    rds = w2_read(9, vS0, 0) + w2_read(10, vS0, 4096) + w2_read(11, vT0, 0) + w2_read(12, vT0, 4096) + w2_read(13, vT0, 8192, trd)
    run(rds, 16)
    def mm(p, t):
        i = seq[p]; u, s_, mh = i >> 2, (i >> 1) & 1, i & 1
        vm.wait(th[p].t)
        mfma(v(ACC + 16 * (2 * t + mh), 16), a(16 * u + 8 * s_ + 4 * t, 4), v(HB + 4 * (p % NB_), 4), "0" if i < 2 else None)
    side = []
    tgb = Tok()
    for a_ in range(4):
        side.append(jDS(f"ds_read_b128 v[{160+4*a_}:{163+4*a_}], v{vVEC} offset:{256+32*a_}"))
        side.append(jDS(f"ds_read_b128 v[{176+4*a_}:{179+4*a_}], v{vVEC} offset:{384+32*a_}", tgb))
    side += [f"v_accvgpr_read_b32 v{144+r}, a{224+r}" for r in range(16)]
    side.append(lambda: lg.wait(tgb.t))
    for r in range(16): side.append(f"v_fmac_f32 v{144+r}, v{160+r}, v{176+r}")
    for r in range(16): side.append(f"v_mul_f32 v{160+r}, v{160+r}, v{vT3}")
    tpl = Tok()
    for i in range(48):
        if pollfirst and i == LFLAG: vm.wait(last1.t); flag(86)
        if i == LATE:
            jVM(f"buffer_load_dword v{vJUNK}, v{vFD}, {WS}, s81 offen sc1", tpl)()
        if i == LATE + LATW:
            lr, lj = U("lr"), U("lj")
            vm.wait(tpl.t)
            A(f"v_cmp_ne_u32 vcc, s{sTAG}, v{vJUNK}\ns_cmp_eq_u32 s{sUNI}, 0\ns_cbranch_scc1 {lr}\ns_cbranch_vccnz {lr}\n{lj}:")
            tail.append(f"""{lr}:
            s_mov_b32 s{sCNT}, 0
            {lr}a:
            buffer_load_dword v{vJUNK}, v{vFD}, {WS}, s81 offen sc1
            s_add_u32 s{sCNT}, s{sCNT}, 1
            s_waitcnt vmcnt(0)
            v_cmp_ne_u32 vcc, s{sTAG}, v{vJUNK}
            s_cbranch_vccz {lr}b
            s_cmp_lt_u32 s{sCNT}, {SPIN}
            s_cbranch_scc1 {lr}a
            {lr}b:
            s_cmp_eq_u32 s{sUNI}, 1
            s_cbranch_scc1 {lj}
            buffer_inv sc1
            s_waitcnt vmcnt(0)
            s_branch {lj}""")
            stamp("S4b")
            mem += [hj(k) for k in range(28, 56)]
            run(mem, max(0, len(mem) - 28 + min(PRO, i + PRO - 28)) if i + PRO > 29 else 0)
        if i == 20: barrier()
        if i == 24: lg.wait(trd.t)
        mm(i, 0); run(mem, 1); mm(i, 1); run(rds, 3)
        if i >= 33: run(side, 4)
        if 'fine' in dbg and i in (0, 8, 16, 28, 36): stamp(f'g{i}')
    assert not mem and not side
    wrj = lambda k: [jDS(f"ds_write_b128 v{vRW+k-1}, v[{ACC+16*k+4*q}:{ACC+16*k+4*q+3}] offset:{1024*q}") for q in range(4)]
    wr = wrj(1) + wrj(3)
    tailo = [(48, 1), (48, 0), (49, 1), (49, 0), (50, 1), (50, 0), (51, 1), (52, 1), (53, 1), (54, 1), (55, 1), (51, 0), (52, 0), (53, 0), (54, 0), (55, 0)]
    for n, (p, t) in enumerate(tailo):
        mm(p, t)
        if n == 12: wr += wrj(2)
        if n >= 2 and n % 3 != 1: run(wr, 1)
    run(wr, 99)
    stamp("ffn2")
    lg.all()
    barrier()
    tk = {}
    for q in range(4):
        for k in range(3): tk[q] = DS(f"ds_read_b128 v[{64+16*k+4*q}:{67+16*k+4*q}], v{vRR} offset:{4096*k+1024*q}")
    for q in range(4):
        lg.wait(tk[q])
        for e in range(0, 4, 2):
            r = 4 * q + e
            A(f"""v_pk_add_f32 v[{64+r}:{65+r}], v[{64+r}:{65+r}], v[{80+r}:{81+r}]
            v_pk_add_f32 v[{96+r}:{97+r}], v[{96+r}:{97+r}], v[{r}:{r+1}]
            v_pk_add_f32 v[{64+r}:{65+r}], v[{64+r}:{65+r}], v[{96+r}:{97+r}]
            v_pk_fma_f32 v[{144+r}:{145+r}], v[{64+r}:{65+r}], v[{160+r}:{161+r}], v[{144+r}:{145+r}]
            v_cvt_pk_bf16_f32 v{192+r//2}, v{144+r}, v{145+r}""")
        if q % 2 == 1:
            b = 192 + 2 * (q - 1)
            A(f"v_permlane32_swap_b32 v{b}, v{b+2}\nv_permlane32_swap_b32 v{b+1}, v{b+3}")
            VM(f"buffer_store_dwordx4 v[{b}:{b+3}], v{vROW}, {OUT}, s{sROW} offen offset:{16*(q-1)}{omod}")
    stamp("done")
    if meas:
        A(f"""s_cmp_lg_u32 s2, {meas[3]}
        s_cbranch_scc1 L_fin
        v_readlane_b32 s61, v{vST}, 0
        v_readlane_b32 s62, v{vST}, 1
        s_memrealtime s[100:101]
        s_sub_u32 s61, s62, s61
        s_mul_i32 s61, s61, {meas[2]}
        s_min_u32 s61, s61, 100000
        s_waitcnt lgkmcnt(0)
        s_mov_b32 s63, s100
        L_ms:
        s_memrealtime s[100:101]
        s_waitcnt lgkmcnt(0)
        s_sub_u32 s62, s100, s63
        s_cmp_lt_u32 s62, s61
        s_cbranch_scc1 L_ms""")
    return done()

HEAD = open("adaLN_cond__sliding_block__dense_activation_squared_relu__prompt.s.ref").read().split("; Override launch")[0]
def wrap(A, tail, lst=None):
    for t in tail: A(t)
    A("L_exit:\ns_endpgm")
    A.raw("CODE_END:")
    txt = HEAD + f"; @launch grid=(256,1,1) block=(256,1,1) lds={LDS_BYTES}\n.amdgcn_target \"amdgcn-amd-amdhsa--gfx950\"\n.text\n" + kernel_header(NAME) + A.text()
    if lst:
        main = f"; @launch kernel={NAME} grid=(256,1,1) block=(256,1,1) lds={LDS_BYTES}\n"
        tiny = "; @launch kernel=tiny_kernel grid=(1,1,1) block=(64,1,1) lds=0\n"
        txt = txt.replace(f"; @launch grid=(256,1,1) block=(256,1,1) lds={LDS_BYTES}\n", "".join(main if c == "m" else tiny for c in lst))
        txt += kernel_header("tiny_kernel") + "    s_endpgm\n"
    txt += ".section .rodata,\"a\"\n.p2align 6\n" + kernel_desc(NAME, 512, 102, 256)
    if lst: txt += ".p2align 6\n" + kernel_desc("tiny_kernel", 8, 16, 8)
    return txt

if __name__ == "__main__":
    out = sys.argv[1]
    kw = eval("dict(" + (sys.argv[2] if len(sys.argv) > 2 else "") + ")")
    t, names = gen(**kw)
    open(out, "w").write(t)
    if names: json.dump(names, open(out + ".json", "w"))
    print(out, len(t.split("\n")), "lines", len(names), "stamps")
```

```python
import sys, json, struct
from asmgen import *
NAME = "adaLN_cond__sliding_block__dense_activation_squared_relu__prompt_kernel"
QSCALE = struct.unpack("<I", struct.pack("<f", 28 ** -0.5 * 1.4426950408889634))[0]

CTL = 0x4000
C_FH, C_FQ, C_FO, C_FY, C_FD = 0, 0x200, 0x400, 0x600, 0x800
S0U = 0x10000
XCCG = 0x14000
AUG = 0x1C000
STATS = 0x28000
NU = 0x70000
RS2 = 0x80000
FKV = 0xA0000
QO = 0x100000
KG = 0x300000
VG = 0x500000
HID = 0x700000
STAMP = 0xF00000
WSZ = 0x1000000
OOB = 0x40000000
L_WKV, L_B, L_WQ = 0, 57344, 122880
L_K, L_V = 98304, 122880
L_WO = 0
L_P0 = 58368; L_P1 = 0
L_EX = 115712
L_MISC = 151552
L_X = L_MISC; L_XT = L_MISC; L_SILU = L_MISC + 7168; L_MODV = L_MISC + 8192; L_VEC = L_MODV
LDS_BYTES = 163840
sW, sG, sM, sTAG, sUNI = 3, 4, 5, 6, 7
X, WQKV, WO, W1, W2, WMOD, OUT, WS = [f"s[{i}:{i+3}]" for i in (8, 12, 16, 20, 24, 28, 32, 36)]
sCTL = 47
sJ, sTQ, sHEAD, sRB, sTA, sNB, sTO, sKH, sR4, sWG, sHI, sCOL = 48, 49, 50, 51, 52, 53, 54, 55, 56, 57, 58, 59
sCNT = 60
sSRC, sHLP, sCT = 67, 68, 69
sFT = 70
sROW, sEX, sDL, sUI, sPSW = 77, 78, 94, 95, 96
sSTB, sKVS, sQS, sHS, sFKV, sFQ, sFHP = 79, 80, 81, 82, 83, 84, 85
sLK, sK0, sQO, sFO, sWOL, sW1C, sSTA = 86, 87, 90, 91, 92, 93, 97
sYS, sFY, sFOP, sOS, sSTS, sNUS = 98, 99, 0, 1, 44, 45
vL, vL16, vTN0, vTN1, vTP0, vTP1 = 255, 254, 253, 252, 251, 250
vPAN = 246
vTAG, vHALF, vL31 = 245, 244, 243
vT0, vT1, vT2, vT3 = 239, 240, 241, 242
vJUNK, vST, vROW, vVEC, vR0 = 238, 237, 236, 235, 233
NEG = 0xF149F2CA
SPIN = 60000

class Ctr:
    def __init__(s, A, name, mx): s.A, s.name, s.mx, s.n, s.done = A, name, mx, 0, 0
    def issue(s): s.n += 1; return s.n
    def wait(s, tok):
        if tok <= s.done: return
        k = min(s.n - tok, s.mx)
        s.A.e(f"s_waitcnt {s.name}({k})"); s.done = s.n - k
    def all(s): s.A.e(f"s_waitcnt {s.name}(0)"); s.done = s.n
    def drained(s): s.done = s.n
class Tok: t = None

def gen(stop=99, stamps=False, force_slow=False, only=None, meas=None, dbg=(), lst=None,
        a1='K0 H pR', a2='LQ', a3='K1 pQ pA', a5='Q7 pO', a6='pF', a7='pS', kvt='QP B0 B1', qp='XT A0 A1', p4='A2 R0 R1 B0 B1', at='O0 Wa NU O1 Wb', ot='L1', hp0='', hp1='', hp2='',
        hl2=True, PRO=10, LATE=8, LATW=10, STP=6, KVF=22, ns3=8, msub=True, AR=2, hid='hyb1', wb=0, KVA=99, QB=10):
    A = Asm()
    vm = Ctr(A, "vmcnt", 63); lg = Ctr(A, "lgkmcnt", 15)
    tail = []; uid = [0]; names = []
    def U(p): uid[0] += 1; return f"L_{p}{uid[0]}"
    def stamp(nm):
        if meas and nm in meas[:2]:
            A(f"s_memrealtime s[100:101]\ns_waitcnt lgkmcnt(0)\nv_writelane_b32 v{vST}, s100, {meas.index(nm)}"); lg.drained()
        if not stamps or (only and nm not in only): return
        if nm not in names: names.append(nm)
        A(f"{'s_memtime' if stamps == 2 else 's_memrealtime'} s[100:101]\ns_waitcnt lgkmcnt(0)\nv_writelane_b32 v{vST}, s100, {names.index(nm)}"); lg.drained()
    def VM(t): A(t); return vm.issue()
    def DS(t): A(t); return lg.issue()
    def barrier(): A("s_barrier")
    def mfma(d, a_, b_, c=None): A(f"v_mfma_f32_32x32x16_bf16 {d}, {a_}, {b_}, {c if c is not None else d}")
    def run(q, n):
        for _ in range(n):
            if not q: return
            e = q.pop(0)
            if callable(e): e()
            else: A(e)
    def lines(t): return [x.strip() for x in t.strip().split("\n") if x.strip()]
    def jVM(text, tok=None, pre=None):
        def f():
            if pre: A(pre)
            k = VM(text)
            if tok is not None: tok.t = k
        return f
    def jDS(text, tok=None):
        def f():
            k = DS(text)
            if tok is not None: tok.t = k
        return f
    def flag(soff, slow=False):
        A("s_mov_b64 exec, 1")
        if slow: VM(f"buffer_store_dword v{vTAG}, off, {WS}, s{soff} sc1")
        else:
            ls, lj = U("fs"), U("fj")
            A(f"s_cmp_eq_u32 s{sUNI}, 0\ns_cbranch_scc1 {ls}")
            VM(f"buffer_store_dword v{vTAG}, off, {WS}, s{soff}")
            A(f"{lj}:")
            tail.append(f"{ls}:\nbuffer_wbl2 sc1\ns_waitcnt vmcnt(0)\nbuffer_store_dword v{vTAG}, off, {WS}, s{soff} sc1\ns_branch {lj}")
        A("s_mov_b64 exec, -1")
    def poll(vaddr, soff):
        lp, ld, li, lj = U("p"), U("pd"), U("pi"), U("pj")
        A(f"s_mov_b32 s{sCNT}, 0\n{lp}:\nbuffer_load_dword v{vJUNK}, v{vaddr}, {WS}, {soff} offen sc1\ns_add_u32 s{sCNT}, s{sCNT}, 1\ns_cmp_ge_u32 s{sCNT}, {SPIN}\ns_cbranch_scc1 {ld}\ns_cmp_eq_u32 s{sUNI}, 0\ns_waitcnt vmcnt(0)")
        A(f"v_cmp_ne_u32 vcc, s{sTAG}, v{vJUNK}\ns_cbranch_vccnz {lp}\n{ld}:\ns_cbranch_scc1 {li}\n{lj}:")
        vm.drained()
        tail.append(f"{li}:\ns_waitcnt vmcnt(0)\nbuffer_inv sc1\ns_waitcnt vmcnt(0)\ns_branch {lj}")
    def panel_addr(dst, rs, swz="std"):
        t = f"v_lshrrev_b32 v{vT0}, 3, v{vL}\nv_and_b32 v{vT1}, 7, v{vL}\n"
        if swz == "std": t += f"v_bfe_u32 v{vT2}, v{vL}, 4, 1\nv_lshlrev_b32 v{vT2}, 2, v{vT2}\n"
        else: t += f"v_bfe_u32 v{vT2}, v{vL}, 4, 2\nv_lshlrev_b32 v{vT2}, 1, v{vT2}\n"
        t += f"v_xor_b32 v{vT1}, v{vT1}, v{vT2}\nv_mul_u32_u24 v{vT0}, {rs}, v{vT0}\nv_lshl_add_u32 v{dst}, v{vT1}, 4, v{vT0}\n"
        for i in range(1, 4): t += f"v_add_u32 v{dst+i}, {i*(8*rs-1024)}, v{dst}\n"
        return t
    def dma_jobs(srd, vp, rs, n, setup, tok=None):
        if "nobulk" in dbg and srd in (W2, W1, WO) and vp != 4:
            def nop():
                if tok is not None: tok.t = 0
            return [nop] * n
        js = []
        for i in range(n):
            q = i % 4
            pre = setup if i == 0 else (f"s_add_u32 m0, m0, 4096\ns_add_u32 s{sSRC}, s{sSRC}, {32*rs}" if q == 0 else None)
            js.append(jVM(f"buffer_load_dwordx4 v{vp+q}, {srd}, s{sSRC} offen offset:{1024*q} lds", tok, pre))
        return js
    def w2_dma(u, lds_s, lds_off, tok=None):
        return dma_jobs(W2, vPAN, 896, 4, f"s_add_u32 m0, s{lds_s}, {lds_off}\n{'s_xor_b32 s%d, s%d, 2' % (sSRC, sFT+u%7) if u >= 7 else ''}\ns_mul_i32 s{sSRC}, s{sSRC if u >= 7 else sFT+u%7}, {32*896}\ns_add_u32 s{sSRC}, s{sSRC}, s{sCOL}", tok)
    def w2_read(u, va, off, tok=None):
        js = []
        for s_ in range(2):
            for t in range(2):
                r = 16 * u + 8 * s_ + 4 * t
                for p in range(2): js.append(jDS(f"ds_read_b64_tr_b16 a[{r+2*p}:{r+2*p+1}], v{va+t} offset:{off+2048*s_+1024*p}", tok))
        return js
    def done():
        A("L_fin:")
        if stamps:
            A(f"v_writelane_b32 v{vST}, s{sUNI}, 63")
            A(f"s_lshl_b32 s61, s2, 2\ns_add_u32 s61, s61, s{sW}\ns_lshl_b32 s61, s61, 8\ns_add_u32 s61, s61, {STAMP}\nv_lshlrev_b32 v{vT1}, 2, v{vL}")
            A(f"buffer_store_dword v{vST}, v{vT1}, {WS}, s61 offen")
        A("s_endpgm")
        return wrap(A, tail, lst), names
    stash = {}
    def put(name, r):
        stash.setdefault(name, 224 + len(stash)); assert stash[name] < 246
        return f"v_accvgpr_write_b32 a{stash[name]}, v{r}"
    def get(name, r): return f"v_accvgpr_read_b32 v{r}, a{stash[name]}"
    aX, aB2 = 248, 246

    ent = bool(stamps) or bool(meas and "entry" in meas[:2])
    if ent: A(f"{'s_memtime' if stamps == 2 else 's_memrealtime'} s[100:101]")
    for r, off in ((28, 72), (44, 64), (8, 0)):
        A(f"s_load_dwordx2 s[{r}:{r+1}], s[0:1], {off}")
    A(f"""v_readfirstlane_b32 s{sW}, v0
    s_mov_b32 s30, 2408448
    s_mov_b32 s31, 0x20000
    s_mov_b32 s{sHLP}, 0
    s_sub_u32 s{sUI}, s2, 224
    s_cmp_ge_u32 s{sUI}, 32
    s_cbranch_scc1 L_w0
    s_mov_b32 s{sHLP}, 1
    v_lshrrev_b32 v1, 3, v0
    v_and_b32 v2, 6, v1
    v_xor_b32 v2, v2, v0
    v_and_b32 v2, 7, v2
    v_mul_u32_u24 v1, 5376, v1
    v_lshl_add_u32 v4, v2, 4, v1
    v_min_u32 v2, 223, v0
    v_lshlrev_b32 v3, 2, v2
    s_lshl_b32 s61, s{sW}, 4
    s_add_u32 m0, s61, {L_B}
    s_lshr_b32 s61, s{sUI}, 1
    s_lshl_b32 s61, s61, 7
    s_bitcmp1_b32 s{sUI}, 0
    s_cselect_b32 s62, {224*5376}, 0
    s_add_u32 s61, s61, s62
    s_cmp_ge_u32 s{sUI}, 28
    s_cselect_b32 s61, 2.0, s61
    s_mov_b32 s62, 7
    s_waitcnt lgkmcnt(0)
    global_load_dword v8, v3, s[44:45]
    L_m0:
    buffer_load_dwordx4 v4, {WMOD}, s61 offen lds
    s_addk_i32 m0, 4096
    s_add_u32 s61, s61, {32*5376}
    s_sub_u32 s62, s62, 1
    s_cmp_lg_u32 s62, 0
    s_cbranch_scc1 L_m0
    L_w0:
    s_lshr_b32 s{sM}, s2, 3
    v_min_u32 v5, 11, v0
    v_lshl_add_u32 v5, v5, 5, s{sM}
    s_getpc_b64 s[62:63]
    L_pc:
    v_min_u32 v5, (CODE_END-L_pc-4)>>7, v5
    v_lshlrev_b32 v5, 7, v5
    global_load_dword v{vJUNK}, v5, s[62:63]
    s_cmp_ge_u32 s2, 256
    s_cbranch_scc1 L_exit
    s_lshr_b32 s{sW}, s{sW}, 6
    v_and_b32 v{vL}, 63, v0
    s_and_b32 s{sG}, s2, 7
    s_mov_b32 s10, 1835008
    s_mov_b32 s11, s31""")
    for r, off in ((36, 96), (12, 8), (32, 80), (24, 48), (16, 16), (20, 32), (40, 40), (42, 56)): A(f"s_load_dwordx2 s[{r}:{r+1}], s[0:1], {off}")
    A(f"""v_lshrrev_b32 v9, 3, v{vL}
    v_xor_b32 v10, v9, v{vL}
    v_and_b32 v10, 7, v10
    v_mul_u32_u24 v9, 896, v9
    v_lshl_add_u32 v9, v10, 4, v9
    s_lshl_b32 s61, s{sG}, 5
    s_add_u32 s{sWG}, s61, s{sM}
    s_mul_i32 s61, s{sWG}, 7168
    s_lshl_b32 s62, s{sW}, 7
    s_add_u32 s61, s61, s62
    s_lshl_b32 s62, s{sW}, 10
    s_add_u32 m0, s62, {L_X}
    s_add_u32 s63, s61, 512
    s_cmp_eq_u32 s{sW}, 3
    s_cselect_b32 s63, s61, s63
    s_cselect_b32 s64, 0, 4096
    s_waitcnt lgkmcnt(0)""")
    if ent:
        A(f"v_mov_b32 v{vST}, 0\nv_writelane_b32 v{vST}, s100, 0")
        if stamps: names.append("entry")
    stamp("karg")
    A(f"s_load_dword s{sTAG}, s[36:37], 0")
    VM(f"buffer_load_dwordx4 v9, {X}, s61 offen lds")
    A("s_add_u32 m0, m0, s64")
    tx = VM(f"buffer_load_dwordx4 v9, {X}, s63 offen lds")
    for r, n in ((12, 1204224), (36, WSZ), (32, 1835008), (16, 401408), (20, 1605632), (24, 1605632)):
        A(f"s_mov_b32 s{r+2}, {n}\ns_mov_b32 s{r+3}, s31")
    A(panel_addr(12, 2688))
    A(f"""s_cmp_ge_u32 s{sM}, 14
    s_cselect_b32 s65, 14, 0
    s_cselect_b32 s{sPSW}, 1, 0
    s_sub_u32 s{sJ}, s{sM}, s65""")
    def wkv_half(second):
        return dma_jobs(WQKV, 12, 2688, 7, f"""s_xor_b32 s65, s{sPSW}, s{sG}
        s_and_b32 s65, s65, 1
        {'s_xor_b32 s65, s65, 1' if second else ''}
        s_lshl_b32 s66, s{sW}, 1
        s_add_u32 s65, s65, s66
        s_mul_i32 m0, s65, 7168
        s_mul_i32 s{sSRC}, s65, {56*2688}
        s_lshl_b32 s65, s{sJ}, 7
        s_add_u32 s{sSRC}, s{sSRC}, s65
        s_add_u32 s{sSRC}, s{sSRC}, 896""")
    wkv = wkv_half(0) + wkv_half(1)
    vWQ = 228; vPQ = 229
    twq = Tok()
    def wq_half(second):
        return dma_jobs(WQKV, vPQ, 2 * 2688, 4, f"""s_and_b32 s65, s{sJ}, 1
        {'s_xor_b32 s65, s65, 1' if second else ''}
        s_mul_i32 s65, s65, 3
        s_mul_i32 s66, s{sW}, 7
        s_add_u32 s65, s65, s66
        s_lshl_b32 s66, s65, 10
        s_add_u32 m0, s66, {L_WQ}
        s_mul_i32 s{sSRC}, s65, {16*2688}
        s_lshl_b32 s65, s{sJ}, 6
        s_add_u32 s{sSRC}, s{sSRC}, s65""", twq)
    def touch(srd, n, idx, k=0, of=1):
        return [jVM(f"buffer_load_dword v{vJUNK}, v{vT0}, {srd}, s65 offen", None, f"{idx}\ns_mul_i32 s65, s65, {128*n*of}\ns_add_u32 s65, s65, {128*n*k}\nv_min_u32 v{vT0}, {n-1}, v{vL}\nv_lshlrev_b32 v{vT0}, 7, v{vT0}")]
    wi = f"s_mul_i32 s65, s{sG}, 28\ns_add_u32 s65, s65, s{sM}\ns_lshl_b32 s65, s65, 2\ns_add_u32 s65, s65, s{sW}"
    hi = f"s_lshl_b32 s65, s{sHI}, 2\ns_add_u32 s65, s65, s{sW}"
    hg = hi + "\ns_and_b32 s65, s65, 15"
    J = dict(K0=lambda: [wkv.pop(0) for _ in range(7)], K1=lambda: [wkv.pop(0) for _ in range(7)], K4=lambda: [wkv.pop(0) for _ in range(4)], K3=lambda: [wkv.pop(0) for _ in range(3)],
             Q0=lambda: wq_half(0), Q1=lambda: wq_half(1), W=lambda: [vm.all],
             H=lambda: [jVM(f"buffer_load_dword v{vJUNK}, v77, {OUT}, s98 offen sc1")],
             QP=lambda: [jVM(f"buffer_load_dword v{vJUNK}, v{vT0}, {WS}, s{sQO} offen sc1", None, f"v_and_b32 v{vT0}, 15, v{vL}\nv_lshlrev_b32 v{vT0}, 7, v{vT0}")],
             XT=lambda: [jVM(f"global_load_dwordx2 a[{aB2}:{aB2+1}], v{vT0}, s[42:43]", None, f"s_lshl_b32 s65, s{sCT}, 6\nv_and_b32 v{vT0}, 7, v{vL}\nv_lshl_add_u32 v{vT0}, v{vT0}, 3, s65"),
                         jVM(f"buffer_load_dwordx4 v{vT1}, {X}, s65 offen lds", None, f"{get('XA', vT1)}\ns_and_b32 s65, s{sTO}, 0xfe\ns_lshl_b32 s65, s65, 1\ns_add_u32 s65, s65, s{sW}\ns_mul_i32 s65, s65, 14336\ns_add_u32 s65, s65, s{sCOL}\ns_lshl_b32 s66, s{sW}, 11\ns_add_u32 m0, s66, {L_XT}"),
                         jVM(f"buffer_load_dwordx4 v{vT1}, {X}, s65 offen offset:1024 lds", None, "s_add_u32 s65, s65, 6144")],
             LQ=lambda: [jVM(f"buffer_load_dword v{vJUNK}, v{vT0}, {WQKV}, s65 offen", None, f"s_lshl_b32 s65, s{sM}, 2\ns_add_u32 s65, s65, s{sW}\ns_mul_i32 s65, s65, {4*2688}\nv_and_b32 v{vT1}, 7, v{vL}\nv_min_u32 v{vT1}, 6, v{vT1}\nv_bfe_u32 v{vT0}, v{vL}, 3, 2\nv_mul_u32_u24 v{vT0}, 2688, v{vT0}\nv_lshl_add_u32 v{vT0}, v{vT1}, 7, v{vT0}")],
             Q7=lambda: dma_jobs(WQKV, vPQ, 2 * 2688, 7, f"s_mul_i32 s65, s{sW}, 7168\ns_add_u32 m0, s65, {L_WQ}\ns_mul_i32 s{sSRC}, s65, 42\ns_lshl_b32 s65, s{sJ}, 6\ns_add_u32 s{sSRC}, s{sSRC}, s65", twq),
             TQ=lambda: touch(WQKV, 11, wi), T2=lambda: touch(W2, 14, wi), T1=lambda: touch(W1, 14, wi), TO=lambda: touch(WO, 4, wi))
    HJ = dict(TQ=lambda: touch(WQKV, 37, hi, 0, 2) + touch(WQKV, 37, hi, 1, 2), T2=lambda: touch(W2, 49, hi, 0, 2) + touch(W2, 49, hi, 1, 2), TO=lambda: touch(WO, 25, hi),
              LO=lambda: sum((touch(WO, 49, hg, k, 4) for k in range(4)), []),
              **{f'QP{k}': (lambda k=k: [jVM(f"buffer_load_dword v{vJUNK}, v{vT0}, {WS}, s65 offen sc1", None, f"{hi}\ns_lshl_b32 s65, s65, 14\ns_add_u32 s65, s65, {QO+8192*k}\nv_lshlrev_b32 v{vT0}, 7, v{vL}")]) for k in range(2)},
              QP=lambda: sum(([jVM(f"buffer_load_dword v{vJUNK}, v{vT0}, {WS}, s65 offen sc1", None, f"{hi}\ns_lshl_b32 s65, s65, 14\ns_add_u32 s65, s65, {QO+8192*k}\nv_lshlrev_b32 v{vT0}, 7, v{vL}")] for k in range(2)), []))
    used = set((a1 + " " + a2 + " " + a3 + " " + a7 + " " + a5 + " " + a6 + " " + kvt + " " + qp + " " + p4 + " " + at).split())
    def jobs(sq, T=None): return sum(((T or J)[a_]() for a_ in sq.split()), [])
    hline = f"""s_lshr_b32 s65, s{sWG}, 2
    s_mul_i32 s98, s65, 28672
    s_and_b32 s65, s{sM}, 3
    s_lshl_b32 s65, s65, 7
    s_add_u32 s98, s98, s65
    s_lshl_b32 s62, s{sW}, 12
    s_add_u32 s98, s98, s62
    s_add_u32 s99, s98, 16384
    s_cmp_eq_u32 s{sW}, 3
    s_cselect_b32 s99, {OOB}, s99
    s_cselect_b32 s61, 0, 16384
    v_bfe_u32 v77, v{vL}, 3, 1
    v_mul_u32_u24 v77, s61, v77
    v_and_b32 v30, 7, v{vL}
    v_lshl_add_u32 v77, v30, 9, v77"""
    roles = f"""s_lshl_b32 s61, s{sG}, 1
    s_add_u32 s62, s61, s{sPSW}
    s_lshl_b32 s{sTQ}, s62, 2
    s_add_u32 s{sTQ}, s{sTQ}, s{sW}
    s_and_b32 s{sHEAD}, s{sM}, 15
    s_lshr_b32 s62, s{sM}, 4
    s_add_u32 s{sRB}, s61, s62
    s_lshl_b32 s{sTA}, s{sRB}, 2
    s_add_u32 s{sTA}, s{sTA}, s{sW}
    s_mul_i32 s61, s{sM}, 37
    s_lshr_b32 s{sR4}, s61, 8
    s_mul_i32 s62, s{sR4}, 7
    s_sub_u32 s{sNB}, s{sM}, s62
    s_lshl_b32 s{sCOL}, s{sNB}, 7
    s_and_b32 s61, s{sW}, 1
    s_lshr_b32 s{sKH}, s{sW}, 1
    s_lshl_b32 s{sTO}, s{sG}, 2
    s_add_u32 s{sTO}, s{sTO}, s{sR4}
    s_lshl_b32 s{sTO}, s{sTO}, 1
    s_add_u32 s{sTO}, s{sTO}, s61
    s_mul_i32 s{sEX}, s{sW}, 8960
    s_add_u32 s{sEX}, s{sEX}, {L_EX}
    {panel_addr(vPAN, 896)}
    v_and_b32 v{vT0}, 3, v{vL}
    v_lshlrev_b32 v{vT0}, 3, v{vT0}
    v_bfe_u32 v{vT1}, v{vL}, 4, 1
    v_lshl_add_u32 v{vT0}, v{vT1}, 5, v{vT0}
    v_bfe_u32 v{vT1}, v{vL}, 2, 2
    v_lshl_add_u32 v16, v{vT1}, 6, v{vT0}
    v_lshl_add_u32 v16, v{vHALF}, 9, v16
    v_lshl_add_u32 v{vT0}, v{vT1}, 7, v{vT0}
    v_bfe_u32 v{vT1}, v{vL}, 3, 1
    v_lshl_add_u32 v{vT0}, v{vT1}, 6, v{vT0}
    v_lshl_add_u32 v{vTN0}, v{vHALF}, 10, v{vT0}
    v_lshl_add_u32 v{vTP0}, v{vHALF}, 9, v{vT0}
    v_xor_b32 v{vTN1}, 64, v{vTN0}
    v_xor_b32 v{vTP1}, 64, v{vTP0}
    s_lshl_b32 s62, s{sKH}, 6
    v_xor_b32 v{vR0}, s62, v{vTP0}
    v_xor_b32 v{vR0+1}, s62, v{vTP1}"""
    prepA = f"""s_mul_i32 s{sLK}, s{sW}, 6144
    s_add_u32 s{sLK}, s{sLK}, {L_K}
    s_lshl_b32 s61, s{sHEAD}, 6
    s_lshl_b32 s62, s{sRB}, 2
    s_mul_i32 s63, s{sW}, 3
    s_add_u32 s62, s62, s63
    s_sub_u32 s62, s62, 8"""
    for q in range(3):
        prepA += f"""
        s_add_u32 s63, s62, {q}
        s_add_u32 s64, s63, s61
        s_mul_i32 s64, s64, 1792
        s_add_u32 s64, s64, {KG}
        s_cmp_lt_i32 s63, 0
        s_cselect_b32 s{sK0+q}, {OOB}, s64"""
    prepA += f"""
    v_lshlrev_b32 v{vT0}, 9, v{vHALF}
    v_lshl_add_u32 v{vT0}, v{vL31}, 3, v{vT0}
    {put('QA', vT0)}
    s_lshl_b32 s61, s{sW}, 11
    s_add_u32 s61, s61, {L_K}
    v_add_u32 v{vT0}, s61, v{vT0}
    {put('KA', vT0)}
    v_mul_u32_u24 v{vT0}, 448, v{vHALF}
    v_lshl_add_u32 v{vT0}, v{vL31}, 4, v{vT0}
    {put('VS', vT0)}
    s_lshl_b32 s{sQO}, s{sTA}, 4
    s_add_u32 s{sQO}, s{sQO}, s{sHEAD}
    s_and_b32 s61, s{sQO}, 127
    s_lshl_b32 s61, s61, 2
    s_add_u32 s61, s61, s{sCTL}
    s_add_u32 s{sFO}, s61, {C_FO}
    s_lshl_b32 s{sQO}, s{sQO}, 11
    s_add_u32 s{sQO}, s{sQO}, {QO}
    v_min_u32 v{vT0}, 13, v{vL}
    v_and_b32 v{vT1}, 1, v{vT0}
    v_mul_u32_u24 v{vT1}, 27, v{vT1}
    s_mul_i32 s61, s{sHEAD}, 28
    v_add_u32 v{vT1}, s61, v{vT1}
    v_lshrrev_b32 v{vT2}, 6, v{vT1}
    v_bfe_u32 v{vT3}, v{vT0}, 1, 1
    v_mad_u32_u24 v{vT2}, v{vT3}, 7, v{vT2}
    v_lshrrev_b32 v{vT3}, 2, v{vT0}
    v_add_u32 v{vT3}, s62, v{vT3}
    v_max_i32 v{vT3}, 0, v{vT3}
    v_mad_u32_u24 v{vT2}, v{vT3}, 14, v{vT2}
    v_lshlrev_b32 v{vT2}, 7, v{vT2}
    v_add_u32 v{vT2}, {FKV}, v{vT2}
    v_lshrrev_b32 v{vT1}, 5, v{vT1}
    s_and_b32 s61, s{sTA}, 7
    s_lshl_b32 s61, s61, 6
    s_add_u32 s61, s61, s{sCTL}
    s_add_u32 s61, s61, {C_FQ}
    v_lshl_add_u32 v{vT1}, v{vT1}, 2, s61
    v_cmp_gt_u32 vcc, 12, v{vT0}
    v_cndmask_b32 v{vT0}, v{vT1}, v{vT2}, vcc
    {put('PA', vT0)}
    {panel_addr(120, 3584)}
    {put('P1a', 120)}
    {put('P1b', 121)}
    {put('P1c', 122)}
    {put('P1d', 123)}
    s_mul_i32 s{sWOL}, s{sW}, 14336
    s_bfe_u32 s61, s{sJ}, 0x10001
    s_lshl_b32 s{sW1C}, s{sJ}, 1
    s_add_u32 s{sW1C}, s{sW1C}, s61
    s_lshl_b32 s{sW1C}, s{sW1C}, 7
    s_mul_i32 s{sSTA}, s{sW}, 12288
    s_lshl_b32 s61, s{sNB}, 1
    s_add_u32 s{sCT}, s61, s{sKH}
    s_lshl_b32 s61, s{sCT}, 7
    s_add_u32 s{sNUS}, s61, {NU}
    v_and_b32 v{vT0}, 7, v{vL}
    v_bfe_u32 v{vT1}, v{vL}, 3, 2
    v_min_u32 v{vT1}, 2, v{vT1}
    v_min_u32 v{vT2}, 1, v{vT1}
    v_add_u32 v{vT1}, v{vT1}, v{vT2}
    v_mul_u32_u24 v{vT1}, 1792, v{vT1}
    v_lshl_add_u32 v{vT1}, v{vT0}, 4, v{vT1}
    {put('NU', vT1)}"""
    kpad = f"v_mov_b32 v121, 0\nv_lshl_add_u32 v122, v{vL31}, 3, s{sLK}\ns_mov_b32 exec_hi, 0"
    for q in range(3): kpad += f"\ns_cmp_eq_u32 s{sK0+q}, {OOB}\ns_cselect_b32 s64, {NEG>>16:#x}, 0\nv_mov_b32 v120, s64\nds_write_b64 v122, v[120:121] offset:{2048*q+1792}"
    kpad += "\ns_mov_b64 exec, -1"
    vKS = 216; vQS = 224
    def b_pR():
        A(roles)
        A(f"""v_add_u32 v{vWQ}, {L_WQ}, v16
        v_lshrrev_b32 v{vPQ}, 2, v{vL}
        v_mul_u32_u24 v{vPQ}, 2688, v{vPQ}
        v_and_b32 v17, 3, v{vL}
        v_lshl_add_u32 v{vPQ}, v17, 4, v{vPQ}""")
        for i in range(1, 4): A(f"v_add_u32 v{vPQ+i}, {i*(16*2688-1024)}, v{vPQ}")
    def b_pF():
        A(f"""s_add_u32 s62, s{sR4}, s{sNB}
        s_lshl_b32 s62, s62, 1
        s_add_u32 s62, s62, s{sG}
        s_mul_i32 s64, s62, 37
        s_lshr_b32 s64, s64, 8
        s_mul_i32 s64, s64, 7
        s_sub_u32 s62, s62, s64
        s_mul_i32 s63, s{sW}, 7""")
        for q in range(7):
            A(f"""s_add_u32 s64, s62, {q}
            s_cmp_ge_u32 s64, 7
            s_cselect_b32 s65, 7, 0
            s_sub_u32 s64, s64, s65
            s_add_u32 s64, s64, s63
            s_and_b32 s65, s64, 0xfe
            s_lshr_b32 s66, s64, 1
            s_and_b32 s66, s66, 2
            s_add_u32 s64, s64, s66
            s_add_u32 s{sFT+q}, s64, s65""")
    def b_pO():
        A(f"""v_mul_u32_u24 v{vROW}, 896, v{vL31}
        v_lshl_add_u32 v{vROW}, v{vHALF}, 4, v{vROW}
        s_mul_i32 s62, s{sTO}, 28672
        s_lshl_b32 s61, s{sCT}, 6
        s_add_u32 s{sROW}, s62, s61
    """)
        A(f"""s_lshl_b32 s61, s{sW}, 9
        s_add_u32 s61, s61, {L_VEC}
        v_lshl_add_u32 v{vVEC}, v{vHALF}, 4, s61
        v_lshl_add_u32 v{vT0}, v{vL31}, 4, s61
        {put('VW', vT0)}
        s_and_b32 s61, s{sTO}, 7
        s_lshl_b32 s61, s61, 6
        s_add_u32 s61, s61, s{sCTL}
        s_lshl_b32 s62, s{sKH}, 5
        s_add_u32 s61, s61, s62
        s_add_u32 s{sFOP}, s61, {C_FO}
        s_lshl_b32 s62, s{sTO}, 1
        s_add_u32 s62, s62, s{sKH}
        s_lshl_b32 s62, s62, 14
        s_add_u32 s{sOS}, s62, {QO}
        s_mul_i32 s{sSTS}, s{sTO}, 3584
        s_lshl_b32 s61, s{sNB}, 9
        s_add_u32 s{sSTS}, s{sSTS}, s61
        s_lshl_b32 s61, s{sKH}, 3
        s_add_u32 s{sSTS}, s{sSTS}, s61
        s_add_u32 s{sSTS}, s{sSTS}, {STATS}
    """)
    def b_pQ():
        A(f"""s_and_b32 s61, s{sTQ}, 7
        s_lshl_b32 s61, s61, 6
        s_add_u32 s{sFHP}, s61, s{sCTL}
        s_lshl_b32 s62, s{sJ}, 2
        s_add_u32 s62, s62, s{sFHP}
        s_add_u32 s{sFQ}, s62, {C_FQ}
        s_mul_i32 s{sHS}, s{sTQ}, 28672
        s_mul_i32 s{sKVS}, s{sTQ}, 1792
        s_lshl_b32 s{sQS}, s{sTQ}, 15
        s_add_u32 s{sQS}, s{sQS}, {QO}
        s_mul_i32 s{sFKV}, s{sTQ}, 14
        s_add_u32 s{sFKV}, s{sFKV}, s{sJ}
        s_lshl_b32 s{sFKV}, s{sFKV}, 7
        s_add_u32 s{sFKV}, s{sFKV}, {FKV}
        s_lshl_b32 s{sSTB}, s{sW}, 13
        s_add_u32 s{sSTB}, s{sSTB}, {L_B}
    """)
    def b_pS():
        A(f"""s_lshl_b32 s61, s{sJ}, 3""")
        for a_ in range(4):
            A(f"""v_add3_u32 v{vT0}, v{vHALF}, s61, {2*a_}
            v_mul_u32_u24 v{vT1}, 147, v{vT0}
            v_lshrrev_b32 v{vT1}, 10, v{vT1}
            v_add_lshl_u32 v{vT0}, v{vT0}, v{vT1}, 8
            v_lshl_add_u32 v{vQS+a_}, v{vL31}, 3, v{vT0}""")
        A(f"s_cmp_ge_u32 s{sJ}, 7\ns_cbranch_scc1 L_va\ns_lshl_b32 s61, s{sJ}, 4\ns_add_u32 s{sKVS}, s{sKVS}, {KG}")
        for i in range(8):
            A(f"""v_add3_u32 v{vT0}, v{vHALF}, s61, {2*i}
            v_mul_u32_u24 v{vT1}, 147, v{vT0}
            v_lshrrev_b32 v{vT1}, 10, v{vT1}
            v_mul_u32_u24 v{vT1}, {64*1792-7*256}, v{vT1}
            v_lshl_add_u32 v{vT0}, v{vT0}, 8, v{vT1}
            v_lshl_add_u32 v{vKS+i}, v{vL31}, 3, v{vT0}""")
        A(f"s_branch L_vb\nL_va:\ns_sub_u32 s61, s{sJ}, 7\ns_lshl_b32 s61, s61, 6\ns_add_u32 s{sKVS}, s{sKVS}, {VG}")
        for t in range(2):
            A(f"""v_add3_u32 v{vT0}, v{vL31}, s61, {32*t}
            v_lshrrev_b32 v{vT1}, 2, v{vT0}
            v_mul_u32_u24 v{vT1}, 147, v{vT1}
            v_lshrrev_b32 v{vT1}, 10, v{vT1}
            v_mul_u32_u24 v{vT1}, {64*1792-448}, v{vT1}
            v_lshl_add_u32 v{vT0}, v{vT0}, 4, v{vT1}
            v_mul_u32_u24 v{vT1}, 448, v{vHALF}
            v_add_u32 v{vKS+t}, v{vT0}, v{vT1}""")
        for i in range(2, 8): A(f"v_mov_b32 v{vKS+i}, 0")
        A("L_vb:")
    J.update(pR=lambda: [b_pR], pF=lambda: [b_pF], pO=lambda: [b_pO], pQ=lambda: [b_pQ], pS=lambda: [b_pS], pA=lambda: [lambda: (A(prepA), A(kpad), [lg.issue() for _ in range(3)])])
    A(hline)
    A(put('XA', 9))
    A(f"""v_lshlrev_b32 v{vL16}, 4, v{vL}
    v_lshrrev_b32 v{vHALF}, 5, v{vL}
    v_and_b32 v{vL31}, 31, v{vL}
    s_getreg_b32 s46, hwreg(HW_REG_XCC_ID, 0, 4)
    s_mov_b32 s{sUNI}, 0
    s_lshl_b32 s{sCTL}, s{sG}, 12
    s_add_u32 s{sCTL}, s{sCTL}, {CTL}
    v_and_b32 v30, 7, v{vL}
    v_lshrrev_b32 v31, 3, v{vL}
    v_xor_b32 v32, v30, v31
    v_lshlrev_b32 v32, 4, v32
    v_lshl_add_u32 v32, v30, 7, v32
    v_add_u32 v32, {L_X}, v32
    s_lshl_b32 s61, s{sW}, 10
    v_add_u32 v33, s61, v32
    s_mov_b32 s86, 0x07060500
    s_mov_b32 s87, 0x07060501
    s_mov_b32 s88, 0x07060502
    s_mov_b32 s89, 0x07060503
    s_add_u32 s61, s46, 1
    v_cvt_f32_u32 v18, s61
    s_lshl_b32 s61, s{sWG}, 7
    s_add_u32 s90, s61, {XCCG}
    s_mov_b32 s66, 0xffff0000
    s_cmp_eq_u32 s{sHLP}, 1
    s_cbranch_scc1 L_h2""")
    main = A.lines; A.lines = []; hist = A.hist; A.hist = []
    A("L_h2:")
    A(f"""v_lshrrev_b32 v20, 2, v{vL}
    v_bfe_u32 v21, v{vL}, 3, 2
    v_xor_b32 v21, s{sW}, v21
    v_lshlrev_b32 v21, 5, v21
    v_lshl_add_u32 v20, v20, 7, v21
    v_and_b32 v21, 3, v{vL}
    v_lshl_add_u32 v20, v21, 3, v20
    v_add_u32 v20, {L_B}, v20
    v_and_b32 v22, 48, v{vL}
    s_and_b32 s61, s{sUI}, 1
    s_mul_i32 s62, s61, 448
    s_add_u32 s62, s62, {L_SILU}
    v_add_u32 v21, s62, v22
    s_mul_i32 s61, s61, 56
    s_lshr_b32 s62, s{sUI}, 1
    s_lshl_b32 s62, s62, 2
    s_add_u32 s61, s61, s62
    s_add_u32 s61, s61, s{sW}
    s_lshl_b32 s61, s61, 7
    s_add_u32 s84, s61, {S0U}
    s_cmp_ge_u32 s{sUI}, 28
    s_cselect_b32 s84, {OOB}, s84
    s_lshl_b32 s{sHI}, s{sG}, 2
    s_add_u32 s{sHI}, s{sHI}, s{sM}
    s_sub_u32 s{sHI}, s{sHI}, 28
    v_bfe_u32 v24, v2, 1, 2
    v_and_b32 v25, 0xf1, v2
    v_lshl_add_u32 v25, v24, 2, v25
    v_bfe_u32 v24, v2, 3, 1
    v_lshl_add_u32 v25, v24, 1, v25
    v_lshlrev_b32 v25, 2, v25
    v_add_u32 v25, {L_SILU}, v25
    s_waitcnt vmcnt(10)
    v_lshlrev_b32 v26, 16, v8
    v_and_b32 v27, 0xffff0000, v8
    v_mul_f32 v28, 0xbfb8aa3b, v26
    v_mul_f32 v29, 0xbfb8aa3b, v27
    v_exp_f32 v28, v28
    v_exp_f32 v29, v29
    v_add_f32 v28, 1.0, v28
    v_add_f32 v29, 1.0, v29
    v_rcp_f32 v28, v28
    v_rcp_f32 v29, v29
    v_mul_f32 v26, v26, v28
    v_mul_f32 v27, v27, v29
    v_cvt_pk_bf16_f32 v26, v26, v27
    ds_write_b32 v25, v26
    s_waitcnt lgkmcnt(0)
    s_mul_i32 s{sTAG}, s{sTAG}, 0x9E3779B1
    s_add_u32 s{sTAG}, s{sTAG}, 0x7F4A7C15
    v_mov_b32 v{vTAG}, s{sTAG}
    s_waitcnt vmcnt(3)""")
    barrier()
    stamp("B1")
    lg.n = lg.done = 0
    toks = []
    for s_ in range(7):
        DS(f"ds_read_b128 v[{140+4*s_}:{143+4*s_}], v21 offset:{64*s_}")
        DS(f"ds_read_b64_tr_b16 v[{168+4*s_}:{169+4*s_}], v20 offset:{4096*s_}")
        toks.append(DS(f"ds_read_b64_tr_b16 v[{170+4*s_}:{171+4*s_}], v20 offset:{4096*s_+2048}"))
    for s_ in range(7):
        lg.wait(toks[s_])
        A(f"v_mfma_f32_16x16x32_bf16 v[24:27], v[{168+4*s_}:{171+4*s_}], v[{140+4*s_}:{143+4*s_}], {'0' if s_ == 0 else 'v[24:27]'}")
    A(f"""s_mov_b32 exec_lo, 0x00010001
    s_mov_b32 exec_hi, 0x00010001
    v_perm_b32 v24, v24, v{vTAG}, s86
    v_perm_b32 v25, v25, v{vTAG}, s87
    v_perm_b32 v26, v26, v{vTAG}, s88
    v_perm_b32 v27, v27, v{vTAG}, s89
    buffer_store_dwordx4 v[24:27], v22, {WS}, s84 offen sc1
    s_mov_b64 exec, -1""")
    stamp("gemv")
    xcc = lambda l: f"""s_cmp_lg_u32 s{sW}, 0
    s_cbranch_scc1 {l}
    v_perm_b32 v136, v18, v{vTAG}, s86
    v_perm_b32 v137, v18, v{vTAG}, s87
    v_perm_b32 v138, v18, v{vTAG}, s88
    v_perm_b32 v139, v18, v{vTAG}, s89
    s_mov_b64 exec, 1
    buffer_store_dwordx4 v[136:139], off, {WS}, s90 sc1
    s_mov_b64 exec, -1
    {l}:"""
    A(xcc("L_nx1"))
    A(f"""s_lshl_b32 s85, s{sHI}, 2
    s_add_u32 s85, s85, s{sW}
    s_lshl_b32 s61, s85, 8
    s_add_u32 s61, s61, {CTL}
    v_and_b32 v11, 1, v{vL}
    v_lshlrev_b32 v11, 7, v11
    buffer_load_dword v{vJUNK}, v11, {WS}, s61 offen sc1
    buffer_load_dword v{vJUNK}, v77, {OUT}, s98 offen sc1""")
    sv = (vm.n, vm.done); h0 = jobs(hp0, HJ); nh0 = len(h0); run(h0, 99); vm.n, vm.done = sv
    A(f"s_cmp_eq_u32 s{sW}, 0\ns_cbranch_scc1 L_hx\ns_waitcnt vmcnt({3+nh0})\nL_hx:\ns_waitcnt vmcnt({4+nh0})")
    barrier()
    A("s_branch L_w3")
    tail.append(("raw", A.lines)); A.lines = main; A.hist = hist
    run(jobs(a1), 99)
    A(f"""s_waitcnt lgkmcnt(0)
    s_mul_i32 s{sTAG}, s{sTAG}, 0x9E3779B1
    s_add_u32 s{sTAG}, s{sTAG}, 0x7F4A7C15
    v_mov_b32 v{vTAG}, s{sTAG}
""")
    vm.wait(tx)
    barrier()
    stamp("B0")
    A(xcc("L_nx2"))
    run(jobs(a2), 99)
    A("L_w3:\ns_mov_b32 s66, 0xffff0000")
    lg.n = lg.done = 0
    tk = [DS(f"ds_read_b128 v[{40+4*i}:{43+4*i}], v32 offset:{1024*i}") for i in range(7)]
    DS("ds_read_b128 v[68:71], v33"); town = DS("ds_read_b128 v[72:75], v33 offset:4096")
    for i in range(7):
        lg.wait(tk[i])
        for d in range(4):
            A(f"v_lshlrev_b32 v{80+8*i+2*d}, 16, v{40+4*i+d}\nv_and_b32 v{81+8*i+2*d}, s66, v{40+4*i+d}")
    A("v_pk_add_f32 v[34:35], v[80:81], v[82:83]")
    for i in range(2, 28): A(f"v_pk_add_f32 v[34:35], v[34:35], v[{80+2*i}:{81+2*i}]")
    def red8(r):
        A(f"""v_add_f32_dpp v{r}, v{r}, v{r} row_ror:8 row_mask:0xf bank_mask:0xf
        v_mov_b32 v{vT0}, v{r}
        v_permlane16_swap_b32 v{r}, v{vT0}
        v_add_f32 v{r}, v{r}, v{vT0}
        v_mov_b32 v{vT0}, v{r}
        v_permlane32_swap_b32 v{r}, v{vT0}
        v_add_f32 v{r}, v{r}, v{vT0}""")
    A("v_add_f32 v34, v34, v35"); red8(34)
    A("v_mul_f32 v34, 0xbb124925, v34\nv_mov_b32 v35, v34")
    for i in range(28): A(f"v_pk_add_f32 v[{80+2*i}:{81+2*i}], v[{80+2*i}:{81+2*i}], v[34:35]")
    A("v_pk_mul_f32 v[36:37], v[80:81], v[80:81]")
    for i in range(1, 28): A(f"v_pk_fma_f32 v[36:37], v[{80+2*i}:{81+2*i}], v[{80+2*i}:{81+2*i}], v[36:37]")
    A("v_add_f32 v36, v36, v37"); red8(36)
    A("v_mov_b32 v37, 0x3727c5ac\nv_fmac_f32 v37, 0x3b124925, v36\nv_rsq_f32 v36, v37")
    lg.wait(town)
    for d in range(8):
        A(f"v_lshlrev_b32 v{40+2*d}, 16, v{68+d}\nv_and_b32 v{41+2*d}, s66, v{68+d}")
    A("v_mov_b32 v37, v36")
    for d in range(8): A(f"v_pk_add_f32 v[{40+2*d}:{41+2*d}], v[{40+2*d}:{41+2*d}], v[34:35]")
    for d in range(8): A(f"v_pk_mul_f32 v[{40+2*d}:{41+2*d}], v[{40+2*d}:{41+2*d}], v[36:37]")
    A(f"""v_lshrrev_b32 v62, 2, v0
    v_lshlrev_b32 v62, 7, v62
    v_and_b32 v56, 3, v0
    v_lshl_add_u32 v62, v56, 4, v62
    v_add_u32 v56, {56*128}, v62
    s_lshl_b32 s61, s{sG}, 12
    s_add_u32 s61, s61, {XCCG-S0U}
    v_lshl_add_u32 v57, v{vL31}, 7, s61
    v_cmp_gt_u32 vcc, 224, v0
    v_cndmask_b32 v62, v57, v62, vcc
    v_cndmask_b32 v56, v57, v56, vcc
    v_lshlrev_b32 v57, 4, v0
    v_add_u32 v57, {L_MODV}, v57
    v_cmp_le_u32 vcc, 112, v0
    v_cndmask_b32 v63, 0, 1.0, vcc
    s_lshl_b32 s61, s{sW}, 8
    s_add_u32 s61, s61, {L_MODV}
    v_lshl_add_u32 v58, v31, 5, s61
    v_lshlrev_b32 v59, 4, v{vL31}
    v_add_u32 v59, {L_MODV+3584}, v59
    v_lshlrev_b32 v60, 9, v31
    v_lshl_add_u32 v60, v30, 4, v60
    v_fma_f32 v76, v18, 2.0, 1.0
    s_lshl_b32 s46, s{sM}, 2
    s_add_u32 s46, s46, s{sW}
    s_lshl_b32 s46, s46, 2
    s_add_u32 s46, s46, s{sCTL}""")
    stamp("stats")
    A(f"s_cmp_eq_u32 s{sHLP}, 1\ns_cbranch_scc1 L_w4")
    run(jobs(a3), 99)
    assert not wkv
    A("L_w4:")
    stamp("prep")
    A(f"""s_mov_b32 s{sCNT}, 0
    s_mov_b32 s61, {S0U}
    s_mov_b32 s64, 0x0c0c0400
    s_mov_b32 s65, 0x05040100
    L_s0:
    buffer_load_dwordx4 v[64:67], v62, {WS}, s61 offen sc1
    buffer_load_dwordx4 v[68:71], v56, {WS}, s61 offen sc1
    s_add_u32 s{sCNT}, s{sCNT}, 1
    s_cmp_ge_u32 s{sCNT}, {SPIN}
    s_cbranch_scc1 L_s0d
    s_waitcnt vmcnt(1)
    v_perm_b32 v72, v65, v64, s64
    v_perm_b32 v73, v67, v66, s64
    v_perm_b32 v72, v73, v72, s65
    v_cmp_ne_u32 s[62:63], s{sTAG}, v72
    s_waitcnt vmcnt(0)
    v_perm_b32 v74, v69, v68, s64
    v_perm_b32 v75, v71, v70, s64
    v_perm_b32 v74, v75, v74, s65
    v_cmp_ne_u32 vcc, s{sTAG}, v74
    s_or_b64 vcc, vcc, s[62:63]
    s_cbranch_vccnz L_s0
    L_s0d:
    s_waitcnt vmcnt(0)""")
    for r in range(64, 72): A(f"v_and_b32 v{r}, 0xffffff00, v{r}")
    A(f"""v_pk_add_f32 v[64:65], v[64:65], v[68:69]
    v_pk_add_f32 v[66:67], v[66:67], v[70:71]
    v_cvt_pk_bf16_f32 v68, v64, v65
    v_cvt_pk_bf16_f32 v69, v66, v67
    v_lshlrev_b32 v64, 16, v68
    v_and_b32 v65, 0xffff0000, v68
    v_lshlrev_b32 v66, 16, v69
    v_and_b32 v67, 0xffff0000, v69
    v_add_f32 v64, v64, v63
    v_add_f32 v65, v65, v63
    v_add_f32 v66, v66, v63
    v_add_f32 v67, v67, v63
    v_cvt_pk_bf16_f32 v68, v64, v65
    v_cvt_pk_bf16_f32 v69, v66, v67
    v_lshlrev_b32 v64, 16, v68
    v_and_b32 v65, 0xffff0000, v68
    v_lshlrev_b32 v66, 16, v69
    v_and_b32 v67, 0xffff0000, v69
    ds_write_b128 v57, v[64:67]
    s_waitcnt lgkmcnt(0)""")
    vm.drained(); lg.drained()
    barrier()
    stamp("S0")
    t0 = []
    for p in range(2):
        for q in range(2):
            DS(f"ds_read_b128 v[{80+16*p+4*q}:{83+16*p+4*q}], v58 offset:{1792+1024*p+16*q}")
            t0.append(DS(f"ds_read_b128 v[{88+16*p+4*q}:{91+16*p+4*q}], v58 offset:{1024*p+16*q}"))
    txc = DS("ds_read_b32 v61, v59")
    for p in range(2):
        for q in range(2):
            lg.wait(t0[2 * p + q])
            for e in range(0, 4, 2):
                r = 40 + 8 * p + 4 * q + e
                A(f"v_pk_fma_f32 v[{r}:{r+1}], v[{r}:{r+1}], v[{80+16*p+4*q+e}:{81+16*p+4*q+e}], v[{88+16*p+4*q+e}:{89+16*p+4*q+e}]")
        for d in range(4): A(f"v_cvt_pk_bf16_f32 v{112+4*p+d}, v{40+8*p+2*d}, v{41+8*p+2*d}")
        th = VM(f"buffer_store_dwordx4 v[{112+4*p}:{115+4*p}], v60, {OUT}, s{98+p} offen")
    lg.wait(txc)
    A(f"v_cmp_neq_f32 vcc, v76, v61\ns_cmp_eq_u64 vcc, 0\ns_cselect_b32 s{sUNI}, {0 if force_slow else 1}, 0")
    A(f"s_cmp_eq_u32 s{sHLP}, 1\ns_cbranch_scc1 L_help")

    run(jobs(a5), 99)
    ACC = 112; WB = 160
    tw = {}
    def ld(s_):
        b = WB + 8 * (s_ % 4); js = []
        tw[s_] = Tok()
        for t in range(2):
            js.append(jDS(f"ds_read_b64_tr_b16 v[{b+4*t}:{b+4*t+1}], v{vTN0-t} offset:{L_WKV+2048*s_}"))
            js.append(jDS(f"ds_read_b64_tr_b16 v[{b+4*t+2}:{b+4*t+3}], v{vTN0-t} offset:{L_WKV+2048*s_+512}", tw[s_]))
        return js
    for s_ in range(3): run(ld(s_), 4)
    vm.wait(th)
    flag(46)
    stamp("hpub")
    run(jobs(a6), 99)
    A(f"""s_mul_i32 s{sYS}, s{sTO}, 28672
    s_lshl_b32 s61, s{sCT}, 11
    s_add_u32 s{sYS}, s{sYS}, s61
    s_and_b32 s61, s{sTO}, 7
    s_lshl_b32 s61, s61, 4
    s_add_u32 s61, s61, s{sCT}
    s_lshl_b32 s61, s61, 2
    s_add_u32 s61, s61, s{sCTL}
    s_add_u32 s{sFY}, s61, {C_FY}
    v_and_b32 v{vT3}, 15, v{vL}
    v_lshlrev_b32 v{vT3}, 2, v{vT3}""")
    poll(vT3, f"s{sFHP}")
    stamp("S0b")
    if stop <= 1:
        A("s_branch L_fin\nL_help:\ns_waitcnt vmcnt(0)"); flag(46); return done()
    th = [Tok() for _ in range(28)]
    def hjobs(): return [jVM(f"buffer_load_dwordx4 v[{4*s_}:{4*s_+3}], v{vL16}, {OUT}, s{sHS} offen offset:{1024*(s_%4)} sc1", th[s_], f"s_add_u32 s{sHS}, s{sHS}, 4096" if (s_ % 4 == 0 and s_) else None) for s_ in range(28)]
    run(hjobs(), PRO)
    run(jobs(a7), 99)
    tQ = Tok()
    slot = {}; nxt = [0]
    def stage(nm):
        def f():
            slot[nm] = (nxt[0], Tok()); nxt[0] += 1
            return w2_dma(slot[nm][0], sSTB if nm[0] == "B" else sSTA, 4096 * int(nm[1]), slot[nm][1])
        return f
    for nm in ("A0", "A1", "A2", "B0", "B1"): J[nm] = stage(nm)
    def kv_pass(vtype):
        sv = (vm.n, vm.done, lg.n, lg.done)
        mem = hjobs()[PRO:]
        slot.clear(); nxt[0] = 0
        mem += jobs(kvt); bulk = mem[28:] + jobs(qp); mem = mem[:28]
        tq = {}
        def ldq(s_):
            b = WB + 4 * (s_ % 8); tq[s_] = Tok()
            return [jDS(f"ds_read_b64_tr_b16 v[{b}:{b+1}], v{vWQ} offset:{1024*s_}"), jDS(f"ds_read_b64_tr_b16 v[{b+2}:{b+3}], v{vWQ} offset:{1024*s_+256}", tq[s_])]
        for s_ in range(28):
            vm.wait(th[s_].t); lg.wait(tw[s_].t)
            if s_ == 26: vm.wait(twq.t); barrier()
            b = WB + 8 * (s_ % 4)
            nx = ld(s_ + 3) if s_ + 3 < 28 else (ldq(2 * (s_ - 26)) + ldq(2 * (s_ - 26) + 1) if s_ >= 26 else [])
            for t in range(2):
                wf, hf = v(b + 4 * t, 4), v(4 * s_, 4)
                c = "0" if s_ == 0 else None
                if vtype: mfma(v(ACC + 16 * t, 16), hf, wf, c)
                else: mfma(v(ACC + 16 * t, 16), wf, hf, c)
                if t == 0:
                    run(mem, 1); run(nx, 1)
                else: run(nx, 3)
            if 'fine' in dbg and s_ in (0, 9, 18): stamp(f'k{s_}')
        stamp("kv")
        epi = []; last = Tok()
        for t in range(2):
            P = 192 + 8 * t
            for d in range(8):
                epi.append(f"v_cvt_pk_bf16_f32 v{P+d}, v{ACC+16*t+2*d}, v{ACC+16*t+2*d+1}")
                if vtype and d % 4 == 3: epi.append(jVM(f"buffer_store_dwordx4 v[{P+d-3}:{P+d}], v{vKS+t}, {WS}, s{sKVS} offen offset:{896*(d//4)} sc1", last))
                if not vtype and d % 2 == 1: epi.append(jVM(f"buffer_store_dwordx2 v[{P+d-1}:{P+d}], v{vKS+4*t+d//2}, {WS}, s{sKVS} offen sc1", last))
        for s_ in range(28):
            lg.wait(tq[s_].t)
            b = WB + 4 * (s_ % 8)
            mfma(v(ACC + 32, 16), v(b, 4), v(4 * s_, 4), "0" if s_ == 0 else None)
            if s_ + 4 < 28: run(ldq(s_ + 4), 2)
            if epi:
                if s_ >= 1: run(epi, 6)
            elif s_ >= QB and (len(bulk) >= 28 - s_ or s_ % 2 == 0): run(bulk, 1)
            if s_ == 8: barrier()
            if s_ == KVA: vm.wait(last.t); flag(sFKV, slow=True)
        run(bulk, 99)
        A(f"s_mov_b32 s61, {QSCALE:#x}")
        for d in range(8):
            A(f"v_mul_f32 v{ACC+32+2*d}, s61, v{ACC+32+2*d}\nv_mul_f32 v{ACC+33+2*d}, s61, v{ACC+33+2*d}\nv_cvt_pk_bf16_f32 v{208+d}, v{ACC+32+2*d}, v{ACC+33+2*d}")
            if d % 2 == 1: tQ.t = VM(f"buffer_store_dwordx2 v[{207+d}:{208+d}], v{vQS+d//2}, {WS}, s{sQS} offen")
        stamp("q")
        if KVA > 27: vm.wait(last.t); flag(sFKV, slow=True)
        stamp("kvpub")
        vm.wait(tQ.t); flag(sFQ)
        stamp("qpub")
        vm.n, vm.done, lg.n, lg.done = sv
    A(f"s_cmp_ge_u32 s{sJ}, 7\ns_cbranch_scc1 L_kvV")
    e0 = kv_pass(False)
    A("s_branch L_kvE\nL_kvV:")
    e1 = kv_pass(True)
    A("L_kvE:")
    vm.n = vm.done = 0; lg.n = lg.done = 0
    vSA, vSB = 229, 231
    A(f"v_add_u32 v{vSB}, s{sSTB}, v{vR0}\nv_add_u32 v{vSB+1}, s{sSTB}, v{vR0+1}\nv_add_u32 v{vSA}, s{sSTA}, v{vR0}\nv_add_u32 v{vSA+1}, s{sSTA}, v{vR0+1}")
    def rd(nm, tok=None):
        u, _ = slot.pop(nm); return w2_read(u, vSB if nm[0] == "B" else vSA, 4096 * int(nm[1]), tok)
    tR = Tok()
    for a_ in p4.split():
        if a_[0] == "R": run(rd("B" + a_[1], tR), 99)
        else:
            if a_[0] == "B": lg.wait(tR.t)
            run(J[a_](), 99)
    A("s_branch L_att")
    A("L_help:")
    A("s_waitcnt vmcnt(0)")
    flag(46)
    run(jobs(hp1, HJ), 99)
    A(f"""s_lshl_b32 s85, s{sHI}, 2
    s_add_u32 s85, s85, s{sW}
    s_mul_i32 s61, s85, 896
    s_add_u32 s61, s61, {FKV}
    v_min_u32 v11, 6, v{vL}
    v_lshlrev_b32 v11, 7, v11
    buffer_load_dword v{vJUNK}, v11, {WS}, s61 offen sc1
    s_cmp_eq_u32 s{sG}, 7
    s_cbranch_scc1 L_hn""")
    A(panel_addr(4, 5376, "mod"))
    run(dma_jobs(WMOD, 4, 5376, 14, f"s_add_u32 s62, s{sHI}, 14\ns_lshl_b32 s{sSRC}, s62, 7\ns_mul_i32 s63, s{sW}, {112*5376}\ns_add_u32 s{sSRC}, s{sSRC}, s63\ns_mul_i32 s63, s{sW}, 14336\ns_add_u32 m0, s63, {L_B}"), 99)
    A(panel_addr(4, 3584, "mod"))
    w1h = dma_jobs(W1, 4, 3584, 14, f"s_lshl_b32 s{sSRC}, s{sHI}, 7\ns_mul_i32 s63, s{sW}, {112*3584}\ns_add_u32 s{sSRC}, s{sSRC}, s63\ns_mul_i32 m0, s{sW}, 14336")
    run(w1h, 8)
    A(f"v_add_u32 v21, {L_SILU}, v22\ns_waitcnt vmcnt(8)")
    barrier()
    def gemv14(va, vb):
        lg.n = lg.done = 0
        toks = []
        def gemv_ld(s_):
            b = 32 + 8 * s_
            DS(f"ds_read_b128 v[{b}:{b+3}], v{va} offset:{64*s_}")
            DS(f"ds_read_b64_tr_b16 v[{b+4}:{b+5}], v{vb} offset:{4096*s_}")
            toks.append(DS(f"ds_read_b64_tr_b16 v[{b+6}:{b+7}], v{vb} offset:{4096*s_+2048}"))
        for s_ in range(4): gemv_ld(s_)
        for s_ in range(14):
            lg.wait(toks[s_])
            b = 32 + 8 * s_
            A(f"v_mfma_f32_16x16x32_bf16 v[24:27], v[{b}:{b+3}], v[{b+4}:{b+7}], {'0' if s_ == 0 else 'v[24:27]'}")
            if s_ + 4 < 14: gemv_ld(s_ + 4)
    gemv14(21, 20)
    A(f"""s_sub_u32 s61, s{sHI}, 14
    s_cmp_lt_u32 s61, 7
    s_cselect_b32 s62, 1.0, 0
    s_lshl_b32 s61, s{sHI}, 8
    s_lshl_b32 s63, s{sW}, 6
    s_add_u32 s61, s61, s63
    s_add_u32 s61, s61, {NU}
    v_lshlrev_b32 v23, 2, v{vL}
    v_cvt_pk_bf16_f32 v24, v24, v24
    v_and_b32 v24, 0xffff0000, v24
    v_add_f32 v24, s62, v24
    v_mov_b32 v29, s{sTAG}
    v_mov_b32_dpp v25, v24 quad_perm:[1,0,3,2] row_mask:0xf bank_mask:0xf
    v_cvt_pk_bf16_f32 v28, v24, v25
    s_mov_b64 exec, 0x5555
    buffer_store_dwordx2 v[28:29], v23, {WS}, s61 offen sc1
    s_mov_b64 exec, -1""")
    run(w1h, 99)
    A(f"""L_hn:
    s_mul_i32 s61, s85, 1792
    s_add_u32 s61, s61, {STATS}
    v_min_u32 v11, 13, v{vL}
    v_lshlrev_b32 v11, 7, v11
    buffer_load_dword v{vJUNK}, v11, {WS}, s61 offen sc1""")
    run(jobs(hp2, HJ), 99)
    A(roles); A(prepA)
    if 'QP' in used: run(jobs('QP'), 9)
    barrier()
    A(kpad)
    A(f"s_mov_b32 s{sCOL}, {OOB}\ns_mov_b32 s{sW1C}, {OOB}\ns_mov_b32 s{sWOL}, {L_P0}")
    A("L_att:")
    if stop <= 2: return done()

    S = 0; QF = 144; KB = 152; OA = 184; VB = 200
    vKA, vVA, vVS, vQA, vP1, vMX, vNU, vS0 = 216, 217, 218, 219, 222, 226, 228, 220
    vm.n = vm.done = 0; lg.n = lg.done = 0
    A(f"{get('PA', vT3)}\n{get('QA', vQA)}\n{get('VS', vVS)}")
    A(f"v_lshlrev_b32 v{vT0}, 2, v{vHALF}\nv_sub_u32 v{vT0}, v{vL31}, v{vT0}\nv_mov_b32 v{vT1}, {NEG:#x}")
    mk = (62, 64, 80, 82)
    for r in range(16):
        i0 = 8 * (r >> 2) + (r & 3)
        A(f"v_cmp_gt_i32 s[{mk[r&3]}:{mk[r&3]+1}], {i0}, v{vT0}")
        if r & 3 == 3:
            for q in range(4):
                A(f"v_cndmask_b32 v{S+128+r-3+q}, 0, v{vT1}, s[{mk[q]}:{mk[q]+1}]")
                A(f"v_cndmask_b32 v{S+r-3+q}, v{vT1}, 0, s[{mk[q]}:{mk[q]+1}]")
    stamp("pre1")
    poll(vT3, "0")
    stamp("S1")
    for q in range(3):
        A(f"s_add_u32 m0, s{sLK}, {2048*q}")
        VM(f"buffer_load_dwordx4 v{vL16}, {WS}, s{sK0+q} offen sc1 lds")
    A("s_mov_b32 exec_hi, 0xffff")
    for q in range(3):
        A(f"s_add_u32 m0, s{sLK}, {2048*q}")
        VM(f"buffer_load_dwordx4 v{vL16}, {WS}, s{sK0+q} offen offset:1024 sc1 lds")
    A("s_mov_b64 exec, -1")
    for i in range(4):
        tq = VM(f"buffer_load_dwordx2 v[{QF+2*i}:{QF+2*i+1}], v{vQA}, {WS}, s{sQO} offen offset:{1024*(i>>1)+256*(i&1)} sc1")
    barrier()
    A("s_mov_b32 exec_lo, 0x0fffffff\ns_mov_b32 exec_hi, 0x0fffffff")
    vj = []
    for q in range(3):
        vj.append(jVM(f"buffer_load_dwordx4 v{vVS}, {WS}, s61 offen sc1 lds", None, f"s_add_u32 m0, s{sLK}, {L_V-L_K+2048*q}\ns_add_u32 s61, s{sK0+q}, {VG-KG}"))
        tv = Tok(); vj.append(jVM(f"buffer_load_dwordx4 v{vVS}, {WS}, s62 offen offset:1024 sc1 lds", tv, f"s_add_u32 s62, s{sK0+q}, {VG-KG-128}"))
    run(vj, 2)
    A(f"""s_not_b64 exec, exec
    v_mov_b32 v152, 0x3f803f80
    v_mov_b32 v153, v152
    v_mov_b32 v154, v152
    v_mov_b32 v155, v152
    v_add_u32 v184, s{sLK}, v{vL16}""")
    for i in range(6): DS(f"ds_write_b128 v184, v[152:155] offset:{L_V-L_K+1024*i}")
    A("s_mov_b64 exec, -1")
    A(f"s_cmp_eq_u32 s{sHLP}, 1\ns_cbranch_scc1 L_nr1")
    for nm in list(slot): run(rd(nm), 99)
    A("L_nr1:")
    A(f"""{get('KA', vKA)}
    {get('NU', 232)}
    {get('P1a', vP1)}
    {get('P1b', vP1+1)}
    {get('P1c', vP1+2)}
    {get('P1d', vP1+3)}
    s_lshl_b32 s61, s{sW}, 11
    s_add_u32 s61, s61, {L_V}
    v_add_u32 v{vVA}, s61, v{vL16}
    v_mov_b32 v{vT0}, 0x3f80
    v_add_u32 v{vS0}, s{sEX}, v{vR0}
    v_add_u32 v{vS0+1}, s{sEX}, v{vR0+1}
    v_cmp_eq_u32 vcc, 0, v{vHALF}
    s_mov_b32 exec_lo, 0x0fffffff
    s_mov_b32 exec_hi, 0x0fffffff""")
    run(vj, 9)
    A("s_mov_b64 exec, -1")
    lg.all()
    vm.wait(tq)
    A(f"v_cndmask_b32 v{QF+6}, v{vT0}, v{QF+6}, vcc\nv_cndmask_b32 v{QF+7}, 0, v{QF+7}, vcc")
    barrier()
    stamp("Kin")
    def w1_jobs(base, per, first, tok=None):
        return dma_jobs(W1, vP1, 3584, per, f"s_mul_i32 s{sSRC}, s{sW}, {per*1024}\ns_add_u32 m0, s{sSRC}, {base+first*1024}\ns_mul_i32 s{sSRC}, s{sSRC}, 28\ns_add_u32 s{sSRC}, s{sSRC}, s{sW1C}" + (f"\ns_add_u32 s{sSRC}, s{sSRC}, {first*8*3584}" if first else ""), tok)
    def wo_half(second):
        return dma_jobs(WO, vPAN, 896, 8, f"""s_bitcmp{1 if second else 0}_b32 s{sR4}, 0
        s_cselect_b32 s65, 0, 7168
        s_add_u32 s65, s65, s{sWOL}
        s_mov_b32 m0, s65
        s_mul_i32 s{sSRC}, s65, 7
        s_add_u32 s{sSRC}, s{sSRC}, s{sCOL}""")
    def w1_half(second):
        return dma_jobs(W1, vP1, 3584, 7, f"""s_cmp_eq_u32 s{sPSW}, {1 if second else 0}
        s_cselect_b32 s65, 0, 4
        s_add_u32 s65, s65, s{sW}
        s_mul_i32 s65, s65, 7168
        s_add_u32 m0, s65, {L_P0}
        s_mul_i32 s{sSRC}, s65, 28
        s_add_u32 s{sSRC}, s{sSRC}, s{sW1C}""")
    J.update(O0=lambda: wo_half(0), O1=lambda: wo_half(1), Wa=lambda: w1_half(0), Wb=lambda: w1_half(1),
             NU=lambda: [jVM(f"buffer_load_dwordx4 v[{vNU}:{vNU+3}], v232, {WS}, s{sNUS} offen sc1")],
             L1=lambda: [jVM(f"buffer_load_dword v{vJUNK}, v{vT3}, {W1}, s65 offen", None, f"s_lshl_b32 s65, s{sPSW}, 2\ns_add_u32 s65, s65, s{sW}\ns_mul_i32 s65, s65, {56*3584}\ns_add_u32 s65, s65, s{sW1C}\ns_xor_b32 s65, s65, 128\nv_min_u32 v{vT3}, 55, v{vL}\nv_mul_u32_u24 v{vT3}, 3584, v{vT3}")])
    assert len(jobs(at.split('Wa')[0])) >= 8 and 'XT' in used and 'XT' not in at
    mem1 = jobs(at)
    tk = []
    def ldk(n):
        b = KB + 8 * (n % 4)
        for i in range(4): k = DS(f"ds_read_b64 v[{b+2*i}:{b+2*i+1}], v{vKA} offset:{2048*n+1024*(i>>1)+256*(i&1)}")
        tk.append(k)
    for n in range(3): ldk(n)
    run(mem1, 3)
    def mx(n):
        return [f"v_max_f32 v{vMX}, v{S}, v{S+1}" if (n == 0 and r == 0) else f"v_max3_f32 v{vMX}, v{vMX}, v{S+16*n+r}, v{S+16*n+r+1}" for r in range(0, 16, 2)]
    for n in range(9):
        lg.wait(tk[n])
        b = KB + 8 * (n % 4)
        m_ = mx(n - 2) if n >= 2 else []
        mfma(v(S + 16 * n, 16), v(b, 4), v(QF, 4), None if n in (0, 8) else "0")
        if n + 3 < 9: ldk(n + 3)
        else: run(mem1, 1)
        run(m_, 2)
        mfma(v(S + 16 * n, 16), v(b + 4, 4), v(QF + 4, 4))
        if n < 2: run(mem1, 1)
        run(m_, 6)
    vm.wait(tv.t)
    barrier()
    tvv = []
    def ldv(n):
        b = VB + 8 * (n % 2)
        DS(f"ds_read_b128 v[{b}:{b+3}], v{vVA} offset:{2048*n}")
        tvv.append(DS(f"ds_read_b128 v[{b+4}:{b+7}], v{vVA} offset:{2048*n+1024}"))
    ldv(0); ldv(1)
    ON, MB = 160, 164
    run(mx(7), 9)
    if msub: A(f"v_mov_b32 v{vT1}, 0x3f803f80\nv_cndmask_b32 v{ON}, 0, v{vT1}, vcc\nv_cndmask_b32 v{ON+1}, 0, v{vT0}, vcc\nv_mov_b32 v{ON+2}, 0\nv_mov_b32 v{ON+3}, 0\nv_mov_b32 v{MB+2}, 0\nv_mov_b32 v{MB+3}, 0")
    run(mem1, 1); run(mx(8), 9)
    A(f"v_mov_b32 v{vT0}, v{vMX}\nv_permlane32_swap_b32 v{vMX}, v{vT0}\nv_max_f32 v{vMX}, v{vMX}, v{vT0}")
    stamp("qk")
    for i in range(8 if msub else 72):
        A(f"v_pk_add_f32 v[{S+2*i}:{S+2*i+1}], v[{S+2*i}:{S+2*i+1}], v[{vMX}:{vMX+1}] op_sel_hi:[1,0] neg_lo:[0,1] neg_hi:[0,1]")
        if i % 24 == 23: run(mem1, 1)
    if msub:
        A(f"""v_and_b32 v{vT0}, 0xffff0000, v{vMX}
        v_sub_f32 v{vT1}, v{vMX}, v{vT0}
        v_and_b32 v{vT2}, 0xffff0000, v{vT1}
        v_sub_f32 v{vT1}, v{vT1}, v{vT2}
        v_cvt_pk_bf16_f32 v{MB}, -v{vT0}, -v{vT2}
        v_cvt_pk_bf16_f32 v{MB+1}, -v{vT1}, 0""")
        mfma(v(S + 16, 16), v(ON, 4), v(MB, 4))
    def soft(n, s_, mid=None):
        r0 = S + 16 * n + 8 * s_
        for e in range(8):
            A(f"v_exp_f32 v{r0+e}, v{r0+e}")
            if e == 3 and mid: mid()
        for e in range(4): A(f"v_cvt_pk_bf16_f32 v{r0+e}, v{r0+2*e}, v{r0+2*e+1}")
    soft(0, 0)
    for i in range(18):
        n, s_ = i >> 1, i & 1
        mid = (lambda: mfma(v(S + 16 * (n + 2), 16), v(ON, 4), v(MB, 4))) if (msub and s_ == 1 and n + 2 < 9) else None
        if i + 1 < 18: soft((i + 1) >> 1, (i + 1) & 1, mid)
        if s_ == 0: lg.wait(tvv[n])
        mfma(v(OA, 16), v(VB + 8 * (n % 2) + 4 * s_, 4), v(S + 16 * n + 8 * s_, 4), "0" if i == 0 else None)
        if s_ == 1 and n + 2 < 9: ldv(n + 2)
        run(mem1, AR)
    assert not mem1
    A(f"""v_mov_b32 v{vT0}, v{OA+12}
    v_mov_b32 v{vT1}, v{OA+12}
    v_permlane32_swap_b32 v{vT0}, v{vT1}
    v_rcp_f32 v{vT1}, v{vT1}""")
    for d in range(8):
        A(f"v_pk_mul_f32 v[{OA+2*d}:{OA+2*d+1}], v[{OA+2*d}:{OA+2*d+1}], v[{vT1}:{vT1+1}] op_sel_hi:[1,0]\nv_cvt_pk_bf16_f32 v{KB+d}, v{OA+2*d}, v{OA+2*d+1}")
        if d >= 6: A(f"v_cndmask_b32 v{KB+d}, 0, v{KB+d}, vcc")
        if d % 4 == 3: to = VM(f"buffer_store_dwordx4 v[{KB+d-3}:{KB+d}], v{vL16}, {WS}, s{sQO} offen offset:{1024*(d//4)}")
    stamp("att")
    A(f"s_cmp_eq_u32 s{sHLP}, 0\ns_cbranch_scc0 L_hu0")
    main = A.lines; A.lines = []; hist = A.hist; A.hist = []
    A("L_hu0:\ns_waitcnt vmcnt(0)")
    sv2 = (vm.n, vm.done, lg.n, lg.done); flag(sFO)
    A(f"""s_lshl_b32 s61, s{sW}, 6
    v_add_u32 v4, s61, v{vL}
    v_add_u32 v5, 256, v4
    v_min_u32 v5, 447, v5
    s_lshl_b32 s85, s{sHI}, 2
    s_add_u32 s85, s85, s{sW}
    s_min_u32 s62, s85, 111
    s_lshl_b32 s62, s62, 5
    v_and_b32 v16, 15, v{vL}
    v_lshl_add_u32 v17, v16, 1, s62
    global_load_ushort v18, v17, s[40:41]""")
    for r, d in ((4, 6), (5, 7)):
        A(f"""v_and_b32 v{d}, 0x1f8, v{r}
        v_and_b32 v{vT0}, 3, v{r}
        v_lshl_add_u32 v{d}, v{vT0}, 1, v{d}
        v_bfe_u32 v{vT0}, v{r}, 2, 1
        v_add_lshl_u32 v{d}, v{d}, v{vT0}, 3
        v_add_u32 v{d}, {L_VEC}, v{d}
        v_lshlrev_b32 v{r}, 4, v{r}""")
    A(f"""s_mov_b32 s{sCNT}, 0
    s_mov_b32 s61, {NU}
    L_nu:
    buffer_load_dwordx4 v[8:11], v4, {WS}, s61 offen sc1
    buffer_load_dwordx4 v[12:15], v5, {WS}, s61 offen sc1
    s_add_u32 s{sCNT}, s{sCNT}, 1
    s_waitcnt vmcnt(0)
    v_cmp_ne_u32 vcc, s{sTAG}, v9
    v_cmp_ne_u32 s[62:63], s{sTAG}, v11
    v_cmp_ne_u32 s[64:65], s{sTAG}, v13
    v_cmp_ne_u32 s[82:83], s{sTAG}, v15
    s_or_b64 vcc, vcc, s[62:63]
    s_or_b64 s[64:65], s[64:65], s[82:83]
    s_or_b64 vcc, vcc, s[64:65]
    s_cbranch_vccz L_nud
    s_cmp_lt_u32 s{sCNT}, {SPIN}
    s_cbranch_scc1 L_nu
    L_nud:
    v_mov_b32 v9, v10
    v_mov_b32 v13, v14
    ds_write_b64 v6, v[8:9]
    ds_write_b64 v7, v[12:13]
    v_lshrrev_b32 v20, 2, v{vL}
    v_bfe_u32 v21, v{vL}, 3, 2
    v_xor_b32 v21, s{sW}, v21
    v_lshlrev_b32 v21, 5, v21
    v_lshl_add_u32 v20, v20, 7, v21
    v_and_b32 v21, 3, v{vL}
    v_lshl_add_u32 v20, v21, 3, v20
    v_and_b32 v21, 1, v{vL}
    v_mul_u32_u24 v21, 896, v21
    v_and_b32 v22, 48, v{vL}
    v_sub_u32 v21, v22, v21
    v_add_u32 v21, {L_VEC+1792}, v21
    s_waitcnt lgkmcnt(0)""")
    barrier()
    A(f"""s_cmp_lg_u32 s{sG}, 7
    s_cbranch_scc1 L_hu
    s_cmp_lg_u32 s85, 112
    s_cbranch_scc1 L_hz
    s_mov_b64 exec, 1
    buffer_store_dword v{vTAG}, off, {WS}, 0 sc1
    s_mov_b64 exec, -1
    s_branch L_hz
    L_hu:""")
    gemv14(21, 20)
    A(f"""v_lshlrev_b32 v18, 16, v18
    s_lshl_b32 s61, s85, 8
    s_add_u32 s61, s61, {AUG}
    v_mov_b32 v31, s{sTAG}
    v_add_f32 v25, v25, v18
    v_cvt_pk_bf16_f32 v29, v24, v25
    v_lshlrev_b32 v26, 16, v29
    v_and_b32 v27, 0xffff0000, v29
    v_sub_f32 v24, v24, v26
    v_sub_f32 v25, v25, v27
    v_cvt_pk_bf16_f32 v28, v26, v24
    v_cvt_pk_bf16_f32 v30, v25, v27
    s_mov_b64 exec, 0xffff
    buffer_store_dwordx4 v[28:31], v{vL16}, {WS}, s61 offen sc1
    s_mov_b64 exec, -1
    L_hz:""")
    if hl2:
        A(f"""s_and_b32 s61, s85, 15
        s_bitcmp0_b32 s61, 1
        s_cselect_b32 s62, 57344, 0
        s_mul_i32 s61, s61, 114688
        s_add_u32 s61, s61, s62
        v_lshlrev_b32 v4, 7, v{vL}""")
        for k in range(7): A(f"buffer_load_dword v{vJUNK}, v4, {W2}, s61 offen\ns_add_u32 s61, s61, 8192")
    if hid in ('fast', 'mix'):
        A(f"""s_mul_i32 s61, s85, 57344
        s_add_u32 s61, s61, {HID}
        s_bfe_u32 s62, s85, 0x10003
        s_lshl_b32 s62, s62, 12
        v_lshlrev_b32 v4, 13, v{vHALF}
        v_lshl_add_u32 v4, v{vL31}, 7, v4
        v_lshlrev_b32 v5, 7, v{vL31}""")
        for late in ((0, 1) if hid == 'fast' else (1,)):
            A(f"s_xor_b32 s63, s62, {4096*late}\ns_add_u32 s63, s63, s61")
            for k in range(4): A(f"buffer_load_dword v{vJUNK}, v{5 if k == 3 else 4}, {WS}, s63 offen sc1\ns_add_u32 s63, s63, 16384")
    if wb:
        A(f"""s_and_b32 s61, s85, 15
        s_cmp_lg_u32 s61, 0
        s_cbranch_scc1 L_fin
        v_lshrrev_b32 v4, 3, v{vL}
        v_and_b32 v5, 7, v{vL}
        v_lshlrev_b32 v5, 3, v5
        v_min_u32 v5, 52, v5
        v_lshl_add_u32 v4, v4, 7, v5
        s_add_u32 s62, s{sCTL}, {C_FD+64}""")
        poll(4, "s62")
        A("buffer_wbl2 sc1\ns_waitcnt vmcnt(0)")
    A("s_branch L_fin")
    tail.append(("raw", A.lines)); A.lines = main; A.hist = hist
    vm.n, vm.done, lg.n, lg.done = sv2

    XR = 128; GA = 136; A2 = 152; X1 = 168; WB = 184
    vIN, vOUTB, vWO = 216, 217, 218
    u7 = nxt[0]; no = ot.split().count('D')
    A(f"""s_and_b32 s61, s{sW}, 1
    s_lshl_b32 s61, s61, 12
    s_add_u32 s61, s61, {L_XT}
    v_lshl_add_u32 v4, v{vL31}, 7, s61
    v_lshl_add_u32 v4, v{vHALF}, 3, v4
    v_and_b32 v5, 7, v{vL}
    s_lshl_b32 s61, s{sKH}, 2
    v_xor_b32 v5, s61, v5""")
    for a_ in range(4):
        A(f"v_xor_b32 v6, {a_}, v5\nv_lshl_add_u32 v{8+a_}, v6, 4, v4")
        txr = DS(f"ds_read_b64 v[{XR+2*a_}:{XR+2*a_+1}], v{8+a_}")
    A(f"""v_accvgpr_read_b32 v12, a{aB2}
    v_accvgpr_read_b32 v13, a{aB2+1}
    {get('VW', 7)}
    v_and_b32 v{vT3}, 7, v{vL}
    v_lshlrev_b32 v{vT3}, 2, v{vT3}
    s_mul_i32 s61, s{sKH}, {224*128}
    v_add_u32 v{vWO}, s61, v{vR0}
    v_add_u32 v{vWO+1}, s61, v{vR0+1}
    v_add_u32 v{vIN}, s{sEX}, v{vL16}
    s_xor_b32 s61, s{sW}, 2
    s_mul_i32 s61, s61, 8960
    s_add_u32 s61, s61, {L_EX}
    v_add_u32 v{vOUTB}, s61, v{vL16}
    s_xor_b32 s{sW1C}, s{sW1C}, 128""")
    lg.wait(txr)
    for d in range(8): A(f"v_lshlrev_b32 v{X1+2*d}, 16, v{XR+d}\nv_and_b32 v{X1+2*d+1}, 0xffff0000, v{XR+d}")
    vm.wait(to)
    flag(sFO)
    stamp("opub")
    if stop <= 3: return done()
    barrier()
    order = [(i, t) for i in range(11) for t in (1, 0)] + [(i, 1) for i in range(11, 16)] + [(i, 0) for i in range(11, 16)]
    two = {}
    def ldo(k):
        i, t = order[k]; b = WB + 4 * (k % 8); two[k] = Tok(); off = L_WO + 3584 * (i >> 1) + 2048 * (i & 1)
        return [jDS(f"ds_read_b64_tr_b16 v[{b}:{b+1}], v{vWO+t} offset:{off}"), jDS(f"ds_read_b64_tr_b16 v[{b+2}:{b+3}], v{vWO+t} offset:{off+1024}", two[k])]
    for k in range(5): run(ldo(k), 2)
    stamp("pre2")
    poll(vT3, f"s{sFOP}")
    stamp("S2")
    to = [Tok() for _ in range(16)]
    mem = [jVM(f"buffer_load_dwordx4 v[{16+4*i}:{19+4*i}], v{vL16}, {WS}, s{sOS} offen offset:{1024*(i%4)} sc1", to[i], f"s_add_u32 s{sOS}, s{sOS}, 4096" if (i % 4 == 0 and i) else None) for i in range(16)]
    run(mem, PRO)
    A(f"""s_mov_b32 s{sCNT}, 0
    L_nv:
    v_cmp_ne_u32 vcc, s{sTAG}, v{vNU+1}
    v_cmp_ne_u32 s[62:63], s{sTAG}, v{vNU+3}
    s_or_b64 vcc, vcc, s[62:63]
    s_cbranch_vccnz L_nvr
    L_nvd:
    v_cmp_lt_u32 vcc, 23, v{vL31}
    v_cndmask_b32 v8, v{vNU}, v12, vcc
    v_cndmask_b32 v10, v{vNU+2}, v13, vcc
    v_and_b32 v9, 0xffff0000, v8
    v_lshlrev_b32 v8, 16, v8
    v_and_b32 v11, 0xffff0000, v10
    v_lshlrev_b32 v10, 16, v10""")
    tail.append(f"""L_nvr:
    s_add_u32 s{sCNT}, s{sCNT}, 1
    s_cmp_ge_u32 s{sCNT}, {SPIN}
    s_cbranch_scc1 L_nvd
    buffer_load_dwordx4 v[{vNU}:{vNU+3}], v232, {WS}, s{sNUS} offen sc1
    s_waitcnt vmcnt(0)
    s_branch L_nv""")
    DS("ds_write_b128 v7, v[8:11]")
    side = []
    for a_ in range(4):
        side.append(jDS(f"ds_read_b128 v[{GA+4*a_}:{GA+4*a_+3}], v{vVEC} offset:{32*a_}"))
        side.append(jDS(f"ds_read_b128 v[{A2+4*a_}:{A2+4*a_+3}], v{vVEC} offset:{128+32*a_}"))
    vSTA, vW1, vS1 = 229, 228, 231
    sFYP, sYL, sRS, sFD0, sFD1, sSTL, sHST, sAU0, sAU1 = 82, 83, 84, 85, 86, 87, 88, 89, 90
    side += lines(f"""v_min_u32 v{vT3}, 13, v{vL}
    v_lshlrev_b32 v{vT3}, 2, v{vT3}
    s_and_b32 s61, s{sTQ}, 7
    s_lshl_b32 s62, s61, 6
    s_add_u32 s62, s62, s{sCTL}
    s_add_u32 s{sFYP}, s62, {C_FY}
    s_lshl_b32 s62, s61, 7
    s_add_u32 s62, s62, s{sCTL}
    s_lshl_b32 s63, s{sJ}, 2
    s_add_u32 s62, s62, s63
    s_add_u32 s{sFD0}, s62, {C_FD}
    s_add_u32 s{sFD1}, s{sFD0}, 64
    s_mul_i32 s{sRS}, s{sTQ}, 14
    s_add_u32 s{sRS}, s{sRS}, s{sJ}
    s_lshl_b32 s{sRS}, s{sRS}, 7
    s_add_u32 s{sRS}, s{sRS}, {RS2}
    s_mul_i32 s{sYL}, s{sTQ}, 28672
    s_mul_i32 s{sSTL}, s{sTQ}, 3584
    s_add_u32 s{sSTL}, s{sSTL}, {STATS}
    s_mul_i32 s{sHST}, s{sTQ}, 114688
    s_xor_b32 s61, s{sW1C}, 128
    s_lshr_b32 s61, s61, 7
    s_lshl_b32 s62, s61, 12
    s_add_u32 s{sHST}, s{sHST}, s62
    s_add_u32 s{sHST}, s{sHST}, {HID}
    s_lshl_b32 s61, s61, 10
    s_add_u32 s{sAU0}, s61, {AUG}
    s_xor_b32 s61, s61, 1024
    s_add_u32 s{sAU1}, s61, {AUG}
    v_lshlrev_b32 v{vSTA}, 11, v{vHALF}
    v_lshl_add_u32 v{vSTA}, v{vL31}, 4, v{vSTA}
    v_lshlrev_b32 v{vSTA+1}, 30, v{vHALF}
    v_add_u32 v{vSTA+1}, v{vSTA+1}, v{vSTA}
    v_add_u32 v{vW1}, {L_P0}, v{vTP0}
    v_add_u32 v{vW1-1}, {L_P0}, v{vTP1}
    v_mov_b32 v{vS1}, v{vS0}
    v_mov_b32 v{vS1+1}, v{vS0+1}""")
    J['D'] = lambda: w2_dma(u7, sEX, 0)
    J['L1'] = (lambda: [jVM(f"buffer_load_dword v{vJUNK}, v{vT0}, {W1}, s65 offen", None, f"s_lshl_b32 s65, s{sPSW}, 2\ns_add_u32 s65, s65, s{sW}\ns_mul_i32 s65, s65, {56*3584}\ns_add_u32 s65, s65, s{sW1C}\nv_min_u32 v{vT0}, 55, v{vL}\nv_mul_u32_u24 v{vT0}, 3584, v{vT0}")])
    bulk = jobs(ot)
    ACC = 80
    wr = [jDS(f"ds_write_b128 v{vOUTB}, v[{ACC+16+4*q}:{ACC+19+4*q}] offset:{4096+1024*q}") for q in range(4)]
    augl = [jVM(f"buffer_load_dwordx4 v[{XR}:{XR+3}], v{vL16}, {WS}, s{sAU0} offen sc1"), jVM(f"buffer_load_dwordx4 v[{XR+4}:{XR+7}], v{vL16}, {WS}, s{sAU1} offen sc1")]
    for k, (i, t) in enumerate(order):
        vm.wait(to[i].t); lg.wait(two[k].t)
        mfma(v(ACC + 16 * t, 16), v(WB + 4 * (k % 8), 4), v(16 + 4 * i, 4), "0" if i == 0 else None)
        if k + 5 < 32: run(ldo(k + 5), 2)
        if k % 2 == 0 and (mem or bulk):
            if mem: run(mem, 1)
            else: run(bulk, 1)
        else: run(side, 3)
        if k in (27, 28): run(augl, 1)
        if k >= 29: run(wr, 2)
        if 'fine' in dbg and k in (0, 16, 31): stamp(f'o{k}')
    assert not side and not bulk
    lg.all()
    barrier()
    tk = [DS(f"ds_read_b128 v[{4*q}:{4*q+3}], v{vIN} offset:{4096+1024*q}") for q in range(4)]
    for q in range(4):
        lg.wait(tk[q])
        for e in range(0, 4, 2):
            r = 4 * q + e
            A(f"""v_pk_add_f32 v[{ACC+r}:{ACC+r+1}], v[{ACC+r}:{ACC+r+1}], v[{r}:{r+1}]
            v_pk_fma_f32 v[{X1+r}:{X1+r+1}], v[{ACC+r}:{ACC+r+1}], v[{GA+r}:{GA+r+1}], v[{X1+r}:{X1+r+1}]
            v_pk_mul_f32 v[{ACC+r}:{ACC+r+1}], v[{X1+r}:{X1+r+1}], v[{A2+r}:{A2+r+1}]
            v_cvt_pk_bf16_f32 v{112+r//2}, v{ACC+r}, v{ACC+r+1}""")
        if q % 2 == 1: VM(f"buffer_store_dwordx4 v[{110+2*q}:{113+2*q}], v{vL16}, {OUT}, s{sYS} offen offset:{1024*(q//2)}")
    A(f"v_pk_add_f32 v[120:121], v[{X1}:{X1+1}], v[{X1+2}:{X1+3}]\nv_pk_mul_f32 v[122:123], v[{X1}:{X1+1}], v[{X1}:{X1+1}]")
    for d in range(1, 8):
        if d >= 2: A(f"v_pk_add_f32 v[120:121], v[120:121], v[{X1+2*d}:{X1+2*d+1}]")
        A(f"v_pk_fma_f32 v[122:123], v[{X1+2*d}:{X1+2*d+1}], v[{X1+2*d}:{X1+2*d+1}], v[122:123]")
    A(f"""v_add_f32 v120, v120, v121
    v_add_f32 v121, v122, v123
    v_mov_b32 v122, v120
    v_mov_b32 v123, v121
    v_permlane32_swap_b32 v120, v122
    v_permlane32_swap_b32 v121, v123
    v_add_f32 v120, v120, v122
    v_add_f32 v121, v121, v123
    s_mov_b32 exec_hi, 0""")
    ty = VM(f"buffer_store_dwordx2 v[120:121], v{vL16}, {WS}, s{sSTS} offen")
    A("s_mov_b64 exec, -1")
    stamp("oproj")

    tp1 = Tok()
    run(w1_jobs(L_P1, ns3, 0), 99)
    bulk = w1_jobs(L_P1, 14 - ns3, 4 * ns3, tp1)
    for r in range(16): A(f"v_accvgpr_write_b32 a{224+r}, v{X1+r}")
    vm.wait(ty); flag(sFY); stamp("ypub")
    if stop <= 4: return done()
    ACC = 112; WB = 176; vRS = 226; AU = 248; BA = 240
    tw = {}
    def ld1(i):
        pn, s_ = divmod(i, 28)
        b = WB + 8 * (i % 4); js = []; tw[i] = Tok()
        for t in range(2):
            ad = (vW1 - t) if pn == 0 else (vTP0 - t)
            js.append(jDS(f"ds_read_b64_tr_b16 v[{b+4*t}:{b+4*t+1}], v{ad} offset:{2048*s_}"))
            js.append(jDS(f"ds_read_b64_tr_b16 v[{b+4*t+2}:{b+4*t+3}], v{ad} offset:{2048*s_+1024}", tw[i]))
        return js
    if no: run(w2_read(u7, vS1, 0), 99)
    for i in range(3): run(ld1(i), 4)
    poll(vT3, f"s{sFYP}")
    stamp("S3")
    ty = [Tok() for _ in range(28)]; ts = Tok()
    mem = [jVM(f"buffer_load_dwordx4 v[{4*s_}:{4*s_+3}], v{vL16}, {OUT}, s{sYL} offen offset:{1024*(s_%4)} sc1", ty[s_], f"s_add_u32 s{sYL}, s{sYL}, 4096" if (s_ % 4 == 0 and s_) else None) for s_ in range(28)]
    stl = [jVM(f"buffer_load_dwordx4 v[{160+4*i}:{163+4*i}], v{vSTA+(i==3)}, {WS}, s{sSTL} offen offset:{512*i} sc1", ts) for i in range(4)]
    run(mem, PRO)
    A(f"""s_mov_b32 s{sCNT}, 0
    L_au:
    v_cmp_ne_u32 vcc, s{sTAG}, v{XR+3}
    v_cmp_ne_u32 s[62:63], s{sTAG}, v{XR+7}
    s_or_b64 vcc, vcc, s[62:63]
    s_cbranch_vccnz L_aur
    L_aud:""")
    tail.append(f"""L_aur:
    s_add_u32 s{sCNT}, s{sCNT}, 1
    s_cmp_ge_u32 s{sCNT}, {SPIN}
    s_cbranch_scc1 L_aud
    buffer_load_dwordx4 v[{XR}:{XR+3}], v{vL16}, {WS}, s{sAU0} offen sc1
    buffer_load_dwordx4 v[{XR+4}:{XR+7}], v{vL16}, {WS}, s{sAU1} offen sc1
    s_waitcnt vmcnt(0)
    s_branch L_au""")
    for r in range(8): A(f"v_accvgpr_write_b32 a{AU+r}, {'0' if r % 4 == 3 else 'v%d' % (XR + r)}")
    A(f"v_accvgpr_write_b32 a{BA+3}, 0\nv_accvgpr_write_b32 a{BA+7}, 0\nv_cmp_eq_u32 s[80:81], 0, v{vHALF}\nv_lshlrev_b32 v{vT2}, 2, v{vL31}\nv_lshlrev_b32 v{vT3}, 7, v{vL31}")
    stat = lines(f"""v_add_f32 v208, v160, v162
    v_add_f32 v209, v161, v163
    v_add_f32 v210, v164, v166
    v_add_f32 v211, v165, v167
    v_add_f32 v212, v168, v170
    v_add_f32 v213, v169, v171
    v_add_f32 v214, v172, v174
    v_add_f32 v215, v173, v175
    v_add_f32 v208, v208, v210
    v_add_f32 v209, v209, v211
    v_add_f32 v212, v212, v214
    v_add_f32 v213, v213, v215
    v_add_f32 v208, v208, v212
    v_add_f32 v209, v209, v213
    v_mov_b32 v210, v208
    v_mov_b32 v211, v209
    v_permlane32_swap_b32 v208, v210
    v_permlane32_swap_b32 v209, v211
    v_add_f32 v208, v208, v210
    v_add_f32 v209, v209, v211
    v_mul_f32 v208, 0xbb124925, v208
    v_mul_f32 v209, 0x3b124925, v209
    v_fma_f32 v209, -v208, v208, v209
    v_max_f32 v209, 0, v209
    v_add_f32 v209, 0x3727c5ac, v209
    v_rcp_f32 v{vRS}, v209
    v_sqrt_f32 v209, v209
    v_cvt_pk_bf16_f32 v213, v208, v208
    v_cvt_pk_bf16_f32 v210, v209, v209
    v_and_b32 v211, 0xffff0000, v213
    v_and_b32 v210, 0xffff0000, v210
    v_sub_f32 v211, v208, v211
    v_sub_f32 v212, v209, v210
    v_cvt_pk_bf16_f32 v214, v211, v210
    v_cvt_pk_bf16_f32 v215, v210, v212""")
    for r in range(3):
        stat += [f"v_cndmask_b32 v{216+r}, 0, v{213+r}, s[80:81]", f"v_cndmask_b32 v{219+r}, v{213+r}, 0, s[80:81]"]
    for r in range(3): stat += [f"v_accvgpr_write_b32 a{BA+r}, v{216+r}", f"v_accvgpr_write_b32 a{BA+4+r}, v{219+r}"]
    def epi_list(pn, last):
        e = []
        for t in range(2):
            c = ACC + 32 * pn + 16 * t
            for d in range(8):
                r = c + 2 * d; p = 208 + 8 * t + d
                e += [f"v_mul_f32 v{r}, v{r}, abs(v{r})", f"v_mul_f32 v{r+1}, v{r+1}, abs(v{r+1})", f"v_cvt_pk_bf16_f32 v{p}, v{r}, v{r+1}", f"v_pk_max_i16 v{p}, v{p}, 0"]
                if d % 4 == 3: e.append(jVM(f"buffer_store_dwordx4 v[{205+8*t+d}:{208+8*t+d}], v{vL16}, {WS}, s{sHST} offen offset:{2048*t+1024*(d//4)}{'' if hid == 'fast' or (hid == 'mix' and pn) else ' sc1'}", last))
        return e
    vH0, vH1, vFD, vRW, vRR = 224, 225, 226, 227, 230
    sFE, sFL, sRSL = 91, 92, 93
    prep2 = lines(f"""v_and_b32 v{vH0}, 3, v{vL}
    v_lshlrev_b32 v{vH0}, 2, v{vH0}
    v_bfe_u32 v{vH1}, v{vL}, 2, 1
    v_lshl_add_u32 v{vFD}, v{vH1}, 7, v{vH0}
    s_and_b32 s61, s{sTO}, 6
    s_lshl_b32 s61, s61, 7
    s_add_u32 s61, s61, s{sCTL}
    s_mul_i32 s62, s{sW}, 7
    s_lshr_b32 s62, s62, 1
    s_mul_i32 s{sRSL}, s{sTO}, 14
    s_add_u32 s{sRSL}, s{sRSL}, s62
    s_lshl_b32 s{sRSL}, s{sRSL}, 7
    s_add_u32 s{sRSL}, s{sRSL}, {RS2}
    s_lshl_b32 s62, s62, 2
    s_add_u32 s61, s61, s62
    s_add_u32 s{sFE}, s61, {C_FD}
    s_add_u32 s{sFL}, s{sFE}, 64
    s_mul_i32 s61, s{sTO}, 114688
    s_add_u32 s61, s61, {HID}
    v_add_u32 v{vH0}, s61, v{vL16}
    s_xor_b32 s61, s{sTO}, 1
    s_mul_i32 s61, s61, 114688
    s_add_u32 s61, s61, {HID}
    v_add_u32 v{vH1}, s61, v{vL16}
    s_mul_i32 s61, s{sW}, 12288
    v_add_u32 v{vRR}, s61, v{vL16}""")
    for k in range(1, 4):
        prep2 += lines(f"s_xor_b32 s61, s{sW}, {k}\ns_mul_i32 s61, s61, 12288\ns_add_u32 s61, s61, {4096*(k-1)}\nv_add_u32 v{vRW+k-1}, s61, v{vL16}")
    mem = mem[:STP] + stl + mem[STP:] + bulk
    last0 = Tok(); last1 = Tok()
    side = []
    def aug(pn):
        for t in range(2): mfma(v(ACC + 32 * pn + 16 * t, 16), a(AU + 4 * pn, 4), a(BA + 4 * t, 4))
    ST0 = min(26, STP + PRO); AUG0 = max(28, ST0 + 10)
    rest = list(range(u7 + no, 14)); assert len(rest) <= 7
    pre2 = rest[:-5] if len(rest) > 5 else []; rest = rest[len(pre2):]; tP = Tok(); tPr = Tok()
    for k, u in enumerate(pre2): mem += w2_dma(u, sEX, 4096 * k, tP)
    def retouch(late=False):
        if hid == 'hyb' or (hid in ('mix', 'hyb1') and not late): VM(f"buffer_load_dword v{vJUNK}, v{vT3}, {WS}, s{sHST} offen sc1")
    BAR2 = 34; pub0 = False
    for i in range(56):
        pn, s_ = divmod(i, 28)
        if pn == 0: vm.wait(ty[s_].t)
        lg.wait(tw[i].t)
        if i == 24: barrier()
        if i == ST0: vm.wait(ts.t); side = list(stat)
        if i == AUG0:
            assert not side
            aug(0)
            VM(f"buffer_store_dword v{vRS}, v{vT2}, {WS}, s{sRS} offen sc1")
        if i == AUG0 + 1: side = epi_list(0, last0) + prep2
        if i == BAR2:
            assert 28 + 2 * ns3 - 3 >= BAR2
            if tp1.t is not None: vm.wait(tp1.t)
            barrier()
            A(f"s_mul_i32 s79, s{sW}, 14336\ns_add_u32 s79, s79, {L_P0}\nv_add_u32 v{vT0}, s79, v{vR0}\nv_add_u32 v{vT1}, s79, v{vR0+1}")
        if i == BAR2:
            for k, u in enumerate(rest):
                if k == 3 and pre2: mem.append(lambda: lg.wait(tPr.t))
                mem += w2_dma(u, 79, 4096 * k) if k < 3 else w2_dma(u, sEX, 4096 * (k - 3))
        if i == BAR2 + 8 and pre2:
            vm.wait(tP.t); rd = []
            for k, u in enumerate(pre2): rd += w2_read(u, vS1, 4096 * k, tPr)
            side = rd + side
        b = WB + 8 * (i % 4)
        nx = ld1(i + 3) if i + 3 < 56 else []
        for t in range(2):
            mfma(v(ACC + 32 * pn + 16 * t, 16), v(b + 4 * t, 4), v(4 * s_, 4), "0" if s_ == 0 else None)
            if t == 0:
                if mem: run(mem, 2 if STP <= i < STP + 4 else 1); run(nx, 1); run(side, 2)
                else: run(nx, 2); run(side, 3)
            else:
                run(nx, 3); run(side, 3)
        if i == AUG0 + KVF + 3 and i < 56: vm.wait(last0.t); flag(sFD0); retouch(); pub0 = True
        if i == 27: stamp("f1a")
        if 'fine' in dbg and i in (0, 9, 18, 34, 44, 55): stamp(f'f{i}')
    assert not mem and not side
    aug(1)
    if not pub0: vm.wait(last0.t); flag(sFD0); retouch()
    A(f"s_xor_b32 s{sHST}, s{sHST}, 4096")
    for q in range(7): A(f"s_lshl_b32 s{sFT+q}, s{sFT+q}, 11")
    e1 = epi_list(1, last1)
    tpe = Tok()
    run(e1, 16)
    jVM(f"buffer_load_dword v{vJUNK}, v{vFD}, {WS}, s{sFE} offen sc1", tpe)()
    run(e1, 999)
    stamp("ffn1")
    if stop <= 5:
        vm.wait(last1.t); return done()

    ACC = 0; HB = 64; NB_ = 40
    def check(tok, soff):
        lr, lj = U("lr"), U("lj")
        vm.wait(tok.t)
        A(f"v_cmp_ne_u32 vcc, s{sTAG}, v{vJUNK}\ns_cmp_eq_u32 s{sUNI}, 0\ns_cbranch_scc1 {lr}\ns_cbranch_vccnz {lr}\n{lj}:")
        tail.append(f"""{lr}:
        s_mov_b32 s{sCNT}, 0
        {lr}a:
        buffer_load_dword v{vJUNK}, v{vFD}, {WS}, s{soff} offen sc1
        s_add_u32 s{sCNT}, s{sCNT}, 1
        s_waitcnt vmcnt(0)
        v_cmp_ne_u32 vcc, s{sTAG}, v{vJUNK}
        s_cbranch_vccz {lr}b
        s_cmp_lt_u32 s{sCNT}, {SPIN}
        s_cbranch_scc1 {lr}a
        {lr}b:
        s_cmp_eq_u32 s{sUNI}, 1
        s_cbranch_scc1 {lj}
        buffer_inv sc1
        s_waitcnt vmcnt(0)
        s_branch {lj}""")
    check(tpe, sFE)
    stamp("S4a")
    seq = list(range(40)) + list(range(41, 56, 2)) + list(range(40, 56, 2))
    th = [Tok() for _ in range(56)]
    bumped = set()
    def hj(p):
        i = seq[p]; u, s_, mh = i >> 2, (i >> 1) & 1, i & 1
        b = HB + 4 * (p % NB_)
        pre = None
        if u >= 7 and u not in bumped: bumped.add(u); pre = f"s_xor_b32 s{sFT+u%7}, s{sFT+u%7}, 4096"
        return jVM(f"buffer_load_dwordx4 v[{b}:{b+3}], v{vH1 if mh else vH0}, {WS}, s{sFT+u%7} offen offset:{1024*s_} sc1", th[p], pre)
    mem = [hj(i) for i in range(28)]
    run(mem, PRO - 2)
    trd = Tok(); rds = []
    for k, u in enumerate(rest): rds += w2_read(u, vT0, 4096 * k, trd) if k < 3 else w2_read(u, vS1, 4096 * (k - 3), trd)
    run(rds, 16)
    vm.wait(last1.t); flag(sFD1); retouch(True)
    run(mem, 2)
    mem.append(jVM(f"buffer_load_dword v{vT3}, v{vT2}, {WS}, s{sRSL} offen sc1"))
    def mm(p, t):
        i = seq[p]; u, s_, mh = i >> 2, (i >> 1) & 1, i & 1
        vm.wait(th[p].t)
        mfma(v(ACC + 16 * (2 * t + mh), 16), a(16 * u + 8 * s_ + 4 * t, 4), v(HB + 4 * (p % NB_), 4), "0" if i < 2 else None)
    side = []
    tgb = Tok()
    for a_ in range(4):
        side.append(jDS(f"ds_read_b128 v[{160+4*a_}:{163+4*a_}], v{vVEC} offset:{256+32*a_}"))
        side.append(jDS(f"ds_read_b128 v[{176+4*a_}:{179+4*a_}], v{vVEC} offset:{384+32*a_}", tgb))
    side += [f"v_accvgpr_read_b32 v{144+r}, a{224+r}" for r in range(16)]
    side.append(lambda: lg.wait(tgb.t))
    for r in range(16): side.append(f"v_fmac_f32 v{144+r}, v{160+r}, v{176+r}")
    for r in range(16): side.append(f"v_mul_f32 v{160+r}, v{160+r}, v{vT3}")
    tpl = Tok()
    for i in range(48):
        if i == LATE: jVM(f"buffer_load_dword v{vJUNK}, v{vFD}, {WS}, s{sFL} offen sc1", tpl)()
        if i == LATE + LATW:
            check(tpl, sFL)
            stamp("S4b")
            mem += [hj(k) for k in range(28, 56)]
            run(mem, max(0, len(mem) - 28 + min(PRO, i + PRO - 28)) if i + PRO > 29 else 0)
        if i == 20: barrier()
        if i == 24 and trd.t: lg.wait(trd.t)
        mm(i, 0); run(mem, 1); mm(i, 1); run(rds, 3)
        if i >= 33: run(side, 4)
        if 'fine' in dbg and i in (0, 8, 16, 28, 36): stamp(f'g{i}')
    assert not mem and not side
    wrj = lambda k: [jDS(f"ds_write_b128 v{vRW+k-1}, v[{ACC+16*k+4*q}:{ACC+16*k+4*q+3}] offset:{1024*q}") for q in range(4)]
    wr = wrj(1) + wrj(3)
    tailo = [(48, 1), (48, 0), (49, 1), (49, 0), (50, 1), (50, 0), (51, 1), (52, 1), (53, 1), (54, 1), (55, 1), (51, 0), (52, 0), (53, 0), (54, 0), (55, 0)]
    for n, (p, t) in enumerate(tailo):
        mm(p, t)
        if n == 12: wr += wrj(2)
        if n >= 2 and n % 3 != 1: run(wr, 1)
    run(wr, 99)
    stamp("ffn2")
    lg.all()
    barrier()
    tk = {}
    for q in range(4):
        for k in range(3): tk[q] = DS(f"ds_read_b128 v[{64+16*k+4*q}:{67+16*k+4*q}], v{vRR} offset:{4096*k+1024*q}")
    for q in range(4):
        lg.wait(tk[q])
        for e in range(0, 4, 2):
            r = 4 * q + e
            A(f"""v_pk_add_f32 v[{64+r}:{65+r}], v[{64+r}:{65+r}], v[{80+r}:{81+r}]
            v_pk_add_f32 v[{96+r}:{97+r}], v[{96+r}:{97+r}], v[{r}:{r+1}]
            v_pk_add_f32 v[{64+r}:{65+r}], v[{64+r}:{65+r}], v[{96+r}:{97+r}]
            v_pk_fma_f32 v[{144+r}:{145+r}], v[{64+r}:{65+r}], v[{160+r}:{161+r}], v[{144+r}:{145+r}]
            v_cvt_pk_bf16_f32 v{192+r//2}, v{144+r}, v{145+r}""")
        if q % 2 == 1:
            b = 192 + 2 * (q - 1)
            A(f"v_permlane32_swap_b32 v{b}, v{b+2}\nv_permlane32_swap_b32 v{b+1}, v{b+3}")
            VM(f"buffer_store_dwordx4 v[{b}:{b+3}], v{vROW}, {OUT}, s{sROW} offen offset:{16*(q-1)}")
    stamp("done")
    if meas:
        A(f"""s_cmp_lg_u32 s2, {meas[3]}
        s_cbranch_scc1 L_fin
        v_readlane_b32 s61, v{vST}, 0
        v_readlane_b32 s62, v{vST}, 1
        s_memrealtime s[100:101]
        s_sub_u32 s61, s62, s61
        s_mul_i32 s61, s61, {meas[2]}
        s_min_u32 s61, s61, 100000
        s_waitcnt lgkmcnt(0)
        s_mov_b32 s63, s100
        L_ms:
        s_memrealtime s[100:101]
        s_waitcnt lgkmcnt(0)
        s_sub_u32 s62, s100, s63
        s_cmp_lt_u32 s62, s61
        s_cbranch_scc1 L_ms""")
    return done()

HEAD = open("adaLN_cond__sliding_block__dense_activation_squared_relu__prompt.s.ref").read().split("; Override launch")[0]
def wrap(A, tail, lst=None):
    for t in tail:
        if isinstance(t, tuple): A.lines += t[1]
        else: A(t)
    A("L_exit:\ns_endpgm")
    A.raw("CODE_END:")
    txt = HEAD + f"; @launch grid=(256,1,1) block=(256,1,1) lds={LDS_BYTES}\n.amdgcn_target \"amdgcn-amd-amdhsa--gfx950\"\n.text\n" + kernel_header(NAME) + A.text()
    txt += ".section .rodata,\"a\"\n.p2align 6\n" + kernel_desc(NAME, 512, 102, 256)
    return txt

if __name__ == "__main__":
    out = sys.argv[1]
    kw = eval("dict(" + (sys.argv[2] if len(sys.argv) > 2 else "") + ")")
    t, names = gen(**kw)
    open(out, "w").write(t)
    if names: json.dump(names, open(out + ".json", "w"))
    print(out, len(t.split("\n")), "lines", len(names), "stamps")
```

```python
import sys, json, struct
from asmgen import *
NAME = "adaLN_cond__sliding_block__dense_activation_squared_relu__prompt_kernel"
QSCALE = struct.unpack("<I", struct.pack("<f", 28 ** -0.5 * 1.4426950408889634))[0]

CTL = 0x4000
C_FH, C_FQ, C_FO, C_FY, C_FD = 0, 0x200, 0x400, 0x600, 0x800
S0U = 0x10000
XCCG = 0x14000
AUG = 0x1C000
STATS = 0x28000
NU = 0x70000
RS2 = 0x80000
FKV = 0xA0000
QO = 0x100000
KG = 0x300000
VG = 0x500000
HID = 0x700000
STAMP = 0xF00000
WSZ = 0x1000000
OOB = 0x40000000
L_WKV, L_B, L_WQ = 0, 57344, 122880
L_K, L_V = 98304, 122880
L_WO = 0
L_P0 = 0; L_P1 = 57344
BLK = 16384
L_MISC = 151552
L_X = L_MISC; L_XT = 5 * BLK; L_SILU = L_MISC + 7168; L_MODV = L_MISC + 8192; L_VEC = L_MODV
LDS_BYTES = 163840
sW, sG, sM, sTAG, sUNI = 3, 4, 5, 6, 7
X, WQKV, WO, W1, W2, WMOD, OUT, WS = [f"s[{i}:{i+3}]" for i in (8, 12, 16, 20, 24, 28, 32, 36)]
sCTL = 47
sJ, sTQ, sHEAD, sRB, sTA, sNB, sTO, sKH, sR4, sWG, sHI, sCOL = 48, 49, 50, 51, 52, 53, 54, 55, 56, 57, 58, 59
sCNT = 60
sSRC, sHLP, sCT = 67, 68, 69
sFT = 70
sROW, sEX, sW1D, sUI, sPSW = 77, 78, 94, 95, 96
sSTB, sKVS, sQS, sHS, sFKV, sFQ, sFHP = 79, 80, 81, 82, 83, 84, 85
sLK, sK0, sQO, sFO, sWOL, sW1C, sSTA = 86, 87, 90, 91, 92, 93, 97
sYS, sFY, sFOP, sOS, sSTS, sNUS = 98, 99, 0, 1, 44, 45
vL, vL16, vTN0, vTN1, vTP0, vTP1 = 255, 254, 253, 252, 251, 250
vPAN = 246
vTAG, vHALF, vL31 = 245, 244, 243
vT0, vT1, vT2, vT3 = 239, 240, 241, 242
vJUNK, vST, vROW, vVEC, vR0 = 238, 237, 236, 235, 233
NEG = 0xF149F2CA
SPIN = 60000

class Ctr:
    def __init__(s, A, name, mx): s.A, s.name, s.mx, s.n, s.done = A, name, mx, 0, 0
    def issue(s): s.n += 1; return s.n
    def wait(s, tok):
        if tok <= s.done: return
        k = min(s.n - tok, s.mx)
        s.A.e(f"s_waitcnt {s.name}({k})"); s.done = s.n - k
    def all(s): s.A.e(f"s_waitcnt {s.name}(0)"); s.done = s.n
    def drained(s): s.done = s.n
class Tok: t = None

def gen(stop=99, stamps=False, force_slow=False, only=None, meas=None, dbg=(), lst=None,
        a1='H pR K0', a2='LQ', a3='K1 pQ pA', a5='Q7', a6='', a7='pS', kvt='QP', qp='', p41='', p42='pO XT pF', at1='', at2='O0 NU O1', ot0='', ot1='S4 S8',
        hp0='', hp1='', hp2='', hz='E0 E1 E2 E3 E4 E5 E6 F0 F1 F2 F3 F4 F5 F6',
        PRO=10, STP=6, ER=4, EA=30, RT=True, CK=10, msub=True, AR=2, KVA=99, QB=10, mlate=False, YF=8, plain='', EP=10, ER0=4, YS=0, YH=8):
    A = Asm()
    vm = Ctr(A, "vmcnt", 63); lg = Ctr(A, "lgkmcnt", 15)
    tail = []; uid = [0]; names = []
    def U(p): uid[0] += 1; return f"L_{p}{uid[0]}"
    def stamp(nm):
        if meas and nm in meas[:2]:
            A(f"s_memrealtime s[100:101]\ns_waitcnt lgkmcnt(0)\nv_writelane_b32 v{vST}, s100, {meas.index(nm)}"); lg.drained()
        if not stamps or (only and nm not in only): return
        if nm not in names: names.append(nm)
        A(f"{'s_memtime' if stamps == 2 else 's_memrealtime'} s[100:101]\ns_waitcnt lgkmcnt(0)\nv_writelane_b32 v{vST}, s100, {names.index(nm)}"); lg.drained()
    def VM(t): A(t); return vm.issue()
    def DS(t): A(t); return lg.issue()
    def barrier(): A("s_barrier")
    def mfma(d, a_, b_, c=None): A(f"v_mfma_f32_32x32x16_bf16 {d}, {a_}, {b_}, {c if c is not None else d}")
    def run(q, n):
        for _ in range(n):
            if not q: return
            e = q.pop(0)
            if callable(e): e()
            else: A(e)
    def lines(t): return [x.strip() for x in t.strip().split("\n") if x.strip()]
    def jVM(text, tok=None, pre=None):
        def f():
            if pre: A(pre)
            k = VM(text)
            if tok is not None: tok.t = k
        return f
    def jDS(text, tok=None):
        def f():
            k = DS(text)
            if tok is not None: tok.t = k
        return f
    def flag(soff, slow=False):
        A("s_mov_b64 exec, 1")
        if slow: VM(f"buffer_store_dword v{vTAG}, off, {WS}, s{soff} sc1")
        else:
            ls, lj = U("fs"), U("fj")
            A(f"s_cmp_eq_u32 s{sUNI}, 0\ns_cbranch_scc1 {ls}")
            VM(f"buffer_store_dword v{vTAG}, off, {WS}, s{soff}")
            A(f"{lj}:")
            tail.append(f"{ls}:\nbuffer_wbl2 sc1\ns_waitcnt vmcnt(0)\nbuffer_store_dword v{vTAG}, off, {WS}, s{soff} sc1\ns_branch {lj}")
        A("s_mov_b64 exec, -1")
    def poll(vaddr, soff):
        lp, ld, li, lj = U("p"), U("pd"), U("pi"), U("pj")
        A(f"s_mov_b32 s{sCNT}, 0\n{lp}:\nbuffer_load_dword v{vJUNK}, v{vaddr}, {WS}, {soff} offen sc1\ns_add_u32 s{sCNT}, s{sCNT}, 1\ns_cmp_ge_u32 s{sCNT}, {SPIN}\ns_cbranch_scc1 {ld}\ns_cmp_eq_u32 s{sUNI}, 0\ns_waitcnt vmcnt(0)")
        A(f"v_cmp_ne_u32 vcc, s{sTAG}, v{vJUNK}\ns_cbranch_vccnz {lp}\n{ld}:\ns_cbranch_scc1 {li}\n{lj}:")
        vm.drained()
        tail.append(f"{li}:\ns_waitcnt vmcnt(0)\nbuffer_inv sc1\ns_waitcnt vmcnt(0)\ns_branch {lj}")
    def panel_addr(dst, rs, swz="std"):
        t = f"v_lshrrev_b32 v{vT0}, 3, v{vL}\nv_and_b32 v{vT1}, 7, v{vL}\n"
        if swz == "std": t += f"v_bfe_u32 v{vT2}, v{vL}, 4, 1\nv_lshlrev_b32 v{vT2}, 2, v{vT2}\n"
        else: t += f"v_bfe_u32 v{vT2}, v{vL}, 4, 2\nv_lshlrev_b32 v{vT2}, 1, v{vT2}\n"
        t += f"v_xor_b32 v{vT1}, v{vT1}, v{vT2}\nv_mul_u32_u24 v{vT0}, {rs}, v{vT0}\nv_lshl_add_u32 v{dst}, v{vT1}, 4, v{vT0}\n"
        for i in range(1, 4): t += f"v_add_u32 v{dst+i}, {i*(8*rs-1024)}, v{dst}\n"
        return t
    def dma_jobs(srd, vp, rs, n, setup, tok=None):
        if "nobulk" in dbg and srd in (W2, W1, WO) and vp != 4:
            def nop():
                if tok is not None: tok.t = 0
            return [nop] * n
        js = []
        for i in range(n):
            q = i % 4
            pre = setup if i == 0 else (f"s_add_u32 m0, m0, 4096\ns_add_u32 s{sSRC}, s{sSRC}, {32*rs}" if q == 0 else None)
            js.append(jVM(f"buffer_load_dwordx4 v{vp+q}, {srd}, s{sSRC} offen offset:{1024*q} lds", tok, pre))
        return js
    def w2_dma(u, lds_s, lds_off, tok=None):
        return dma_jobs(W2, vPAN, 896, 4, f"s_add_u32 m0, s{lds_s}, {lds_off}\n{'s_xor_b32 s%d, s%d, 2' % (sSRC, sFT+u%7) if u >= 7 else ''}\ns_mul_i32 s{sSRC}, s{sSRC if u >= 7 else sFT+u}, {32*896}\ns_add_u32 s{sSRC}, s{sSRC}, s{sCOL}", tok)
    def w2_read(u, va, off, tok=None):
        js = []
        for s_ in range(2):
            for t in range(2):
                r = 16 * u + 8 * s_ + 4 * t
                for p in range(2): js.append(jDS(f"ds_read_b64_tr_b16 a[{r+2*p}:{r+2*p+1}], v{va+t} offset:{off+2048*s_+1024*p}", tok))
        return js
    def done():
        A("L_fin:")
        if stamps:
            A(f"v_writelane_b32 v{vST}, s{sUNI}, 63")
            A(f"s_lshl_b32 s61, s2, 2\ns_add_u32 s61, s61, s{sW}\ns_lshl_b32 s61, s61, 8\ns_add_u32 s61, s61, {STAMP}\nv_lshlrev_b32 v{vT1}, 2, v{vL}")
            A(f"buffer_store_dword v{vST}, v{vT1}, {WS}, s61 offen")
        A("s_endpgm")
        return wrap(A, tail, lst), names
    stash = {}
    def put(name, r):
        stash.setdefault(name, 224 + len(stash)); assert stash[name] < 246
        return f"v_accvgpr_write_b32 a{stash[name]}, v{r}"
    def get(name, r): return f"v_accvgpr_read_b32 v{r}, a{stash[name]}"
    aX, aB2 = 248, 246

    ent = bool(stamps) or bool(meas and "entry" in meas[:2])
    if ent: A(f"{'s_memtime' if stamps == 2 else 's_memrealtime'} s[100:101]")
    for r, off in ((28, 72), (44, 64), (8, 0)):
        A(f"s_load_dwordx2 s[{r}:{r+1}], s[0:1], {off}")
    A(f"""v_readfirstlane_b32 s{sW}, v0
    s_mov_b32 s30, 2408448
    s_mov_b32 s31, 0x20000
    s_mov_b32 s{sHLP}, 0
    s_sub_u32 s{sUI}, s2, 224
    s_cmp_ge_u32 s{sUI}, 32
    s_cbranch_scc1 L_w0
    s_mov_b32 s{sHLP}, 1
    v_lshrrev_b32 v1, 3, v0
    v_and_b32 v2, 6, v1
    v_xor_b32 v2, v2, v0
    v_and_b32 v2, 7, v2
    v_mul_u32_u24 v1, 5376, v1
    v_lshl_add_u32 v4, v2, 4, v1
    v_min_u32 v2, 223, v0
    v_lshlrev_b32 v3, 2, v2
    s_lshl_b32 s61, s{sW}, 4
    s_add_u32 m0, s61, {L_B}
    s_lshr_b32 s61, s{sUI}, 1
    s_lshl_b32 s61, s61, 7
    s_bitcmp1_b32 s{sUI}, 0
    s_cselect_b32 s62, {224*5376}, 0
    s_add_u32 s61, s61, s62
    s_cmp_ge_u32 s{sUI}, 28
    s_cselect_b32 s61, 2.0, s61
    s_mov_b32 s62, 7
    s_waitcnt lgkmcnt(0)
    global_load_dword v8, v3, s[44:45]
    L_m0:
    buffer_load_dwordx4 v4, {WMOD}, s61 offen lds
    s_addk_i32 m0, 4096
    s_add_u32 s61, s61, {32*5376}
    s_sub_u32 s62, s62, 1
    s_cmp_lg_u32 s62, 0
    s_cbranch_scc1 L_m0
    L_w0:
    s_lshr_b32 s{sM}, s2, 3
    v_min_u32 v5, 11, v0
    v_lshl_add_u32 v5, v5, 5, s{sM}
    s_getpc_b64 s[62:63]
    L_pc:
    v_min_u32 v5, (CODE_END-L_pc-4)>>7, v5
    v_lshlrev_b32 v5, 7, v5
    global_load_dword v{vJUNK}, v5, s[62:63]
    s_cmp_ge_u32 s2, 256
    s_cbranch_scc1 L_exit
    s_lshr_b32 s{sW}, s{sW}, 6
    v_and_b32 v{vL}, 63, v0
    s_and_b32 s{sG}, s2, 7
    s_mov_b32 s10, 1835008
    s_mov_b32 s11, s31""")
    for r, off in ((36, 96), (12, 8), (32, 80), (24, 48), (16, 16), (20, 32), (40, 40), (42, 56)): A(f"s_load_dwordx2 s[{r}:{r+1}], s[0:1], {off}")
    A(f"""v_lshrrev_b32 v9, 3, v{vL}
    v_xor_b32 v10, v9, v{vL}
    v_and_b32 v10, 7, v10
    v_mul_u32_u24 v9, 896, v9
    v_lshl_add_u32 v9, v10, 4, v9
    s_lshl_b32 s61, s{sG}, 5
    s_add_u32 s{sWG}, s61, s{sM}
    s_mul_i32 s61, s{sWG}, 7168
    s_lshl_b32 s62, s{sW}, 7
    s_add_u32 s61, s61, s62
    s_lshl_b32 s62, s{sW}, 10
    s_add_u32 m0, s62, {L_X}
    s_add_u32 s63, s61, 512
    s_cmp_eq_u32 s{sW}, 3
    s_cselect_b32 s63, s61, s63
    s_cselect_b32 s64, 0, 4096
    s_waitcnt lgkmcnt(0)""")
    if ent:
        A(f"v_mov_b32 v{vST}, 0\nv_writelane_b32 v{vST}, s100, 0")
        if stamps: names.append("entry")
    stamp("karg")
    A(f"s_load_dword s{sTAG}, s[36:37], 0")
    VM(f"buffer_load_dwordx4 v9, {X}, s61 offen lds")
    A("s_add_u32 m0, m0, s64")
    tx = VM(f"buffer_load_dwordx4 v9, {X}, s63 offen lds")
    for r, n in ((12, 1204224), (36, WSZ), (32, 1835008), (16, 401408), (20, 1605632), (24, 1605632)):
        A(f"s_mov_b32 s{r+2}, {n}\ns_mov_b32 s{r+3}, s31")
    A(panel_addr(12, 2688))
    A(f"""s_cmp_ge_u32 s{sM}, 14
    s_cselect_b32 s65, 14, 0
    s_cselect_b32 s{sPSW}, 1, 0
    s_sub_u32 s{sJ}, s{sM}, s65
    s_sub_u32 s65, s{sM}, 14
    s_cmp_ge_u32 s65, 14
    s_cbranch_scc1 L_rl
    s_mov_b32 s{sHLP}, 2
    L_rl:""")
    def wkv_half(second):
        return dma_jobs(WQKV, 12, 2688, 7, f"""s_xor_b32 s65, s{sPSW}, s{sG}
        s_and_b32 s65, s65, 1
        {'s_xor_b32 s65, s65, 1' if second else ''}
        s_lshl_b32 s66, s{sW}, 1
        s_add_u32 s65, s65, s66
        s_mul_i32 m0, s65, 7168
        s_mul_i32 s{sSRC}, s65, {56*2688}
        s_lshl_b32 s65, s{sJ}, 7
        s_add_u32 s{sSRC}, s{sSRC}, s65
        s_add_u32 s{sSRC}, s{sSRC}, 896""")
    wkv = wkv_half(0) + wkv_half(1)
    vWQ = 228; vPQ = 229
    twq = Tok()
    def wq_half(second):
        return dma_jobs(WQKV, vPQ, 2 * 2688, 4, f"""s_and_b32 s65, s{sJ}, 1
        {'s_xor_b32 s65, s65, 1' if second else ''}
        s_mul_i32 s65, s65, 3
        s_mul_i32 s66, s{sW}, 7
        s_add_u32 s65, s65, s66
        s_lshl_b32 s66, s65, 10
        s_add_u32 m0, s66, {L_WQ}
        s_mul_i32 s{sSRC}, s65, {16*2688}
        s_lshl_b32 s65, s{sJ}, 6
        s_add_u32 s{sSRC}, s{sSRC}, s65""", twq)
    def touch(srd, n, idx, k=0, of=1):
        return [jVM(f"buffer_load_dword v{vJUNK}, v{vT0}, {srd}, s65 offen", None, f"{idx}\ns_mul_i32 s65, s65, {128*n*of}\ns_add_u32 s65, s65, {128*n*k}\nv_min_u32 v{vT0}, {n-1}, v{vL}\nv_lshlrev_b32 v{vT0}, 7, v{vT0}")]
    wi = f"s_mul_i32 s65, s{sG}, 28\ns_add_u32 s65, s65, s{sM}\ns_lshl_b32 s65, s65, 2\ns_add_u32 s65, s65, s{sW}"
    hi = f"s_lshl_b32 s65, s{sHI}, 2\ns_add_u32 s65, s65, s{sW}"
    hg = hi + "\ns_and_b32 s65, s65, 15"
    J = dict(K0=lambda: [wkv.pop(0) for _ in range(7)], K1=lambda: [wkv.pop(0) for _ in range(7)], K4=lambda: [wkv.pop(0) for _ in range(4)], K3=lambda: [wkv.pop(0) for _ in range(3)],
             Q0=lambda: wq_half(0), Q1=lambda: wq_half(1), W=lambda: [vm.all],
             H=lambda: [jVM(f"buffer_load_dword v{vJUNK}, v77, {OUT}, s98 offen sc1")],
             QP=lambda: [jVM(f"buffer_load_dword v{vJUNK}, v{vT0}, {WS}, s{sQO} offen sc1", None, f"v_and_b32 v{vT0}, 15, v{vL}\nv_lshlrev_b32 v{vT0}, 7, v{vT0}")],
             XT=lambda: [jVM(f"global_load_dwordx2 a[{aB2}:{aB2+1}], v{vT0}, s[42:43]", None, f"s_lshl_b32 s65, s{sCT}, 6\nv_and_b32 v{vT0}, 7, v{vL}\nv_lshl_add_u32 v{vT0}, v{vT0}, 3, s65"),
                         jVM(f"buffer_load_dwordx4 v{vT1}, {X}, s65 offen lds", None, f"{get('XA', vT1)}\ns_and_b32 s65, s{sTO}, 0xfe\ns_lshl_b32 s65, s65, 1\ns_add_u32 s65, s65, s{sW}\ns_mul_i32 s65, s65, 14336\ns_add_u32 s65, s65, s{sCOL}\ns_lshl_b32 s66, s{sW}, 11\ns_add_u32 m0, s66, {L_XT}"),
                         jVM(f"buffer_load_dwordx4 v{vT1}, {X}, s65 offen offset:1024 lds", None, "s_add_u32 s65, s65, 6144"),
                         jVM(f"buffer_load_dwordx4 v{vT1}, {X}, s65 offen lds", None, f"s_add_u32 m0, m0, 8192\ns_add_u32 s65, s65, {114688-6144}"),
                         jVM(f"buffer_load_dwordx4 v{vT1}, {X}, s65 offen offset:1024 lds", None, "s_add_u32 s65, s65, 6144")],
             LQ=lambda: [jVM(f"buffer_load_dword v{vJUNK}, v{vT0}, {WQKV}, s65 offen", None, f"s_lshl_b32 s65, s{sM}, 2\ns_add_u32 s65, s65, s{sW}\ns_mul_i32 s65, s65, {4*2688}\nv_and_b32 v{vT1}, 7, v{vL}\nv_min_u32 v{vT1}, 6, v{vT1}\nv_bfe_u32 v{vT0}, v{vL}, 3, 2\nv_mul_u32_u24 v{vT0}, 2688, v{vT0}\nv_lshl_add_u32 v{vT0}, v{vT1}, 7, v{vT0}")],
             Q7=lambda: dma_jobs(WQKV, vPQ, 2 * 2688, 7, f"s_mul_i32 s65, s{sW}, 7168\ns_add_u32 m0, s65, {L_WQ}\ns_mul_i32 s{sSRC}, s65, 42\ns_lshl_b32 s65, s{sJ}, 6\ns_add_u32 s{sSRC}, s{sSRC}, s65", twq),
             TQ=lambda: touch(WQKV, 11, wi), T2=lambda: touch(W2, 14, wi), T1=lambda: touch(W1, 14, wi), TO=lambda: touch(WO, 4, wi))
    HJ = dict(T1=lambda: touch(W1, 49, hi, 0, 2) + touch(W1, 49, hi, 1, 2), TQ=lambda: touch(WQKV, 37, hi, 0, 2) + touch(WQKV, 37, hi, 1, 2), T2=lambda: touch(W2, 49, hi, 0, 2) + touch(W2, 49, hi, 1, 2), TO=lambda: touch(WO, 25, hi),
              LO=lambda: sum((touch(WO, 49, hg, k, 4) for k in range(4)), []),
              **{f'QP{k}': (lambda k=k: [jVM(f"buffer_load_dword v{vJUNK}, v{vT0}, {WS}, s65 offen sc1", None, f"{hi}\ns_lshl_b32 s65, s65, 14\ns_add_u32 s65, s65, {QO+8192*k}\nv_lshlrev_b32 v{vT0}, 7, v{vL}")]) for k in range(2)},
              QP=lambda: sum(([jVM(f"buffer_load_dword v{vJUNK}, v{vT0}, {WS}, s65 offen sc1", None, f"{hi}\ns_lshl_b32 s65, s65, 14\ns_add_u32 s65, s65, {QO+8192*k}\nv_lshlrev_b32 v{vT0}, 7, v{vL}")] for k in range(2)), []))
    def hfill(kind, k):
        pre = f"{hg}\ns_add_u32 s66, s{sG}, {k}\ns_cmp_ge_u32 s66, 7\ns_cselect_b32 s64, 7, 0\ns_sub_u32 s66, s66, s64\ns_lshl_b32 s66, s66, 4\ns_add_u32 s65, s65, s66\ns_and_b32 s66, s65, 7\ns_lshr_b32 s65, s65, 3\nv_min_u32 v{vT0}, 55, v{vL}\n"
        if kind in "EF":
            pre += f"s_bitcmp{1 if kind == 'E' else 0}_b32 s65, 1\ns_cselect_b32 s64, 57344, 0\ns_mul_i32 s65, s65, 114688\ns_add_u32 s65, s65, s64\ns_mul_i32 s66, s66, 7168\ns_add_u32 s65, s65, s66\nv_lshlrev_b32 v{vT0}, 7, v{vT0}"
            return [jVM(f"buffer_load_dword v{vJUNK}, v{vT0}, {W2}, s65 offen", None, pre)]
        pre += f"s_bitcmp{0 if kind == 'G' else 1}_b32 s65, 1\ns_cselect_b32 s64, 128, 0\ns_lshl_b32 s65, s65, 8\ns_add_u32 s65, s65, s64\ns_mul_i32 s66, s66, {56*3584}\ns_add_u32 s65, s65, s66\nv_mul_u32_u24 v{vT0}, 3584, v{vT0}"
        return [jVM(f"buffer_load_dword v{vJUNK}, v{vT0}, {W1}, s65 offen", None, pre)]
    for kind in "EFGI":
        for k in range(7): HJ[f"{kind}{k}"] = (lambda kind=kind, k=k: hfill(kind, k))
    for k in range(4): HJ[f"O{k}"] = (lambda k=k: touch(WO, 49, hg, k, 4))
    used = set((a1 + " " + a2 + " " + a3 + " " + a7 + " " + a5 + " " + a6 + " " + kvt + " " + qp + " " + p41 + " " + p42).split())
    def jobs(sq, T=None): return sum(((T or J)[a_]() for a_ in sq.split()), [])
    hline = f"""s_lshr_b32 s65, s{sWG}, 2
    s_mul_i32 s98, s65, 28672
    s_and_b32 s65, s{sM}, 3
    s_lshl_b32 s65, s65, 7
    s_add_u32 s98, s98, s65
    s_lshl_b32 s62, s{sW}, 12
    s_add_u32 s98, s98, s62
    s_add_u32 s99, s98, 16384
    s_cmp_eq_u32 s{sW}, 3
    s_cselect_b32 s99, {OOB}, s99
    s_cselect_b32 s61, 0, 16384
    v_bfe_u32 v77, v{vL}, 3, 1
    v_mul_u32_u24 v77, s61, v77
    v_and_b32 v30, 7, v{vL}
    v_lshl_add_u32 v77, v30, 9, v77"""
    roles = f"""s_lshl_b32 s61, s{sG}, 1
    s_add_u32 s62, s61, s{sPSW}
    s_lshl_b32 s{sTQ}, s62, 2
    s_add_u32 s{sTQ}, s{sTQ}, s{sW}
    s_and_b32 s{sHEAD}, s{sM}, 15
    s_lshr_b32 s62, s{sM}, 4
    s_add_u32 s{sRB}, s61, s62
    s_lshl_b32 s{sTA}, s{sRB}, 2
    s_add_u32 s{sTA}, s{sTA}, s{sW}
    s_mul_i32 s61, s{sM}, 37
    s_lshr_b32 s{sR4}, s61, 8
    s_mul_i32 s62, s{sR4}, 7
    s_sub_u32 s{sNB}, s{sM}, s62
    s_lshl_b32 s{sCOL}, s{sNB}, 7
    s_and_b32 s61, s{sW}, 1
    s_lshr_b32 s{sKH}, s{sW}, 1
    s_lshl_b32 s{sTO}, s{sG}, 2
    s_and_b32 s{sR4}, s{sR4}, 1
    s_add_u32 s{sTO}, s{sTO}, s{sR4}
    s_lshl_b32 s{sTO}, s{sTO}, 1
    s_add_u32 s{sTO}, s{sTO}, s61
    s_lshl_b32 s{sEX}, s{sW}, 12
    {panel_addr(vPAN, 896)}
    v_and_b32 v{vT0}, 3, v{vL}
    v_lshlrev_b32 v{vT0}, 3, v{vT0}
    v_bfe_u32 v{vT1}, v{vL}, 4, 1
    v_lshl_add_u32 v{vT0}, v{vT1}, 5, v{vT0}
    v_bfe_u32 v{vT1}, v{vL}, 2, 2
    v_lshl_add_u32 v16, v{vT1}, 6, v{vT0}
    v_lshl_add_u32 v16, v{vHALF}, 9, v16
    v_lshl_add_u32 v{vT0}, v{vT1}, 7, v{vT0}
    v_bfe_u32 v{vT1}, v{vL}, 3, 1
    v_lshl_add_u32 v{vT0}, v{vT1}, 6, v{vT0}
    v_lshl_add_u32 v{vTN0}, v{vHALF}, 10, v{vT0}
    v_lshl_add_u32 v{vTP0}, v{vHALF}, 9, v{vT0}
    v_xor_b32 v{vTN1}, 64, v{vTN0}
    v_xor_b32 v{vTP1}, 64, v{vTP0}
    s_lshl_b32 s62, s{sKH}, 6
    v_xor_b32 v{vR0}, s62, v{vTP0}
    v_xor_b32 v{vR0+1}, s62, v{vTP1}"""
    prepA = f"""s_mul_i32 s{sLK}, s{sW}, 6144
    s_add_u32 s{sLK}, s{sLK}, {L_K}
    s_lshl_b32 s61, s{sHEAD}, 6
    s_lshl_b32 s62, s{sRB}, 2
    s_mul_i32 s63, s{sW}, 3
    s_add_u32 s62, s62, s63
    s_sub_u32 s62, s62, 8"""
    for q in range(3):
        prepA += f"""
        s_add_u32 s63, s62, {q}
        s_add_u32 s64, s63, s61
        s_mul_i32 s64, s64, 1792
        s_add_u32 s64, s64, {KG}
        s_cmp_lt_i32 s63, 0
        s_cselect_b32 s{sK0+q}, {OOB}, s64"""
    prepA += f"""
    v_lshlrev_b32 v{vT0}, 9, v{vHALF}
    v_lshl_add_u32 v{vT0}, v{vL31}, 3, v{vT0}
    {put('QA', vT0)}
    s_lshl_b32 s61, s{sW}, 11
    s_add_u32 s61, s61, {L_K}
    v_add_u32 v{vT0}, s61, v{vT0}
    {put('KA', vT0)}
    v_mul_u32_u24 v{vT0}, 448, v{vHALF}
    v_lshl_add_u32 v{vT0}, v{vL31}, 4, v{vT0}
    {put('VS', vT0)}
    s_lshl_b32 s{sQO}, s{sTA}, 4
    s_add_u32 s{sQO}, s{sQO}, s{sHEAD}
    s_and_b32 s61, s{sQO}, 127
    s_lshl_b32 s61, s61, 2
    s_add_u32 s61, s61, s{sCTL}
    s_add_u32 s{sFO}, s61, {C_FO}
    s_lshl_b32 s{sQO}, s{sQO}, 11
    s_add_u32 s{sQO}, s{sQO}, {QO}
    v_min_u32 v{vT0}, 13, v{vL}
    v_and_b32 v{vT1}, 1, v{vT0}
    v_mul_u32_u24 v{vT1}, 27, v{vT1}
    s_mul_i32 s61, s{sHEAD}, 28
    v_add_u32 v{vT1}, s61, v{vT1}
    v_lshrrev_b32 v{vT2}, 6, v{vT1}
    v_bfe_u32 v{vT3}, v{vT0}, 1, 1
    v_mad_u32_u24 v{vT2}, v{vT3}, 7, v{vT2}
    v_lshrrev_b32 v{vT3}, 2, v{vT0}
    v_add_u32 v{vT3}, s62, v{vT3}
    v_max_i32 v{vT3}, 0, v{vT3}
    v_mad_u32_u24 v{vT2}, v{vT3}, 14, v{vT2}
    v_lshlrev_b32 v{vT2}, 7, v{vT2}
    v_add_u32 v{vT2}, {FKV}, v{vT2}
    v_lshrrev_b32 v{vT1}, 5, v{vT1}
    s_and_b32 s61, s{sTA}, 7
    s_lshl_b32 s61, s61, 6
    s_add_u32 s61, s61, s{sCTL}
    s_add_u32 s61, s61, {C_FQ}
    v_lshl_add_u32 v{vT1}, v{vT1}, 2, s61
    v_cmp_gt_u32 vcc, 12, v{vT0}
    v_cndmask_b32 v{vT0}, v{vT1}, v{vT2}, vcc
    {put('PA', vT0)}
    {panel_addr(120, 3584)}
    {put('P1a', 120)}
    {put('P1b', 121)}
    {put('P1c', 122)}
    {put('P1d', 123)}
    s_mul_i32 s{sWOL}, s{sW}, 14336
    s_bfe_u32 s61, s{sJ}, 0x10001
    s_lshl_b32 s{sW1C}, s{sJ}, 1
    s_add_u32 s{sW1C}, s{sW1C}, s61
    s_lshl_b32 s{sW1C}, s{sW1C}, 7
    s_xor_b32 s{sW1D}, s{sW1C}, 128
    s_lshl_b32 s61, s{sNB}, 1
    s_add_u32 s{sCT}, s61, s{sKH}
    s_lshl_b32 s61, s{sCT}, 7
    s_add_u32 s{sNUS}, s61, {NU}
    v_and_b32 v{vT0}, 7, v{vL}
    v_bfe_u32 v{vT1}, v{vL}, 3, 2
    v_min_u32 v{vT1}, 2, v{vT1}
    v_min_u32 v{vT2}, 1, v{vT1}
    v_add_u32 v{vT1}, v{vT1}, v{vT2}
    v_mul_u32_u24 v{vT1}, 1792, v{vT1}
    v_lshl_add_u32 v{vT1}, v{vT0}, 4, v{vT1}
    {put('NU', vT1)}"""
    kpad = f"v_mov_b32 v121, 0\nv_lshl_add_u32 v122, v{vL31}, 3, s{sLK}\ns_mov_b32 exec_hi, 0"
    for q in range(3): kpad += f"\ns_cmp_eq_u32 s{sK0+q}, {OOB}\ns_cselect_b32 s64, {NEG>>16:#x}, 0\nv_mov_b32 v120, s64\nds_write_b64 v122, v[120:121] offset:{2048*q+1792}"
    kpad += "\ns_mov_b64 exec, -1"
    vKS = 216; vQS = 224
    def b_pR():
        A(roles)
        A(f"""v_add_u32 v{vWQ}, {L_WQ}, v16
        v_lshrrev_b32 v{vPQ}, 2, v{vL}
        v_mul_u32_u24 v{vPQ}, 2688, v{vPQ}
        v_and_b32 v17, 3, v{vL}
        v_lshl_add_u32 v{vPQ}, v17, 4, v{vPQ}""")
        for i in range(1, 4): A(f"v_add_u32 v{vPQ+i}, {i*(16*2688-1024)}, v{vPQ}")
    def b_pF():
        A(f"""s_lshl_b32 s62, s{sR4}, 1
        s_add_u32 s62, s62, s{sNB}
        s_lshl_b32 s62, s62, 1
        s_add_u32 s62, s62, s{sG}
        s_mul_i32 s64, s62, 37
        s_lshr_b32 s64, s64, 8
        s_mul_i32 s64, s64, 7
        s_sub_u32 s62, s62, s64
        s_mul_i32 s63, s{sW}, 7""")
        for q in range(7):
            A(f"""s_add_u32 s64, s62, {q}
            s_cmp_ge_u32 s64, 7
            s_cselect_b32 s65, 7, 0
            s_sub_u32 s64, s64, s65
            s_add_u32 s64, s64, s63
            s_and_b32 s65, s64, 0xfe
            s_lshr_b32 s66, s64, 1
            s_and_b32 s66, s66, 2
            s_add_u32 s64, s64, s66
            s_add_u32 s{sFT+q}, s64, s65""")
    def b_pO():
        A(f"""v_mul_u32_u24 v{vROW}, 896, v{vL31}
        v_lshl_add_u32 v{vROW}, v{vHALF}, 4, v{vROW}
        s_mul_i32 s62, s{sTO}, 28672
        s_lshl_b32 s61, s{sCT}, 6
        s_add_u32 s{sROW}, s62, s61
    """)
        A(f"""s_lshl_b32 s61, s{sW}, 9
        s_add_u32 s61, s61, {L_VEC}
        v_lshl_add_u32 v{vVEC}, v{vHALF}, 4, s61
        v_lshl_add_u32 v{vT0}, v{vL31}, 4, s61
        {put('VW', vT0)}
        s_and_b32 s61, s{sTO}, 7
        s_lshl_b32 s61, s61, 6
        s_add_u32 s61, s61, s{sCTL}
        s_lshl_b32 s62, s{sKH}, 5
        s_add_u32 s61, s61, s62
        s_add_u32 s{sFOP}, s61, {C_FO}
        s_lshl_b32 s62, s{sTO}, 1
        s_add_u32 s62, s62, s{sKH}
        s_lshl_b32 s62, s62, 14
        s_add_u32 s{sOS}, s62, {QO}
        s_mul_i32 s{sSTS}, s{sTO}, 3584
        s_lshl_b32 s61, s{sNB}, 9
        s_add_u32 s{sSTS}, s{sSTS}, s61
        s_lshl_b32 s61, s{sKH}, 3
        s_add_u32 s{sSTS}, s{sSTS}, s61
        s_add_u32 s{sSTS}, s{sSTS}, {STATS}
    """)
        A(f"""s_mul_i32 s{sYS}, s{sTO}, 28672
        s_lshl_b32 s61, s{sCT}, 11
        s_add_u32 s{sYS}, s{sYS}, s61
        s_and_b32 s61, s{sTO}, 7
        s_lshl_b32 s61, s61, 4
        s_add_u32 s61, s61, s{sCT}
        s_lshl_b32 s61, s61, 2
        s_add_u32 s61, s61, s{sCTL}
        s_add_u32 s{sFY}, s61, {C_FY}""")
    def b_pQ():
        A(f"""s_and_b32 s61, s{sTQ}, 7
        s_lshl_b32 s61, s61, 6
        s_add_u32 s{sFHP}, s61, s{sCTL}
        s_lshl_b32 s62, s{sJ}, 2
        s_add_u32 s62, s62, s{sFHP}
        s_add_u32 s{sFQ}, s62, {C_FQ}
        s_mul_i32 s{sHS}, s{sTQ}, 28672
        s_mul_i32 s{sKVS}, s{sTQ}, 1792
        s_lshl_b32 s{sQS}, s{sTQ}, 15
        s_add_u32 s{sQS}, s{sQS}, {QO}
        s_mul_i32 s{sFKV}, s{sTQ}, 14
        s_add_u32 s{sFKV}, s{sFKV}, s{sJ}
        s_lshl_b32 s{sFKV}, s{sFKV}, 7
        s_add_u32 s{sFKV}, s{sFKV}, {FKV}
    """)
    def b_pS():
        A(f"""s_lshl_b32 s61, s{sJ}, 3""")
        for a_ in range(4):
            A(f"""v_add3_u32 v{vT0}, v{vHALF}, s61, {2*a_}
            v_mul_u32_u24 v{vT1}, 147, v{vT0}
            v_lshrrev_b32 v{vT1}, 10, v{vT1}
            v_add_lshl_u32 v{vT0}, v{vT0}, v{vT1}, 8
            v_lshl_add_u32 v{vQS+a_}, v{vL31}, 3, v{vT0}""")
        A(f"s_cmp_ge_u32 s{sJ}, 7\ns_cbranch_scc1 L_va\ns_lshl_b32 s61, s{sJ}, 4\ns_add_u32 s{sKVS}, s{sKVS}, {KG}")
        for i in range(8):
            A(f"""v_add3_u32 v{vT0}, v{vHALF}, s61, {2*i}
            v_mul_u32_u24 v{vT1}, 147, v{vT0}
            v_lshrrev_b32 v{vT1}, 10, v{vT1}
            v_mul_u32_u24 v{vT1}, {64*1792-7*256}, v{vT1}
            v_lshl_add_u32 v{vT0}, v{vT0}, 8, v{vT1}
            v_lshl_add_u32 v{vKS+i}, v{vL31}, 3, v{vT0}""")
        A(f"s_branch L_vb\nL_va:\ns_sub_u32 s61, s{sJ}, 7\ns_lshl_b32 s61, s61, 6\ns_add_u32 s{sKVS}, s{sKVS}, {VG}")
        for t in range(2):
            A(f"""v_add3_u32 v{vT0}, v{vL31}, s61, {32*t}
            v_lshrrev_b32 v{vT1}, 2, v{vT0}
            v_mul_u32_u24 v{vT1}, 147, v{vT1}
            v_lshrrev_b32 v{vT1}, 10, v{vT1}
            v_mul_u32_u24 v{vT1}, {64*1792-448}, v{vT1}
            v_lshl_add_u32 v{vT0}, v{vT0}, 4, v{vT1}
            v_mul_u32_u24 v{vT1}, 448, v{vHALF}
            v_add_u32 v{vKS+t}, v{vT0}, v{vT1}""")
        for i in range(2, 8): A(f"v_mov_b32 v{vKS+i}, 0")
        A("L_vb:")
    J.update(pR=lambda: [b_pR], pF=lambda: [b_pF], pO=lambda: [b_pO], pQ=lambda: [b_pQ], pS=lambda: [b_pS], pA=lambda: [lambda: (A(prepA), A(kpad), [lg.issue() for _ in range(3)])])
    A(hline)
    A(put('XA', 9))
    A(f"""v_lshlrev_b32 v{vL16}, 4, v{vL}
    v_lshrrev_b32 v{vHALF}, 5, v{vL}
    v_and_b32 v{vL31}, 31, v{vL}
    s_getreg_b32 s46, hwreg(HW_REG_XCC_ID, 0, 4)
    s_mov_b32 s{sUNI}, 0
    s_lshl_b32 s{sCTL}, s{sG}, 12
    s_add_u32 s{sCTL}, s{sCTL}, {CTL}
    v_and_b32 v30, 7, v{vL}
    v_lshrrev_b32 v31, 3, v{vL}
    v_xor_b32 v32, v30, v31
    v_lshlrev_b32 v32, 4, v32
    v_lshl_add_u32 v32, v30, 7, v32
    v_add_u32 v32, {L_X}, v32
    s_lshl_b32 s61, s{sW}, 10
    v_add_u32 v33, s61, v32
    s_mov_b32 s86, 0x07060500
    s_mov_b32 s87, 0x07060501
    s_mov_b32 s88, 0x07060502
    s_mov_b32 s89, 0x07060503
    s_add_u32 s61, s46, 1
    v_cvt_f32_u32 v18, s61
    s_lshl_b32 s61, s{sWG}, 7
    s_add_u32 s90, s61, {XCCG}
    s_mov_b32 s66, 0xffff0000
    s_cmp_eq_u32 s{sHLP}, 1
    s_cbranch_scc1 L_h2""")
    main = A.lines; A.lines = []; hist = A.hist; A.hist = []
    A("L_h2:")
    A(f"""v_lshrrev_b32 v20, 2, v{vL}
    v_bfe_u32 v21, v{vL}, 3, 2
    v_xor_b32 v21, s{sW}, v21
    v_lshlrev_b32 v21, 5, v21
    v_lshl_add_u32 v20, v20, 7, v21
    v_and_b32 v21, 3, v{vL}
    v_lshl_add_u32 v20, v21, 3, v20
    v_add_u32 v20, {L_B}, v20
    v_and_b32 v22, 48, v{vL}
    s_and_b32 s61, s{sUI}, 1
    s_mul_i32 s62, s61, 448
    s_add_u32 s62, s62, {L_SILU}
    v_add_u32 v21, s62, v22
    s_mul_i32 s61, s61, 56
    s_lshr_b32 s62, s{sUI}, 1
    s_lshl_b32 s62, s62, 2
    s_add_u32 s61, s61, s62
    s_add_u32 s61, s61, s{sW}
    s_lshl_b32 s61, s61, 7
    s_add_u32 s84, s61, {S0U}
    s_cmp_ge_u32 s{sUI}, 28
    s_cselect_b32 s84, {OOB}, s84
    s_lshl_b32 s{sHI}, s{sG}, 2
    s_add_u32 s{sHI}, s{sHI}, s{sM}
    s_sub_u32 s{sHI}, s{sHI}, 28
    v_bfe_u32 v24, v2, 1, 2
    v_and_b32 v25, 0xf1, v2
    v_lshl_add_u32 v25, v24, 2, v25
    v_bfe_u32 v24, v2, 3, 1
    v_lshl_add_u32 v25, v24, 1, v25
    v_lshlrev_b32 v25, 2, v25
    v_add_u32 v25, {L_SILU}, v25
    s_waitcnt vmcnt(10)
    v_lshlrev_b32 v26, 16, v8
    v_and_b32 v27, 0xffff0000, v8
    v_mul_f32 v28, 0xbfb8aa3b, v26
    v_mul_f32 v29, 0xbfb8aa3b, v27
    v_exp_f32 v28, v28
    v_exp_f32 v29, v29
    v_add_f32 v28, 1.0, v28
    v_add_f32 v29, 1.0, v29
    v_rcp_f32 v28, v28
    v_rcp_f32 v29, v29
    v_mul_f32 v26, v26, v28
    v_mul_f32 v27, v27, v29
    v_cvt_pk_bf16_f32 v26, v26, v27
    ds_write_b32 v25, v26
    s_waitcnt lgkmcnt(0)
    s_mul_i32 s{sTAG}, s{sTAG}, 0x9E3779B1
    s_add_u32 s{sTAG}, s{sTAG}, 0x7F4A7C15
    v_mov_b32 v{vTAG}, s{sTAG}
    s_waitcnt vmcnt(3)""")
    barrier()
    stamp("B1")
    lg.n = lg.done = 0
    toks = []
    for s_ in range(7):
        DS(f"ds_read_b128 v[{140+4*s_}:{143+4*s_}], v21 offset:{64*s_}")
        DS(f"ds_read_b64_tr_b16 v[{168+4*s_}:{169+4*s_}], v20 offset:{4096*s_}")
        toks.append(DS(f"ds_read_b64_tr_b16 v[{170+4*s_}:{171+4*s_}], v20 offset:{4096*s_+2048}"))
    for s_ in range(7):
        lg.wait(toks[s_])
        A(f"v_mfma_f32_16x16x32_bf16 v[24:27], v[{168+4*s_}:{171+4*s_}], v[{140+4*s_}:{143+4*s_}], {'0' if s_ == 0 else 'v[24:27]'}")
    A(f"""s_mov_b32 exec_lo, 0x00010001
    s_mov_b32 exec_hi, 0x00010001
    v_perm_b32 v24, v24, v{vTAG}, s86
    v_perm_b32 v25, v25, v{vTAG}, s87
    v_perm_b32 v26, v26, v{vTAG}, s88
    v_perm_b32 v27, v27, v{vTAG}, s89
    buffer_store_dwordx4 v[24:27], v22, {WS}, s84 offen sc1
    s_mov_b64 exec, -1""")
    stamp("gemv")
    xcc = lambda l: f"""s_cmp_lg_u32 s{sW}, 0
    s_cbranch_scc1 {l}
    v_perm_b32 v136, v18, v{vTAG}, s86
    v_perm_b32 v137, v18, v{vTAG}, s87
    v_perm_b32 v138, v18, v{vTAG}, s88
    v_perm_b32 v139, v18, v{vTAG}, s89
    s_mov_b64 exec, 1
    buffer_store_dwordx4 v[136:139], off, {WS}, s90 sc1
    s_mov_b64 exec, -1
    {l}:"""
    A(xcc("L_nx1"))
    A(f"""s_lshl_b32 s85, s{sHI}, 2
    s_add_u32 s85, s85, s{sW}
    s_lshl_b32 s61, s85, 8
    s_add_u32 s61, s61, {CTL}
    v_and_b32 v11, 1, v{vL}
    v_lshlrev_b32 v11, 7, v11
    buffer_load_dword v{vJUNK}, v11, {WS}, s61 offen sc1
    buffer_load_dword v{vJUNK}, v77, {OUT}, s98 offen sc1""")
    sv = (vm.n, vm.done); h0 = jobs(hp0, HJ); nh0 = len(h0); run(h0, 99); vm.n, vm.done = sv
    A(f"s_cmp_eq_u32 s{sW}, 0\ns_cbranch_scc1 L_hx\ns_waitcnt vmcnt({3+nh0})\nL_hx:\ns_waitcnt vmcnt({4+nh0})")
    barrier()
    A("s_branch L_w3")
    tail.append(("raw", A.lines)); A.lines = main; A.hist = hist
    run(jobs(a1), 99)
    A(f"""s_waitcnt lgkmcnt(0)
    s_mul_i32 s{sTAG}, s{sTAG}, 0x9E3779B1
    s_add_u32 s{sTAG}, s{sTAG}, 0x7F4A7C15
    v_mov_b32 v{vTAG}, s{sTAG}
""")
    vm.wait(tx)
    barrier()
    stamp("B0")
    A(xcc("L_nx2"))
    run(jobs(a2), 99)
    A("L_w3:\ns_mov_b32 s66, 0xffff0000")
    lg.n = lg.done = 0
    tk = [DS(f"ds_read_b128 v[{40+4*i}:{43+4*i}], v32 offset:{1024*i}") for i in range(7)]
    DS("ds_read_b128 v[68:71], v33"); town = DS("ds_read_b128 v[72:75], v33 offset:4096")
    for i in range(7):
        lg.wait(tk[i])
        for d in range(4):
            A(f"v_lshlrev_b32 v{80+8*i+2*d}, 16, v{40+4*i+d}\nv_and_b32 v{81+8*i+2*d}, s66, v{40+4*i+d}")
    A.raw("    .p2align 3")
    A("v_pk_add_f32 v[34:35], v[80:81], v[82:83]")
    for i in range(2, 28): A(f"v_pk_add_f32 v[34:35], v[34:35], v[{80+2*i}:{81+2*i}]")
    def red8(r):
        A(f"""v_add_f32_dpp v{r}, v{r}, v{r} row_ror:8 row_mask:0xf bank_mask:0xf
        v_mov_b32 v{vT0}, v{r}
        v_permlane16_swap_b32 v{r}, v{vT0}
        v_add_f32 v{r}, v{r}, v{vT0}
        v_mov_b32 v{vT0}, v{r}
        v_permlane32_swap_b32 v{r}, v{vT0}
        v_add_f32 v{r}, v{r}, v{vT0}""")
    A("v_add_f32 v34, v34, v35"); red8(34)
    A("v_mul_f32 v34, 0xbb124925, v34\nv_mov_b32 v35, v34")
    A.raw("    .p2align 3")
    for i in range(28): A(f"v_pk_add_f32 v[{80+2*i}:{81+2*i}], v[{80+2*i}:{81+2*i}], v[34:35]")
    A("v_pk_mul_f32 v[36:37], v[80:81], v[80:81]")
    for i in range(1, 28): A(f"v_pk_fma_f32 v[36:37], v[{80+2*i}:{81+2*i}], v[{80+2*i}:{81+2*i}], v[36:37]")
    A("v_add_f32 v36, v36, v37"); red8(36)
    A("v_mov_b32 v37, 0x3727c5ac\nv_fmac_f32 v37, 0x3b124925, v36\nv_rsq_f32 v36, v37")
    lg.wait(town)
    for d in range(8):
        A(f"v_lshlrev_b32 v{40+2*d}, 16, v{68+d}\nv_and_b32 v{41+2*d}, s66, v{68+d}")
    A("v_mov_b32 v37, v36")
    for d in range(8): A(f"v_pk_add_f32 v[{40+2*d}:{41+2*d}], v[{40+2*d}:{41+2*d}], v[34:35]")
    for d in range(8): A(f"v_pk_mul_f32 v[{40+2*d}:{41+2*d}], v[{40+2*d}:{41+2*d}], v[36:37]")
    A(f"""v_lshrrev_b32 v62, 2, v0
    v_lshlrev_b32 v62, 7, v62
    v_and_b32 v56, 3, v0
    v_lshl_add_u32 v62, v56, 4, v62
    v_add_u32 v56, {56*128}, v62
    s_lshl_b32 s61, s{sG}, 12
    s_add_u32 s61, s61, {XCCG-S0U}
    v_lshl_add_u32 v57, v{vL31}, 7, s61
    v_cmp_gt_u32 vcc, 224, v0
    v_cndmask_b32 v62, v57, v62, vcc
    v_cndmask_b32 v56, v57, v56, vcc
    v_lshlrev_b32 v57, 4, v0
    v_add_u32 v57, {L_MODV}, v57
    v_cmp_le_u32 vcc, 112, v0
    v_cndmask_b32 v63, 0, 1.0, vcc
    s_lshl_b32 s61, s{sW}, 8
    s_add_u32 s61, s61, {L_MODV}
    v_lshl_add_u32 v58, v31, 5, s61
    v_lshlrev_b32 v59, 4, v{vL31}
    v_add_u32 v59, {L_MODV+3584}, v59
    v_lshlrev_b32 v60, 9, v31
    v_lshl_add_u32 v60, v30, 4, v60
    v_fma_f32 v76, v18, 2.0, 1.0
    s_lshl_b32 s46, s{sM}, 2
    s_add_u32 s46, s46, s{sW}
    s_lshl_b32 s46, s46, 2
    s_add_u32 s46, s46, s{sCTL}""")
    stamp("stats")
    A(f"s_cmp_eq_u32 s{sHLP}, 1\ns_cbranch_scc1 L_w4")
    run(jobs(a3), 99)
    assert not wkv
    A("L_w4:")
    stamp("prep")
    A(f"""s_mov_b32 s{sCNT}, 0
    s_mov_b32 s61, {S0U}
    s_mov_b32 s64, 0x0c0c0400
    s_mov_b32 s65, 0x05040100
    L_s0:
    buffer_load_dwordx4 v[64:67], v62, {WS}, s61 offen sc1
    buffer_load_dwordx4 v[68:71], v56, {WS}, s61 offen sc1
    s_add_u32 s{sCNT}, s{sCNT}, 1
    s_cmp_ge_u32 s{sCNT}, {SPIN}
    s_cbranch_scc1 L_s0d
    s_waitcnt vmcnt(1)
    v_perm_b32 v72, v65, v64, s64
    v_perm_b32 v73, v67, v66, s64
    v_perm_b32 v72, v73, v72, s65
    v_cmp_ne_u32 s[62:63], s{sTAG}, v72
    s_waitcnt vmcnt(0)
    v_perm_b32 v74, v69, v68, s64
    v_perm_b32 v75, v71, v70, s64
    v_perm_b32 v74, v75, v74, s65
    v_cmp_ne_u32 vcc, s{sTAG}, v74
    s_or_b64 vcc, vcc, s[62:63]
    s_cbranch_vccnz L_s0
    L_s0d:
    s_waitcnt vmcnt(0)""")
    for r in range(64, 72): A(f"v_and_b32 v{r}, 0xffffff00, v{r}")
    A(f"""v_pk_add_f32 v[64:65], v[64:65], v[68:69]
    v_pk_add_f32 v[66:67], v[66:67], v[70:71]
    v_cvt_pk_bf16_f32 v68, v64, v65
    v_cvt_pk_bf16_f32 v69, v66, v67
    v_lshlrev_b32 v64, 16, v68
    v_and_b32 v65, 0xffff0000, v68
    v_lshlrev_b32 v66, 16, v69
    v_and_b32 v67, 0xffff0000, v69
    v_add_f32 v64, v64, v63
    v_add_f32 v65, v65, v63
    v_add_f32 v66, v66, v63
    v_add_f32 v67, v67, v63
    v_cvt_pk_bf16_f32 v68, v64, v65
    v_cvt_pk_bf16_f32 v69, v66, v67
    v_lshlrev_b32 v64, 16, v68
    v_and_b32 v65, 0xffff0000, v68
    v_lshlrev_b32 v66, 16, v69
    v_and_b32 v67, 0xffff0000, v69
    ds_write_b128 v57, v[64:67]
    s_waitcnt lgkmcnt(0)""")
    vm.drained(); lg.drained()
    barrier()
    stamp("S0")
    t0 = []
    for p in range(2):
        for q in range(2):
            DS(f"ds_read_b128 v[{80+16*p+4*q}:{83+16*p+4*q}], v58 offset:{1792+1024*p+16*q}")
            t0.append(DS(f"ds_read_b128 v[{88+16*p+4*q}:{91+16*p+4*q}], v58 offset:{1024*p+16*q}"))
    txc = DS("ds_read_b32 v61, v59")
    for p in range(2):
        for q in range(2):
            lg.wait(t0[2 * p + q])
            for e in range(0, 4, 2):
                r = 40 + 8 * p + 4 * q + e
                A(f"v_pk_fma_f32 v[{r}:{r+1}], v[{r}:{r+1}], v[{80+16*p+4*q+e}:{81+16*p+4*q+e}], v[{88+16*p+4*q+e}:{89+16*p+4*q+e}]")
        for d in range(4): A(f"v_cvt_pk_bf16_f32 v{112+4*p+d}, v{40+8*p+2*d}, v{41+8*p+2*d}")
        th = VM(f"buffer_store_dwordx4 v[{112+4*p}:{115+4*p}], v60, {OUT}, s{98+p} offen")
    lg.wait(txc)
    A(f"v_cmp_neq_f32 vcc, v76, v61\ns_cmp_eq_u64 vcc, 0\ns_cselect_b32 s{sUNI}, {0 if force_slow else 1}, 0")
    A(f"s_cmp_eq_u32 s{sHLP}, 1\ns_cbranch_scc1 L_help")

    run(jobs(a5), 99)
    ACC = 112; WB = 160
    tw = {}
    def ld(s_):
        b = WB + 8 * (s_ % 4); js = []
        tw[s_] = Tok()
        for t in range(2):
            js.append(jDS(f"ds_read_b64_tr_b16 v[{b+4*t}:{b+4*t+1}], v{vTN0-t} offset:{L_WKV+2048*s_}"))
            js.append(jDS(f"ds_read_b64_tr_b16 v[{b+4*t+2}:{b+4*t+3}], v{vTN0-t} offset:{L_WKV+2048*s_+512}", tw[s_]))
        return js
    for s_ in range(3): run(ld(s_), 4)
    vm.wait(th)
    flag(46)
    stamp("hpub")
    run(jobs(a6), 99)
    A(f"""v_and_b32 v{vT3}, 15, v{vL}
    v_lshlrev_b32 v{vT3}, 2, v{vT3}""")
    poll(vT3, f"s{sFHP}")
    stamp("S0b")
    if stop <= 1:
        A("s_branch L_fin\nL_help:\ns_waitcnt vmcnt(0)"); flag(46); return done()
    th = [Tok() for _ in range(28)]
    def hjobs(): return [jVM(f"buffer_load_dwordx4 v[{4*s_}:{4*s_+3}], v{vL16}, {OUT}, s{sHS} offen offset:{1024*(s_%4)} sc1", th[s_], f"s_add_u32 s{sHS}, s{sHS}, 4096" if (s_ % 4 == 0 and s_) else None) for s_ in range(28)]
    run(hjobs(), PRO)
    run(jobs(a7), 99)
    tQ = Tok()
    def kv_pass(vtype):
        sv = (vm.n, vm.done, lg.n, lg.done)
        mem = hjobs()[PRO:]
        mem += jobs(kvt); bulk = mem[28:] + jobs(qp); mem = mem[:28]
        tq = {}
        def ldq(s_):
            b = WB + 4 * (s_ % 8); tq[s_] = Tok()
            return [jDS(f"ds_read_b64_tr_b16 v[{b}:{b+1}], v{vWQ} offset:{1024*s_}"), jDS(f"ds_read_b64_tr_b16 v[{b+2}:{b+3}], v{vWQ} offset:{1024*s_+256}", tq[s_])]
        for s_ in range(28):
            vm.wait(th[s_].t); lg.wait(tw[s_].t)
            if s_ == 26: vm.wait(twq.t); barrier()
            b = WB + 8 * (s_ % 4)
            nx = ld(s_ + 3) if s_ + 3 < 28 else (ldq(2 * (s_ - 26)) + ldq(2 * (s_ - 26) + 1) if s_ >= 26 else [])
            for t in range(2):
                wf, hf = v(b + 4 * t, 4), v(4 * s_, 4)
                c = "0" if s_ == 0 else None
                if vtype: mfma(v(ACC + 16 * t, 16), hf, wf, c)
                else: mfma(v(ACC + 16 * t, 16), wf, hf, c)
                if t == 0:
                    run(mem, 1); run(nx, 1)
                else: run(nx, 3)
            if 'fine' in dbg and s_ in (0, 9, 18): stamp(f'k{s_}')
        stamp("kv")
        epi = []; last = Tok()
        for t in range(2):
            P = 192 + 8 * t
            for d in range(8):
                epi.append(f"v_cvt_pk_bf16_f32 v{P+d}, v{ACC+16*t+2*d}, v{ACC+16*t+2*d+1}")
                if vtype and d % 4 == 3: epi.append(jVM(f"buffer_store_dwordx4 v[{P+d-3}:{P+d}], v{vKS+t}, {WS}, s{sKVS} offen offset:{896*(d//4)} sc1", last))
                if not vtype and d % 2 == 1: epi.append(jVM(f"buffer_store_dwordx2 v[{P+d-1}:{P+d}], v{vKS+4*t+d//2}, {WS}, s{sKVS} offen sc1", last))
        for s_ in range(28):
            lg.wait(tq[s_].t)
            b = WB + 4 * (s_ % 8)
            mfma(v(ACC + 32, 16), v(b, 4), v(4 * s_, 4), "0" if s_ == 0 else None)
            if s_ + 4 < 28: run(ldq(s_ + 4), 2)
            if epi:
                if s_ >= 1: run(epi, 6)
            elif s_ >= QB and (len(bulk) >= 28 - s_ or s_ % 2 == 0): run(bulk, 1)
            if s_ == 8: barrier()
            if s_ == KVA: vm.wait(last.t); flag(sFKV, slow=True)
        run(bulk, 99)
        A(f"s_mov_b32 s61, {QSCALE:#x}")
        for d in range(8):
            A(f"v_mul_f32 v{ACC+32+2*d}, s61, v{ACC+32+2*d}\nv_mul_f32 v{ACC+33+2*d}, s61, v{ACC+33+2*d}\nv_cvt_pk_bf16_f32 v{208+d}, v{ACC+32+2*d}, v{ACC+33+2*d}")
            if d % 2 == 1: tQ.t = VM(f"buffer_store_dwordx2 v[{207+d}:{208+d}], v{vQS+d//2}, {WS}, s{sQS} offen")
        stamp("q")
        if KVA > 27: vm.wait(last.t); flag(sFKV, slow=True)
        stamp("kvpub")
        vm.wait(tQ.t); flag(sFQ)
        stamp("qpub")
        vm.n, vm.done, lg.n, lg.done = sv
    A(f"s_cmp_ge_u32 s{sJ}, 7\ns_cbranch_scc1 L_kvV")
    e0 = kv_pass(False)
    A("s_branch L_kvE\nL_kvV:")
    e1 = kv_pass(True)
    A("L_kvE:")
    vm.n = vm.done = 0; lg.n = lg.done = 0
    vP1 = 222
    getP1 = "\n".join(get(n_, vP1 + i) for i, n_ in enumerate(("P1a", "P1b", "P1c", "P1d")))
    def w1_jobs(second, per, first, tok=None):
        return dma_jobs(W1, vP1, 3584, per, f"s_mul_i32 s{sSRC}, s{sW}, {per*1024}\ns_add_u32 m0, s{sSRC}, {(L_P1 if second else L_P0)+first*1024}\ns_mul_i32 s{sSRC}, s{sSRC}, 28\ns_add_u32 s{sSRC}, s{sSRC}, s{sW1D if second else sW1C}" + (f"\ns_add_u32 s{sSRC}, s{sSRC}, {first*8*3584}" if first else ""), tok)
    def wo_half(second):
        return dma_jobs(WO, vPAN, 896, 8, f"""s_bitcmp{1 if second else 0}_b32 s{sR4}, 0
        s_cselect_b32 s65, 0, 7168
        s_add_u32 s65, s65, s{sWOL}
        s_mov_b32 m0, s65
        s_mul_i32 s{sSRC}, s65, 7
        s_add_u32 s{sSRC}, s{sSRC}, s{sCOL}""")
    slot = {}; nxt = [0]; nb1 = [0]
    def stage(k):
        assert k not in slot
        slot[k] = (nxt[0], Tok()); nxt[0] += 1
        return w2_dma(slot[k][0], sEX, BLK * k, slot[k][1])
    def wb(n):
        nb1[0] += n; return w1_jobs(1, n, 4 * (nb1[0] - n))
    vNU = 228
    J.update(O0=lambda: wo_half(0), O1=lambda: wo_half(1), Wa=lambda: w1_jobs(0, 14, 0),
             NU=lambda: [jVM(f"buffer_load_dwordx4 v[{vNU}:{vNU+3}], v232, {WS}, s{sNUS} offen sc1")],
             **{f"Wb{n}": (lambda n=n: wb(n)) for n in range(1, 11)}, **{f"S{k}": (lambda k=k: stage(k)) for k in range(9)})
    A(f"s_cmp_eq_u32 s{sHLP}, 2\ns_cbranch_scc1 L_p42")
    if p41: A(getP1)
    run(jobs(p41), 99)
    A("s_branch L_att\nL_p42:")
    run(jobs(p42), 99)
    A("s_branch L_att")
    A("L_help:")
    A("s_waitcnt vmcnt(0)")
    flag(46)
    A(f"""s_lshl_b32 s85, s{sHI}, 2
    s_add_u32 s85, s85, s{sW}
    s_mul_i32 s61, s85, 896
    s_add_u32 s61, s61, {FKV}
    v_min_u32 v11, 6, v{vL}
    v_lshlrev_b32 v11, 7, v11
    buffer_load_dword v{vJUNK}, v11, {WS}, s61 offen sc1""")
    run(jobs(hp1, HJ), 99)
    A(panel_addr(4, 5376, "mod"))
    nuj = dma_jobs(WMOD, 4, 5376, 14, f"s_add_u32 s62, s{sHI}, 14\ns_lshl_b32 s{sSRC}, s62, 7\ns_mul_i32 s63, s{sW}, {112*5376}\ns_add_u32 s{sSRC}, s{sSRC}, s63\ns_cmp_eq_u32 s{sG}, 7\ns_cselect_b32 s{sSRC}, {OOB}, s{sSRC}\ns_mul_i32 s63, s{sW}, 14336\ns_add_u32 m0, s63, {L_B}")
    run(nuj, 8)
    A(roles); A(prepA)
    if 'QP' in used: run(jobs('QP'), 9)
    run(nuj, 99)
    A(f"s_mov_b32 s{sW1D}, {OOB}\ns_cmp_eq_u32 s{sG}, 7\ns_cbranch_scc1 L_hn")
    A(panel_addr(4, 3584, "mod"))
    w1h = dma_jobs(W1, 4, 3584, 14, f"s_lshl_b32 s{sSRC}, s{sHI}, 7\ns_mul_i32 s63, s{sW}, {112*3584}\ns_add_u32 s{sSRC}, s{sSRC}, s63\ns_mul_i32 m0, s{sW}, 14336")
    run(w1h, 8)
    A(f"v_add_u32 v21, {L_SILU}, v22\ns_waitcnt vmcnt(8)")
    barrier()
    def gemv14(va, vb):
        lg.n = lg.done = 0
        toks = []
        def gemv_ld(s_):
            b = 32 + 8 * (s_ % 5)
            DS(f"ds_read_b128 v[{b}:{b+3}], v{va} offset:{64*s_}")
            DS(f"ds_read_b64_tr_b16 v[{b+4}:{b+5}], v{vb} offset:{4096*s_}")
            toks.append(DS(f"ds_read_b64_tr_b16 v[{b+6}:{b+7}], v{vb} offset:{4096*s_+2048}"))
        for s_ in range(4): gemv_ld(s_)
        for s_ in range(14):
            lg.wait(toks[s_])
            b = 32 + 8 * (s_ % 5)
            A(f"v_mfma_f32_16x16x32_bf16 v[24:27], v[{b}:{b+3}], v[{b+4}:{b+7}], {'0' if s_ == 0 else 'v[24:27]'}")
            if s_ + 4 < 14: gemv_ld(s_ + 4)
    gemv14(21, 20)
    A(f"""s_sub_u32 s61, s{sHI}, 14
    s_cmp_lt_u32 s61, 7
    s_cselect_b32 s62, 1.0, 0
    s_lshl_b32 s61, s{sHI}, 8
    s_lshl_b32 s63, s{sW}, 6
    s_add_u32 s61, s61, s63
    s_add_u32 s61, s61, {NU}
    v_lshlrev_b32 v23, 2, v{vL}
    v_cvt_pk_bf16_f32 v24, v24, v24
    v_and_b32 v24, 0xffff0000, v24
    v_add_f32 v24, s62, v24
    v_mov_b32 v29, s{sTAG}
    v_mov_b32_dpp v25, v24 quad_perm:[1,0,3,2] row_mask:0xf bank_mask:0xf
    v_cvt_pk_bf16_f32 v28, v24, v25
    s_mov_b64 exec, 0x5555
    buffer_store_dwordx2 v[28:29], v23, {WS}, s61 offen sc1
    s_mov_b64 exec, -1""")
    run(w1h, 99)
    A("s_branch L_hn2\nL_hn:\ns_waitcnt vmcnt(0)\nL_hn2:")
    barrier()
    A(kpad)
    A(f"""s_mul_i32 s61, s85, 1792
    s_add_u32 s61, s61, {STATS}
    v_min_u32 v11, 13, v{vL}
    v_lshlrev_b32 v11, 7, v11
    buffer_load_dword v{vJUNK}, v11, {WS}, s61 offen sc1""")
    run(jobs(hp2, HJ), 99)
    A("L_att:")
    if stop <= 2: return done()

    S = 0; QF = 144; KB = 152; OA = 184; VB = 200
    vKA, vVA, vVS, vQA, vMX = 216, 217, 218, 219, 226
    vm.n = vm.done = 0; lg.n = lg.done = 0
    A(f"{get('PA', vT3)}\n{get('QA', vQA)}\n{get('VS', vVS)}")
    def masks():
        A(f"v_lshlrev_b32 v{vT0}, 2, v{vHALF}\nv_sub_u32 v{vT0}, v{vL31}, v{vT0}\nv_mov_b32 v{vT1}, {NEG:#x}")
        mk = (62, 64, 80, 82)
        for r in range(16):
            i0 = 8 * (r >> 2) + (r & 3)
            A(f"v_cmp_gt_i32 s[{mk[r&3]}:{mk[r&3]+1}], {i0}, v{vT0}")
            if r & 3 == 3:
                for q in range(4):
                    A(f"v_cndmask_b32 v{S+128+r-3+q}, 0, v{vT1}, s[{mk[q]}:{mk[q]+1}]")
                    A(f"v_cndmask_b32 v{S+r-3+q}, v{vT1}, 0, s[{mk[q]}:{mk[q]+1}]")
    if not mlate: masks()
    stamp("pre1")
    poll(vT3, "0")
    stamp("S1")
    for q in range(3):
        A(f"s_add_u32 m0, s{sLK}, {2048*q}")
        VM(f"buffer_load_dwordx4 v{vL16}, {WS}, s{sK0+q} offen sc1 lds")
    A("s_mov_b32 exec_hi, 0xffff")
    for q in range(3):
        A(f"s_add_u32 m0, s{sLK}, {2048*q}")
        VM(f"buffer_load_dwordx4 v{vL16}, {WS}, s{sK0+q} offen offset:1024 sc1 lds")
    A("s_mov_b64 exec, -1")
    for i in range(4):
        tq = VM(f"buffer_load_dwordx2 v[{QF+2*i}:{QF+2*i+1}], v{vQA}, {WS}, s{sQO} offen offset:{1024*(i>>1)+256*(i&1)} sc1")
    barrier()
    A("s_mov_b32 exec_lo, 0x0fffffff\ns_mov_b32 exec_hi, 0x0fffffff")
    vj = []
    for q in range(3):
        vj.append(jVM(f"buffer_load_dwordx4 v{vVS}, {WS}, s61 offen sc1 lds", None, f"s_add_u32 m0, s{sLK}, {L_V-L_K+2048*q}\ns_add_u32 s61, s{sK0+q}, {VG-KG}"))
        tv = Tok(); vj.append(jVM(f"buffer_load_dwordx4 v{vVS}, {WS}, s62 offen offset:1024 sc1 lds", tv, f"s_add_u32 s62, s{sK0+q}, {VG-KG-128}"))
    run(vj, 2)
    A(f"""s_not_b64 exec, exec
    v_mov_b32 v152, 0x3f803f80
    v_mov_b32 v153, v152
    v_mov_b32 v154, v152
    v_mov_b32 v155, v152
    v_add_u32 v184, s{sLK}, v{vL16}""")
    for i in range(6): DS(f"ds_write_b128 v184, v[152:155] offset:{L_V-L_K+1024*i}")
    A("s_mov_b64 exec, -1")
    if mlate: masks()
    A(f"""{get('KA', vKA)}
    {get('NU', 232)}
    {get('P1a', vP1)}
    {get('P1b', vP1+1)}
    {get('P1c', vP1+2)}
    {get('P1d', vP1+3)}
    s_lshl_b32 s61, s{sW}, 11
    s_add_u32 s61, s61, {L_V}
    v_add_u32 v{vVA}, s61, v{vL16}
    v_mov_b32 v{vT0}, 0x3f80
    v_cmp_eq_u32 vcc, 0, v{vHALF}
    s_mov_b32 exec_lo, 0x0fffffff
    s_mov_b32 exec_hi, 0x0fffffff""")
    run(vj, 9)
    A("s_mov_b64 exec, -1")
    lg.all()
    vm.wait(tq)
    A(f"v_cndmask_b32 v{QF+6}, v{vT0}, v{QF+6}, vcc\nv_cndmask_b32 v{QF+7}, 0, v{QF+7}, vcc")
    barrier()
    stamp("Kin")
    svA = (vm.n, vm.done, lg.n, lg.done)
    def att_core(mem1):
        vm.n, vm.done, lg.n, lg.done = svA
        tk = []
        def ldk(n):
            b = KB + 8 * (n % 4)
            for i in range(4): k = DS(f"ds_read_b64 v[{b+2*i}:{b+2*i+1}], v{vKA} offset:{2048*n+1024*(i>>1)+256*(i&1)}")
            tk.append(k)
        for n in range(3): ldk(n)
        run(mem1, 3)
        def mx(n):
            return [f"v_max_f32 v{vMX}, v{S}, v{S+1}" if (n == 0 and r == 0) else f"v_max3_f32 v{vMX}, v{vMX}, v{S+16*n+r}, v{S+16*n+r+1}" for r in range(0, 16, 2)]
        for n in range(9):
            lg.wait(tk[n])
            b = KB + 8 * (n % 4)
            m_ = mx(n - 2) if n >= 2 else []
            mfma(v(S + 16 * n, 16), v(b, 4), v(QF, 4), None if n in (0, 8) else "0")
            if n + 3 < 9: ldk(n + 3)
            else: run(mem1, 1)
            run(m_, 2)
            mfma(v(S + 16 * n, 16), v(b + 4, 4), v(QF + 4, 4))
            if n < 2: run(mem1, 1)
            run(m_, 6)
        vm.wait(tv.t)
        barrier()
        tvv = []
        def ldv(n):
            b = VB + 8 * (n % 2)
            DS(f"ds_read_b128 v[{b}:{b+3}], v{vVA} offset:{2048*n}")
            tvv.append(DS(f"ds_read_b128 v[{b+4}:{b+7}], v{vVA} offset:{2048*n+1024}"))
        ldv(0); ldv(1)
        ON, MB = 160, 164
        run(mx(7), 9)
        if msub: A(f"v_mov_b32 v{vT1}, 0x3f803f80\nv_cndmask_b32 v{ON}, 0, v{vT1}, vcc\nv_cndmask_b32 v{ON+1}, 0, v{vT0}, vcc\nv_mov_b32 v{ON+2}, 0\nv_mov_b32 v{ON+3}, 0\nv_mov_b32 v{MB+2}, 0\nv_mov_b32 v{MB+3}, 0")
        run(mem1, 1); run(mx(8), 9)
        A(f"v_mov_b32 v{vT0}, v{vMX}\nv_permlane32_swap_b32 v{vMX}, v{vT0}\nv_max_f32 v{vMX}, v{vMX}, v{vT0}")
        stamp("qk")
        for i in range(8 if msub else 72):
            A(f"v_pk_add_f32 v[{S+2*i}:{S+2*i+1}], v[{S+2*i}:{S+2*i+1}], v[{vMX}:{vMX+1}] op_sel_hi:[1,0] neg_lo:[0,1] neg_hi:[0,1]")
            if i % 24 == 23: run(mem1, 1)
        if msub:
            A(f"""v_and_b32 v{vT0}, 0xffff0000, v{vMX}
            v_sub_f32 v{vT1}, v{vMX}, v{vT0}
            v_and_b32 v{vT2}, 0xffff0000, v{vT1}
            v_sub_f32 v{vT1}, v{vT1}, v{vT2}
            v_cvt_pk_bf16_f32 v{MB}, -v{vT0}, -v{vT2}
            v_cvt_pk_bf16_f32 v{MB+1}, -v{vT1}, 0""")
            mfma(v(S + 16, 16), v(ON, 4), v(MB, 4))
        def soft(n, s_, mid=None):
            r0 = S + 16 * n + 8 * s_
            for e in range(8):
                A(f"v_exp_f32 v{r0+e}, v{r0+e}")
                if e == 3 and mid: mid()
            for e in range(4): A(f"v_cvt_pk_bf16_f32 v{r0+e}, v{r0+2*e}, v{r0+2*e+1}")
        soft(0, 0)
        for i in range(18):
            n, s_ = i >> 1, i & 1
            mid = (lambda: mfma(v(S + 16 * (n + 2), 16), v(ON, 4), v(MB, 4))) if (msub and s_ == 1 and n + 2 < 9) else None
            if i + 1 < 18: soft((i + 1) >> 1, (i + 1) & 1, mid)
            if s_ == 0: lg.wait(tvv[n])
            mfma(v(OA, 16), v(VB + 8 * (n % 2) + 4 * s_, 4), v(S + 16 * n + 8 * s_, 4), "0" if i == 0 else None)
            if s_ == 1 and n + 2 < 9: ldv(n + 2)
            run(mem1, AR)
        assert not mem1
        A(f"""v_mov_b32 v{vT0}, v{OA+12}
        v_mov_b32 v{vT1}, v{OA+12}
        v_permlane32_swap_b32 v{vT0}, v{vT1}
        v_rcp_f32 v{vT1}, v{vT1}""")
        for d in range(8):
            A(f"v_pk_mul_f32 v[{OA+2*d}:{OA+2*d+1}], v[{OA+2*d}:{OA+2*d+1}], v[{vT1}:{vT1+1}] op_sel_hi:[1,0]\nv_cvt_pk_bf16_f32 v{KB+d}, v{OA+2*d}, v{OA+2*d+1}")
            if d >= 6: A(f"v_cndmask_b32 v{KB+d}, 0, v{KB+d}, vcc")
            if d % 4 == 3: to = VM(f"buffer_store_dwordx4 v[{KB+d-3}:{KB+d}], v{vL16}, {WS}, s{sQO} offen offset:{1024*(d//4)}")
        stamp("att")
        return to
    A(f"s_cmp_eq_u32 s{sHLP}, 2\ns_cbranch_scc1 L_at2")
    to = att_core(jobs(at1)); assert nb1[0] <= 10
    A(f"s_cmp_eq_u32 s{sHLP}, 1\ns_cbranch_scc1 L_hu0")
    main = A.lines; A.lines = []; hist = A.hist; A.hist = []
    A("L_hu0:\ns_waitcnt vmcnt(0)")
    sv2 = (vm.n, vm.done, lg.n, lg.done); flag(sFO)
    A(f"""s_lshl_b32 s61, s{sW}, 6
    v_add_u32 v4, s61, v{vL}
    v_add_u32 v5, 256, v4
    v_min_u32 v5, 447, v5
    s_lshl_b32 s85, s{sHI}, 2
    s_add_u32 s85, s85, s{sW}
    s_min_u32 s62, s85, 111
    s_lshl_b32 s62, s62, 5
    v_and_b32 v16, 15, v{vL}
    v_lshl_add_u32 v17, v16, 1, s62
    global_load_ushort v18, v17, s[40:41]""")
    for r, d in ((4, 6), (5, 7)):
        A(f"""v_and_b32 v{d}, 0x1f8, v{r}
        v_and_b32 v{vT0}, 3, v{r}
        v_lshl_add_u32 v{d}, v{vT0}, 1, v{d}
        v_bfe_u32 v{vT0}, v{r}, 2, 1
        v_add_lshl_u32 v{d}, v{d}, v{vT0}, 3
        v_add_u32 v{d}, {L_VEC}, v{d}
        v_lshlrev_b32 v{r}, 4, v{r}""")
    A(f"""s_mov_b32 s{sCNT}, 0
    s_mov_b32 s61, {NU}
    L_nu:
    buffer_load_dwordx4 v[8:11], v4, {WS}, s61 offen sc1
    buffer_load_dwordx4 v[12:15], v5, {WS}, s61 offen sc1
    s_add_u32 s{sCNT}, s{sCNT}, 1
    s_waitcnt vmcnt(0)
    v_cmp_ne_u32 vcc, s{sTAG}, v9
    v_cmp_ne_u32 s[62:63], s{sTAG}, v11
    v_cmp_ne_u32 s[64:65], s{sTAG}, v13
    v_cmp_ne_u32 s[82:83], s{sTAG}, v15
    s_or_b64 vcc, vcc, s[62:63]
    s_or_b64 s[64:65], s[64:65], s[82:83]
    s_or_b64 vcc, vcc, s[64:65]
    s_cbranch_vccz L_nud
    s_cmp_lt_u32 s{sCNT}, {SPIN}
    s_cbranch_scc1 L_nu
    L_nud:
    v_mov_b32 v9, v10
    v_mov_b32 v13, v14
    ds_write_b64 v6, v[8:9]
    ds_write_b64 v7, v[12:13]
    v_lshrrev_b32 v20, 2, v{vL}
    v_bfe_u32 v21, v{vL}, 3, 2
    v_xor_b32 v21, s{sW}, v21
    v_lshlrev_b32 v21, 5, v21
    v_lshl_add_u32 v20, v20, 7, v21
    v_and_b32 v21, 3, v{vL}
    v_lshl_add_u32 v20, v21, 3, v20
    v_add_u32 v20, {L_P0}, v20
    v_and_b32 v21, 1, v{vL}
    v_mul_u32_u24 v21, 896, v21
    v_and_b32 v22, 48, v{vL}
    v_sub_u32 v21, v22, v21
    v_add_u32 v21, {L_VEC+1792}, v21
    s_waitcnt lgkmcnt(0)""")
    barrier()
    A(f"""s_cmp_lg_u32 s{sG}, 7
    s_cbranch_scc1 L_hu
    s_cmp_lg_u32 s85, 112
    s_cbranch_scc1 L_hz
    s_mov_b64 exec, 1
    buffer_store_dword v{vTAG}, off, {WS}, 0 sc1
    s_mov_b64 exec, -1
    s_branch L_hz
    L_hu:""")
    gemv14(21, 20)
    A(f"""v_lshlrev_b32 v18, 16, v18
    s_lshl_b32 s61, s85, 8
    s_add_u32 s61, s61, {AUG}
    v_mov_b32 v31, s{sTAG}
    v_add_f32 v25, v25, v18
    v_cvt_pk_bf16_f32 v29, v24, v25
    v_lshlrev_b32 v26, 16, v29
    v_and_b32 v27, 0xffff0000, v29
    v_sub_f32 v24, v24, v26
    v_sub_f32 v25, v25, v27
    v_cvt_pk_bf16_f32 v28, v26, v24
    v_cvt_pk_bf16_f32 v30, v25, v27
    s_mov_b64 exec, 0xffff
    buffer_store_dwordx4 v[28:31], v{vL16}, {WS}, s61 offen sc1
    s_mov_b64 exec, -1
    L_hz:""")
    run(jobs(hz, HJ), 99)
    A("s_branch L_fin")
    tail.append(("raw", A.lines)); A.lines = main; A.hist = hist
    vm.n, vm.done, lg.n, lg.done = sv2

    def check(tok, va, soff, off):
        lr, lj = U("lr"), U("lj")
        vm.wait(tok.t)
        A(f"v_cmp_ne_u32 vcc, s{sTAG}, v{vJUNK}\ns_cmp_eq_u32 s{sUNI}, 0\ns_cbranch_scc1 {lr}\ns_cbranch_vccnz {lr}\n{lj}:")
        tail.append(f"""{lr}:
        s_mov_b32 s{sCNT}, 0
        {lr}a:
        buffer_load_dword v{vJUNK}, v{va}, {WS}, s{soff} offen offset:{off} sc1
        s_add_u32 s{sCNT}, s{sCNT}, 1
        s_waitcnt vmcnt(0)
        v_cmp_ne_u32 vcc, s{sTAG}, v{vJUNK}
        s_cbranch_vccz {lr}b
        s_cmp_lt_u32 s{sCNT}, {SPIN}
        s_cbranch_scc1 {lr}a
        {lr}b:
        s_cmp_eq_u32 s{sUNI}, 1
        s_cbranch_scc1 {lj}
        buffer_inv sc1
        s_waitcnt vmcnt(0)
        s_branch {lj}""")
    def look(tok, va, soff, off): return jVM(f"buffer_load_dword v{vJUNK}, v{va}, {WS}, s{soff} offen offset:{off} sc1", tok)

    vm.wait(to); flag(sFO); stamp("opub")
    barrier()
    assert 'Wa' not in at1
    run(w1_jobs(1, 14 - nb1[0], 4 * nb1[0]), 99)
    tw2 = vm.n; wa = w1_jobs(0, 14, 0); run(wa, 6)
    vSTA, vFY, vRS, vRA, vTA = 229, 228, 226, vT2, vT3
    sFYP, sYL, sRS, sFD, sSTL, sHST, sAU0, sAU1, sHC = 82, 83, 84, 85, 87, 88, 89, 90, 86
    ACC = 112; WB = 176; AU = 248; BA = (240, 232)
    A(f"""v_min_u32 v{vFY}, 13, v{vL}
    v_lshlrev_b32 v{vFY}, 2, v{vFY}
    s_lshl_b32 s62, s{sW}, 6
    s_add_u32 s62, s62, s{sCTL}
    s_add_u32 s{sFYP}, s62, {C_FY}
    s_lshl_b32 s62, s{sW}, 8
    s_add_u32 s62, s62, s{sCTL}
    s_lshl_b32 s63, s{sJ}, 2
    s_add_u32 s62, s62, s63
    s_add_u32 s{sFD}, s62, {C_FD}
    s_mul_i32 s{sRS}, s{sTQ}, 14
    s_add_u32 s{sRS}, s{sRS}, s{sJ}
    s_lshl_b32 s{sRS}, s{sRS}, 7
    s_add_u32 s{sRS}, s{sRS}, {RS2}
    s_mul_i32 s{sYL}, s{sTQ}, 28672
    s_mul_i32 s{sSTL}, s{sTQ}, 3584
    s_add_u32 s{sSTL}, s{sSTL}, {STATS}
    s_mul_i32 s{sHST}, s{sTQ}, 114688
    s_lshl_b32 s62, s{sW1C}, 5
    s_add_u32 s{sHST}, s{sHST}, s62
    s_add_u32 s{sHST}, s{sHST}, {HID}
    s_lshl_b32 s61, s{sW1C}, 3
    s_add_u32 s{sAU0}, s61, {AUG}
    s_xor_b32 s61, s61, 1024
    s_add_u32 s{sAU1}, s61, {AUG}
    v_lshlrev_b32 v{vSTA}, 11, v{vHALF}
    v_lshl_add_u32 v{vSTA}, v{vL31}, 4, v{vSTA}
    v_lshlrev_b32 v{vSTA+1}, 30, v{vHALF}
    v_add_u32 v{vSTA+1}, v{vSTA+1}, v{vSTA}
    v_add_u32 v{vT0}, {L_P1}, v{vTP0}
    v_add_u32 v{vT1}, {L_P1}, v{vTP1}
    v_cmp_eq_u32 s[80:81], 0, v{vHALF}
    v_lshlrev_b32 v{vRA}, 2, v{vL31}
    v_lshlrev_b32 v{vTA}, 7, v{vL31}""")
    for b_ in BA: A(f"v_accvgpr_write_b32 a{b_+3}, 0\nv_accvgpr_write_b32 a{b_+7}, 0")
    vm.wait(tw2)
    barrier()
    stamp("w1b")
    augl = f"buffer_load_dwordx4 v[144:147], v{vL16}, {WS}, s{sAU0} offen sc1\nbuffer_load_dwordx4 v[148:151], v{vL16}, {WS}, s{sAU1} offen sc1"
    pb = []
    for s_ in range(28):
        for t in range(2):
            for p in range(2): pb.append(jDS(f"ds_read_b64_tr_b16 a[{8*s_+4*t+2*p}:{8*s_+4*t+2*p+1}], v{vT0+t} offset:{2048*s_+1024*p}"))
    run(wa, 5); run(pb, 40); run(wa, 9); tw1 = vm.n
    hoff = lambda p: f"s_xor_b32 s{sHC}, s{sHST}, {4096*(p&1)}" + (f"\ns_add_u32 s{sHC}, s{sHC}, {4*114688}" if p > 1 else "")
    for p in map(int, plain):
        A(hoff(p)); VM(f"buffer_load_dword v{vPAN}, v{vTA}, {WS}, s{sHC} offen sc1")
    run(pb, 99)
    for l_ in lines(augl): VM(l_)
    vm.wait(tw1)
    barrier()
    stamp("w1in")
    tw = {}
    def ld1(n):
        t, s_ = n & 1, (n % 56) >> 1; b = WB + 4 * (n % 8); tw[n] = Tok()
        return [jDS(f"ds_read_b64_tr_b16 v[{b}:{b+1}], v{vTP0-t} offset:{L_P0+2048*s_}"), jDS(f"ds_read_b64_tr_b16 v[{b+2}:{b+3}], v{vTP0-t} offset:{L_P0+2048*s_+1024}", tw[n])]
    for n in range(6): run(ld1(n), 2)
    stamp("pre3")
    poll(vFY, f"s{sFYP}")
    stamp("S3")
    ty = {}; ts = [Tok(), Tok()]
    def yj(rd_):
        js = []
        for s_ in range(28):
            ty[rd_, s_] = Tok()
            pre = f"s_add_u32 s{sYL}, s{sYL}, {114688-24576}" if (rd_ and s_ == 0) else (f"s_add_u32 s{sYL}, s{sYL}, 4096" if (s_ % 4 == 0 and s_) else None)
            js.append(jVM(f"buffer_load_dwordx4 v[{4*s_}:{4*s_+3}], v{vL16}, {OUT}, s{sYL} offen offset:{1024*(s_%4)} sc1", ty[rd_, s_], pre))
        return js
    SB = (160, 112)
    def stl(rd_): return [jVM(f"buffer_load_dwordx4 v[{SB[rd_]+4*i}:{SB[rd_]+4*i+3}], v{vSTA+(i==3)}, {WS}, s{sSTL} offen offset:{512*i} sc1", ts[rd_], f"s_add_u32 s{sSTL}, s{sSTL}, {4*3584}" if (rd_ and i == 0) else None) for i in range(4)]
    mem = yj(0); run(mem, PRO)
    def augchk():
        A(f"""s_mov_b32 s{sCNT}, 0
        L_au:
        v_cmp_ne_u32 vcc, s{sTAG}, v147
        v_cmp_ne_u32 s[62:63], s{sTAG}, v151
        s_or_b64 vcc, vcc, s[62:63]
        s_cbranch_vccnz L_aur
        L_aud:""")
        tail.append(f"""L_aur:
        s_add_u32 s{sCNT}, s{sCNT}, 1
        s_cmp_ge_u32 s{sCNT}, {SPIN}
        s_cbranch_scc1 L_aud
        {augl}
        s_waitcnt vmcnt(0)
        s_branch L_au""")
    augmv = [f"v_accvgpr_write_b32 a{AU+r}, {'0' if r % 4 == 3 else 'v%d' % (144 + r)}" for r in range(8)]
    def stat_list(rd_):
        b = SB[rd_]
        st = [f"v_add_f32 v{208+i}, v{b+4*(i>>1)+(i&1)}, v{b+4*(i>>1)+(i&1)+2}" for i in range(8)]
        st += lines(f"""v_add_f32 v208, v208, v210
        v_add_f32 v209, v209, v211
        v_add_f32 v212, v212, v214
        v_add_f32 v213, v213, v215
        v_add_f32 v208, v208, v212
        v_add_f32 v209, v209, v213
        v_mov_b32 v210, v208
        v_mov_b32 v211, v209
        v_permlane32_swap_b32 v208, v210
        v_permlane32_swap_b32 v209, v211
        v_add_f32 v208, v208, v210
        v_add_f32 v209, v209, v211
        v_mul_f32 v208, 0xbb124925, v208
        v_mul_f32 v209, 0x3b124925, v209
        v_fma_f32 v209, -v208, v208, v209
        v_max_f32 v209, 0, v209
        v_add_f32 v209, 0x3727c5ac, v209
        v_rcp_f32 v{vRS+rd_}, v209
        v_sqrt_f32 v209, v209
        v_cvt_pk_bf16_f32 v213, v208, v208
        v_cvt_pk_bf16_f32 v210, v209, v209
        v_and_b32 v211, 0xffff0000, v213
        v_and_b32 v210, 0xffff0000, v210
        v_sub_f32 v211, v208, v211
        v_sub_f32 v212, v209, v210
        v_cvt_pk_bf16_f32 v214, v211, v210
        v_cvt_pk_bf16_f32 v215, v210, v212""")
        for r in range(3): st += [f"v_cndmask_b32 v{216+r}, 0, v{213+r}, s[80:81]", f"v_cndmask_b32 v{219+r}, v{213+r}, 0, s[80:81]"]
        for r in range(3): st += [f"v_accvgpr_write_b32 a{BA[rd_]+r}, v{216+r}", f"v_accvgpr_write_b32 a{BA[rd_]+4+r}, v{219+r}"]
        return st
    def epi_list(p, last):
        e = [f"s_xor_b32 s{sHC}, s{sHST}, {4096*(p&1)}"] if p < 2 else [f"s_xor_b32 s{sHC}, s{sHST}, {4096*(p&1)}", f"s_add_u32 s{sHC}, s{sHC}, {4*114688}"]
        for t in range(2):
            c = ACC + 32 * (p & 1) + 16 * t
            for d in range(8):
                r = c + 2 * d; q = 208 + 8 * t + d
                e += [f"v_mul_f32 v{r}, v{r}, abs(v{r})", f"v_mul_f32 v{r+1}, v{r+1}, abs(v{r+1})", f"v_cvt_pk_bf16_f32 v{q}, v{r}, v{r+1}", f"v_pk_max_i16 v{q}, v{q}, 0"]
                if d % 4 == 3: e.append(jVM(f"buffer_store_dwordx4 v[{205+8*t+d}:{208+8*t+d}], v{vL16}, {WS}, s{sHC} offen offset:{2048*t+1024*(d//4)}{'' if str(p) in plain else ' sc1'}", last))
        return e
    def publish(p, last):
        vm.wait(last.t)
        A(f"s_add_u32 s79, s{sFD}, {1024*(p>>1)+64*(p&1)}"); flag(79)
        if RT and str(p) not in plain: VM(f"buffer_load_dword v{vPAN}, v{vTA}, {WS}, s{sHC} offen sc1")
        stamp(f"pub{p}")
    mem = mem[:STP] + stl(0) + mem[STP:]
    ST0 = 2 * (STP + PRO); assert ST0 <= 34
    side = []; urgent = []; dq = []; last = [Tok() for _ in range(4)]; pubat = None; tl_ = Tok(); mem2 = []; pub_done = False
    for n in range(224):
        p, m_ = divmod(n, 56); rd_ = p >> 1; t, s_ = m_ & 1, m_ >> 1
        if m_ == 0 and p:
            assert not side and not urgent
            for t2 in range(2): mfma(v(ACC + 32 * ((p - 1) & 1) + 16 * t2, 16), a(AU + 4 * ((p - 1) & 1), 4), a(BA[(p - 1) >> 1] + 4 * t2, 4))
            if p & 1:
                if p == 3: A(f"s_add_u32 s{sRS}, s{sRS}, {4*14*128}")
                VM(f"buffer_store_dword v{vRS+rd_}, v{vRA}, {WS}, s{sRS} offen sc1")
            stamp(f"p{p-1}")
        if m_ == 2 and p: urgent = epi_list(p - 1, last[p - 1]); pubat = -1
        if p & 1 == 0:
            if t == 0: vm.wait(ty[rd_, s_].t); lg.wait(tw[n + 1].t)
        if n == ST0: vm.wait(ts[0].t); side = stat_list(0) + [augchk] + augmv
        if n == 46: look(tl_, vFY, sFYP, 256)()
        if n == 57: check(tl_, vFY, sFYP, 256); mem = yj(1)
        if n == 56 + 22: assert not urgent; mem2 = stl(1)
        if n == 56 + 39: vm.wait(ts[1].t); side = stat_list(1)
        if (n + 6) // 56 in (0, 2): dq += ld1(n + 6)
        wf = v(WB + 4 * (n % 8), 4) if p & 1 == 0 else a(8 * s_ + 4 * t, 4)
        mfma(v(ACC + 32 * (p & 1) + 16 * t, 16), wf, v(4 * s_, 4), "0" if s_ == 0 else None)
        k = ((ER0 if p == 1 else ER) if urgent else 3) + (1 if p & 1 else 0)
        if p == 0 and t == 0 and mem: run(mem, 2 if STP <= s_ < STP + 4 else 1); run(dq, 1); k -= 1
        elif p in (1, 2) and t == 1 and mem and (pub_done or 28 - len(mem) < YH): run(mem, 1); run(dq, 2); k -= 2
        elif p == 1 and t == 0 and mem2: run(mem2, 1); k -= 2
        else: run(dq, 3 if t else 2)
        if urgent:
            run(urgent, k)
            if not urgent: pubat = min(n + (EP if str(p - 1) in plain else EA), 56 * p + 55)
        else: run(side, k)
        if n == pubat: publish(p - 1, last[p - 1]); pub_done = True
    assert not mem and not side and not urgent and not dq
    for t2 in range(2): mfma(v(ACC + 32 + 16 * t2, 16), a(AU + 4, 4), a(BA[1] + 4 * t2, 4))
    stamp("p3")
    run(epi_list(3, last[3]), 999)
    publish(3, last[3])
    A("s_branch L_fin")

    A("L_at2:")
    to = att_core(jobs(at2))
    XR = 128; GA = 136; A2 = 152; X1 = 168; WB = 184
    vIN, vOUTB, vWO, vXA, vSL = 216, 217, 218, 124, 220
    A(f"""s_and_b32 s61, s{sW}, 1
    s_lshl_b32 s61, s61, 12
    s_add_u32 s61, s61, {L_XT}
    v_lshl_add_u32 v4, v{vL31}, 7, s61
    v_lshl_add_u32 v4, v{vHALF}, 3, v4
    v_and_b32 v5, 7, v{vL}
    s_lshl_b32 s61, s{sKH}, 2
    v_xor_b32 v5, s61, v5""")
    for a_ in range(4): A(f"v_xor_b32 v6, {a_}, v5\nv_lshl_add_u32 v{vXA+a_}, v6, 4, v4")
    txr = Tok()
    def xrd(rd_): return [jDS(f"ds_read_b64 v[{XR+2*a_}:{XR+2*a_+1}], v{vXA+a_} offset:{8192*rd_}", txr) for a_ in range(4)]
    xun = [lambda: lg.wait(txr.t)] + sum(([f"v_lshlrev_b32 v{X1+2*d}, 16, v{XR+d}", f"v_and_b32 v{X1+2*d+1}, s79, v{XR+d}"] for d in range(8)), [])
    run(xrd(0), 4)
    A(f"""v_accvgpr_read_b32 v12, a{aB2}
    v_accvgpr_read_b32 v13, a{aB2+1}
    {get('VW', 7)}
    v_and_b32 v{vT3}, 7, v{vL}
    v_lshlrev_b32 v{vT3}, 2, v{vT3}
    v_bfe_u32 v{vT2}, v{vL}, 3, 1
    v_lshl_add_u32 v{vT3}, v{vT2}, 8, v{vT3}
    s_mul_i32 s61, s{sKH}, {224*128}
    v_add_u32 v{vWO}, s61, v{vR0}
    v_add_u32 v{vWO+1}, s61, v{vR0+1}
    s_add_u32 s61, s{sEX}, {6*BLK}
    v_add_u32 v{vIN}, s61, v{vL16}
    s_xor_b32 s61, s61, 8192
    v_add_u32 v{vOUTB}, s61, v{vL16}
    s_mov_b32 s79, 0xffff0000""")
    run(list(xun), 99)
    vm.wait(to)
    flag(sFO)
    stamp("opub")
    barrier()
    order = [(i, t) for i in range(11) for t in (1, 0)] + [(i, 1) for i in range(11, 16)] + [(i, 0) for i in range(11, 16)]
    two = {}
    def ldo(k):
        i, t = order[k % 32]; b = WB + 4 * (k % 8); two[k] = Tok(); off = L_WO + 3584 * (i >> 1) + 2048 * (i & 1)
        return [jDS(f"ds_read_b64_tr_b16 v[{b}:{b+1}], v{vWO+t} offset:{off}"), jDS(f"ds_read_b64_tr_b16 v[{b+2}:{b+3}], v{vWO+t} offset:{off+1024}", two[k])]
    for k in range(5): run(ldo(k), 2)
    for k in range(3): A(f"s_add_u32 s61, s{sEX}, {65536*k}\nv_add_u32 v{vSL+2*k}, s61, v{vR0}\nv_add_u32 v{vSL+2*k+1}, s61, v{vR0+1}")
    def rdslot(k, tok=None, wait=True):
        u, t_ = slot.pop(k)
        return ([lambda: vm.wait(t_.t)] if wait else []) + w2_read(u, vSL + 2 * (k >> 2), BLK * (k & 3), tok)
    tR = Tok(); tR.t = 0
    for k in list(slot): run(rdslot(k, tR), 99)
    stamp("pre2")
    poll(vT3, f"s{sFOP}")
    stamp("S2")
    to = {}
    def oj(rd_):
        js = []
        for i in range(16):
            to[rd_, i] = Tok()
            pre = f"s_add_u32 s{sOS}, s{sOS}, {131072-12288}" if (rd_ and i == 0) else (f"s_add_u32 s{sOS}, s{sOS}, 4096" if (i % 4 == 0 and i) else None)
            js.append(jVM(f"buffer_load_dwordx4 v[{16+4*i}:{19+4*i}], v{vL16}, {WS}, s{sOS} offen offset:{1024*(i%4)} sc1", to[rd_, i], pre))
        return js
    mem = oj(0); run(mem, PRO)
    A(f"""s_mov_b32 s{sCNT}, 0
    L_nv:
    v_cmp_ne_u32 vcc, s{sTAG}, v{vNU+1}
    v_cmp_ne_u32 s[62:63], s{sTAG}, v{vNU+3}
    s_or_b64 vcc, vcc, s[62:63]
    s_cbranch_vccnz L_nvr
    L_nvd:
    v_cmp_lt_u32 vcc, 23, v{vL31}
    v_cndmask_b32 v8, v{vNU}, v12, vcc
    v_cndmask_b32 v10, v{vNU+2}, v13, vcc
    v_and_b32 v9, s79, v8
    v_lshlrev_b32 v8, 16, v8
    v_and_b32 v11, s79, v10
    v_lshlrev_b32 v10, 16, v10""")
    tail.append(f"""L_nvr:
    s_add_u32 s{sCNT}, s{sCNT}, 1
    s_cmp_ge_u32 s{sCNT}, {SPIN}
    s_cbranch_scc1 L_nvd
    buffer_load_dwordx4 v[{vNU}:{vNU+3}], v232, {WS}, s{sNUS} offen sc1
    s_waitcnt vmcnt(0)
    s_branch L_nv""")
    DS("ds_write_b128 v7, v[8:11]")
    side = []
    for a_ in range(4):
        side.append(jDS(f"ds_read_b128 v[{GA+4*a_}:{GA+4*a_+3}], v{vVEC} offset:{32*a_}"))
        side.append(jDS(f"ds_read_b128 v[{A2+4*a_}:{A2+4*a_+3}], v{vVEC} offset:{128+32*a_}"))
    ACC = 80
    mem1 = oj(1); ty = None
    for rd_ in range(2):
        if rd_ == 0: mem += jobs(ot0); nx_ = 16 - len(mem); mem += mem1[:nx_]; mem1 = mem1[nx_:]
        else: mem = mem1 + [lambda: lg.wait(tR.t)] + jobs(ot1)
        wr = [jDS(f"ds_write_b128 v{vOUTB}, v[{ACC+16+4*q}:{ACC+19+4*q}] offset:{BLK*rd_+1024*q}") for q in range(4)]
        for k, (i, t) in enumerate(order):
            kk = 32 * rd_ + k
            vm.wait(to[rd_, i].t); lg.wait(two[kk].t)
            mfma(v(ACC + 16 * t, 16), v(WB + 4 * (kk % 8), 4), v(16 + 4 * i, 4), "0" if i == 0 else None)
            if kk + 5 < 64: run(ldo(kk + 5), 2)
            if k % 2 == 0: run(mem, 1)
            else: run(side, 3)
            if rd_ and k == YF:
                vm.wait(ty); flag(sFY); stamp("ypub")
            if k >= 29: run(wr, 2)
        assert not side
        lg.all()
        barrier()
        tk = [DS(f"ds_read_b128 v[{4*q}:{4*q+3}], v{vIN} offset:{BLK*rd_+1024*q}") for q in range(4)]
        if rd_: A(f"s_add_u32 s{sYS}, s{sYS}, 114688\ns_add_u32 s{sSTS}, s{sSTS}, 14336\ns_add_u32 s{sFY}, s{sFY}, 256")
        for q in range(4):
            lg.wait(tk[q])
            A.raw("    .p2align 3")
            for e in range(0, 4, 2):
                r = 4 * q + e
                A(f"""v_pk_add_f32 v[{r}:{r+1}], v[{ACC+r}:{ACC+r+1}], v[{r}:{r+1}]
                v_pk_fma_f32 v[{X1+r}:{X1+r+1}], v[{r}:{r+1}], v[{GA+r}:{GA+r+1}], v[{X1+r}:{X1+r+1}]
                v_pk_mul_f32 v[{r}:{r+1}], v[{X1+r}:{X1+r+1}], v[{A2+r}:{A2+r+1}]
                v_cvt_pk_bf16_f32 v{112+r//2}, v{r}, v{r+1}""")
            if q % 2 == 1: VM(f"buffer_store_dwordx4 v[{110+2*q}:{113+2*q}], v{vL16}, {OUT}, s{sYS} offen offset:{1024*(q//2)}")
        A(f"v_pk_add_f32 v[120:121], v[{X1}:{X1+1}], v[{X1+2}:{X1+3}]\nv_pk_mul_f32 v[122:123], v[{X1}:{X1+1}], v[{X1}:{X1+1}]")
        for d in range(1, 8):
            if d >= 2: A(f"v_pk_add_f32 v[120:121], v[120:121], v[{X1+2*d}:{X1+2*d+1}]")
            A(f"v_pk_fma_f32 v[122:123], v[{X1+2*d}:{X1+2*d+1}], v[{X1+2*d}:{X1+2*d+1}], v[122:123]")
        A(f"""v_add_f32 v120, v120, v121
        v_add_f32 v121, v122, v123
        v_mov_b32 v122, v120
        v_mov_b32 v123, v121
        v_permlane32_swap_b32 v120, v122
        v_permlane32_swap_b32 v121, v123
        v_add_f32 v120, v120, v122
        v_add_f32 v121, v121, v123
        s_mov_b32 exec_hi, 0""")
        ty = VM(f"buffer_store_dwordx2 v[120:121], v{vL16}, {WS}, s{sSTS} offen")
        A("s_mov_b64 exec, -1")
        stamp(f"op{rd_}")
        if rd_ == 0: side = xrd(1) + [f"v_accvgpr_write_b32 a{224+r}, v{X1+r}" for r in range(16)] + list(xun)
    run(mem, 99)
    GB = 192; ZT = 208
    free = [k for k in range(9) if k not in slot]; pend = list(slot)
    for k in free[:2]: run(stage(k), 99); pend.append(k)
    free = free[2:]
    for a_ in range(4):
        DS(f"ds_read_b128 v[{GB+4*a_}:{GB+4*a_+3}], v{vVEC} offset:{256+32*a_}")
        tgb = DS(f"ds_read_b128 v[{GA+4*a_}:{GA+4*a_+3}], v{vVEC} offset:{384+32*a_}")
    vm.wait(ty); flag(sFY); stamp("ypub1")
    for r in range(16): A(f"v_accvgpr_read_b32 v{A2+r}, a{224+r}")
    lg.wait(tgb)
    for r in range(0, 16, 2):
        A(f"v_pk_fma_f32 v[{A2+r}:{A2+r+1}], v[{GB+r}:{GB+r+1}], v[{GA+r}:{GA+r+1}], v[{A2+r}:{A2+r+1}]\nv_pk_fma_f32 v[{X1+r}:{X1+r+1}], v[{GB+r}:{GB+r+1}], v[{GA+r}:{GA+r+1}], v[{X1+r}:{X1+r+1}]")
    for r in range(16): A(f"v_accvgpr_write_b32 a{224+r}, v{A2+r}\nv_accvgpr_write_b32 a{240+r}, v{X1+r}")
    vH0, vH1, vFD, vRW, vRR, vRQ = 226, 227, vTN0, 228, 231, vT0
    sFE, sRSL = 91, 58
    A(f"""v_and_b32 v{vFD}, 3, v{vL}
    v_lshlrev_b32 v{vFD}, 2, v{vFD}
    v_bfe_u32 v{vT0}, v{vL}, 2, 1
    v_lshl_add_u32 v{vFD}, v{vT0}, 8, v{vFD}
    s_and_b32 s61, s{sTO}, 6
    s_lshl_b32 s61, s61, 8
    s_add_u32 s61, s61, s{sCTL}
    s_mul_i32 s62, s{sW}, 7
    s_lshr_b32 s62, s62, 1
    s_mul_i32 s{sRSL}, s{sTO}, 14
    s_add_u32 s{sRSL}, s{sRSL}, s62
    s_lshl_b32 s{sRSL}, s{sRSL}, 7
    s_add_u32 s{sRSL}, s{sRSL}, {RS2}
    s_lshl_b32 s62, s62, 2
    s_add_u32 s61, s61, s62
    s_add_u32 s{sFE}, s61, {C_FD}
    s_mul_i32 s61, s{sTO}, 114688
    s_add_u32 s61, s61, {HID}
    v_add_u32 v{vH0}, s61, v{vL16}
    s_xor_b32 s61, s{sTO}, 1
    s_mul_i32 s61, s61, 114688
    s_add_u32 s61, s61, {HID}
    v_add_u32 v{vH1}, s61, v{vL16}
    s_mul_i32 s61, s{sW}, 12288
    v_add_u32 v{vRR}, s61, v{vL16}
    v_lshlrev_b32 v{vT2}, 2, v{vL31}""")
    for k in range(1, 4): A(f"s_xor_b32 s61, s{sW}, {k}\ns_mul_i32 s61, s61, 12288\ns_add_u32 s61, s61, {4096*(k-1)}\nv_add_u32 v{vRW+k-1}, s61, v{vL16}")
    rtok = {}
    while nxt[0] < 14:
        k = free.pop(0)
        if k in rtok: lg.wait(rtok.pop(k))
        run(stage(k), 99); pend.append(k)
        if len(pend) > 3 or not free:
            k2 = pend.pop(0); run(rdslot(k2, tR), 99); free.append(k2); rtok[k2] = tR.t
    for k in pend: run(rdslot(k, tR), 99)
    for q in range(7): A(f"s_lshl_b32 s{sFT+q}, s{sFT+q}, 11")
    lg.all()
    barrier()
    stamp("w2in")
    poll(vFD, f"s{sFE}")
    stamp("S4")

    HB = 128; NB_ = 16
    seq = list(range(56)) + list(range(40)) + list(range(41, 56, 2)) + list(range(40, 56, 2))
    th = [Tok() for _ in range(112)]
    state = {}
    def hj(p):
        rd_ = p // 56; i = seq[p]; u, s_, mh = i >> 2, (i >> 1) & 1, i & 1
        b = HB + 4 * (p % NB_); pre = ""
        if p == 56: pre += f"v_add_u32 v{vH0}, {4*114688}, v{vH0}\nv_add_u32 v{vH1}, {4*114688}, v{vH1}\n"
        if state.get(u % 7, 0) != (u >= 7): state[u % 7] = (u >= 7); pre += f"s_xor_b32 s{sFT+u%7}, s{sFT+u%7}, 4096"
        return jVM(f"buffer_load_dwordx4 v[{b}:{b+3}], v{vH1 if mh else vH0}, {WS}, s{sFT+u%7} offen offset:{1024*s_} sc1", th[p], pre or None)
    def rsj(rd_): return jVM(f"buffer_load_dword v{vRQ+rd_}, v{vT2}, {WS}, s{sRSL} offen sc1", None, f"s_add_u32 s{sRSL}, s{sRSL}, {4*14*128}" if rd_ else None)
    mem = [hj(p) for p in range(28)]
    run(mem, PRO); rsj(0)()
    def mm(p, t):
        rd_ = p // 56; i = seq[p]; u, s_, mh = i >> 2, (i >> 1) & 1, i & 1
        vm.wait(th[p].t)
        mfma(v(64 * rd_ + 16 * (2 * t + mh), 16), a(16 * u + 8 * s_ + 4 * t, 4), v(HB + 4 * (p % NB_), 4), "0" if i < 2 else None)
    wrj = lambda rd_, k: [jDS(f"ds_write_b128 v{vRW+k-1}, v[{64*rd_+16*k+4*q}:{64*rd_+16*k+4*q+3}] offset:{49152*rd_+1024*q}") for q in range(4)]
    tin = Tok()
    fin0 = [jDS(f"ds_read_b128 v[{16+16*k+4*q}:{19+16*k+4*q}], v{vRR} offset:{4096*k+1024*q}", tin) for k in range(3) for q in range(4)]
    fin0 += [f"v_accvgpr_read_b32 v{ZT+r}, a{224+r}" for r in range(16)] + [lambda: lg.wait(tin.t)]
    for r in range(16):
        fin0 += [f"v_add_f32 v{r}, v{r}, v{16+r}", f"v_add_f32 v{32+r}, v{32+r}, v{48+r}", f"v_add_f32 v{r}, v{r}, v{32+r}", f"v_mul_f32 v{r}, v{r}, v{vRQ}", f"v_fmac_f32 v{ZT+r}, v{r}, v{GB+r}"]
    fin0 += [f"v_cvt_pk_bf16_f32 v{d}, v{ZT+2*d}, v{ZT+2*d+1}" for d in range(8)]
    fin0 += [f"v_permlane32_swap_b32 v{b}, v{b+2}" for b in (0, 1, 4, 5)]
    fin0 += [f"v_accvgpr_read_b32 v{ZT+r}, a{240+r}" for r in range(16)] + [f"v_mul_f32 v{GB+r}, v{GB+r}, v{vRQ+1}" for r in range(16)]
    st0 = [jVM(f"buffer_store_dwordx4 v[{4*q}:{4*q+3}], v{vROW}, {OUT}, s{sROW} offen offset:{32*q}") for q in range(2)]
    tl_ = Tok(); side = []; wr = []
    for p in range(104):
        for lo, off in ((28, 64), (56, 1024), (84, 1088)):
            if p == lo - PRO - CK: look(tl_, vFD, sFE, off)()
            if p == lo - PRO:
                check(tl_, vFD, sFE, off); stamp(f"c{lo}")
                mem += [hj(k) for k in range(lo, lo + 28)]
                if lo == 56: rsj(1)()
        if p == 58: wr = wrj(0, 1) + wrj(0, 2) + wrj(0, 3)
        if p == 71:
            assert not wr
            lg.all(); barrier(); side = fin0
        mm(p, 0); run(mem, 1); mm(p, 1)
        if wr: run(wr, 1)
        else: run(side, 5)
        if p >= 102: assert not side and not mem; run(st0, 1)
        if 'fine' in dbg and p in (0, 28, 56, 84): stamp(f'g{p}')
    wr = wrj(1, 1) + wrj(1, 3)
    tailo = [(48, 1), (48, 0), (49, 1), (49, 0), (50, 1), (50, 0), (51, 1), (52, 1), (53, 1), (54, 1), (55, 1), (51, 0), (52, 0), (53, 0), (54, 0), (55, 0)]
    for n, (p, t) in enumerate(tailo):
        mm(56 + p, t)
        if n == 12: wr += wrj(1, 2)
        if n >= 2 and n % 3 != 1: run(wr, 1)
    run(wr, 99)
    stamp("ffn2")
    A(f"s_add_u32 s{sROW}, s{sROW}, 114688")
    lg.all()
    barrier()
    tk = {}
    for q in range(4):
        for k in range(3): tk[q] = DS(f"ds_read_b128 v[{16+16*k+4*q}:{19+16*k+4*q}], v{vRR} offset:{49152+4096*k+1024*q}")
    for q in range(4):
        lg.wait(tk[q])
        A.raw("    .p2align 3")
        for e in range(0, 4, 2):
            r = 4 * q + e
            A(f"""v_pk_add_f32 v[{16+r}:{17+r}], v[{16+r}:{17+r}], v[{32+r}:{33+r}]
            v_pk_add_f32 v[{48+r}:{49+r}], v[{48+r}:{49+r}], v[{64+r}:{65+r}]
            v_pk_add_f32 v[{16+r}:{17+r}], v[{16+r}:{17+r}], v[{48+r}:{49+r}]
            v_pk_fma_f32 v[{ZT+r}:{ZT+r+1}], v[{16+r}:{17+r}], v[{GB+r}:{GB+r+1}], v[{ZT+r}:{ZT+r+1}]
            v_cvt_pk_bf16_f32 v{8+r//2}, v{ZT+r}, v{ZT+r+1}""")
        if q % 2 == 1:
            b = 8 + 2 * (q - 1)
            A(f"v_permlane32_swap_b32 v{b}, v{b+2}\nv_permlane32_swap_b32 v{b+1}, v{b+3}")
            VM(f"buffer_store_dwordx4 v[{b}:{b+3}], v{vROW}, {OUT}, s{sROW} offen offset:{16*(q-1)}")
    stamp("done")
    if meas:
        A(f"""s_cmp_lg_u32 s2, {meas[3]}
        s_cbranch_scc1 L_fin
        v_readlane_b32 s61, v{vST}, 0
        v_readlane_b32 s62, v{vST}, 1
        s_memrealtime s[100:101]
        s_sub_u32 s61, s62, s61
        s_mul_i32 s61, s61, {meas[2]}
        s_min_u32 s61, s61, 100000
        s_waitcnt lgkmcnt(0)
        s_mov_b32 s63, s100
        L_ms:
        s_memrealtime s[100:101]
        s_waitcnt lgkmcnt(0)
        s_sub_u32 s62, s100, s63
        s_cmp_lt_u32 s62, s61
        s_cbranch_scc1 L_ms""")
    return done()

HEAD = open("adaLN_cond__sliding_block__dense_activation_squared_relu__prompt.s.ref").read().split("; Override launch")[0]
def wrap(A, tail, lst=None):
    for t in tail:
        if isinstance(t, tuple): A.lines += t[1]
        else: A(t)
    A("L_exit:\ns_endpgm")
    A.raw("CODE_END:")
    txt = HEAD + f"; @launch grid=(256,1,1) block=(256,1,1) lds={LDS_BYTES}\n.amdgcn_target \"amdgcn-amd-amdhsa--gfx950\"\n.text\n" + kernel_header(NAME) + A.text()
    txt += ".section .rodata,\"a\"\n.p2align 6\n" + kernel_desc(NAME, 512, 102, 256)
    return txt

if __name__ == "__main__":
    out = sys.argv[1]
    kw = eval("dict(" + (sys.argv[2] if len(sys.argv) > 2 else "") + ")")
    t, names = gen(**kw)
    open(out, "w").write(t)
    if names: json.dump(names, open(out + ".json", "w"))
    print(out, len(t.split("\n")), "lines", len(names), "stamps")
```

```python
import sys, json, struct
from asmgen import *
NAME = "adaLN_cond__sliding_block__dense_activation_squared_relu__prompt_kernel"
QSCALE = struct.unpack("<I", struct.pack("<f", 28 ** -0.5 * 1.4426950408889634))[0]

CTL = 0x4000
C_FH, C_FQ, C_FO, C_FY, C_FD = 0, 0x200, 0x400, 0x600, 0x800
S0U = 0x10000
XCCG = 0x14000
AUG = 0x1C000
STATS = 0x28000
NU = 0x70000
RS2 = 0x80000
FKV = 0xA0000
QO = 0x100000
KG = 0x300000
VG = 0x500000
HID = 0x700000
STAMP = 0xF00000
WSZ = 0x1000000
OOB = 0x40000000
L_WKV, L_B, L_WQ = 0, 57344, 122880
L_K, L_V = 98304, 122880
L_WO = 0
L_P0 = 0; L_P1 = 57344
BLK = 16384
L_MISC = 151552
L_X = L_MISC; L_XT = 5 * BLK; L_SILU = L_MISC + 7168; L_MODV = L_MISC + 8192; L_VEC = L_MODV
LDS_BYTES = 163840
sW, sG, sM, sTAG, sUNI = 3, 4, 5, 6, 7
X, WQKV, WO, W1, W2, WMOD, OUT, WS = [f"s[{i}:{i+3}]" for i in (8, 12, 16, 20, 24, 28, 32, 36)]
sCTL = 47
sJ, sTQ, sHEAD, sRB, sTA, sNB, sTO, sKH, sR4, sWG, sHI, sCOL = 48, 49, 50, 51, 52, 53, 54, 55, 56, 57, 58, 59
sCNT = 60
sSRC, sHLP, sCT = 67, 68, 69
sFT = 70
sROW, sEX, sW1D, sUI, sPSW = 77, 78, 94, 95, 96
sSTB, sKVS, sQS, sHS, sFKV, sFQ, sFHP = 79, 80, 81, 82, 83, 84, 85
sLK, sK0, sQO, sFO, sWOL, sW1C, sSTA = 86, 87, 90, 91, 92, 93, 97
sYS, sFY, sFOP, sOS, sSTS, sNUS = 98, 99, 0, 1, 44, 45
vL, vL16, vTN0, vTN1, vTP0, vTP1 = 255, 254, 253, 252, 251, 250
vPAN = 246
vTAG, vHALF, vL31 = 245, 244, 243
vT0, vT1, vT2, vT3 = 239, 240, 241, 242
vJUNK, vST, vROW, vVEC, vR0 = 238, 237, 236, 235, 233
NEG = 0xF149F2CA
SPIN = 60000

class Ctr:
    def __init__(s, A, name, mx): s.A, s.name, s.mx, s.n, s.done = A, name, mx, 0, 0
    def issue(s): s.n += 1; return s.n
    def wait(s, tok):
        if tok <= s.done: return
        k = min(s.n - tok, s.mx)
        s.A.e(f"s_waitcnt {s.name}({k})"); s.done = s.n - k
    def all(s): s.A.e(f"s_waitcnt {s.name}(0)"); s.done = s.n
    def drained(s): s.done = s.n
class Tok: t = None

def gen(stop=99, stamps=False, force_slow=False, only=None, meas=None, warm=True, dbg=(), lst=None,
        a1='H pR K0', a2='LQ', a3='K1 pQ pA', a5='Q7', a6='', a7='pS', kvt='QP', qp='', p41='', p42='pO XT pF', at1='Wb8', at2='O0 NU O1', ot0='', ot1='S4 S8',
        hp0='', hp1='', hp2='', hz='F0 F1 F2 F3 F4 F5 F6',
        PRO=10, STP=2, ER=5, EA=18, RT='123', SR=3, CK=6, msub=True, AR=2, KVA=99, QB=10, mlate=False, YF=6, plain='', EP=10, YH=10, YC=48, f1f='Z0 Z1', PS=2, O1=8, CP=(6, 6, 6)):
    A = Asm()
    vm = Ctr(A, "vmcnt", 63); lg = Ctr(A, "lgkmcnt", 15)
    tail = []; uid = [0]; names = []
    def U(p): uid[0] += 1; return f"L_{p}{uid[0]}"
    def stamp(nm):
        if meas and nm in meas[:2]:
            A(f"s_memrealtime s[100:101]\ns_waitcnt lgkmcnt(0)\nv_writelane_b32 v{vST}, s100, {meas.index(nm)}"); lg.drained()
        if not stamps or (only and nm not in only): return
        if nm not in names: names.append(nm)
        A(f"{'s_memtime' if stamps == 2 else 's_memrealtime'} s[100:101]\ns_waitcnt lgkmcnt(0)\nv_writelane_b32 v{vST}, s100, {names.index(nm)}"); lg.drained()
    def VM(t): A(t); return vm.issue()
    def DS(t): A(t); return lg.issue()
    def barrier(): A("s_barrier")
    def mfma(d, a_, b_, c=None): A(f"v_mfma_f32_32x32x16_bf16 {d}, {a_}, {b_}, {c if c is not None else d}")
    def run(q, n):
        for _ in range(n):
            if not q: return
            e = q.pop(0)
            if callable(e): e()
            else: A(e)
    def lines(t): return [x.strip() for x in t.strip().split("\n") if x.strip()]
    def jVM(text, tok=None, pre=None):
        def f():
            if pre: A(pre)
            k = VM(text)
            if tok is not None: tok.t = k
        return f
    def jDS(text, tok=None):
        def f():
            k = DS(text)
            if tok is not None: tok.t = k
        return f
    def flag(soff, slow=False):
        A("s_mov_b64 exec, 1")
        if slow: VM(f"buffer_store_dword v{vTAG}, off, {WS}, s{soff} sc1")
        else:
            ls, lj = U("fs"), U("fj")
            A(f"s_cmp_eq_u32 s{sUNI}, 0\ns_cbranch_scc1 {ls}")
            VM(f"buffer_store_dword v{vTAG}, off, {WS}, s{soff}")
            A(f"{lj}:")
            tail.append(f"{ls}:\nbuffer_wbl2 sc1\ns_waitcnt vmcnt(0)\nbuffer_store_dword v{vTAG}, off, {WS}, s{soff} sc1\ns_branch {lj}")
        A("s_mov_b64 exec, -1")
    def poll(vaddr, soff):
        lp, ld, li, lj = U("p"), U("pd"), U("pi"), U("pj")
        A(f"s_mov_b32 s{sCNT}, 0\n{lp}:\nbuffer_load_dword v{vJUNK}, v{vaddr}, {WS}, {soff} offen sc1\ns_add_u32 s{sCNT}, s{sCNT}, 1\ns_cmp_ge_u32 s{sCNT}, {SPIN}\ns_cbranch_scc1 {ld}\ns_cmp_eq_u32 s{sUNI}, 0\ns_waitcnt vmcnt(0)")
        A(f"v_cmp_ne_u32 vcc, s{sTAG}, v{vJUNK}\ns_cbranch_vccnz {lp}\n{ld}:\ns_cbranch_scc1 {li}\n{lj}:")
        vm.drained()
        tail.append(f"{li}:\ns_waitcnt vmcnt(0)\nbuffer_inv sc1\ns_waitcnt vmcnt(0)\ns_branch {lj}")
    def panel_addr(dst, rs, swz="std"):
        t = f"v_lshrrev_b32 v{vT0}, 3, v{vL}\nv_and_b32 v{vT1}, 7, v{vL}\n"
        if swz == "std": t += f"v_bfe_u32 v{vT2}, v{vL}, 4, 1\nv_lshlrev_b32 v{vT2}, 2, v{vT2}\n"
        else: t += f"v_bfe_u32 v{vT2}, v{vL}, 4, 2\nv_lshlrev_b32 v{vT2}, 1, v{vT2}\n"
        t += f"v_xor_b32 v{vT1}, v{vT1}, v{vT2}\nv_mul_u32_u24 v{vT0}, {rs}, v{vT0}\nv_lshl_add_u32 v{dst}, v{vT1}, 4, v{vT0}\n"
        for i in range(1, 4): t += f"v_add_u32 v{dst+i}, {i*(8*rs-1024)}, v{dst}\n"
        return t
    def dma_jobs(srd, vp, rs, n, setup, tok=None):
        if "nobulk" in dbg and srd in (W2, W1, WO) and vp != 4:
            def nop():
                if tok is not None: tok.t = 0
            return [nop] * n
        js = []
        for i in range(n):
            q = i % 4
            pre = setup if i == 0 else (f"s_add_u32 m0, m0, 4096\ns_add_u32 s{sSRC}, s{sSRC}, {32*rs}" if q == 0 else None)
            js.append(jVM(f"buffer_load_dwordx4 v{vp+q}, {srd}, s{sSRC} offen offset:{1024*q} lds", tok, pre))
        return js
    def w2_dma(u, lds_s, lds_off, tok=None):
        return dma_jobs(W2, vPAN, 896, 4, f"s_add_u32 m0, s{lds_s}, {lds_off}\n{'s_xor_b32 s%d, s%d, 2' % (sSRC, sFT+u%7) if u >= 7 else ''}\ns_mul_i32 s{sSRC}, s{sSRC if u >= 7 else sFT+u}, {32*896}\ns_add_u32 s{sSRC}, s{sSRC}, s{sCOL}", tok)
    def w2_read(u, va, off, tok=None):
        js = []
        for s_ in range(2):
            for t in range(2):
                r = 16 * u + 8 * s_ + 4 * t
                for p in range(2): js.append(jDS(f"ds_read_b64_tr_b16 a[{r+2*p}:{r+2*p+1}], v{va+t} offset:{off+2048*s_+1024*p}", tok))
        return js
    def done():
        A("L_fin:")
        if stamps:
            A(f"v_writelane_b32 v{vST}, s{sUNI}, 63")
            A(f"s_lshl_b32 s61, s2, 2\ns_add_u32 s61, s61, s{sW}\ns_lshl_b32 s61, s61, 8\ns_add_u32 s61, s61, {STAMP}\nv_lshlrev_b32 v{vT1}, 2, v{vL}")
            A(f"buffer_store_dword v{vST}, v{vT1}, {WS}, s61 offen")
        A("s_endpgm")
        return wrap(A, tail, warm and stop > 5), names
    stash = {}
    def put(name, r):
        stash.setdefault(name, 224 + len(stash)); assert stash[name] < 246
        return f"v_accvgpr_write_b32 a{stash[name]}, v{r}"
    def get(name, r): return f"v_accvgpr_read_b32 v{r}, a{stash[name]}"
    aX, aB2 = 248, 246

    ent = bool(stamps) or bool(meas and "entry" in meas[:2])
    if ent: A(f"{'s_memtime' if stamps == 2 else 's_memrealtime'} s[100:101]")
    for r, off in ((28, 72), (44, 64), (8, 0)):
        A(f"s_load_dwordx2 s[{r}:{r+1}], s[0:1], {off}")
    A(f"""v_readfirstlane_b32 s{sW}, v0
    s_mov_b32 s30, 2408448
    s_mov_b32 s31, 0x20000
    s_mov_b32 s{sHLP}, 0
    s_sub_u32 s{sUI}, s2, 224
    s_cmp_ge_u32 s{sUI}, 32
    s_cbranch_scc1 L_w0
    s_mov_b32 s{sHLP}, 1
    v_lshrrev_b32 v1, 3, v0
    v_and_b32 v2, 6, v1
    v_xor_b32 v2, v2, v0
    v_and_b32 v2, 7, v2
    v_mul_u32_u24 v1, 5376, v1
    v_lshl_add_u32 v4, v2, 4, v1
    v_min_u32 v2, 223, v0
    v_lshlrev_b32 v3, 2, v2
    s_lshl_b32 s61, s{sW}, 4
    s_add_u32 m0, s61, {L_B}
    s_lshr_b32 s61, s{sUI}, 1
    s_lshl_b32 s61, s61, 7
    s_bitcmp1_b32 s{sUI}, 0
    s_cselect_b32 s62, {224*5376}, 0
    s_add_u32 s61, s61, s62
    s_cmp_ge_u32 s{sUI}, 28
    s_cselect_b32 s61, 2.0, s61
    s_mov_b32 s62, 7
    s_waitcnt lgkmcnt(0)
    global_load_dword v8, v3, s[44:45]
    L_m0:
    buffer_load_dwordx4 v4, {WMOD}, s61 offen lds
    s_addk_i32 m0, 4096
    s_add_u32 s61, s61, {32*5376}
    s_sub_u32 s62, s62, 1
    s_cmp_lg_u32 s62, 0
    s_cbranch_scc1 L_m0
    L_w0:
    s_lshr_b32 s{sM}, s2, 3
    v_min_u32 v5, 12, v0
    v_lshl_add_u32 v5, v5, 5, s{sM}
    s_getpc_b64 s[62:63]
    L_pc:
    v_min_u32 v5, (CODE_END-L_pc-4)>>7, v5
    v_lshlrev_b32 v5, 7, v5
    global_load_dword v{vJUNK}, v5, s[62:63]
    s_cmp_ge_u32 s2, 256
    s_cbranch_scc1 L_exit
    s_lshr_b32 s{sW}, s{sW}, 6
    v_and_b32 v{vL}, 63, v0
    s_and_b32 s{sG}, s2, 7
    s_mov_b32 s10, 1835008
    s_mov_b32 s11, s31""")
    for r, off in ((36, 96), (12, 8), (32, 80), (24, 48), (16, 16), (20, 32), (40, 40), (42, 56)): A(f"s_load_dwordx2 s[{r}:{r+1}], s[0:1], {off}")
    A(f"""v_lshrrev_b32 v9, 3, v{vL}
    v_xor_b32 v10, v9, v{vL}
    v_and_b32 v10, 7, v10
    v_mul_u32_u24 v9, 896, v9
    v_lshl_add_u32 v9, v10, 4, v9
    s_lshl_b32 s61, s{sG}, 5
    s_add_u32 s{sWG}, s61, s{sM}
    s_mul_i32 s61, s{sWG}, 7168
    s_lshl_b32 s62, s{sW}, 7
    s_add_u32 s61, s61, s62
    s_lshl_b32 s62, s{sW}, 10
    s_add_u32 m0, s62, {L_X}
    s_add_u32 s63, s61, 512
    s_cmp_eq_u32 s{sW}, 3
    s_cselect_b32 s63, s61, s63
    s_cselect_b32 s64, 0, 4096
    s_waitcnt lgkmcnt(0)""")
    if ent:
        A(f"v_mov_b32 v{vST}, 0\nv_writelane_b32 v{vST}, s100, 0")
        if stamps: names.append("entry")
    stamp("karg")
    A(f"s_load_dword s{sTAG}, s[36:37], 0")
    VM(f"buffer_load_dwordx4 v9, {X}, s61 offen lds")
    A("s_add_u32 m0, m0, s64")
    tx = VM(f"buffer_load_dwordx4 v9, {X}, s63 offen lds")
    for r, n in ((12, 1204224), (36, WSZ), (32, 1835008), (16, 401408), (20, 1605632), (24, 1605632)):
        A(f"s_mov_b32 s{r+2}, {n}\ns_mov_b32 s{r+3}, s31")
    A(panel_addr(12, 2688))
    A(f"""s_cmp_ge_u32 s{sM}, 14
    s_cselect_b32 s65, 14, 0
    s_cselect_b32 s{sPSW}, 1, 0
    s_sub_u32 s{sJ}, s{sM}, s65
    s_sub_u32 s65, s{sM}, 14
    s_cmp_ge_u32 s65, 14
    s_cbranch_scc1 L_rl
    s_mov_b32 s{sHLP}, 2
    L_rl:""")
    def wkv_half(second):
        return dma_jobs(WQKV, 12, 2688, 7, f"""s_xor_b32 s65, s{sPSW}, s{sG}
        s_and_b32 s65, s65, 1
        {'s_xor_b32 s65, s65, 1' if second else ''}
        s_lshl_b32 s66, s{sW}, 1
        s_add_u32 s65, s65, s66
        s_mul_i32 m0, s65, 7168
        s_mul_i32 s{sSRC}, s65, {56*2688}
        s_lshl_b32 s65, s{sJ}, 7
        s_add_u32 s{sSRC}, s{sSRC}, s65
        s_add_u32 s{sSRC}, s{sSRC}, 896""")
    wkv = wkv_half(0) + wkv_half(1)
    vWQ = 228; vPQ = 229
    twq = Tok()
    def wq_half(second):
        return dma_jobs(WQKV, vPQ, 2 * 2688, 4, f"""s_and_b32 s65, s{sJ}, 1
        {'s_xor_b32 s65, s65, 1' if second else ''}
        s_mul_i32 s65, s65, 3
        s_mul_i32 s66, s{sW}, 7
        s_add_u32 s65, s65, s66
        s_lshl_b32 s66, s65, 10
        s_add_u32 m0, s66, {L_WQ}
        s_mul_i32 s{sSRC}, s65, {16*2688}
        s_lshl_b32 s65, s{sJ}, 6
        s_add_u32 s{sSRC}, s{sSRC}, s65""", twq)
    def touch(srd, n, idx, k=0, of=1):
        return [jVM(f"buffer_load_dword v{vJUNK}, v{vT0}, {srd}, s65 offen", None, f"{idx}\ns_mul_i32 s65, s65, {128*n*of}\ns_add_u32 s65, s65, {128*n*k}\nv_min_u32 v{vT0}, {n-1}, v{vL}\nv_lshlrev_b32 v{vT0}, 7, v{vT0}")]
    wi = f"s_mul_i32 s65, s{sG}, 28\ns_add_u32 s65, s65, s{sM}\ns_lshl_b32 s65, s65, 2\ns_add_u32 s65, s65, s{sW}"
    hi = f"s_lshl_b32 s65, s{sHI}, 2\ns_add_u32 s65, s65, s{sW}"
    hg = hi + "\ns_and_b32 s65, s65, 15"
    J = dict(K0=lambda: [wkv.pop(0) for _ in range(7)], K1=lambda: [wkv.pop(0) for _ in range(7)], K4=lambda: [wkv.pop(0) for _ in range(4)], K3=lambda: [wkv.pop(0) for _ in range(3)],
             Q0=lambda: wq_half(0), Q1=lambda: wq_half(1), W=lambda: [vm.all],
             H=lambda: [jVM(f"buffer_load_dword v{vJUNK}, v77, {OUT}, s98 offen sc1")],
             QP=lambda: [jVM(f"buffer_load_dword v{vJUNK}, v{vT0}, {WS}, s{sQO} offen sc1", None, f"v_and_b32 v{vT0}, 15, v{vL}\nv_lshlrev_b32 v{vT0}, 7, v{vT0}")],
             XT=lambda: [jVM(f"global_load_dwordx2 a[{aB2}:{aB2+1}], v{vT0}, s[42:43]", None, f"s_lshl_b32 s65, s{sCT}, 6\nv_and_b32 v{vT0}, 7, v{vL}\nv_lshl_add_u32 v{vT0}, v{vT0}, 3, s65"),
                         jVM(f"buffer_load_dwordx4 v{vT1}, {X}, s65 offen lds", None, f"{get('XA', vT1)}\ns_and_b32 s65, s{sTO}, 0xfe\ns_lshl_b32 s65, s65, 1\ns_add_u32 s65, s65, s{sW}\ns_mul_i32 s65, s65, 14336\ns_add_u32 s65, s65, s{sCOL}\ns_lshl_b32 s66, s{sW}, 11\ns_add_u32 m0, s66, {L_XT}"),
                         jVM(f"buffer_load_dwordx4 v{vT1}, {X}, s65 offen offset:1024 lds", None, "s_add_u32 s65, s65, 6144"),
                         jVM(f"buffer_load_dwordx4 v{vT1}, {X}, s65 offen lds", None, f"s_add_u32 m0, m0, 8192\ns_add_u32 s65, s65, {114688-6144}"),
                         jVM(f"buffer_load_dwordx4 v{vT1}, {X}, s65 offen offset:1024 lds", None, "s_add_u32 s65, s65, 6144")],
             LQ=lambda: [jVM(f"buffer_load_dword v{vJUNK}, v{vT0}, {WQKV}, s65 offen", None, f"s_lshl_b32 s65, s{sM}, 2\ns_add_u32 s65, s65, s{sW}\ns_mul_i32 s65, s65, {4*2688}\nv_and_b32 v{vT1}, 7, v{vL}\nv_min_u32 v{vT1}, 6, v{vT1}\nv_bfe_u32 v{vT0}, v{vL}, 3, 2\nv_mul_u32_u24 v{vT0}, 2688, v{vT0}\nv_lshl_add_u32 v{vT0}, v{vT1}, 7, v{vT0}")],
             Q7=lambda: dma_jobs(WQKV, vPQ, 2 * 2688, 7, f"s_mul_i32 s65, s{sW}, 7168\ns_add_u32 m0, s65, {L_WQ}\ns_mul_i32 s{sSRC}, s65, 42\ns_lshl_b32 s65, s{sJ}, 6\ns_add_u32 s{sSRC}, s{sSRC}, s65", twq),
             TQ=lambda: touch(WQKV, 11, wi), T2=lambda: touch(W2, 14, wi), T1=lambda: touch(W1, 14, wi), TO=lambda: touch(WO, 4, wi))
    HJ = dict(T1=lambda: touch(W1, 49, hi, 0, 2) + touch(W1, 49, hi, 1, 2), TQ=lambda: touch(WQKV, 37, hi, 0, 2) + touch(WQKV, 37, hi, 1, 2), T2=lambda: touch(W2, 49, hi, 0, 2) + touch(W2, 49, hi, 1, 2), TO=lambda: touch(WO, 25, hi),
              LO=lambda: sum((touch(WO, 49, hg, k, 4) for k in range(4)), []),
              **{f'QP{k}': (lambda k=k: [jVM(f"buffer_load_dword v{vJUNK}, v{vT0}, {WS}, s65 offen sc1", None, f"{hi}\ns_lshl_b32 s65, s65, 14\ns_add_u32 s65, s65, {QO+8192*k}\nv_lshlrev_b32 v{vT0}, 7, v{vL}")]) for k in range(2)},
              QP=lambda: sum(([jVM(f"buffer_load_dword v{vJUNK}, v{vT0}, {WS}, s65 offen sc1", None, f"{hi}\ns_lshl_b32 s65, s65, 14\ns_add_u32 s65, s65, {QO+8192*k}\nv_lshlrev_b32 v{vT0}, 7, v{vL}")] for k in range(2)), []))
    def hfill(kind, k):
        pre = f"{hg}\ns_add_u32 s66, s{sG}, {k}\ns_cmp_ge_u32 s66, 7\ns_cselect_b32 s64, 7, 0\ns_sub_u32 s66, s66, s64\ns_lshl_b32 s66, s66, 4\ns_add_u32 s65, s65, s66\ns_and_b32 s66, s65, 7\ns_lshr_b32 s65, s65, 3\nv_min_u32 v{vT0}, 55, v{vL}\n"
        if kind in "EF":
            pre += f"s_bitcmp{1 if kind == 'E' else 0}_b32 s65, 1\ns_cselect_b32 s64, 57344, 0\ns_mul_i32 s65, s65, 114688\ns_add_u32 s65, s65, s64\ns_mul_i32 s66, s66, 7168\ns_add_u32 s65, s65, s66\nv_lshlrev_b32 v{vT0}, 7, v{vT0}"
            return [jVM(f"buffer_load_dword v{vJUNK}, v{vT0}, {W2}, s65 offen", None, pre)]
        pre += f"s_bitcmp{0 if kind == 'G' else 1}_b32 s65, 1\ns_cselect_b32 s64, 128, 0\ns_lshl_b32 s65, s65, 8\ns_add_u32 s65, s65, s64\ns_mul_i32 s66, s66, {56*3584}\ns_add_u32 s65, s65, s66\nv_mul_u32_u24 v{vT0}, 3584, v{vT0}"
        return [jVM(f"buffer_load_dword v{vJUNK}, v{vT0}, {W1}, s65 offen", None, pre)]
    for kind in "EFGI":
        for k in range(7): HJ[f"{kind}{k}"] = (lambda kind=kind, k=k: hfill(kind, k))
    for k in range(4): HJ[f"O{k}"] = (lambda k=k: touch(WO, 49, hg, k, 4))
    used = set((a1 + " " + a2 + " " + a3 + " " + a7 + " " + a5 + " " + a6 + " " + kvt + " " + qp + " " + p41 + " " + p42).split())
    def jobs(sq, T=None): return sum(((T or J)[a_]() for a_ in sq.split()), [])
    hline = f"""s_lshr_b32 s65, s{sWG}, 2
    s_mul_i32 s98, s65, 28672
    s_and_b32 s65, s{sM}, 3
    s_lshl_b32 s65, s65, 7
    s_add_u32 s98, s98, s65
    s_lshl_b32 s62, s{sW}, 12
    s_add_u32 s98, s98, s62
    s_add_u32 s99, s98, 16384
    s_cmp_eq_u32 s{sW}, 3
    s_cselect_b32 s99, {OOB}, s99
    s_cselect_b32 s61, 0, 16384
    v_bfe_u32 v77, v{vL}, 3, 1
    v_mul_u32_u24 v77, s61, v77
    v_and_b32 v30, 7, v{vL}
    v_lshl_add_u32 v77, v30, 9, v77"""
    roles = f"""s_lshl_b32 s61, s{sG}, 1
    s_add_u32 s62, s61, s{sPSW}
    s_lshl_b32 s{sTQ}, s62, 2
    s_add_u32 s{sTQ}, s{sTQ}, s{sW}
    s_and_b32 s{sHEAD}, s{sM}, 15
    s_lshr_b32 s62, s{sM}, 4
    s_add_u32 s{sRB}, s61, s62
    s_lshl_b32 s{sTA}, s{sRB}, 2
    s_add_u32 s{sTA}, s{sTA}, s{sW}
    s_mul_i32 s61, s{sM}, 37
    s_lshr_b32 s{sR4}, s61, 8
    s_mul_i32 s62, s{sR4}, 7
    s_sub_u32 s{sNB}, s{sM}, s62
    s_lshl_b32 s{sCOL}, s{sNB}, 7
    s_and_b32 s61, s{sW}, 1
    s_lshr_b32 s{sKH}, s{sW}, 1
    s_lshl_b32 s{sTO}, s{sG}, 2
    s_and_b32 s{sR4}, s{sR4}, 1
    s_add_u32 s{sTO}, s{sTO}, s{sR4}
    s_lshl_b32 s{sTO}, s{sTO}, 1
    s_add_u32 s{sTO}, s{sTO}, s61
    s_lshl_b32 s{sEX}, s{sW}, 12
    {panel_addr(vPAN, 896)}
    v_and_b32 v{vT0}, 3, v{vL}
    v_lshlrev_b32 v{vT0}, 3, v{vT0}
    v_bfe_u32 v{vT1}, v{vL}, 4, 1
    v_lshl_add_u32 v{vT0}, v{vT1}, 5, v{vT0}
    v_bfe_u32 v{vT1}, v{vL}, 2, 2
    v_lshl_add_u32 v16, v{vT1}, 6, v{vT0}
    v_lshl_add_u32 v16, v{vHALF}, 9, v16
    v_lshl_add_u32 v{vT0}, v{vT1}, 7, v{vT0}
    v_bfe_u32 v{vT1}, v{vL}, 3, 1
    v_lshl_add_u32 v{vT0}, v{vT1}, 6, v{vT0}
    v_lshl_add_u32 v{vTN0}, v{vHALF}, 10, v{vT0}
    v_lshl_add_u32 v{vTP0}, v{vHALF}, 9, v{vT0}
    v_xor_b32 v{vTN1}, 64, v{vTN0}
    v_xor_b32 v{vTP1}, 64, v{vTP0}
    s_lshl_b32 s62, s{sKH}, 6
    v_xor_b32 v{vR0}, s62, v{vTP0}
    v_xor_b32 v{vR0+1}, s62, v{vTP1}"""
    prepA = f"""s_mul_i32 s{sLK}, s{sW}, 6144
    s_add_u32 s{sLK}, s{sLK}, {L_K}
    s_lshl_b32 s61, s{sHEAD}, 6
    s_lshl_b32 s62, s{sRB}, 2
    s_mul_i32 s63, s{sW}, 3
    s_add_u32 s62, s62, s63
    s_sub_u32 s62, s62, 8"""
    for q in range(3):
        prepA += f"""
        s_add_u32 s63, s62, {q}
        s_add_u32 s64, s63, s61
        s_mul_i32 s64, s64, 1792
        s_add_u32 s64, s64, {KG}
        s_cmp_lt_i32 s63, 0
        s_cselect_b32 s{sK0+q}, {OOB}, s64"""
    prepA += f"""
    v_lshlrev_b32 v{vT0}, 9, v{vHALF}
    v_lshl_add_u32 v{vT0}, v{vL31}, 3, v{vT0}
    {put('QA', vT0)}
    s_lshl_b32 s61, s{sW}, 11
    s_add_u32 s61, s61, {L_K}
    v_add_u32 v{vT0}, s61, v{vT0}
    {put('KA', vT0)}
    v_mul_u32_u24 v{vT0}, 448, v{vHALF}
    v_lshl_add_u32 v{vT0}, v{vL31}, 4, v{vT0}
    {put('VS', vT0)}
    s_lshl_b32 s{sQO}, s{sTA}, 4
    s_add_u32 s{sQO}, s{sQO}, s{sHEAD}
    s_and_b32 s61, s{sQO}, 127
    s_lshl_b32 s61, s61, 2
    s_add_u32 s61, s61, s{sCTL}
    s_add_u32 s{sFO}, s61, {C_FO}
    s_lshl_b32 s{sQO}, s{sQO}, 11
    s_add_u32 s{sQO}, s{sQO}, {QO}
    v_min_u32 v{vT0}, 13, v{vL}
    v_and_b32 v{vT1}, 1, v{vT0}
    v_mul_u32_u24 v{vT1}, 27, v{vT1}
    s_mul_i32 s61, s{sHEAD}, 28
    v_add_u32 v{vT1}, s61, v{vT1}
    v_lshrrev_b32 v{vT2}, 6, v{vT1}
    v_bfe_u32 v{vT3}, v{vT0}, 1, 1
    v_mad_u32_u24 v{vT2}, v{vT3}, 7, v{vT2}
    v_lshrrev_b32 v{vT3}, 2, v{vT0}
    v_add_u32 v{vT3}, s62, v{vT3}
    v_max_i32 v{vT3}, 0, v{vT3}
    v_mad_u32_u24 v{vT2}, v{vT3}, 14, v{vT2}
    v_lshlrev_b32 v{vT2}, 7, v{vT2}
    v_add_u32 v{vT2}, {FKV}, v{vT2}
    v_lshrrev_b32 v{vT1}, 5, v{vT1}
    s_and_b32 s61, s{sTA}, 7
    s_lshl_b32 s61, s61, 6
    s_add_u32 s61, s61, s{sCTL}
    s_add_u32 s61, s61, {C_FQ}
    v_lshl_add_u32 v{vT1}, v{vT1}, 2, s61
    v_cmp_gt_u32 vcc, 12, v{vT0}
    v_cndmask_b32 v{vT0}, v{vT1}, v{vT2}, vcc
    {put('PA', vT0)}
    {panel_addr(120, 3584)}
    {put('P1a', 120)}
    {put('P1b', 121)}
    {put('P1c', 122)}
    {put('P1d', 123)}
    s_mul_i32 s{sWOL}, s{sW}, 14336
    s_bfe_u32 s61, s{sJ}, 0x10001
    s_lshl_b32 s{sW1C}, s{sJ}, 1
    s_add_u32 s{sW1C}, s{sW1C}, s61
    s_lshl_b32 s{sW1C}, s{sW1C}, 7
    s_xor_b32 s{sW1D}, s{sW1C}, 128
    s_lshl_b32 s61, s{sNB}, 1
    s_add_u32 s{sCT}, s61, s{sKH}
    s_lshl_b32 s61, s{sCT}, 7
    s_add_u32 s{sNUS}, s61, {NU}
    v_and_b32 v{vT0}, 7, v{vL}
    v_bfe_u32 v{vT1}, v{vL}, 3, 2
    v_min_u32 v{vT1}, 2, v{vT1}
    v_min_u32 v{vT2}, 1, v{vT1}
    v_add_u32 v{vT1}, v{vT1}, v{vT2}
    v_mul_u32_u24 v{vT1}, 1792, v{vT1}
    v_lshl_add_u32 v{vT1}, v{vT0}, 4, v{vT1}
    {put('NU', vT1)}"""
    kpad = f"v_mov_b32 v121, 0\nv_lshl_add_u32 v122, v{vL31}, 3, s{sLK}\ns_mov_b32 exec_hi, 0"
    for q in range(3): kpad += f"\ns_cmp_eq_u32 s{sK0+q}, {OOB}\ns_cselect_b32 s64, {NEG>>16:#x}, 0\nv_mov_b32 v120, s64\nds_write_b64 v122, v[120:121] offset:{2048*q+1792}"
    kpad += "\ns_mov_b64 exec, -1"
    vKS = 216; vQS = 224
    def b_pR():
        A(roles)
        A(f"""v_add_u32 v{vWQ}, {L_WQ}, v16
        v_lshrrev_b32 v{vPQ}, 2, v{vL}
        v_mul_u32_u24 v{vPQ}, 2688, v{vPQ}
        v_and_b32 v17, 3, v{vL}
        v_lshl_add_u32 v{vPQ}, v17, 4, v{vPQ}""")
        for i in range(1, 4): A(f"v_add_u32 v{vPQ+i}, {i*(16*2688-1024)}, v{vPQ}")
    def b_pF():
        A(f"""s_lshl_b32 s62, s{sR4}, 1
        s_add_u32 s62, s62, s{sNB}
        s_lshl_b32 s62, s62, 1
        s_add_u32 s62, s62, s{sG}
        s_mul_i32 s64, s62, 37
        s_lshr_b32 s64, s64, 8
        s_mul_i32 s64, s64, 7
        s_sub_u32 s62, s62, s64
        s_mul_i32 s63, s{sW}, 7""")
        for q in range(7):
            A(f"""s_add_u32 s64, s62, {q}
            s_cmp_ge_u32 s64, 7
            s_cselect_b32 s65, 7, 0
            s_sub_u32 s64, s64, s65
            s_add_u32 s64, s64, s63
            s_and_b32 s65, s64, 0xfe
            s_lshr_b32 s66, s64, 1
            s_and_b32 s66, s66, 2
            s_add_u32 s64, s64, s66
            s_add_u32 s{sFT+q}, s64, s65""")
    def b_pO():
        A(f"""v_mul_u32_u24 v{vROW}, 896, v{vL31}
        v_lshl_add_u32 v{vROW}, v{vHALF}, 4, v{vROW}
        s_mul_i32 s62, s{sTO}, 28672
        s_lshl_b32 s61, s{sCT}, 6
        s_add_u32 s{sROW}, s62, s61
    """)
        A(f"""s_lshl_b32 s61, s{sW}, 9
        s_add_u32 s61, s61, {L_VEC}
        v_lshl_add_u32 v{vVEC}, v{vHALF}, 4, s61
        v_lshl_add_u32 v{vT0}, v{vL31}, 4, s61
        {put('VW', vT0)}
        s_and_b32 s61, s{sTO}, 7
        s_lshl_b32 s61, s61, 6
        s_add_u32 s61, s61, s{sCTL}
        s_lshl_b32 s62, s{sKH}, 5
        s_add_u32 s61, s61, s62
        s_add_u32 s{sFOP}, s61, {C_FO}
        s_lshl_b32 s62, s{sTO}, 1
        s_add_u32 s62, s62, s{sKH}
        s_lshl_b32 s62, s62, 14
        s_add_u32 s{sOS}, s62, {QO}
        s_mul_i32 s{sSTS}, s{sTO}, 3584
        s_lshl_b32 s61, s{sNB}, 9
        s_add_u32 s{sSTS}, s{sSTS}, s61
        s_lshl_b32 s61, s{sKH}, 3
        s_add_u32 s{sSTS}, s{sSTS}, s61
        s_add_u32 s{sSTS}, s{sSTS}, {STATS}
    """)
        A(f"""s_mul_i32 s{sYS}, s{sTO}, 28672
        s_lshl_b32 s61, s{sCT}, 11
        s_add_u32 s{sYS}, s{sYS}, s61
        s_and_b32 s61, s{sTO}, 7
        s_lshl_b32 s61, s61, 4
        s_add_u32 s61, s61, s{sCT}
        s_lshl_b32 s61, s61, 2
        s_add_u32 s61, s61, s{sCTL}
        s_add_u32 s{sFY}, s61, {C_FY}""")
    def b_pQ():
        A(f"""s_and_b32 s61, s{sTQ}, 7
        s_lshl_b32 s61, s61, 6
        s_add_u32 s{sFHP}, s61, s{sCTL}
        s_lshl_b32 s62, s{sJ}, 2
        s_add_u32 s62, s62, s{sFHP}
        s_add_u32 s{sFQ}, s62, {C_FQ}
        s_mul_i32 s{sHS}, s{sTQ}, 28672
        s_mul_i32 s{sKVS}, s{sTQ}, 1792
        s_lshl_b32 s{sQS}, s{sTQ}, 15
        s_add_u32 s{sQS}, s{sQS}, {QO}
        s_mul_i32 s{sFKV}, s{sTQ}, 14
        s_add_u32 s{sFKV}, s{sFKV}, s{sJ}
        s_lshl_b32 s{sFKV}, s{sFKV}, 7
        s_add_u32 s{sFKV}, s{sFKV}, {FKV}
    """)
    def b_pS():
        A(f"""s_lshl_b32 s61, s{sJ}, 3""")
        for a_ in range(4):
            A(f"""v_add3_u32 v{vT0}, v{vHALF}, s61, {2*a_}
            v_mul_u32_u24 v{vT1}, 147, v{vT0}
            v_lshrrev_b32 v{vT1}, 10, v{vT1}
            v_add_lshl_u32 v{vT0}, v{vT0}, v{vT1}, 8
            v_lshl_add_u32 v{vQS+a_}, v{vL31}, 3, v{vT0}""")
        A(f"s_cmp_ge_u32 s{sJ}, 7\ns_cbranch_scc1 L_va\ns_lshl_b32 s61, s{sJ}, 4\ns_add_u32 s{sKVS}, s{sKVS}, {KG}")
        for i in range(8):
            A(f"""v_add3_u32 v{vT0}, v{vHALF}, s61, {2*i}
            v_mul_u32_u24 v{vT1}, 147, v{vT0}
            v_lshrrev_b32 v{vT1}, 10, v{vT1}
            v_mul_u32_u24 v{vT1}, {64*1792-7*256}, v{vT1}
            v_lshl_add_u32 v{vT0}, v{vT0}, 8, v{vT1}
            v_lshl_add_u32 v{vKS+i}, v{vL31}, 3, v{vT0}""")
        A(f"s_branch L_vb\nL_va:\ns_sub_u32 s61, s{sJ}, 7\ns_lshl_b32 s61, s61, 6\ns_add_u32 s{sKVS}, s{sKVS}, {VG}")
        for t in range(2):
            A(f"""v_add3_u32 v{vT0}, v{vL31}, s61, {32*t}
            v_lshrrev_b32 v{vT1}, 2, v{vT0}
            v_mul_u32_u24 v{vT1}, 147, v{vT1}
            v_lshrrev_b32 v{vT1}, 10, v{vT1}
            v_mul_u32_u24 v{vT1}, {64*1792-448}, v{vT1}
            v_lshl_add_u32 v{vT0}, v{vT0}, 4, v{vT1}
            v_mul_u32_u24 v{vT1}, 448, v{vHALF}
            v_add_u32 v{vKS+t}, v{vT0}, v{vT1}""")
        for i in range(2, 8): A(f"v_mov_b32 v{vKS+i}, 0")
        A("L_vb:")
    J.update(pR=lambda: [b_pR], pF=lambda: [b_pF], pO=lambda: [b_pO], pQ=lambda: [b_pQ], pS=lambda: [b_pS], pA=lambda: [lambda: (A(prepA), A(kpad), [lg.issue() for _ in range(3)])])
    A(hline)
    A(put('XA', 9))
    A(f"""v_lshlrev_b32 v{vL16}, 4, v{vL}
    v_lshrrev_b32 v{vHALF}, 5, v{vL}
    v_and_b32 v{vL31}, 31, v{vL}
    s_getreg_b32 s46, hwreg(HW_REG_XCC_ID, 0, 4)
    s_mov_b32 s{sUNI}, 0
    s_lshl_b32 s{sCTL}, s{sG}, 12
    s_add_u32 s{sCTL}, s{sCTL}, {CTL}
    v_and_b32 v30, 7, v{vL}
    v_lshrrev_b32 v31, 3, v{vL}
    v_xor_b32 v32, v30, v31
    v_lshlrev_b32 v32, 4, v32
    v_lshl_add_u32 v32, v30, 7, v32
    v_add_u32 v32, {L_X}, v32
    s_lshl_b32 s61, s{sW}, 10
    v_add_u32 v33, s61, v32
    s_mov_b32 s86, 0x07060500
    s_mov_b32 s87, 0x07060501
    s_mov_b32 s88, 0x07060502
    s_mov_b32 s89, 0x07060503
    s_add_u32 s61, s46, 1
    v_cvt_f32_u32 v18, s61
    s_lshl_b32 s61, s{sWG}, 7
    s_add_u32 s90, s61, {XCCG}
    s_mov_b32 s66, 0xffff0000
    s_cmp_eq_u32 s{sHLP}, 1
    s_cbranch_scc1 L_h2""")
    main = A.lines; A.lines = []; hist = A.hist; A.hist = []
    A("L_h2:")
    A(f"""v_lshrrev_b32 v20, 2, v{vL}
    v_bfe_u32 v21, v{vL}, 3, 2
    v_xor_b32 v21, s{sW}, v21
    v_lshlrev_b32 v21, 5, v21
    v_lshl_add_u32 v20, v20, 7, v21
    v_and_b32 v21, 3, v{vL}
    v_lshl_add_u32 v20, v21, 3, v20
    v_add_u32 v20, {L_B}, v20
    v_and_b32 v22, 48, v{vL}
    s_and_b32 s61, s{sUI}, 1
    s_mul_i32 s62, s61, 448
    s_add_u32 s62, s62, {L_SILU}
    v_add_u32 v21, s62, v22
    s_mul_i32 s61, s61, 56
    s_lshr_b32 s62, s{sUI}, 1
    s_lshl_b32 s62, s62, 2
    s_add_u32 s61, s61, s62
    s_add_u32 s61, s61, s{sW}
    s_lshl_b32 s61, s61, 7
    s_add_u32 s84, s61, {S0U}
    s_cmp_ge_u32 s{sUI}, 28
    s_cselect_b32 s84, {OOB}, s84
    s_lshl_b32 s{sHI}, s{sG}, 2
    s_add_u32 s{sHI}, s{sHI}, s{sM}
    s_sub_u32 s{sHI}, s{sHI}, 28
    v_bfe_u32 v24, v2, 1, 2
    v_and_b32 v25, 0xf1, v2
    v_lshl_add_u32 v25, v24, 2, v25
    v_bfe_u32 v24, v2, 3, 1
    v_lshl_add_u32 v25, v24, 1, v25
    v_lshlrev_b32 v25, 2, v25
    v_add_u32 v25, {L_SILU}, v25
    s_waitcnt vmcnt(10)
    v_lshlrev_b32 v26, 16, v8
    v_and_b32 v27, 0xffff0000, v8
    v_mul_f32 v28, 0xbfb8aa3b, v26
    v_mul_f32 v29, 0xbfb8aa3b, v27
    v_exp_f32 v28, v28
    v_exp_f32 v29, v29
    v_add_f32 v28, 1.0, v28
    v_add_f32 v29, 1.0, v29
    v_rcp_f32 v28, v28
    v_rcp_f32 v29, v29
    v_mul_f32 v26, v26, v28
    v_mul_f32 v27, v27, v29
    v_cvt_pk_bf16_f32 v26, v26, v27
    ds_write_b32 v25, v26
    s_waitcnt lgkmcnt(0)
    s_mul_i32 s{sTAG}, s{sTAG}, 0x9E3779B1
    s_add_u32 s{sTAG}, s{sTAG}, 0x7F4A7C15
    v_mov_b32 v{vTAG}, s{sTAG}
    s_waitcnt vmcnt(3)""")
    barrier()
    stamp("B1")
    lg.n = lg.done = 0
    toks = []
    for s_ in range(7):
        DS(f"ds_read_b128 v[{140+4*s_}:{143+4*s_}], v21 offset:{64*s_}")
        DS(f"ds_read_b64_tr_b16 v[{168+4*s_}:{169+4*s_}], v20 offset:{4096*s_}")
        toks.append(DS(f"ds_read_b64_tr_b16 v[{170+4*s_}:{171+4*s_}], v20 offset:{4096*s_+2048}"))
    for s_ in range(7):
        lg.wait(toks[s_])
        A(f"v_mfma_f32_16x16x32_bf16 v[24:27], v[{168+4*s_}:{171+4*s_}], v[{140+4*s_}:{143+4*s_}], {'0' if s_ == 0 else 'v[24:27]'}")
    A(f"""s_mov_b32 exec_lo, 0x00010001
    s_mov_b32 exec_hi, 0x00010001
    v_perm_b32 v24, v24, v{vTAG}, s86
    v_perm_b32 v25, v25, v{vTAG}, s87
    v_perm_b32 v26, v26, v{vTAG}, s88
    v_perm_b32 v27, v27, v{vTAG}, s89
    buffer_store_dwordx4 v[24:27], v22, {WS}, s84 offen sc1
    s_mov_b64 exec, -1""")
    stamp("gemv")
    xcc = lambda l: f"""s_cmp_lg_u32 s{sW}, 0
    s_cbranch_scc1 {l}
    v_perm_b32 v136, v18, v{vTAG}, s86
    v_perm_b32 v137, v18, v{vTAG}, s87
    v_perm_b32 v138, v18, v{vTAG}, s88
    v_perm_b32 v139, v18, v{vTAG}, s89
    s_mov_b64 exec, 1
    buffer_store_dwordx4 v[136:139], off, {WS}, s90 sc1
    s_mov_b64 exec, -1
    {l}:"""
    A(xcc("L_nx1"))
    A(f"""s_lshl_b32 s85, s{sHI}, 2
    s_add_u32 s85, s85, s{sW}
    s_lshl_b32 s61, s85, 8
    s_add_u32 s61, s61, {CTL}
    v_and_b32 v11, 1, v{vL}
    v_lshlrev_b32 v11, 7, v11
    buffer_load_dword v{vJUNK}, v11, {WS}, s61 offen sc1
    buffer_load_dword v{vJUNK}, v77, {OUT}, s98 offen sc1""")
    sv = (vm.n, vm.done); h0 = jobs(hp0, HJ); nh0 = len(h0); run(h0, 99); vm.n, vm.done = sv
    A(f"s_cmp_eq_u32 s{sW}, 0\ns_cbranch_scc1 L_hx\ns_waitcnt vmcnt({3+nh0})\nL_hx:\ns_waitcnt vmcnt({4+nh0})")
    barrier()
    A("s_branch L_w3")
    tail.append(("raw", A.lines)); A.lines = main; A.hist = hist
    run(jobs(a1), 99)
    A(f"""s_waitcnt lgkmcnt(0)
    s_mul_i32 s{sTAG}, s{sTAG}, 0x9E3779B1
    s_add_u32 s{sTAG}, s{sTAG}, 0x7F4A7C15
    v_mov_b32 v{vTAG}, s{sTAG}
""")
    if warm and stop > 5: A("s_branch L_pg"); A.raw("    .p2align 12"); A("L_pg:")
    vm.wait(tx)
    barrier()
    stamp("B0")
    A(xcc("L_nx2"))
    run(jobs(a2), 99)
    A("L_w3:\ns_mov_b32 s66, 0xffff0000")
    lg.n = lg.done = 0
    tk = [DS(f"ds_read_b128 v[{40+4*i}:{43+4*i}], v32 offset:{1024*i}") for i in range(7)]
    DS("ds_read_b128 v[68:71], v33"); town = DS("ds_read_b128 v[72:75], v33 offset:4096")
    for i in range(7):
        lg.wait(tk[i])
        for d in range(4):
            A(f"v_lshlrev_b32 v{80+8*i+2*d}, 16, v{40+4*i+d}\nv_and_b32 v{81+8*i+2*d}, s66, v{40+4*i+d}")
    A.raw("    .p2align 3")
    A("v_pk_add_f32 v[34:35], v[80:81], v[82:83]")
    for i in range(2, 28): A(f"v_pk_add_f32 v[34:35], v[34:35], v[{80+2*i}:{81+2*i}]")
    def red8(r):
        A(f"""v_add_f32_dpp v{r}, v{r}, v{r} row_ror:8 row_mask:0xf bank_mask:0xf
        v_mov_b32 v{vT0}, v{r}
        v_permlane16_swap_b32 v{r}, v{vT0}
        v_add_f32 v{r}, v{r}, v{vT0}
        v_mov_b32 v{vT0}, v{r}
        v_permlane32_swap_b32 v{r}, v{vT0}
        v_add_f32 v{r}, v{r}, v{vT0}""")
    A("v_add_f32 v34, v34, v35"); red8(34)
    A("v_mul_f32 v34, 0xbb124925, v34\nv_mov_b32 v35, v34")
    A.raw("    .p2align 3")
    for i in range(28): A(f"v_pk_add_f32 v[{80+2*i}:{81+2*i}], v[{80+2*i}:{81+2*i}], v[34:35]")
    A("v_pk_mul_f32 v[36:37], v[80:81], v[80:81]")
    for i in range(1, 28): A(f"v_pk_fma_f32 v[36:37], v[{80+2*i}:{81+2*i}], v[{80+2*i}:{81+2*i}], v[36:37]")
    A("v_add_f32 v36, v36, v37"); red8(36)
    A("v_mov_b32 v37, 0x3727c5ac\nv_fmac_f32 v37, 0x3b124925, v36\nv_rsq_f32 v36, v37")
    lg.wait(town)
    for d in range(8):
        A(f"v_lshlrev_b32 v{40+2*d}, 16, v{68+d}\nv_and_b32 v{41+2*d}, s66, v{68+d}")
    A("v_mov_b32 v37, v36")
    for d in range(8): A(f"v_pk_add_f32 v[{40+2*d}:{41+2*d}], v[{40+2*d}:{41+2*d}], v[34:35]")
    for d in range(8): A(f"v_pk_mul_f32 v[{40+2*d}:{41+2*d}], v[{40+2*d}:{41+2*d}], v[36:37]")
    A(f"""v_lshrrev_b32 v62, 2, v0
    v_lshlrev_b32 v62, 7, v62
    v_and_b32 v56, 3, v0
    v_lshl_add_u32 v62, v56, 4, v62
    v_add_u32 v56, {56*128}, v62
    s_lshl_b32 s61, s{sG}, 12
    s_add_u32 s61, s61, {XCCG-S0U}
    v_lshl_add_u32 v57, v{vL31}, 7, s61
    v_cmp_gt_u32 vcc, 224, v0
    v_cndmask_b32 v62, v57, v62, vcc
    v_cndmask_b32 v56, v57, v56, vcc
    v_lshlrev_b32 v57, 4, v0
    v_add_u32 v57, {L_MODV}, v57
    v_cmp_le_u32 vcc, 112, v0
    v_cndmask_b32 v63, 0, 1.0, vcc
    s_lshl_b32 s61, s{sW}, 8
    s_add_u32 s61, s61, {L_MODV}
    v_lshl_add_u32 v58, v31, 5, s61
    v_lshlrev_b32 v59, 4, v{vL31}
    v_add_u32 v59, {L_MODV+3584}, v59
    v_lshlrev_b32 v60, 9, v31
    v_lshl_add_u32 v60, v30, 4, v60
    v_fma_f32 v76, v18, 2.0, 1.0
    s_lshl_b32 s46, s{sM}, 2
    s_add_u32 s46, s46, s{sW}
    s_lshl_b32 s46, s46, 2
    s_add_u32 s46, s46, s{sCTL}""")
    stamp("stats")
    A(f"s_cmp_eq_u32 s{sHLP}, 1\ns_cbranch_scc1 L_w4")
    run(jobs(a3), 99)
    assert not wkv
    A("L_w4:")
    if warm and stop > 5: A.raw("WARM a")
    stamp("prep")
    A(f"""s_mov_b32 s{sCNT}, 0
    s_mov_b32 s61, {S0U}
    s_mov_b32 s64, 0x0c0c0400
    s_mov_b32 s65, 0x05040100
    L_s0:
    buffer_load_dwordx4 v[64:67], v62, {WS}, s61 offen sc1
    buffer_load_dwordx4 v[68:71], v56, {WS}, s61 offen sc1
    s_add_u32 s{sCNT}, s{sCNT}, 1
    s_cmp_ge_u32 s{sCNT}, {SPIN}
    s_cbranch_scc1 L_s0d
    s_waitcnt vmcnt(1)
    v_perm_b32 v72, v65, v64, s64
    v_perm_b32 v73, v67, v66, s64
    v_perm_b32 v72, v73, v72, s65
    v_cmp_ne_u32 s[62:63], s{sTAG}, v72
    s_waitcnt vmcnt(0)
    v_perm_b32 v74, v69, v68, s64
    v_perm_b32 v75, v71, v70, s64
    v_perm_b32 v74, v75, v74, s65
    v_cmp_ne_u32 vcc, s{sTAG}, v74
    s_or_b64 vcc, vcc, s[62:63]
    s_cbranch_vccnz L_s0
    L_s0d:
    s_waitcnt vmcnt(0)""")
    for r in range(64, 72): A(f"v_and_b32 v{r}, 0xffffff00, v{r}")
    A(f"""v_pk_add_f32 v[64:65], v[64:65], v[68:69]
    v_pk_add_f32 v[66:67], v[66:67], v[70:71]
    v_cvt_pk_bf16_f32 v68, v64, v65
    v_cvt_pk_bf16_f32 v69, v66, v67
    v_lshlrev_b32 v64, 16, v68
    v_and_b32 v65, 0xffff0000, v68
    v_lshlrev_b32 v66, 16, v69
    v_and_b32 v67, 0xffff0000, v69
    v_add_f32 v64, v64, v63
    v_add_f32 v65, v65, v63
    v_add_f32 v66, v66, v63
    v_add_f32 v67, v67, v63
    v_cvt_pk_bf16_f32 v68, v64, v65
    v_cvt_pk_bf16_f32 v69, v66, v67
    v_lshlrev_b32 v64, 16, v68
    v_and_b32 v65, 0xffff0000, v68
    v_lshlrev_b32 v66, 16, v69
    v_and_b32 v67, 0xffff0000, v69
    ds_write_b128 v57, v[64:67]
    s_waitcnt lgkmcnt(0)""")
    vm.drained(); lg.drained()
    barrier()
    stamp("S0")
    t0 = []
    for p in range(2):
        for q in range(2):
            DS(f"ds_read_b128 v[{80+16*p+4*q}:{83+16*p+4*q}], v58 offset:{1792+1024*p+16*q}")
            t0.append(DS(f"ds_read_b128 v[{88+16*p+4*q}:{91+16*p+4*q}], v58 offset:{1024*p+16*q}"))
    txc = DS("ds_read_b32 v61, v59")
    for p in range(2):
        for q in range(2):
            lg.wait(t0[2 * p + q])
            for e in range(0, 4, 2):
                r = 40 + 8 * p + 4 * q + e
                A(f"v_pk_fma_f32 v[{r}:{r+1}], v[{r}:{r+1}], v[{80+16*p+4*q+e}:{81+16*p+4*q+e}], v[{88+16*p+4*q+e}:{89+16*p+4*q+e}]")
        for d in range(4): A(f"v_cvt_pk_bf16_f32 v{112+4*p+d}, v{40+8*p+2*d}, v{41+8*p+2*d}")
        th = VM(f"buffer_store_dwordx4 v[{112+4*p}:{115+4*p}], v60, {OUT}, s{98+p} offen")
    lg.wait(txc)
    A(f"v_cmp_neq_f32 vcc, v76, v61\ns_cmp_eq_u64 vcc, 0\ns_cselect_b32 s{sUNI}, {0 if force_slow else 1}, 0")
    A(f"s_cmp_eq_u32 s{sHLP}, 1\ns_cbranch_scc1 L_help")

    run(jobs(a5), 99)
    ACC = 112; WB = 160
    tw = {}
    def ld(s_):
        b = WB + 8 * (s_ % 4); js = []
        tw[s_] = Tok()
        for t in range(2):
            js.append(jDS(f"ds_read_b64_tr_b16 v[{b+4*t}:{b+4*t+1}], v{vTN0-t} offset:{L_WKV+2048*s_}"))
            js.append(jDS(f"ds_read_b64_tr_b16 v[{b+4*t+2}:{b+4*t+3}], v{vTN0-t} offset:{L_WKV+2048*s_+512}", tw[s_]))
        return js
    for s_ in range(3): run(ld(s_), 4)
    vm.wait(th)
    flag(46)
    stamp("hpub")
    run(jobs(a6), 99)
    A(f"""v_and_b32 v{vT3}, 15, v{vL}
    v_lshlrev_b32 v{vT3}, 2, v{vT3}""")
    poll(vT3, f"s{sFHP}")
    stamp("S0b")
    if stop <= 1:
        A("s_branch L_fin\nL_help:\ns_waitcnt vmcnt(0)"); flag(46); return done()
    th = [Tok() for _ in range(28)]
    def hjobs(): return [jVM(f"buffer_load_dwordx4 v[{4*s_}:{4*s_+3}], v{vL16}, {OUT}, s{sHS} offen offset:{1024*(s_%4)} sc1", th[s_], f"s_add_u32 s{sHS}, s{sHS}, 4096" if (s_ % 4 == 0 and s_) else None) for s_ in range(28)]
    run(hjobs(), PRO)
    run(jobs(a7), 99)
    tQ = Tok()
    def kv_pass(vtype):
        sv = (vm.n, vm.done, lg.n, lg.done)
        mem = hjobs()[PRO:]
        mem += jobs(kvt); bulk = mem[28:] + jobs(qp); mem = mem[:28]
        tq = {}
        def ldq(s_):
            b = WB + 4 * (s_ % 8); tq[s_] = Tok()
            return [jDS(f"ds_read_b64_tr_b16 v[{b}:{b+1}], v{vWQ} offset:{1024*s_}"), jDS(f"ds_read_b64_tr_b16 v[{b+2}:{b+3}], v{vWQ} offset:{1024*s_+256}", tq[s_])]
        for s_ in range(28):
            vm.wait(th[s_].t); lg.wait(tw[s_].t)
            if s_ == 26: vm.wait(twq.t); barrier()
            b = WB + 8 * (s_ % 4)
            nx = ld(s_ + 3) if s_ + 3 < 28 else (ldq(2 * (s_ - 26)) + ldq(2 * (s_ - 26) + 1) if s_ >= 26 else [])
            for t in range(2):
                wf, hf = v(b + 4 * t, 4), v(4 * s_, 4)
                c = "0" if s_ == 0 else None
                if vtype: mfma(v(ACC + 16 * t, 16), hf, wf, c)
                else: mfma(v(ACC + 16 * t, 16), wf, hf, c)
                if t == 0:
                    run(mem, 1); run(nx, 1)
                else: run(nx, 3)
            if 'fine' in dbg and s_ in (0, 9, 18): stamp(f'k{s_}')
        stamp("kv")
        epi = []; last = Tok()
        for t in range(2):
            P = 192 + 8 * t
            for d in range(8):
                epi.append(f"v_cvt_pk_bf16_f32 v{P+d}, v{ACC+16*t+2*d}, v{ACC+16*t+2*d+1}")
                if vtype and d % 4 == 3: epi.append(jVM(f"buffer_store_dwordx4 v[{P+d-3}:{P+d}], v{vKS+t}, {WS}, s{sKVS} offen offset:{896*(d//4)} sc1", last))
                if not vtype and d % 2 == 1: epi.append(jVM(f"buffer_store_dwordx2 v[{P+d-1}:{P+d}], v{vKS+4*t+d//2}, {WS}, s{sKVS} offen sc1", last))
        for s_ in range(28):
            lg.wait(tq[s_].t)
            b = WB + 4 * (s_ % 8)
            mfma(v(ACC + 32, 16), v(b, 4), v(4 * s_, 4), "0" if s_ == 0 else None)
            if s_ + 4 < 28: run(ldq(s_ + 4), 2)
            if epi:
                if s_ >= 1: run(epi, 6)
            elif s_ >= QB and (len(bulk) >= 28 - s_ or s_ % 2 == 0): run(bulk, 1)
            if s_ == 8: barrier()
            if s_ == KVA: vm.wait(last.t); flag(sFKV, slow=True)
        run(bulk, 99)
        A(f"s_mov_b32 s61, {QSCALE:#x}")
        for d in range(8):
            A(f"v_mul_f32 v{ACC+32+2*d}, s61, v{ACC+32+2*d}\nv_mul_f32 v{ACC+33+2*d}, s61, v{ACC+33+2*d}\nv_cvt_pk_bf16_f32 v{208+d}, v{ACC+32+2*d}, v{ACC+33+2*d}")
            if d % 2 == 1: tQ.t = VM(f"buffer_store_dwordx2 v[{207+d}:{208+d}], v{vQS+d//2}, {WS}, s{sQS} offen")
        stamp("q")
        if KVA > 27: vm.wait(last.t); flag(sFKV, slow=True)
        stamp("kvpub")
        vm.wait(tQ.t); flag(sFQ)
        stamp("qpub")
        vm.n, vm.done, lg.n, lg.done = sv
    A(f"s_cmp_ge_u32 s{sJ}, 7\ns_cbranch_scc1 L_kvV")
    e0 = kv_pass(False)
    A("s_branch L_kvE\nL_kvV:")
    e1 = kv_pass(True)
    A("L_kvE:")
    vm.n = vm.done = 0; lg.n = lg.done = 0
    vP1 = 222
    getP1 = "\n".join(get(n_, vP1 + i) for i, n_ in enumerate(("P1a", "P1b", "P1c", "P1d")))
    def w1_jobs(second, per, first, tok=None):
        return dma_jobs(W1, vP1, 3584, per, f"s_mul_i32 s{sSRC}, s{sW}, {per*1024}\ns_add_u32 m0, s{sSRC}, {(L_P1 if second else L_P0)+first*1024}\ns_mul_i32 s{sSRC}, s{sSRC}, 28\ns_add_u32 s{sSRC}, s{sSRC}, s{sW1D if second else sW1C}" + (f"\ns_add_u32 s{sSRC}, s{sSRC}, {first*8*3584}" if first else ""), tok)
    def wo_half(second):
        return dma_jobs(WO, vPAN, 896, 8, f"""s_bitcmp{1 if second else 0}_b32 s{sR4}, 0
        s_cselect_b32 s65, 0, 7168
        s_add_u32 s65, s65, s{sWOL}
        s_mov_b32 m0, s65
        s_mul_i32 s{sSRC}, s65, 7
        s_add_u32 s{sSRC}, s{sSRC}, s{sCOL}""")
    slot = {}; nxt = [0]; nb1 = [0]
    def stage(k):
        assert k not in slot
        slot[k] = (nxt[0], Tok()); nxt[0] += 1
        return w2_dma(slot[k][0], sEX, BLK * k, slot[k][1])
    def wb(n):
        nb1[0] += n; return w1_jobs(1, n, 4 * (nb1[0] - n))
    def zfill(k):
        return [jVM(f"buffer_load_dword v{vJUNK}, v{vT3}, {W2}, s65 offen", None, f"""s_and_b32 s66, s{sG}, 1
        s_xor_b32 s66, s66, {k&1}
        s_lshl_b32 s66, s66, 2
        s_add_u32 s66, s66, s{sW}
        s_mul_i32 s66, s66, 7168
        s_mul_i32 s65, s{sJ}, 114688
        s_add_u32 s65, s65, s66
        s_bitcmp{0 if k >> 1 else 1}_b32 s{sJ}, 1
        s_cselect_b32 s66, 57344, 0
        s_add_u32 s65, s65, s66
        v_min_u32 v{vT3}, 55, v{vL}
        v_lshlrev_b32 v{vT3}, 7, v{vT3}""")]
    J.update({f"Z{k}": (lambda k=k: zfill(k)) for k in range(4)}); J["_"] = lambda: [lambda: None]
    vNU = 228
    J.update(O0=lambda: wo_half(0), O1=lambda: wo_half(1), Wa=lambda: w1_jobs(0, 14, 0),
             NU=lambda: [jVM(f"buffer_load_dwordx4 v[{vNU}:{vNU+3}], v232, {WS}, s{sNUS} offen sc1")],
             **{f"Wb{n}": (lambda n=n: wb(n)) for n in range(1, 11)}, **{f"S{k}": (lambda k=k: stage(k)) for k in range(9)})
    A(f"s_cmp_eq_u32 s{sHLP}, 2\ns_cbranch_scc1 L_p42")
    if p41: A(getP1)
    run(jobs(p41), 99)
    A("s_branch L_att\nL_p42:")
    run(jobs(p42), 99)
    A("s_branch L_att")
    A("L_help:")
    A("s_waitcnt vmcnt(0)")
    flag(46)
    A(f"""s_lshl_b32 s85, s{sHI}, 2
    s_add_u32 s85, s85, s{sW}
    s_mul_i32 s61, s85, 896
    s_add_u32 s61, s61, {FKV}
    v_min_u32 v11, 6, v{vL}
    v_lshlrev_b32 v11, 7, v11
    buffer_load_dword v{vJUNK}, v11, {WS}, s61 offen sc1""")
    run(jobs(hp1, HJ), 99)
    A(panel_addr(4, 5376, "mod"))
    nuj = dma_jobs(WMOD, 4, 5376, 14, f"s_add_u32 s62, s{sHI}, 14\ns_lshl_b32 s{sSRC}, s62, 7\ns_mul_i32 s63, s{sW}, {112*5376}\ns_add_u32 s{sSRC}, s{sSRC}, s63\ns_cmp_eq_u32 s{sG}, 7\ns_cselect_b32 s{sSRC}, {OOB}, s{sSRC}\ns_mul_i32 s63, s{sW}, 14336\ns_add_u32 m0, s63, {L_B}")
    run(nuj, 8)
    A(roles); A(prepA)
    if 'QP' in used: run(jobs('QP'), 9)
    run(nuj, 99)
    A(f"s_mov_b32 s{sW1D}, {OOB}\ns_cmp_eq_u32 s{sG}, 7\ns_cbranch_scc1 L_hn")
    A(panel_addr(4, 3584, "mod"))
    w1h = dma_jobs(W1, 4, 3584, 14, f"s_lshl_b32 s{sSRC}, s{sHI}, 7\ns_mul_i32 s63, s{sW}, {112*3584}\ns_add_u32 s{sSRC}, s{sSRC}, s63\ns_mul_i32 m0, s{sW}, 14336")
    run(w1h, 8)
    A(f"v_add_u32 v21, {L_SILU}, v22\ns_waitcnt vmcnt(8)")
    barrier()
    def gemv14(va, vb):
        lg.n = lg.done = 0
        toks = []
        def gemv_ld(s_):
            b = 32 + 8 * (s_ % 5)
            DS(f"ds_read_b128 v[{b}:{b+3}], v{va} offset:{64*s_}")
            DS(f"ds_read_b64_tr_b16 v[{b+4}:{b+5}], v{vb} offset:{4096*s_}")
            toks.append(DS(f"ds_read_b64_tr_b16 v[{b+6}:{b+7}], v{vb} offset:{4096*s_+2048}"))
        for s_ in range(4): gemv_ld(s_)
        for s_ in range(14):
            lg.wait(toks[s_])
            b = 32 + 8 * (s_ % 5)
            A(f"v_mfma_f32_16x16x32_bf16 v[24:27], v[{b}:{b+3}], v[{b+4}:{b+7}], {'0' if s_ == 0 else 'v[24:27]'}")
            if s_ + 4 < 14: gemv_ld(s_ + 4)
    gemv14(21, 20)
    A(f"""s_sub_u32 s61, s{sHI}, 14
    s_cmp_lt_u32 s61, 7
    s_cselect_b32 s62, 1.0, 0
    s_lshl_b32 s61, s{sHI}, 8
    s_lshl_b32 s63, s{sW}, 6
    s_add_u32 s61, s61, s63
    s_add_u32 s61, s61, {NU}
    v_lshlrev_b32 v23, 2, v{vL}
    v_cvt_pk_bf16_f32 v24, v24, v24
    v_and_b32 v24, 0xffff0000, v24
    v_add_f32 v24, s62, v24
    v_mov_b32 v29, s{sTAG}
    v_mov_b32_dpp v25, v24 quad_perm:[1,0,3,2] row_mask:0xf bank_mask:0xf
    v_cvt_pk_bf16_f32 v28, v24, v25
    s_mov_b64 exec, 0x5555
    buffer_store_dwordx2 v[28:29], v23, {WS}, s61 offen sc1
    s_mov_b64 exec, -1""")
    run(w1h, 99)
    A("s_branch L_hn2\nL_hn:\ns_waitcnt vmcnt(0)\nL_hn2:")
    barrier()
    A(kpad)
    A(f"""s_mul_i32 s61, s85, 1792
    s_add_u32 s61, s61, {STATS}
    v_min_u32 v11, 13, v{vL}
    v_lshlrev_b32 v11, 7, v11
    buffer_load_dword v{vJUNK}, v11, {WS}, s61 offen sc1""")
    run(jobs(hp2, HJ), 99)
    A("L_att:")
    if stop <= 2: return done()

    S = 0; QF = 144; KB = 152; OA = 184; VB = 200
    vKA, vVA, vVS, vQA, vMX = 216, 217, 218, 219, 226
    vm.n = vm.done = 0; lg.n = lg.done = 0
    A(f"{get('PA', vT3)}\n{get('QA', vQA)}\n{get('VS', vVS)}")
    def masks():
        A(f"v_lshlrev_b32 v{vT0}, 2, v{vHALF}\nv_sub_u32 v{vT0}, v{vL31}, v{vT0}\nv_mov_b32 v{vT1}, {NEG:#x}")
        mk = (62, 64, 80, 82)
        for r in range(16):
            i0 = 8 * (r >> 2) + (r & 3)
            A(f"v_cmp_gt_i32 s[{mk[r&3]}:{mk[r&3]+1}], {i0}, v{vT0}")
            if r & 3 == 3:
                for q in range(4):
                    A(f"v_cndmask_b32 v{S+128+r-3+q}, 0, v{vT1}, s[{mk[q]}:{mk[q]+1}]")
                    A(f"v_cndmask_b32 v{S+r-3+q}, v{vT1}, 0, s[{mk[q]}:{mk[q]+1}]")
    if not mlate: masks()
    if warm and stop > 5:
        A(f"s_cmp_eq_u32 s{sHLP}, 2\ns_cbranch_scc1 L_wc"); A.raw("WARM b"); A("s_branch L_wd\nL_wc:"); A.raw("WARM c"); A("L_wd:")
    stamp("pre1")
    poll(vT3, "0")
    stamp("S1")
    for q in range(3):
        A(f"s_add_u32 m0, s{sLK}, {2048*q}")
        VM(f"buffer_load_dwordx4 v{vL16}, {WS}, s{sK0+q} offen sc1 lds")
    A("s_mov_b32 exec_hi, 0xffff")
    for q in range(3):
        A(f"s_add_u32 m0, s{sLK}, {2048*q}")
        VM(f"buffer_load_dwordx4 v{vL16}, {WS}, s{sK0+q} offen offset:1024 sc1 lds")
    A("s_mov_b64 exec, -1")
    for i in range(4):
        tq = VM(f"buffer_load_dwordx2 v[{QF+2*i}:{QF+2*i+1}], v{vQA}, {WS}, s{sQO} offen offset:{1024*(i>>1)+256*(i&1)} sc1")
    barrier()
    A("s_mov_b32 exec_lo, 0x0fffffff\ns_mov_b32 exec_hi, 0x0fffffff")
    vj = []
    for q in range(3):
        vj.append(jVM(f"buffer_load_dwordx4 v{vVS}, {WS}, s61 offen sc1 lds", None, f"s_add_u32 m0, s{sLK}, {L_V-L_K+2048*q}\ns_add_u32 s61, s{sK0+q}, {VG-KG}"))
        tv = Tok(); vj.append(jVM(f"buffer_load_dwordx4 v{vVS}, {WS}, s62 offen offset:1024 sc1 lds", tv, f"s_add_u32 s62, s{sK0+q}, {VG-KG-128}"))
    run(vj, 2)
    A(f"""s_not_b64 exec, exec
    v_mov_b32 v152, 0x3f803f80
    v_mov_b32 v153, v152
    v_mov_b32 v154, v152
    v_mov_b32 v155, v152
    v_add_u32 v184, s{sLK}, v{vL16}""")
    for i in range(6): DS(f"ds_write_b128 v184, v[152:155] offset:{L_V-L_K+1024*i}")
    A("s_mov_b64 exec, -1")
    if mlate: masks()
    A(f"""{get('KA', vKA)}
    {get('NU', 232)}
    {get('P1a', vP1)}
    {get('P1b', vP1+1)}
    {get('P1c', vP1+2)}
    {get('P1d', vP1+3)}
    s_lshl_b32 s61, s{sW}, 11
    s_add_u32 s61, s61, {L_V}
    v_add_u32 v{vVA}, s61, v{vL16}
    v_mov_b32 v{vT0}, 0x3f80
    v_cmp_eq_u32 vcc, 0, v{vHALF}
    s_mov_b32 exec_lo, 0x0fffffff
    s_mov_b32 exec_hi, 0x0fffffff""")
    run(vj, 9)
    A("s_mov_b64 exec, -1")
    lg.all()
    vm.wait(tq)
    A(f"v_cndmask_b32 v{QF+6}, v{vT0}, v{QF+6}, vcc\nv_cndmask_b32 v{QF+7}, 0, v{QF+7}, vcc")
    barrier()
    stamp("Kin")
    svA = (vm.n, vm.done, lg.n, lg.done)
    def att_core(mem1):
        vm.n, vm.done, lg.n, lg.done = svA
        tk = []
        def ldk(n):
            b = KB + 8 * (n % 4)
            for i in range(4): k = DS(f"ds_read_b64 v[{b+2*i}:{b+2*i+1}], v{vKA} offset:{2048*n+1024*(i>>1)+256*(i&1)}")
            tk.append(k)
        for n in range(3): ldk(n)
        run(mem1, 3)
        def mx(n):
            return [f"v_max_f32 v{vMX}, v{S}, v{S+1}" if (n == 0 and r == 0) else f"v_max3_f32 v{vMX}, v{vMX}, v{S+16*n+r}, v{S+16*n+r+1}" for r in range(0, 16, 2)]
        for n in range(9):
            lg.wait(tk[n])
            b = KB + 8 * (n % 4)
            m_ = mx(n - 2) if n >= 2 else []
            mfma(v(S + 16 * n, 16), v(b, 4), v(QF, 4), None if n in (0, 8) else "0")
            if n + 3 < 9: ldk(n + 3)
            else: run(mem1, 1)
            run(m_, 2)
            mfma(v(S + 16 * n, 16), v(b + 4, 4), v(QF + 4, 4))
            if n < 2: run(mem1, 1)
            run(m_, 6)
        vm.wait(tv.t)
        barrier()
        tvv = []
        def ldv(n):
            b = VB + 8 * (n % 2)
            DS(f"ds_read_b128 v[{b}:{b+3}], v{vVA} offset:{2048*n}")
            tvv.append(DS(f"ds_read_b128 v[{b+4}:{b+7}], v{vVA} offset:{2048*n+1024}"))
        ldv(0); ldv(1)
        ON, MB = 160, 164
        run(mx(7), 9)
        if msub: A(f"v_mov_b32 v{vT1}, 0x3f803f80\nv_cndmask_b32 v{ON}, 0, v{vT1}, vcc\nv_cndmask_b32 v{ON+1}, 0, v{vT0}, vcc\nv_mov_b32 v{ON+2}, 0\nv_mov_b32 v{ON+3}, 0\nv_mov_b32 v{MB+2}, 0\nv_mov_b32 v{MB+3}, 0")
        run(mem1, 1); run(mx(8), 9)
        A(f"v_mov_b32 v{vT0}, v{vMX}\nv_permlane32_swap_b32 v{vMX}, v{vT0}\nv_max_f32 v{vMX}, v{vMX}, v{vT0}")
        stamp("qk")
        for i in range(8 if msub else 72):
            A(f"v_pk_add_f32 v[{S+2*i}:{S+2*i+1}], v[{S+2*i}:{S+2*i+1}], v[{vMX}:{vMX+1}] op_sel_hi:[1,0] neg_lo:[0,1] neg_hi:[0,1]")
            if i % 24 == 23: run(mem1, 1)
        if msub:
            A(f"""v_and_b32 v{vT0}, 0xffff0000, v{vMX}
            v_sub_f32 v{vT1}, v{vMX}, v{vT0}
            v_and_b32 v{vT2}, 0xffff0000, v{vT1}
            v_sub_f32 v{vT1}, v{vT1}, v{vT2}
            v_cvt_pk_bf16_f32 v{MB}, -v{vT0}, -v{vT2}
            v_cvt_pk_bf16_f32 v{MB+1}, -v{vT1}, 0""")
            mfma(v(S + 16, 16), v(ON, 4), v(MB, 4))
        def soft(n, s_, mid=None):
            r0 = S + 16 * n + 8 * s_
            for e in range(8):
                A(f"v_exp_f32 v{r0+e}, v{r0+e}")
                if e == 3 and mid: mid()
            for e in range(4): A(f"v_cvt_pk_bf16_f32 v{r0+e}, v{r0+2*e}, v{r0+2*e+1}")
        soft(0, 0)
        for i in range(18):
            n, s_ = i >> 1, i & 1
            mid = (lambda: mfma(v(S + 16 * (n + 2), 16), v(ON, 4), v(MB, 4))) if (msub and s_ == 1 and n + 2 < 9) else None
            if i + 1 < 18: soft((i + 1) >> 1, (i + 1) & 1, mid)
            if s_ == 0: lg.wait(tvv[n])
            mfma(v(OA, 16), v(VB + 8 * (n % 2) + 4 * s_, 4), v(S + 16 * n + 8 * s_, 4), "0" if i == 0 else None)
            if s_ == 1 and n + 2 < 9: ldv(n + 2)
            run(mem1, AR)
        assert not mem1
        A(f"""v_mov_b32 v{vT0}, v{OA+12}
        v_mov_b32 v{vT1}, v{OA+12}
        v_permlane32_swap_b32 v{vT0}, v{vT1}
        v_rcp_f32 v{vT1}, v{vT1}""")
        for d in range(8):
            A(f"v_pk_mul_f32 v[{OA+2*d}:{OA+2*d+1}], v[{OA+2*d}:{OA+2*d+1}], v[{vT1}:{vT1+1}] op_sel_hi:[1,0]\nv_cvt_pk_bf16_f32 v{KB+d}, v{OA+2*d}, v{OA+2*d+1}")
            if d >= 6: A(f"v_cndmask_b32 v{KB+d}, 0, v{KB+d}, vcc")
            if d % 4 == 3: to = VM(f"buffer_store_dwordx4 v[{KB+d-3}:{KB+d}], v{vL16}, {WS}, s{sQO} offen offset:{1024*(d//4)}")
        stamp("att")
        return to
    A(f"s_cmp_eq_u32 s{sHLP}, 2\ns_cbranch_scc1 L_at2")
    A("L_at1:")
    to = att_core(jobs(at1)); assert nb1[0] <= 10
    A(f"s_cmp_eq_u32 s{sHLP}, 1\ns_cbranch_scc1 L_hu0")
    main = A.lines; A.lines = []; hist = A.hist; A.hist = []
    A("L_hu0:\ns_waitcnt vmcnt(0)")
    sv2 = (vm.n, vm.done, lg.n, lg.done); flag(sFO)
    A(f"""s_lshl_b32 s61, s{sW}, 6
    v_add_u32 v4, s61, v{vL}
    v_add_u32 v5, 256, v4
    v_min_u32 v5, 447, v5
    s_lshl_b32 s85, s{sHI}, 2
    s_add_u32 s85, s85, s{sW}
    s_min_u32 s62, s85, 111
    s_lshl_b32 s62, s62, 5
    v_and_b32 v16, 15, v{vL}
    v_lshl_add_u32 v17, v16, 1, s62
    global_load_ushort v18, v17, s[40:41]""")
    for r, d in ((4, 6), (5, 7)):
        A(f"""v_and_b32 v{d}, 0x1f8, v{r}
        v_and_b32 v{vT0}, 3, v{r}
        v_lshl_add_u32 v{d}, v{vT0}, 1, v{d}
        v_bfe_u32 v{vT0}, v{r}, 2, 1
        v_add_lshl_u32 v{d}, v{d}, v{vT0}, 3
        v_add_u32 v{d}, {L_VEC}, v{d}
        v_lshlrev_b32 v{r}, 4, v{r}""")
    A(f"""s_mov_b32 s{sCNT}, 0
    s_mov_b32 s61, {NU}
    L_nu:
    buffer_load_dwordx4 v[8:11], v4, {WS}, s61 offen sc1
    buffer_load_dwordx4 v[12:15], v5, {WS}, s61 offen sc1
    s_add_u32 s{sCNT}, s{sCNT}, 1
    s_waitcnt vmcnt(0)
    v_cmp_ne_u32 vcc, s{sTAG}, v9
    v_cmp_ne_u32 s[62:63], s{sTAG}, v11
    v_cmp_ne_u32 s[64:65], s{sTAG}, v13
    v_cmp_ne_u32 s[82:83], s{sTAG}, v15
    s_or_b64 vcc, vcc, s[62:63]
    s_or_b64 s[64:65], s[64:65], s[82:83]
    s_or_b64 vcc, vcc, s[64:65]
    s_cbranch_vccz L_nud
    s_cmp_lt_u32 s{sCNT}, {SPIN}
    s_cbranch_scc1 L_nu
    L_nud:
    v_mov_b32 v9, v10
    v_mov_b32 v13, v14
    ds_write_b64 v6, v[8:9]
    ds_write_b64 v7, v[12:13]
    v_lshrrev_b32 v20, 2, v{vL}
    v_bfe_u32 v21, v{vL}, 3, 2
    v_xor_b32 v21, s{sW}, v21
    v_lshlrev_b32 v21, 5, v21
    v_lshl_add_u32 v20, v20, 7, v21
    v_and_b32 v21, 3, v{vL}
    v_lshl_add_u32 v20, v21, 3, v20
    v_add_u32 v20, {L_P0}, v20
    v_and_b32 v21, 1, v{vL}
    v_mul_u32_u24 v21, 896, v21
    v_and_b32 v22, 48, v{vL}
    v_sub_u32 v21, v22, v21
    v_add_u32 v21, {L_VEC+1792}, v21
    s_waitcnt lgkmcnt(0)""")
    barrier()
    A(f"""s_cmp_lg_u32 s{sG}, 7
    s_cbranch_scc1 L_hu
    s_cmp_lg_u32 s85, 112
    s_cbranch_scc1 L_hz
    s_mov_b64 exec, 1
    buffer_store_dword v{vTAG}, off, {WS}, 0 sc1
    s_mov_b64 exec, -1
    s_branch L_hz
    L_hu:""")
    gemv14(21, 20)
    A(f"""v_lshlrev_b32 v18, 16, v18
    s_lshl_b32 s61, s85, 8
    s_add_u32 s61, s61, {AUG}
    v_mov_b32 v31, s{sTAG}
    v_add_f32 v25, v25, v18
    v_cvt_pk_bf16_f32 v29, v24, v25
    v_lshlrev_b32 v26, 16, v29
    v_and_b32 v27, 0xffff0000, v29
    v_sub_f32 v24, v24, v26
    v_sub_f32 v25, v25, v27
    v_cvt_pk_bf16_f32 v28, v26, v24
    v_cvt_pk_bf16_f32 v30, v25, v27
    s_mov_b64 exec, 0xffff
    buffer_store_dwordx4 v[28:31], v{vL16}, {WS}, s61 offen sc1
    s_mov_b64 exec, -1
    L_hz:""")
    run(jobs(hz, HJ), 99)
    A("s_branch L_fin")
    tail.append(("raw", A.lines)); A.lines = main; A.hist = hist
    vm.n, vm.done, lg.n, lg.done = sv2

    def check(tok, va, soff, off):
        lr, lj = U("lr"), U("lj")
        vm.wait(tok.t)
        A(f"v_cmp_ne_u32 vcc, s{sTAG}, v{vJUNK}\ns_cmp_eq_u32 s{sUNI}, 0\ns_cbranch_scc1 {lr}\ns_cbranch_vccnz {lr}\n{lj}:")
        tail.append(f"""{lr}:
        s_mov_b32 s{sCNT}, 0
        {lr}a:
        buffer_load_dword v{vJUNK}, v{va}, {WS}, s{soff} offen offset:{off} sc1
        s_add_u32 s{sCNT}, s{sCNT}, 1
        s_waitcnt vmcnt(0)
        v_cmp_ne_u32 vcc, s{sTAG}, v{vJUNK}
        s_cbranch_vccz {lr}b
        s_cmp_lt_u32 s{sCNT}, {SPIN}
        s_cbranch_scc1 {lr}a
        {lr}b:
        s_cmp_eq_u32 s{sUNI}, 1
        s_cbranch_scc1 {lj}
        buffer_inv sc1
        s_waitcnt vmcnt(0)
        s_branch {lj}""")
    def look(tok, va, soff, off): return jVM(f"buffer_load_dword v{vJUNK}, v{va}, {WS}, s{soff} offen offset:{off} sc1", tok)

    vm.wait(to); flag(sFO); stamp("opub")
    barrier()
    assert 'Wa' not in at1
    run(w1_jobs(1, 14 - nb1[0], 4 * nb1[0]), 99)
    wa = w1_jobs(0, 14, 0); run(wa, 2)
    vSTA, vFY, vRS, vRA, vTA = 229, 228, 226, vT2, vT3
    sFYP, sYL, sRS, sFD, sSTL, sHST, sAU0, sAU1, sHC = 82, 83, 84, 85, 87, 88, 89, 90, 86
    ACC = 112; WB = 176; AU = 248; BA = (240, 232)
    A(f"""v_min_u32 v{vFY}, 13, v{vL}
    v_lshlrev_b32 v{vFY}, 2, v{vFY}
    s_lshl_b32 s62, s{sW}, 6
    s_add_u32 s62, s62, s{sCTL}
    s_add_u32 s{sFYP}, s62, {C_FY}
    s_lshl_b32 s62, s{sW}, 8
    s_add_u32 s62, s62, s{sCTL}
    s_lshl_b32 s63, s{sJ}, 2
    s_add_u32 s62, s62, s63
    s_add_u32 s{sFD}, s62, {C_FD}
    s_mul_i32 s{sRS}, s{sTQ}, 14
    s_add_u32 s{sRS}, s{sRS}, s{sJ}
    s_lshl_b32 s{sRS}, s{sRS}, 7
    s_add_u32 s{sRS}, s{sRS}, {RS2}
    s_mul_i32 s{sYL}, s{sTQ}, 28672
    s_mul_i32 s{sSTL}, s{sTQ}, 3584
    s_add_u32 s{sSTL}, s{sSTL}, {STATS}
    s_mul_i32 s{sHST}, s{sTQ}, 114688
    s_lshl_b32 s62, s{sW1C}, 5
    s_add_u32 s{sHST}, s{sHST}, s62
    s_add_u32 s{sHST}, s{sHST}, {HID}
    s_lshl_b32 s61, s{sW1C}, 3
    s_add_u32 s{sAU0}, s61, {AUG}
    s_xor_b32 s61, s61, 1024
    s_add_u32 s{sAU1}, s61, {AUG}
    v_lshlrev_b32 v{vSTA}, 11, v{vHALF}
    v_lshl_add_u32 v{vSTA}, v{vL31}, 4, v{vSTA}
    v_lshlrev_b32 v{vSTA+1}, 30, v{vHALF}
    v_add_u32 v{vSTA+1}, v{vSTA+1}, v{vSTA}
    v_add_u32 v{vT0}, {L_P1}, v{vTP0}
    v_add_u32 v{vT1}, {L_P1}, v{vTP1}
    v_cmp_eq_u32 s[80:81], 0, v{vHALF}
    v_lshlrev_b32 v{vRA}, 2, v{vL31}
    v_lshlrev_b32 v{vTA}, 7, v{vL31}""")
    for b_ in BA: A(f"v_accvgpr_write_b32 a{b_+3}, 0\nv_accvgpr_write_b32 a{b_+7}, 0")
    augl = f"buffer_load_dwordx4 v[144:147], v{vL16}, {WS}, s{sAU0} offen sc1\nbuffer_load_dwordx4 v[148:151], v{vL16}, {WS}, s{sAU1} offen sc1"
    run(wa, 99); tw1 = vm.n
    run(jobs(f1f), 99); A(f"v_lshlrev_b32 v{vTA}, 7, v{vL31}")
    hoff = lambda p: f"s_xor_b32 s{sHC}, s{sHST}, {4096*(p&1)}" + (f"\ns_add_u32 s{sHC}, s{sHC}, {4*114688}" if p > 1 else "")
    for p in map(int, plain):
        A(hoff(p)); VM(f"buffer_load_dword v{vPAN}, v{vTA}, {WS}, s{sHC} offen sc1")
    vm.wait(tw1)
    barrier()
    stamp("w1in")
    for l_ in lines(augl): VM(l_)
    NA = 7; WA = (112, 168)
    wad = lambda pn, t: (vTP0 - t) if pn == 0 else (vT0 + t)
    for pn in range(2):
        for s_ in range(NA):
            for t in range(2):
                for p in range(2): twa = DS(f"ds_read_b64_tr_b16 a[{WA[pn]+8*s_+4*t+2*p}:{WA[pn]+8*s_+4*t+2*p+1}], v{wad(pn, t)} offset:{2048*s_+1024*p}")
    tw = {}
    def ld1(n):
        pn, t, s_ = (n // 56) & 1, n & 1, (n % 56) >> 1; b = WB + 4 * (n % 8)
        if s_ < NA: return []
        tw[n] = Tok()
        return [jDS(f"ds_read_b64_tr_b16 v[{b}:{b+1}], v{wad(pn, t)} offset:{2048*s_}"), jDS(f"ds_read_b64_tr_b16 v[{b+2}:{b+3}], v{wad(pn, t)} offset:{2048*s_+1024}", tw[n])]
    stamp("pre3")
    poll(vFY, f"s{sFYP}")
    stamp("S3")
    ty = {}; ts = [Tok(), Tok()]
    def yj(rd_):
        js = []
        for s_ in range(28):
            ty[rd_, s_] = Tok()
            pre = f"s_add_u32 s{sYL}, s{sYL}, {114688-24576}" if (rd_ and s_ == 0) else (f"s_add_u32 s{sYL}, s{sYL}, 4096" if (s_ % 4 == 0 and s_) else None)
            js.append(jVM(f"buffer_load_dwordx4 {'va'[rd_]}[{4*s_}:{4*s_+3}], v{vL16}, {OUT}, s{sYL} offen offset:{1024*(s_%4)} sc1", ty[rd_, s_], pre))
        return js
    SB = (160, 0)
    def stl(rd_): return [jVM(f"buffer_load_dwordx4 v[{SB[rd_]+4*i}:{SB[rd_]+4*i+3}], v{vSTA+(i==3)}, {WS}, s{sSTL} offen offset:{512*i} sc1", ts[rd_], f"s_add_u32 s{sSTL}, s{sSTL}, {4*3584}" if (rd_ and i == 0) else None) for i in range(4)]
    mem = yj(0); run(mem, PRO); lg.wait(twa)
    def augchk():
        A(f"""s_mov_b32 s{sCNT}, 0
        L_au:
        v_cmp_ne_u32 vcc, s{sTAG}, v147
        v_cmp_ne_u32 s[62:63], s{sTAG}, v151
        s_or_b64 vcc, vcc, s[62:63]
        s_cbranch_vccnz L_aur
        L_aud:""")
        tail.append(f"""L_aur:
        s_add_u32 s{sCNT}, s{sCNT}, 1
        s_cmp_ge_u32 s{sCNT}, {SPIN}
        s_cbranch_scc1 L_aud
        {augl}
        s_waitcnt vmcnt(0)
        s_branch L_au""")
    augmv = [f"v_accvgpr_write_b32 a{AU+r}, {'0' if r % 4 == 3 else 'v%d' % (144 + r)}" for r in range(8)]
    def stat_list(rd_):
        b = SB[rd_]
        st = [f"v_add_f32 v{208+i}, v{b+4*(i>>1)+(i&1)}, v{b+4*(i>>1)+(i&1)+2}" for i in range(8)]
        st += lines(f"""v_add_f32 v208, v208, v210
        v_add_f32 v209, v209, v211
        v_add_f32 v212, v212, v214
        v_add_f32 v213, v213, v215
        v_add_f32 v208, v208, v212
        v_add_f32 v209, v209, v213
        v_mov_b32 v210, v208
        v_mov_b32 v211, v209
        v_permlane32_swap_b32 v208, v210
        v_permlane32_swap_b32 v209, v211
        v_add_f32 v208, v208, v210
        v_add_f32 v209, v209, v211
        v_mul_f32 v208, 0xbb124925, v208
        v_mul_f32 v209, 0x3b124925, v209
        v_fma_f32 v209, -v208, v208, v209
        v_max_f32 v209, 0, v209
        v_add_f32 v209, 0x3727c5ac, v209
        v_rcp_f32 v{vRS+rd_}, v209
        v_sqrt_f32 v209, v209
        v_cvt_pk_bf16_f32 v213, v208, v208
        v_cvt_pk_bf16_f32 v210, v209, v209
        v_and_b32 v211, 0xffff0000, v213
        v_and_b32 v210, 0xffff0000, v210
        v_sub_f32 v211, v208, v211
        v_sub_f32 v212, v209, v210
        v_cvt_pk_bf16_f32 v214, v211, v210
        v_cvt_pk_bf16_f32 v215, v210, v212""")
        for r in range(3): st += [f"v_cndmask_b32 v{216+r}, 0, v{213+r}, s[80:81]", f"v_cndmask_b32 v{219+r}, v{213+r}, 0, s[80:81]"]
        for r in range(3): st += [f"v_accvgpr_write_b32 a{BA[rd_]+r}, v{216+r}", f"v_accvgpr_write_b32 a{BA[rd_]+4+r}, v{219+r}"]
        return st
    def epi_list(p, last):
        e = [f"s_xor_b32 s{sHC}, s{sHST}, {4096*(p&1)}"] if p < 2 else [f"s_xor_b32 s{sHC}, s{sHST}, {4096*(p&1)}", f"s_add_u32 s{sHC}, s{sHC}, {4*114688}"]
        for t in range(2):
            c = ACC + 32 * (p & 1) + 16 * t
            for d in range(8):
                r = c + 2 * d; q = 208 + 8 * t + d
                e += [f"v_mul_f32 v{r}, v{r}, abs(v{r})", f"v_mul_f32 v{r+1}, v{r+1}, abs(v{r+1})", f"v_cvt_pk_bf16_f32 v{q}, v{r}, v{r+1}", f"v_pk_max_i16 v{q}, v{q}, 0"]
                if d % 4 == 3: e.append(jVM(f"buffer_store_dwordx4 v[{205+8*t+d}:{208+8*t+d}], v{vL16}, {WS}, s{sHC} offen offset:{2048*t+1024*(d//4)}{'' if str(p) in plain else ' sc1'}", last))
        return e
    def publish(p, last):
        vm.wait(last.t)
        A(f"s_add_u32 s79, s{sFD}, {1024*(p>>1)+64*(p&1)}"); flag(79)
        if str(p) in RT and str(p) not in plain: VM(f"buffer_load_dword v{vPAN}, v{vTA}, {WS}, s{sHC} offen sc1")
        stamp(f"pub{p}")
    mem = mem[:STP] + stl(0) + mem[STP:]
    ST0 = 2 * (STP + PRO); assert ST0 <= 34
    side = []; urgent = []; dq = []; last = [Tok() for _ in range(4)]; pubat = None; tl_ = Tok(); mem2 = []; pub_done = False
    held = 0
    for n in range(224):
        p, m_ = divmod(n, 56); rd_ = p >> 1; t, s_ = m_ & 1, m_ >> 1
        if m_ == 0 and p:
            assert not urgent
            if p & 1: run(side, 99)
            for t2 in range(2): mfma(v(ACC + 32 * ((p - 1) & 1) + 16 * t2, 16), a(AU + 4 * ((p - 1) & 1), 4), a(BA[(p - 1) >> 1] + 4 * t2, 4))
            if p & 1:
                if p == 3: A(f"s_add_u32 s{sRS}, s{sRS}, {4*14*128}")
                VM(f"buffer_store_dword v{vRS+rd_}, v{vRA}, {WS}, s{sRS} offen sc1")
            stamp(f"p{p-1}")
        if m_ == 1 and p: urgent = epi_list(p - 1, last[p - 1]); pubat = -1
        if p & 1 == 0 and t == 0: vm.wait(ty[rd_, s_].t)
        if t == 0 and n + 1 in tw: lg.wait(tw[n + 1].t)
        if n == ST0: vm.wait(ts[0].t); side = stat_list(0) + [augchk] + augmv
        if n == YC - 14: look(tl_, vFY, sFYP, 256)()
        if n == YC: check(tl_, vFY, sFYP, 256); mem += yj(1) + stl(1)
        if n == 112 + 22: assert not urgent; vm.wait(ts[1].t); side = stat_list(1)
        if n + 6 < 224: dq += ld1(n + 6)
        wf = a(WA[p & 1] + 8 * s_ + 4 * t, 4) if s_ < NA else v(WB + 4 * (n % 8), 4)
        mfma(v(ACC + 32 * (p & 1) + 16 * t, 16), wf, (a if rd_ else v)(4 * s_, 4), "0" if s_ == 0 else None)
        k = ER if urgent else SR
        if dq and urgent: k -= 1
        go = (t == 0 or (pub_done and len(mem) > (112 - n) // 2)) and mem and not urgent and (p == 0 or pub_done or held < YH)
        if go:
            run(mem, 2 if (p == 0 and STP <= s_ < STP + 4) else 1); run(dq, 3 if t else 1); k -= 1
            if p: held += 1
        else: run(dq, 3 if t else 2)
        if urgent:
            run(urgent, k)
            if not urgent: pubat = min(n + (EP if str(p - 1) in plain else EA), 56 * p + 55)
        else: run(side, k)
        if n == pubat: publish(p - 1, last[p - 1]); pub_done = True
        if n == 111: run(mem, 99)
        if 'fine' in dbg and n % 8 == 7: stamp(f'n{n+1}')
    assert not mem and not side and not urgent and not dq
    for t2 in range(2): mfma(v(ACC + 32 + 16 * t2, 16), a(AU + 4, 4), a(BA[1] + 4 * t2, 4))
    stamp("p3")
    run(epi_list(3, last[3]), 999)
    publish(3, last[3])
    A("s_branch L_fin")

    A("L_at2:")
    to = att_core(jobs(at2))
    XR = 128; GA = 136; A2 = 152; X1 = 168; WB = 184
    vIN, vOUTB, vWO, vXA, vSL = 216, 217, 218, 124, 220
    A(f"""s_and_b32 s61, s{sW}, 1
    s_lshl_b32 s61, s61, 12
    s_add_u32 s61, s61, {L_XT}
    v_lshl_add_u32 v4, v{vL31}, 7, s61
    v_lshl_add_u32 v4, v{vHALF}, 3, v4
    v_and_b32 v5, 7, v{vL}
    s_lshl_b32 s61, s{sKH}, 2
    v_xor_b32 v5, s61, v5""")
    for a_ in range(4): A(f"v_xor_b32 v6, {a_}, v5\nv_lshl_add_u32 v{vXA+a_}, v6, 4, v4")
    txr = Tok()
    def xrd(rd_): return [jDS(f"ds_read_b64 v[{XR+2*a_}:{XR+2*a_+1}], v{vXA+a_} offset:{8192*rd_}", txr) for a_ in range(4)]
    xun = [lambda: lg.wait(txr.t)] + sum(([f"v_lshlrev_b32 v{X1+2*d}, 16, v{XR+d}", f"v_and_b32 v{X1+2*d+1}, s79, v{XR+d}"] for d in range(8)), [])
    run(xrd(0), 4)
    A(f"""v_accvgpr_read_b32 v12, a{aB2}
    v_accvgpr_read_b32 v13, a{aB2+1}
    {get('VW', 7)}
    v_and_b32 v{vT3}, 7, v{vL}
    v_lshlrev_b32 v{vT3}, 2, v{vT3}
    v_bfe_u32 v{vT2}, v{vL}, 3, 1
    v_lshl_add_u32 v{vT3}, v{vT2}, 8, v{vT3}
    s_mul_i32 s61, s{sKH}, {224*128}
    v_add_u32 v{vWO}, s61, v{vR0}
    v_add_u32 v{vWO+1}, s61, v{vR0+1}
    s_add_u32 s61, s{sEX}, {6*BLK}
    v_add_u32 v{vIN}, s61, v{vL16}
    s_xor_b32 s61, s61, 8192
    v_add_u32 v{vOUTB}, s61, v{vL16}
    s_mov_b32 s79, 0xffff0000""")
    run(list(xun), 99)
    vm.wait(to)
    flag(sFO)
    stamp("opub")
    barrier()
    order = [(i, t) for i in range(11) for t in (1, 0)] + [(i, 1) for i in range(11, 16)] + [(i, 0) for i in range(11, 16)]
    two = {}
    def ldo(k):
        i, t = order[k % 32]; b = WB + 4 * (k % 8); two[k] = Tok(); off = L_WO + 3584 * (i >> 1) + 2048 * (i & 1)
        return [jDS(f"ds_read_b64_tr_b16 v[{b}:{b+1}], v{vWO+t} offset:{off}"), jDS(f"ds_read_b64_tr_b16 v[{b+2}:{b+3}], v{vWO+t} offset:{off+1024}", two[k])]
    for k in range(5): run(ldo(k), 2)
    for k in range(3): A(f"s_add_u32 s61, s{sEX}, {65536*k}\nv_add_u32 v{vSL+2*k}, s61, v{vR0}\nv_add_u32 v{vSL+2*k+1}, s61, v{vR0+1}")
    def rdslot(k, tok=None, wait=True):
        u, t_ = slot.pop(k)
        return ([lambda: vm.wait(t_.t)] if wait else []) + w2_read(u, vSL + 2 * (k >> 2), BLK * (k & 3), tok)
    tR = Tok(); tR.t = 0
    for k in list(slot): run(rdslot(k, tR), 99)
    stamp("pre2")
    poll(vT3, f"s{sFOP}")
    stamp("S2")
    to = {}
    def oj(rd_):
        js = []
        for i in range(16):
            to[rd_, i] = Tok()
            pre = f"s_add_u32 s{sOS}, s{sOS}, {131072-12288}" if (rd_ and i == 0) else (f"s_add_u32 s{sOS}, s{sOS}, 4096" if (i % 4 == 0 and i) else None)
            js.append(jVM(f"buffer_load_dwordx4 v[{16+4*i}:{19+4*i}], v{vL16}, {WS}, s{sOS} offen offset:{1024*(i%4)} sc1", to[rd_, i], pre))
        return js
    mem = oj(0); run(mem, PRO)
    A(f"""s_mov_b32 s{sCNT}, 0
    L_nv:
    v_cmp_ne_u32 vcc, s{sTAG}, v{vNU+1}
    v_cmp_ne_u32 s[62:63], s{sTAG}, v{vNU+3}
    s_or_b64 vcc, vcc, s[62:63]
    s_cbranch_vccnz L_nvr
    L_nvd:
    v_cmp_lt_u32 vcc, 23, v{vL31}
    v_cndmask_b32 v8, v{vNU}, v12, vcc
    v_cndmask_b32 v10, v{vNU+2}, v13, vcc
    v_and_b32 v9, s79, v8
    v_lshlrev_b32 v8, 16, v8
    v_and_b32 v11, s79, v10
    v_lshlrev_b32 v10, 16, v10""")
    tail.append(f"""L_nvr:
    s_add_u32 s{sCNT}, s{sCNT}, 1
    s_cmp_ge_u32 s{sCNT}, {SPIN}
    s_cbranch_scc1 L_nvd
    buffer_load_dwordx4 v[{vNU}:{vNU+3}], v232, {WS}, s{sNUS} offen sc1
    s_waitcnt vmcnt(0)
    s_branch L_nv""")
    DS("ds_write_b128 v7, v[8:11]")
    side = []
    for a_ in range(4):
        side.append(jDS(f"ds_read_b128 v[{GA+4*a_}:{GA+4*a_+3}], v{vVEC} offset:{32*a_}"))
        side.append(jDS(f"ds_read_b128 v[{A2+4*a_}:{A2+4*a_+3}], v{vVEC} offset:{128+32*a_}"))
    ACC = 80
    mem1 = oj(1); ty = None
    for rd_ in range(2):
        if rd_ == 0: mem += jobs(ot0); nx_ = min(O1, 16 - len(mem)); mem += mem1[:nx_]; mem1 = mem1[nx_:]
        else: mem = mem1 + [lambda: lg.wait(tR.t)] + jobs(ot1)
        wr = [jDS(f"ds_write_b128 v{vOUTB}, v[{ACC+16+4*q}:{ACC+19+4*q}] offset:{BLK*rd_+1024*q}") for q in range(4)]
        for k, (i, t) in enumerate(order):
            kk = 32 * rd_ + k
            vm.wait(to[rd_, i].t); lg.wait(two[kk].t)
            mfma(v(ACC + 16 * t, 16), v(WB + 4 * (kk % 8), 4), v(16 + 4 * i, 4), "0" if i == 0 else None)
            if kk + 5 < 64: run(ldo(kk + 5), 2)
            if rd_ and k == 0: run(mem, max(0, 9 - O1))
            if k % 2 == 0: run(mem, 1)
            else: run(side, 3)
            if rd_ and k == YF:
                vm.wait(ty); flag(sFY); stamp("ypub")
            if k >= 29: run(wr, 2)
        assert not side
        lg.all()
        barrier()
        tk = [DS(f"ds_read_b128 v[{4*q}:{4*q+3}], v{vIN} offset:{BLK*rd_+1024*q}") for q in range(4)]
        if rd_: A(f"s_add_u32 s{sYS}, s{sYS}, 114688\ns_add_u32 s{sSTS}, s{sSTS}, 14336\ns_add_u32 s{sFY}, s{sFY}, 256")
        for q in range(4):
            lg.wait(tk[q])
            A.raw("    .p2align 3")
            for e in range(0, 4, 2):
                r = 4 * q + e
                A(f"""v_pk_add_f32 v[{r}:{r+1}], v[{ACC+r}:{ACC+r+1}], v[{r}:{r+1}]
                v_pk_fma_f32 v[{X1+r}:{X1+r+1}], v[{r}:{r+1}], v[{GA+r}:{GA+r+1}], v[{X1+r}:{X1+r+1}]
                v_pk_mul_f32 v[{r}:{r+1}], v[{X1+r}:{X1+r+1}], v[{A2+r}:{A2+r+1}]
                v_cvt_pk_bf16_f32 v{112+r//2}, v{r}, v{r+1}""")
            if q % 2 == 1: VM(f"buffer_store_dwordx4 v[{110+2*q}:{113+2*q}], v{vL16}, {OUT}, s{sYS} offen offset:{1024*(q//2)}")
        A(f"v_pk_add_f32 v[120:121], v[{X1}:{X1+1}], v[{X1+2}:{X1+3}]\nv_pk_mul_f32 v[122:123], v[{X1}:{X1+1}], v[{X1}:{X1+1}]")
        for d in range(1, 8):
            if d >= 2: A(f"v_pk_add_f32 v[120:121], v[120:121], v[{X1+2*d}:{X1+2*d+1}]")
            A(f"v_pk_fma_f32 v[122:123], v[{X1+2*d}:{X1+2*d+1}], v[{X1+2*d}:{X1+2*d+1}], v[122:123]")
        A(f"""v_add_f32 v120, v120, v121
        v_add_f32 v121, v122, v123
        v_mov_b32 v122, v120
        v_mov_b32 v123, v121
        v_permlane32_swap_b32 v120, v122
        v_permlane32_swap_b32 v121, v123
        v_add_f32 v120, v120, v122
        v_add_f32 v121, v121, v123
        s_mov_b32 exec_hi, 0""")
        ty = VM(f"buffer_store_dwordx2 v[120:121], v{vL16}, {WS}, s{sSTS} offen")
        A("s_mov_b64 exec, -1")
        stamp(f"op{rd_}")
        if rd_ == 0: side = xrd(1) + [f"v_accvgpr_write_b32 a{224+r}, v{X1+r}" for r in range(16)] + list(xun)
    run(mem, 99)
    GB = 192; ZT = 208
    free = [k for k in range(9) if k not in slot]; pend = list(slot)
    for k in free[:PS]: run(stage(k), 99); pend.append(k)
    free = free[PS:]
    def more():
        k = free.pop(0); run(stage(k), 99); pend.append(k)
    for a_ in range(4):
        DS(f"ds_read_b128 v[{GB+4*a_}:{GB+4*a_+3}], v{vVEC} offset:{256+32*a_}")
        tgb = DS(f"ds_read_b128 v[{GA+4*a_}:{GA+4*a_+3}], v{vVEC} offset:{384+32*a_}")
    vm.wait(ty); flag(sFY); stamp("ypub1")
    more()
    for r in range(16): A(f"v_accvgpr_read_b32 v{A2+r}, a{224+r}")
    lg.wait(tgb)
    for r in range(0, 16, 2):
        A(f"v_pk_fma_f32 v[{A2+r}:{A2+r+1}], v[{GB+r}:{GB+r+1}], v[{GA+r}:{GA+r+1}], v[{A2+r}:{A2+r+1}]\nv_pk_fma_f32 v[{X1+r}:{X1+r+1}], v[{GB+r}:{GB+r+1}], v[{GA+r}:{GA+r+1}], v[{X1+r}:{X1+r+1}]")
    for r in range(16): A(f"v_accvgpr_write_b32 a{224+r}, v{A2+r}\nv_accvgpr_write_b32 a{240+r}, v{X1+r}")
    more()
    vH0, vH1, vFD, vRW, vRR, vRQ = 226, 227, vTN0, 228, 231, vT0
    sFE, sRSL = 91, 58
    A(f"""v_and_b32 v{vFD}, 3, v{vL}
    v_lshlrev_b32 v{vFD}, 2, v{vFD}
    v_bfe_u32 v{vT0}, v{vL}, 2, 1
    v_lshl_add_u32 v{vFD}, v{vT0}, 8, v{vFD}
    s_and_b32 s61, s{sTO}, 6
    s_lshl_b32 s61, s61, 8
    s_add_u32 s61, s61, s{sCTL}
    s_mul_i32 s62, s{sW}, 7
    s_lshr_b32 s62, s62, 1
    s_mul_i32 s{sRSL}, s{sTO}, 14
    s_add_u32 s{sRSL}, s{sRSL}, s62
    s_lshl_b32 s{sRSL}, s{sRSL}, 7
    s_add_u32 s{sRSL}, s{sRSL}, {RS2}
    s_lshl_b32 s62, s62, 2
    s_add_u32 s61, s61, s62
    s_add_u32 s{sFE}, s61, {C_FD}
    s_mul_i32 s61, s{sTO}, 114688
    s_add_u32 s61, s61, {HID}
    v_add_u32 v{vH0}, s61, v{vL16}
    s_xor_b32 s61, s{sTO}, 1
    s_mul_i32 s61, s61, 114688
    s_add_u32 s61, s61, {HID}
    v_add_u32 v{vH1}, s61, v{vL16}
    s_mul_i32 s61, s{sW}, 12288
    v_add_u32 v{vRR}, s61, v{vL16}
    v_lshlrev_b32 v{vT2}, 2, v{vL31}""")
    for k in range(1, 4): A(f"s_xor_b32 s61, s{sW}, {k}\ns_mul_i32 s61, s61, 12288\ns_add_u32 s61, s61, {4096*(k-1)}\nv_add_u32 v{vRW+k-1}, s61, v{vL16}")
    rtok = {}
    while nxt[0] < 14:
        k = free.pop(0)
        if k in rtok: lg.wait(rtok.pop(k))
        run(stage(k), 99); pend.append(k)
        if len(pend) > 3 or not free:
            k2 = pend.pop(0); run(rdslot(k2, tR), 99); free.append(k2); rtok[k2] = tR.t
    for k in pend: run(rdslot(k, tR), 99)
    for q in range(7): A(f"s_lshl_b32 s{sFT+q}, s{sFT+q}, 11")
    lg.all()
    barrier()
    stamp("w2in")
    poll(vFD, f"s{sFE}")
    stamp("S4")

    HB = 128; NB_ = 16
    seq = list(range(56)) + list(range(40)) + list(range(41, 56, 2)) + list(range(40, 56, 2))
    th = [Tok() for _ in range(112)]
    state = {}
    def hj(p):
        rd_ = p // 56; i = seq[p]; u, s_, mh = i >> 2, (i >> 1) & 1, i & 1
        b = HB + 4 * (p % NB_); pre = ""
        if p == 56: pre += f"v_add_u32 v{vH0}, {4*114688}, v{vH0}\nv_add_u32 v{vH1}, {4*114688}, v{vH1}\n"
        if state.get(u % 7, 0) != (u >= 7): state[u % 7] = (u >= 7); pre += f"s_xor_b32 s{sFT+u%7}, s{sFT+u%7}, 4096"
        return jVM(f"buffer_load_dwordx4 v[{b}:{b+3}], v{vH1 if mh else vH0}, {WS}, s{sFT+u%7} offen offset:{1024*s_} sc1", th[p], pre or None)
    def rsj(rd_): return jVM(f"buffer_load_dword v{vRQ+rd_}, v{vT2}, {WS}, s{sRSL} offen sc1", None, f"s_add_u32 s{sRSL}, s{sRSL}, {4*14*128}" if rd_ else None)
    mem = [hj(p) for p in range(28)]
    run(mem, PRO); rsj(0)()
    def mm(p, t):
        rd_ = p // 56; i = seq[p]; u, s_, mh = i >> 2, (i >> 1) & 1, i & 1
        vm.wait(th[p].t)
        mfma(v(64 * rd_ + 16 * (2 * t + mh), 16), a(16 * u + 8 * s_ + 4 * t, 4), v(HB + 4 * (p % NB_), 4), "0" if i < 2 else None)
    wrj = lambda rd_, k: [jDS(f"ds_write_b128 v{vRW+k-1}, v[{64*rd_+16*k+4*q}:{64*rd_+16*k+4*q+3}] offset:{49152*rd_+1024*q}") for q in range(4)]
    tin = Tok()
    fin0 = [jDS(f"ds_read_b128 v[{16+16*k+4*q}:{19+16*k+4*q}], v{vRR} offset:{4096*k+1024*q}", tin) for k in range(3) for q in range(4)]
    fin0 += [f"v_accvgpr_read_b32 v{ZT+r}, a{224+r}" for r in range(16)] + [lambda: lg.wait(tin.t)]
    for r in range(16):
        fin0 += [f"v_add_f32 v{r}, v{r}, v{16+r}", f"v_add_f32 v{32+r}, v{32+r}, v{48+r}", f"v_add_f32 v{r}, v{r}, v{32+r}", f"v_mul_f32 v{r}, v{r}, v{vRQ}", f"v_fmac_f32 v{ZT+r}, v{r}, v{GB+r}"]
    fin0 += [f"v_cvt_pk_bf16_f32 v{d}, v{ZT+2*d}, v{ZT+2*d+1}" for d in range(8)]
    fin0 += [f"v_permlane32_swap_b32 v{b}, v{b+2}" for b in (0, 1, 4, 5)]
    fin0 += [f"v_accvgpr_read_b32 v{ZT+r}, a{240+r}" for r in range(16)] + [f"v_mul_f32 v{GB+r}, v{GB+r}, v{vRQ+1}" for r in range(16)]
    st0 = [jVM(f"buffer_store_dwordx4 v[{4*q}:{4*q+3}], v{vROW}, {OUT}, s{sROW} offen offset:{32*q}") for q in range(2)]
    tl_ = Tok(); side = []; wr = []
    for p in range(104):
        for lo, off in ((28, 64), (56, 1024), (84, 1088)):
            cp = min(PRO, CP[lo // 28 - 1])
            if p == lo - cp - CK: look(tl_, vFD, sFE, off)()
            if p == lo - cp:
                check(tl_, vFD, sFE, off); stamp(f"c{lo}")
                mem += [hj(k) for k in range(lo, lo + 28)]
                run(mem, PRO - cp)
                if lo == 56: rsj(1)()
        if p == 58: wr = wrj(0, 1) + wrj(0, 2) + wrj(0, 3)
        if p == 71:
            assert not wr
            lg.all(); barrier(); side = fin0
        mm(p, 0); run(mem, 1); mm(p, 1)
        if wr: run(wr, 1)
        else: run(side, 5)
        if p >= 102: assert not side and not mem; run(st0, 1)
        if 'fine' in dbg and p in (0, 28, 56, 84): stamp(f'g{p}')
    wr = wrj(1, 1) + wrj(1, 3)
    tailo = [(48, 1), (48, 0), (49, 1), (49, 0), (50, 1), (50, 0), (51, 1), (52, 1), (53, 1), (54, 1), (55, 1), (51, 0), (52, 0), (53, 0), (54, 0), (55, 0)]
    for n, (p, t) in enumerate(tailo):
        mm(56 + p, t)
        if n == 12: wr += wrj(1, 2)
        if n >= 2 and n % 3 != 1: run(wr, 1)
    run(wr, 99)
    stamp("ffn2")
    A(f"s_add_u32 s{sROW}, s{sROW}, 114688")
    lg.all()
    barrier()
    tk = {}
    for q in range(4):
        for k in range(3): tk[q] = DS(f"ds_read_b128 v[{16+16*k+4*q}:{19+16*k+4*q}], v{vRR} offset:{49152+4096*k+1024*q}")
    for q in range(4):
        lg.wait(tk[q])
        A.raw("    .p2align 3")
        for e in range(0, 4, 2):
            r = 4 * q + e
            A(f"""v_pk_add_f32 v[{16+r}:{17+r}], v[{16+r}:{17+r}], v[{32+r}:{33+r}]
            v_pk_add_f32 v[{48+r}:{49+r}], v[{48+r}:{49+r}], v[{64+r}:{65+r}]
            v_pk_add_f32 v[{16+r}:{17+r}], v[{16+r}:{17+r}], v[{48+r}:{49+r}]
            v_pk_fma_f32 v[{ZT+r}:{ZT+r+1}], v[{16+r}:{17+r}], v[{GB+r}:{GB+r+1}], v[{ZT+r}:{ZT+r+1}]
            v_cvt_pk_bf16_f32 v{8+r//2}, v{ZT+r}, v{ZT+r+1}""")
        if q % 2 == 1:
            b = 8 + 2 * (q - 1)
            A(f"v_permlane32_swap_b32 v{b}, v{b+2}\nv_permlane32_swap_b32 v{b+1}, v{b+3}")
            VM(f"buffer_store_dwordx4 v[{b}:{b+3}], v{vROW}, {OUT}, s{sROW} offen offset:{16*(q-1)}")
    stamp("done")
    if meas:
        A(f"""s_cmp_lg_u32 s2, {meas[3]}
        s_cbranch_scc1 L_fin
        v_readlane_b32 s61, v{vST}, 0
        v_readlane_b32 s62, v{vST}, 1
        s_memrealtime s[100:101]
        s_sub_u32 s61, s62, s61
        s_mul_i32 s61, s61, {meas[2]}
        s_min_u32 s61, s61, 100000
        s_waitcnt lgkmcnt(0)
        s_mov_b32 s63, s100
        L_ms:
        s_memrealtime s[100:101]
        s_waitcnt lgkmcnt(0)
        s_sub_u32 s62, s100, s63
        s_cmp_lt_u32 s62, s61
        s_cbranch_scc1 L_ms""")
    return done()

HEAD = open("adaLN_cond__sliding_block__dense_activation_squared_relu__prompt.s.ref").read().split("; Override launch")[0]
def wrap(A, tail, warm):
    A("L_tail:")
    for t in tail:
        if isinstance(t, tuple): A.lines += t[1]
        else: A(t)
    A("L_exit:\ns_endpgm")
    A.raw("CODE_END:")
    def full(lines):
        txt = HEAD + f"; @launch grid=(256,1,1) block=(256,1,1) lds={LDS_BYTES}\n.amdgcn_target \"amdgcn-amd-amdhsa--gfx950\"\n.text\n" + kernel_header(NAME) + "\n".join(lines) + "\n"
        return txt + ".section .rodata,\"a\"\n.p2align 6\n" + kernel_desc(NAME, 512, 102, 256)
    lines = A.lines
    if warm:
        import warm as W
        lines, stubs = W.add_stubs(lines, full, {"a": [("L_wza", "L_at1")], "b": [("L_at1", "L_at2")], "c": [("L_at2", "L_tail")]},
                                   {"L_kvV", "L_kvE", "L_att", "L_p42", "L_help", "L_at2", "L_va", "L_vb"})
    return full(lines)

if __name__ == "__main__":
    out = sys.argv[1]
    kw = eval("dict(" + (sys.argv[2] if len(sys.argv) > 2 else "") + ")")
    t, names = gen(**kw)
    open(out, "w").write(t)
    if names: json.dump(names, open(out + ".json", "w"))
    print(out, len(t.split("\n")), "lines", len(names), "stamps")
```

```python
import sys, json, struct
from asmgen import *
NAME = "adaLN_cond__sliding_block__dense_activation_squared_relu__prompt_kernel"
QSCALE = struct.unpack("<I", struct.pack("<f", 28 ** -0.5 * 1.4426950408889634))[0]

CTL = 0x4000
C_FH, C_FQ, C_FO, C_FY, C_FD = 0, 0x200, 0x400, 0x600, 0x800
S0U = 0x10000
XCCG = 0x14000
AUG = 0x1C000
STATS = 0x28000
NU = 0x70000
RS2 = 0x80000
FKV = 0xA0000
QO = 0x100000
KG = 0x300000
VG = 0x500000
HID = 0x700000
STAMP = 0xF00000
WSZ = 0x1000000
OOB = 0x40000000
L_WKV, L_B, L_WQ = 0, 57344, 122880
L_K, L_V = 98304, 122880
L_WO = 0
L_P0 = 0; L_P1 = 57344
BLK = 16384
L_MISC = 151552
L_X = L_MISC; L_XT = 5 * BLK; L_SILU = L_MISC + 7168; L_MODV = L_MISC + 8192; L_VEC = L_MODV
LDS_BYTES = 163840
sW, sG, sM, sTAG, sUNI = 3, 4, 5, 6, 7
X, WQKV, WO, W1, W2, WMOD, OUT, WS = [f"s[{i}:{i+3}]" for i in (8, 12, 16, 20, 24, 28, 32, 36)]
sCTL = 47
sJ, sTQ, sHEAD, sRB, sTA, sNB, sTO, sKH, sR4, sWG, sHI, sCOL = 48, 49, 50, 51, 52, 53, 54, 55, 56, 57, 58, 59
sCNT = 60
sSRC, sHLP, sCT = 67, 68, 69
sFT = 70
sROW, sEX, sW1D, sUI, sPSW = 77, 78, 94, 95, 96
sSTB, sKVS, sQS, sHS, sFKV, sFQ, sFHP = 79, 80, 81, 82, 83, 84, 85
sLK, sK0, sQO, sFO, sWOL, sW1C, sSTA = 86, 87, 90, 91, 92, 93, 97
sYS, sFY, sFOP, sOS, sSTS, sNUS = 98, 99, 0, 1, 44, 45
vL, vL16, vTN0, vTN1, vTP0, vTP1 = 255, 254, 253, 252, 251, 250
vPAN = 246
vTAG, vHALF, vL31 = 245, 244, 243
vT0, vT1, vT2, vT3 = 239, 240, 241, 242
vJUNK, vST, vROW, vVEC, vR0 = 238, 237, 236, 235, 233
NEG = 0xF149F2CA
SPIN = 60000

class Ctr:
    def __init__(s, A, name, mx): s.A, s.name, s.mx, s.n, s.done = A, name, mx, 0, 0
    def issue(s): s.n += 1; return s.n
    def wait(s, tok):
        if tok <= s.done: return
        k = min(s.n - tok, s.mx)
        s.A.e(f"s_waitcnt {s.name}({k})"); s.done = s.n - k
    def all(s): s.A.e(f"s_waitcnt {s.name}(0)"); s.done = s.n
    def drained(s): s.done = s.n
class Tok: t = None

def gen(stop=99, stamps=False, force_slow=False, only=None, meas=None, warm=True, dbg=(), lst=None,
        a1='H pR K0', a2='LQ', a3='K1 pQ pA', a5='Q7', a6='', a7='pS', kvt='XT QP', qp='', p41='', p42='', kw2='pO pF', wlate='a6', at1='_ _ _ _ _ _ _ _ Wb10', at2='O0 NU O1', ot0='', ot1='S4 S8',
        hp0='', hp1='', hp2='', hz='F0 F1 F2 F3 F4 F5 F6',
        PRO=10, STP=2, ER=7, EA=18, RT='123', SR=3, CK=6, msub=True, AR=1, KVA=22, QB=10, mlate=False, V1=2, V2=4, qfirst=False, merge=True, VBAR=2, YF=6, plain='', EP=10, YH=28, YC=48, slip=True, VD=0, KVV=None, wbz=None, ST0P=102, omod='', hq=False, fkt=True, full='', KT=0, EB=6, SP=16, ERS=None, EAS=None, f1f='Z0 Z1', PS=2, O1=8, CP=(6, 6, 6)):
    A = Asm()
    vm = Ctr(A, "vmcnt", 63); lg = Ctr(A, "lgkmcnt", 15)
    tail = []; uid = [0]; names = []
    def U(p): uid[0] += 1; return f"L_{p}{uid[0]}"
    def stamp(nm):
        if meas and nm in meas[:2]:
            A(f"s_memrealtime s[100:101]\ns_waitcnt lgkmcnt(0)\nv_writelane_b32 v{vST}, s100, {meas.index(nm)}"); lg.drained()
        if not stamps or (only and nm not in only): return
        if nm not in names: names.append(nm)
        A(f"{'s_memtime' if stamps == 2 else 's_memrealtime'} s[100:101]\ns_waitcnt lgkmcnt(0)\nv_writelane_b32 v{vST}, s100, {names.index(nm)}"); lg.drained()
    def VM(t): A(t); return vm.issue()
    def DS(t): A(t); return lg.issue()
    def barrier(): A("s_barrier")
    def mfma(d, a_, b_, c=None): A(f"v_mfma_f32_32x32x16_bf16 {d}, {a_}, {b_}, {c if c is not None else d}")
    def run(q, n):
        for _ in range(n):
            if not q: return
            e = q.pop(0)
            if callable(e): e()
            else: A(e)
    def lines(t): return [x.strip() for x in t.strip().split("\n") if x.strip()]
    def jVM(text, tok=None, pre=None):
        def f():
            if pre: A(pre)
            k = VM(text)
            if tok is not None: tok.t = k
        return f
    def jDS(text, tok=None):
        def f():
            k = DS(text)
            if tok is not None: tok.t = k
        return f
    def flag(soff, slow=False):
        if slow and 'f' in full:
            A(f"v_lshlrev_b32 v{vT2}, 2, v{vL}\ns_mov_b32 exec_hi, 0"); VM(f"buffer_store_dword v{vTAG}, v{vT2}, {WS}, s{soff} offen sc1"); A("s_mov_b64 exec, -1"); return
        A("s_mov_b64 exec, 1")
        if slow: VM(f"buffer_store_dword v{vTAG}, off, {WS}, s{soff} sc1")
        else:
            ls, lj = U("fs"), U("fj")
            A(f"s_cmp_eq_u32 s{sUNI}, 0\ns_cbranch_scc1 {ls}")
            VM(f"buffer_store_dword v{vTAG}, off, {WS}, s{soff}")
            A(f"{lj}:")
            tail.append(f"{ls}:\nbuffer_wbl2 sc1\ns_waitcnt vmcnt(0)\nbuffer_store_dword v{vTAG}, off, {WS}, s{soff} sc1\ns_branch {lj}")
        A("s_mov_b64 exec, -1")
    def poll(vaddr, soff):
        lp, ld, li, lj = U("p"), U("pd"), U("pi"), U("pj")
        A(f"s_mov_b32 s{sCNT}, 0\n{lp}:\nbuffer_load_dword v{vJUNK}, v{vaddr}, {WS}, {soff} offen sc1\ns_add_u32 s{sCNT}, s{sCNT}, 1\ns_cmp_ge_u32 s{sCNT}, {SPIN}\ns_cbranch_scc1 {ld}\ns_cmp_eq_u32 s{sUNI}, 0\ns_waitcnt vmcnt(0)")
        A(f"v_cmp_ne_u32 vcc, s{sTAG}, v{vJUNK}\ns_cbranch_vccnz {lp}\n{ld}:\ns_cbranch_scc1 {li}\n{lj}:")
        vm.drained()
        tail.append(f"{li}:\ns_waitcnt vmcnt(0)\nbuffer_inv sc1\ns_waitcnt vmcnt(0)\ns_branch {lj}")
    def panel_addr(dst, rs, swz="std"):
        t = f"v_lshrrev_b32 v{vT0}, 3, v{vL}\nv_and_b32 v{vT1}, 7, v{vL}\n"
        if swz == "std": t += f"v_bfe_u32 v{vT2}, v{vL}, 4, 1\nv_lshlrev_b32 v{vT2}, 2, v{vT2}\n"
        else: t += f"v_bfe_u32 v{vT2}, v{vL}, 4, 2\nv_lshlrev_b32 v{vT2}, 1, v{vT2}\n"
        t += f"v_xor_b32 v{vT1}, v{vT1}, v{vT2}\nv_mul_u32_u24 v{vT0}, {rs}, v{vT0}\nv_lshl_add_u32 v{dst}, v{vT1}, 4, v{vT0}\n"
        for i in range(1, 4): t += f"v_add_u32 v{dst+i}, {i*(8*rs-1024)}, v{dst}\n"
        return t
    def dma_jobs(srd, vp, rs, n, setup, tok=None):
        if "nobulk" in dbg and srd in (W2, W1, WO) and vp != 4:
            def nop():
                if tok is not None: tok.t = 0
            return [nop] * n
        js = []
        for i in range(n):
            q = i % 4
            pre = setup if i == 0 else (f"s_add_u32 m0, m0, 4096\ns_add_u32 s{sSRC}, s{sSRC}, {32*rs}" if q == 0 else None)
            js.append(jVM(f"buffer_load_dwordx4 v{vp+q}, {srd}, s{sSRC} offen offset:{1024*q} lds", tok, pre))
        return js
    def w2_dma(u, lds_s, lds_off, tok=None):
        return dma_jobs(W2, vPAN, 896, 4, f"s_add_u32 m0, s{lds_s}, {lds_off}\n{'s_xor_b32 s%d, s%d, 2' % (sSRC, sFT+u%7) if u >= 7 else ''}\ns_mul_i32 s{sSRC}, s{sSRC if u >= 7 else sFT+u}, {32*896}\ns_add_u32 s{sSRC}, s{sSRC}, s{sCOL}", tok)
    def w2_read(u, va, off, tok=None):
        js = []
        for s_ in range(2):
            for t in range(2):
                r = 16 * u + 8 * s_ + 4 * t
                for p in range(2): js.append(jDS(f"ds_read_b64_tr_b16 a[{r+2*p}:{r+2*p+1}], v{va+t} offset:{off+2048*s_+1024*p}", tok))
        return js
    def done():
        A("L_fin:")
        if stamps:
            A(f"v_writelane_b32 v{vST}, s{sUNI}, 63")
            A(f"s_lshl_b32 s61, s2, 2\ns_add_u32 s61, s61, s{sW}\ns_lshl_b32 s61, s61, 8\ns_add_u32 s61, s61, {STAMP}\nv_lshlrev_b32 v{vT1}, 2, v{vL}")
            A(f"buffer_store_dword v{vST}, v{vT1}, {WS}, s61 offen")
        A("s_endpgm")
        return wrap(A, tail, warm and stop > 5), names
    stash = {}
    def put(name, r):
        stash.setdefault(name, 224 + len(stash)); assert stash[name] < 246
        return f"v_accvgpr_write_b32 a{stash[name]}, v{r}"
    def get(name, r): return f"v_accvgpr_read_b32 v{r}, a{stash[name]}"
    aX, aB2 = 248, 246

    def check(tok, va, soff, off):
        lr, lj = U("lr"), U("lj")
        vm.wait(tok.t)
        A(f"v_cmp_ne_u32 vcc, s{sTAG}, v{vJUNK}\ns_cmp_eq_u32 s{sUNI}, 0\ns_cbranch_scc1 {lr}\ns_cbranch_vccnz {lr}\n{lj}:")
        tail.append(f"""{lr}:
        s_mov_b32 s{sCNT}, 0
        {lr}a:
        buffer_load_dword v{vJUNK}, v{va}, {WS}, {'s%d' % soff if soff is not None else 0} offen offset:{off} sc1
        s_add_u32 s{sCNT}, s{sCNT}, 1
        s_waitcnt vmcnt(0)
        v_cmp_ne_u32 vcc, s{sTAG}, v{vJUNK}
        s_cbranch_vccz {lr}b
        s_cmp_lt_u32 s{sCNT}, {SPIN}
        s_cbranch_scc1 {lr}a
        {lr}b:
        s_cmp_eq_u32 s{sUNI}, 1
        s_cbranch_scc1 {lj}
        buffer_inv sc1
        s_waitcnt vmcnt(0)
        s_branch {lj}""")
    def look(tok, va, soff, off): return jVM(f"buffer_load_dword v{vJUNK}, v{va}, {WS}, {'s%d' % soff if soff is not None else 0} offen offset:{off} sc1", tok)

    ent = bool(stamps) or bool(meas and "entry" in meas[:2])
    if ent: A(f"{'s_memtime' if stamps == 2 else 's_memrealtime'} s[100:101]")
    for r, off in ((28, 72), (44, 64), (8, 0)):
        A(f"s_load_dwordx2 s[{r}:{r+1}], s[0:1], {off}")
    A(f"""v_readfirstlane_b32 s{sW}, v0
    s_mov_b32 s30, 2408448
    s_mov_b32 s31, 0x20000
    s_mov_b32 s{sHLP}, 0
    s_sub_u32 s{sUI}, s2, 224
    s_cmp_ge_u32 s{sUI}, 32
    s_cbranch_scc1 L_w0
    s_mov_b32 s{sHLP}, 1
    v_lshrrev_b32 v1, 3, v0
    v_and_b32 v2, 6, v1
    v_xor_b32 v2, v2, v0
    v_and_b32 v2, 7, v2
    v_mul_u32_u24 v1, 5376, v1
    v_lshl_add_u32 v4, v2, 4, v1
    v_min_u32 v2, 223, v0
    v_lshlrev_b32 v3, 2, v2
    s_lshl_b32 s61, s{sW}, 4
    s_add_u32 m0, s61, {L_B}
    s_lshr_b32 s61, s{sUI}, 1
    s_lshl_b32 s61, s61, 7
    s_bitcmp1_b32 s{sUI}, 0
    s_cselect_b32 s62, {224*5376}, 0
    s_add_u32 s61, s61, s62
    s_cmp_ge_u32 s{sUI}, 28
    s_cselect_b32 s61, 2.0, s61
    s_mov_b32 s62, 7
    s_waitcnt lgkmcnt(0)
    global_load_dword v8, v3, s[44:45]
    L_m0:
    buffer_load_dwordx4 v4, {WMOD}, s61 offen lds
    s_addk_i32 m0, 4096
    s_add_u32 s61, s61, {32*5376}
    s_sub_u32 s62, s62, 1
    s_cmp_lg_u32 s62, 0
    s_cbranch_scc1 L_m0
    L_w0:
    s_lshr_b32 s{sM}, s2, 3
    v_min_u32 v5, 12, v0
    v_lshl_add_u32 v5, v5, 5, s{sM}
    s_getpc_b64 s[62:63]
    L_pc:
    v_min_u32 v5, (CODE_END-L_pc-4)>>7, v5
    v_lshlrev_b32 v5, 7, v5
    global_load_dword v{vJUNK}, v5, s[62:63]
    s_cmp_ge_u32 s2, 256
    s_cbranch_scc1 L_exit
    s_lshr_b32 s{sW}, s{sW}, 6
    v_and_b32 v{vL}, 63, v0
    s_and_b32 s{sG}, s2, 7
    s_mov_b32 s10, 1835008
    s_mov_b32 s11, s31""")
    for r, off in ((36, 96), (12, 8), (32, 80), (24, 48), (16, 16), (20, 32), (40, 40), (42, 56)): A(f"s_load_dwordx2 s[{r}:{r+1}], s[0:1], {off}")
    A(f"""v_lshrrev_b32 v9, 3, v{vL}
    v_xor_b32 v10, v9, v{vL}
    v_and_b32 v10, 7, v10
    v_mul_u32_u24 v9, 896, v9
    v_lshl_add_u32 v9, v10, 4, v9
    s_lshl_b32 s61, s{sG}, 5
    s_add_u32 s{sWG}, s61, s{sM}
    s_mul_i32 s61, s{sWG}, 7168
    s_lshl_b32 s62, s{sW}, 7
    s_add_u32 s61, s61, s62
    s_lshl_b32 s62, s{sW}, 10
    s_add_u32 m0, s62, {L_X}
    s_add_u32 s63, s61, 512
    s_cmp_eq_u32 s{sW}, 3
    s_cselect_b32 s63, s61, s63
    s_cselect_b32 s64, 0, 4096
    s_waitcnt lgkmcnt(0)""")
    if ent:
        A(f"v_mov_b32 v{vST}, 0\nv_writelane_b32 v{vST}, s100, 0")
        if stamps: names.append("entry")
    stamp("karg")
    A(f"s_load_dword s{sTAG}, s[36:37], 0")
    VM(f"buffer_load_dwordx4 v9, {X}, s61 offen lds")
    A("s_add_u32 m0, m0, s64")
    tx = VM(f"buffer_load_dwordx4 v9, {X}, s63 offen lds")
    for r, n in ((12, 1204224), (36, WSZ), (32, 1835008), (16, 401408), (20, 1605632), (24, 1605632)):
        A(f"s_mov_b32 s{r+2}, {n}\ns_mov_b32 s{r+3}, s31")
    A(panel_addr(12, 2688))
    A(f"""s_cmp_ge_u32 s{sM}, 14
    s_cselect_b32 s65, 14, 0
    s_cselect_b32 s{sPSW}, 1, 0
    s_sub_u32 s{sJ}, s{sM}, s65
    s_sub_u32 s65, s{sM}, 14
    s_cmp_ge_u32 s65, 14
    s_cbranch_scc1 L_rl
    s_mov_b32 s{sHLP}, 2
    L_rl:""")
    def wkv_half(second):
        return dma_jobs(WQKV, 12, 2688, 7, f"""s_xor_b32 s65, s{sPSW}, s{sG}
        s_and_b32 s65, s65, 1
        {'s_xor_b32 s65, s65, 1' if second else ''}
        s_lshl_b32 s66, s{sW}, 1
        s_add_u32 s65, s65, s66
        s_mul_i32 m0, s65, 7168
        s_mul_i32 s{sSRC}, s65, {56*2688}
        s_lshl_b32 s65, s{sJ}, 7
        s_add_u32 s{sSRC}, s{sSRC}, s65
        s_add_u32 s{sSRC}, s{sSRC}, 896""")
    wkv = wkv_half(0) + wkv_half(1)
    vWQ = 228; vPQ = 229
    twq = Tok()
    def wq_half(second):
        return dma_jobs(WQKV, vPQ, 2 * 2688, 4, f"""s_and_b32 s65, s{sJ}, 1
        {'s_xor_b32 s65, s65, 1' if second else ''}
        s_mul_i32 s65, s65, 3
        s_mul_i32 s66, s{sW}, 7
        s_add_u32 s65, s65, s66
        s_lshl_b32 s66, s65, 10
        s_add_u32 m0, s66, {L_WQ}
        s_mul_i32 s{sSRC}, s65, {16*2688}
        s_lshl_b32 s65, s{sJ}, 6
        s_add_u32 s{sSRC}, s{sSRC}, s65""", twq)
    def touch(srd, n, idx, k=0, of=1):
        return [jVM(f"buffer_load_dword v{vJUNK}, v{vT0}, {srd}, s65 offen", None, f"{idx}\ns_mul_i32 s65, s65, {128*n*of}\ns_add_u32 s65, s65, {128*n*k}\nv_min_u32 v{vT0}, {n-1}, v{vL}\nv_lshlrev_b32 v{vT0}, 7, v{vT0}")]
    wi = f"s_mul_i32 s65, s{sG}, 28\ns_add_u32 s65, s65, s{sM}\ns_lshl_b32 s65, s65, 2\ns_add_u32 s65, s65, s{sW}"
    hi = f"s_lshl_b32 s65, s{sHI}, 2\ns_add_u32 s65, s65, s{sW}"
    hg = hi + "\ns_and_b32 s65, s65, 15"
    J = dict(K0=lambda: [wkv.pop(0) for _ in range(7)], K1=lambda: [wkv.pop(0) for _ in range(7)], K4=lambda: [wkv.pop(0) for _ in range(4)], K3=lambda: [wkv.pop(0) for _ in range(3)],
             Q0=lambda: wq_half(0), Q1=lambda: wq_half(1), W=lambda: [vm.all],
             H=lambda: [jVM(f"buffer_load_dword v{vJUNK}, v77, {OUT}, s98 offen sc1")],
             QP=lambda: [jVM(f"buffer_load_dword v{vJUNK}, v{vT0}, {WS}, s{sQO} offen sc1", None, f"v_and_b32 v{vT0}, 15, v{vL}\nv_lshlrev_b32 v{vT0}, 7, v{vT0}")],
             XT=lambda: [jVM(f"global_load_dwordx2 a[{aB2}:{aB2+1}], v{vT0}, s[42:43]", None, f"s_lshl_b32 s65, s{sCT}, 6\nv_and_b32 v{vT0}, 7, v{vL}\nv_lshl_add_u32 v{vT0}, v{vT0}, 3, s65"),
                         jVM(f"buffer_load_dwordx4 v{vT1}, {X}, s65 offen lds", None, f"{get('XA', vT1)}\ns_and_b32 s65, s{sTO}, 0xfe\ns_lshl_b32 s65, s65, 1\ns_add_u32 s65, s65, s{sW}\ns_mul_i32 s65, s65, 14336\ns_add_u32 s65, s65, s{sCOL}\ns_lshl_b32 s66, s{sW}, 11\ns_add_u32 m0, s66, {L_XT}"),
                         jVM(f"buffer_load_dwordx4 v{vT1}, {X}, s65 offen offset:1024 lds", None, "s_add_u32 s65, s65, 6144"),
                         jVM(f"buffer_load_dwordx4 v{vT1}, {X}, s65 offen lds", None, f"s_add_u32 m0, m0, 8192\ns_add_u32 s65, s65, {114688-6144}"),
                         jVM(f"buffer_load_dwordx4 v{vT1}, {X}, s65 offen offset:1024 lds", None, "s_add_u32 s65, s65, 6144")],
             LQ=lambda: [jVM(f"buffer_load_dword v{vJUNK}, v{vT0}, {WQKV}, s65 offen", None, f"s_lshl_b32 s65, s{sM}, 2\ns_add_u32 s65, s65, s{sW}\ns_mul_i32 s65, s65, {4*2688}\nv_and_b32 v{vT1}, 7, v{vL}\nv_min_u32 v{vT1}, 6, v{vT1}\nv_bfe_u32 v{vT0}, v{vL}, 3, 2\nv_mul_u32_u24 v{vT0}, 2688, v{vT0}\nv_lshl_add_u32 v{vT0}, v{vT1}, 7, v{vT0}")],
             Q7=lambda: dma_jobs(WQKV, vPQ, 2 * 2688, 7, f"s_mul_i32 s65, s{sW}, 7168\ns_add_u32 m0, s65, {L_WQ}\ns_mul_i32 s{sSRC}, s65, 42\ns_lshl_b32 s65, s{sJ}, 6\ns_add_u32 s{sSRC}, s{sSRC}, s65", twq),
             TQ=lambda: touch(WQKV, 11, wi), T2=lambda: touch(W2, 14, wi), T1=lambda: touch(W1, 14, wi), TO=lambda: touch(WO, 4, wi))
    HJ = dict(T1=lambda: touch(W1, 49, hi, 0, 2) + touch(W1, 49, hi, 1, 2), TQ=lambda: touch(WQKV, 37, hi, 0, 2) + touch(WQKV, 37, hi, 1, 2), T2=lambda: touch(W2, 49, hi, 0, 2) + touch(W2, 49, hi, 1, 2), TO=lambda: touch(WO, 25, hi),
              LO=lambda: sum((touch(WO, 49, hg, k, 4) for k in range(4)), []),
              **{f'QP{k}': (lambda k=k: [jVM(f"buffer_load_dword v{vJUNK}, v{vT0}, {WS}, s65 offen sc1", None, f"{hi}\ns_lshl_b32 s65, s65, 14\ns_add_u32 s65, s65, {QO+8192*k}\nv_lshlrev_b32 v{vT0}, 7, v{vL}")]) for k in range(2)},
              QP=lambda: sum(([jVM(f"buffer_load_dword v{vJUNK}, v{vT0}, {WS}, s65 offen sc1", None, f"{hi}\ns_lshl_b32 s65, s65, 14\ns_add_u32 s65, s65, {QO+8192*k}\nv_lshlrev_b32 v{vT0}, 7, v{vL}")] for k in range(2)), []))
    def hfill(kind, k):
        pre = f"{hg}\ns_add_u32 s66, s{sG}, {k}\ns_cmp_ge_u32 s66, 7\ns_cselect_b32 s64, 7, 0\ns_sub_u32 s66, s66, s64\ns_lshl_b32 s66, s66, 4\ns_add_u32 s65, s65, s66\ns_and_b32 s66, s65, 7\ns_lshr_b32 s65, s65, 3\nv_min_u32 v{vT0}, 55, v{vL}\n"
        if kind in "EF":
            pre += f"s_bitcmp{1 if kind == 'E' else 0}_b32 s65, 1\ns_cselect_b32 s64, 57344, 0\ns_mul_i32 s65, s65, 114688\ns_add_u32 s65, s65, s64\ns_mul_i32 s66, s66, 7168\ns_add_u32 s65, s65, s66\nv_lshlrev_b32 v{vT0}, 7, v{vT0}"
            return [jVM(f"buffer_load_dword v{vJUNK}, v{vT0}, {W2}, s65 offen", None, pre)]
        pre += f"s_bitcmp{0 if kind == 'G' else 1}_b32 s65, 1\ns_cselect_b32 s64, 128, 0\ns_lshl_b32 s65, s65, 8\ns_add_u32 s65, s65, s64\ns_mul_i32 s66, s66, {56*3584}\ns_add_u32 s65, s65, s66\nv_mul_u32_u24 v{vT0}, 3584, v{vT0}"
        return [jVM(f"buffer_load_dword v{vJUNK}, v{vT0}, {W1}, s65 offen", None, pre)]
    for kind in "EFGI":
        for k in range(7): HJ[f"{kind}{k}"] = (lambda kind=kind, k=k: hfill(kind, k))
    for k in range(4): HJ[f"O{k}"] = (lambda k=k: touch(WO, 49, hg, k, 4))
    used = set((a1 + " " + a2 + " " + a3 + " " + a7 + " " + a5 + " " + a6 + " " + kvt + " " + qp + " " + p41 + " " + p42).split())
    J['XD'] = lambda: J['XT']()[1:]
    def jobs(sq, T=None): return sum(((T or J)[a_]() for a_ in sq.split()), [])
    hline = f"""s_lshr_b32 s65, s{sWG}, 2
    s_mul_i32 s98, s65, 28672
    s_and_b32 s65, s{sM}, 3
    s_lshl_b32 s65, s65, 7
    s_add_u32 s98, s98, s65
    s_lshl_b32 s62, s{sW}, 12
    s_add_u32 s98, s98, s62
    s_add_u32 s99, s98, 16384
    s_cmp_eq_u32 s{sW}, 3
    s_cselect_b32 s99, {OOB}, s99
    s_cselect_b32 s61, 0, 16384
    v_bfe_u32 v77, v{vL}, 3, 1
    v_mul_u32_u24 v77, s61, v77
    v_and_b32 v30, 7, v{vL}
    v_lshl_add_u32 v77, v30, 9, v77"""
    roles = f"""s_lshl_b32 s61, s{sG}, 1
    s_add_u32 s62, s61, s{sPSW}
    s_lshl_b32 s{sTQ}, s62, 2
    s_add_u32 s{sTQ}, s{sTQ}, s{sW}
    s_and_b32 s{sHEAD}, s{sM}, 15
    s_lshr_b32 s62, s{sM}, 4
    s_add_u32 s{sRB}, s61, s62
    s_lshl_b32 s{sTA}, s{sRB}, 2
    s_add_u32 s{sTA}, s{sTA}, s{sW}
    s_mul_i32 s61, s{sM}, 37
    s_lshr_b32 s{sR4}, s61, 8
    s_mul_i32 s62, s{sR4}, 7
    s_sub_u32 s{sNB}, s{sM}, s62
    s_lshl_b32 s{sCOL}, s{sNB}, 7
    s_and_b32 s61, s{sW}, 1
    s_lshr_b32 s{sKH}, s{sW}, 1
    s_lshl_b32 s{sTO}, s{sG}, 2
    s_and_b32 s{sR4}, s{sR4}, 1
    s_add_u32 s{sTO}, s{sTO}, s{sR4}
    s_lshl_b32 s{sTO}, s{sTO}, 1
    s_add_u32 s{sTO}, s{sTO}, s61
    s_lshl_b32 s{sEX}, s{sW}, 12
    {panel_addr(vPAN, 896)}
    v_and_b32 v{vT0}, 3, v{vL}
    v_lshlrev_b32 v{vT0}, 3, v{vT0}
    v_bfe_u32 v{vT1}, v{vL}, 4, 1
    v_lshl_add_u32 v{vT0}, v{vT1}, 5, v{vT0}
    v_bfe_u32 v{vT1}, v{vL}, 2, 2
    v_lshl_add_u32 v16, v{vT1}, 6, v{vT0}
    v_lshl_add_u32 v16, v{vHALF}, 9, v16
    v_lshl_add_u32 v{vT0}, v{vT1}, 7, v{vT0}
    v_bfe_u32 v{vT1}, v{vL}, 3, 1
    v_lshl_add_u32 v{vT0}, v{vT1}, 6, v{vT0}
    v_lshl_add_u32 v{vTN0}, v{vHALF}, 10, v{vT0}
    v_lshl_add_u32 v{vTP0}, v{vHALF}, 9, v{vT0}
    v_xor_b32 v{vTN1}, 64, v{vTN0}
    v_xor_b32 v{vTP1}, 64, v{vTP0}
    s_lshl_b32 s62, s{sKH}, 6
    v_xor_b32 v{vR0}, s62, v{vTP0}
    v_xor_b32 v{vR0+1}, s62, v{vTP1}"""
    prepA = f"""s_mul_i32 s{sLK}, s{sW}, 6144
    s_add_u32 s{sLK}, s{sLK}, {L_K}
    s_lshl_b32 s61, s{sHEAD}, 6
    s_lshl_b32 s62, s{sRB}, 2
    s_mul_i32 s63, s{sW}, 3
    s_add_u32 s62, s62, s63
    s_sub_u32 s62, s62, 8"""
    for q in range(3):
        prepA += f"""
        s_add_u32 s63, s62, {q}
        s_add_u32 s64, s63, s61
        s_mul_i32 s64, s64, 1792
        s_add_u32 s64, s64, {KG}
        s_cmp_lt_i32 s63, 0
        s_cselect_b32 s{sK0+q}, {OOB}, s64"""
    prepA += f"""
    v_lshlrev_b32 v{vT0}, 9, v{vHALF}
    v_lshl_add_u32 v{vT0}, v{vL31}, 3, v{vT0}
    {put('QA', vT0)}
    s_lshl_b32 s61, s{sW}, 11
    s_add_u32 s61, s61, {L_K}
    v_add_u32 v{vT0}, s61, v{vT0}
    {put('KA', vT0)}
    v_mul_u32_u24 v{vT0}, 448, v{vHALF}
    v_lshl_add_u32 v{vT0}, v{vL31}, 4, v{vT0}
    {put('VS', vT0)}
    s_lshl_b32 s{sQO}, s{sTA}, 4
    s_add_u32 s{sQO}, s{sQO}, s{sHEAD}
    s_and_b32 s61, s{sQO}, 127
    s_lshl_b32 s61, s61, 2
    s_add_u32 s61, s61, s{sCTL}
    s_add_u32 s{sFO}, s61, {C_FO}
    s_lshl_b32 s{sQO}, s{sQO}, 11
    s_add_u32 s{sQO}, s{sQO}, {QO}
    v_min_u32 v{vT0}, 13, v{vL}
    v_and_b32 v{vT1}, 1, v{vT0}
    v_mul_u32_u24 v{vT1}, 27, v{vT1}
    s_mul_i32 s61, s{sHEAD}, 28
    v_add_u32 v{vT1}, s61, v{vT1}
    v_lshrrev_b32 v{vT2}, 6, v{vT1}
    v_bfe_u32 v{vT3}, v{vT0}, 1, 1
    v_mad_u32_u24 v{vT2}, v{vT3}, 7, v{vT2}
    v_lshrrev_b32 v{vT3}, 2, v{vT0}
    v_add_u32 v{vT3}, s62, v{vT3}
    v_max_i32 v{vT3}, 0, v{vT3}
    v_mad_u32_u24 v{vT2}, v{vT3}, 14, v{vT2}
    v_lshlrev_b32 v{vT2}, 7, v{vT2}
    v_add_u32 v{vT2}, {FKV}, v{vT2}
    v_lshrrev_b32 v{vT1}, 5, v{vT1}
    s_and_b32 s61, s{sTA}, 7
    s_lshl_b32 s61, s61, 6
    s_add_u32 s61, s61, s{sCTL}
    s_add_u32 s61, s61, {C_FQ}
    v_lshl_add_u32 v{vT1}, v{vT1}, 2, s61
    v_cmp_gt_u32 vcc, 12, v{vT0}
    v_cndmask_b32 v{vT0}, v{vT1}, v{vT2}, vcc
    {put('PA', vT0)}
    {panel_addr(120, 3584)}
    {put('P1a', 120)}
    {put('P1b', 121)}
    {put('P1c', 122)}
    {put('P1d', 123)}
    s_mul_i32 s{sWOL}, s{sW}, 14336
    s_bfe_u32 s61, s{sJ}, 0x10001
    s_lshl_b32 s{sW1C}, s{sJ}, 1
    s_add_u32 s{sW1C}, s{sW1C}, s61
    s_lshl_b32 s{sW1C}, s{sW1C}, 7
    s_xor_b32 s{sW1D}, s{sW1C}, 128
    s_mov_b32 s{sSTA}, 0
    s_lshl_b32 s61, s{sNB}, 1
    s_add_u32 s{sCT}, s61, s{sKH}
    s_lshl_b32 s61, s{sCT}, 7
    s_add_u32 s{sNUS}, s61, {NU}
    v_and_b32 v{vT0}, 7, v{vL}
    v_bfe_u32 v{vT1}, v{vL}, 3, 2
    v_min_u32 v{vT1}, 2, v{vT1}
    v_min_u32 v{vT2}, 1, v{vT1}
    v_add_u32 v{vT1}, v{vT1}, v{vT2}
    v_mul_u32_u24 v{vT1}, 1792, v{vT1}
    v_lshl_add_u32 v{vT1}, v{vT0}, 4, v{vT1}
    {put('NU', vT1)}"""
    kpad = f"v_mov_b32 v121, 0\nv_lshl_add_u32 v122, v{vL31}, 3, s{sLK}\ns_mov_b32 exec_hi, 0"
    for q in range(3): kpad += f"\ns_cmp_eq_u32 s{sK0+q}, {OOB}\ns_cselect_b32 s64, {NEG>>16:#x}, 0\nv_mov_b32 v120, s64\nds_write_b64 v122, v[120:121] offset:{2048*q+1792}"
    kpad += "\ns_mov_b64 exec, -1"
    vKS = 216; vQS = 224
    def b_pR():
        A(roles)
        A(f"""v_add_u32 v{vWQ}, {L_WQ}, v16
        v_lshrrev_b32 v{vPQ}, 2, v{vL}
        v_mul_u32_u24 v{vPQ}, 2688, v{vPQ}
        v_and_b32 v17, 3, v{vL}
        v_lshl_add_u32 v{vPQ}, v17, 4, v{vPQ}""")
        for i in range(1, 4): A(f"v_add_u32 v{vPQ+i}, {i*(16*2688-1024)}, v{vPQ}")
    def b_pF():
        A(f"""s_lshl_b32 s62, s{sR4}, 1
        s_add_u32 s62, s62, s{sNB}
        s_lshl_b32 s62, s62, 1
        s_add_u32 s62, s62, s{sG}
        s_mul_i32 s64, s62, 37
        s_lshr_b32 s64, s64, 8
        s_mul_i32 s64, s64, 7
        s_sub_u32 s62, s62, s64
        s_mul_i32 s63, s{sW}, 7""")
        for q in range(7):
            A(f"""s_add_u32 s64, s62, {q}
            s_cmp_ge_u32 s64, 7
            s_cselect_b32 s65, 7, 0
            s_sub_u32 s64, s64, s65
            s_add_u32 s64, s64, s63
            s_and_b32 s65, s64, 0xfe
            s_lshr_b32 s66, s64, 1
            s_and_b32 s66, s66, 2
            s_add_u32 s64, s64, s66
            s_add_u32 s{sFT+q}, s64, s65""")
    def b_pO():
        A(f"""v_mul_u32_u24 v{vROW}, 896, v{vL31}
        v_lshl_add_u32 v{vROW}, v{vHALF}, 4, v{vROW}
        s_mul_i32 s62, s{sTO}, 28672
        s_lshl_b32 s61, s{sCT}, 6
        s_add_u32 s{sROW}, s62, s61
    """)
        A(f"""s_lshl_b32 s61, s{sW}, 9
        s_add_u32 s61, s61, {L_VEC}
        v_lshl_add_u32 v{vVEC}, v{vHALF}, 4, s61
        v_lshl_add_u32 v{vT0}, v{vL31}, 4, s61
        {put('VW', vT0)}
        s_and_b32 s61, s{sTO}, 7
        s_lshl_b32 s61, s61, 6
        s_add_u32 s61, s61, s{sCTL}
        s_lshl_b32 s62, s{sKH}, 5
        s_add_u32 s61, s61, s62
        s_add_u32 s{sFOP}, s61, {C_FO}
        s_lshl_b32 s62, s{sTO}, 1
        s_add_u32 s62, s62, s{sKH}
        s_lshl_b32 s62, s62, 14
        s_add_u32 s{sOS}, s62, {QO}
        s_mul_i32 s{sSTS}, s{sTO}, 3584
        s_lshl_b32 s61, s{sNB}, 9
        s_add_u32 s{sSTS}, s{sSTS}, s61
        s_lshl_b32 s61, s{sKH}, 3
        s_add_u32 s{sSTS}, s{sSTS}, s61
        s_add_u32 s{sSTS}, s{sSTS}, {STATS}
    """)
        A(f"""s_mul_i32 s{sYS}, s{sTO}, 28672
        s_lshl_b32 s61, s{sCT}, 11
        s_add_u32 s{sYS}, s{sYS}, s61
        s_and_b32 s61, s{sTO}, 7
        s_lshl_b32 s61, s61, 4
        s_add_u32 s61, s61, s{sCT}
        s_lshl_b32 s61, s61, 2
        s_add_u32 s61, s61, s{sCTL}
        s_add_u32 s{sFY}, s61, {C_FY}""")
    def b_pQ():
        A(f"""s_and_b32 s61, s{sTQ}, 7
        s_lshl_b32 s61, s61, 6
        s_add_u32 s{sFHP}, s61, s{sCTL}
        s_lshl_b32 s62, s{sJ}, 2
        s_add_u32 s62, s62, s{sFHP}
        s_add_u32 s{sFQ}, s62, {C_FQ}
        s_mul_i32 s{sHS}, s{sTQ}, 28672
        s_mul_i32 s{sKVS}, s{sTQ}, 1792
        s_lshl_b32 s{sQS}, s{sTQ}, 15
        s_add_u32 s{sQS}, s{sQS}, {QO}
        s_mul_i32 s{sFKV}, s{sTQ}, 14
        s_add_u32 s{sFKV}, s{sFKV}, s{sJ}
        s_lshl_b32 s{sFKV}, s{sFKV}, 7
        s_add_u32 s{sFKV}, s{sFKV}, {FKV}
    """)
    def b_pS():
        A(f"""s_lshl_b32 s61, s{sJ}, 3""")
        for a_ in range(4):
            A(f"""v_add3_u32 v{vT0}, v{vHALF}, s61, {2*a_}
            v_mul_u32_u24 v{vT1}, 147, v{vT0}
            v_lshrrev_b32 v{vT1}, 10, v{vT1}
            v_add_lshl_u32 v{vT0}, v{vT0}, v{vT1}, 8
            v_lshl_add_u32 v{vQS+a_}, v{vL31}, 3, v{vT0}""")
        A(f"s_cmp_ge_u32 s{sJ}, 7\ns_cbranch_scc1 L_va\ns_lshl_b32 s61, s{sJ}, 4\ns_add_u32 s{sKVS}, s{sKVS}, {KG}")
        for i in range(8):
            A(f"""v_add3_u32 v{vT0}, v{vHALF}, s61, {2*i}
            v_mul_u32_u24 v{vT1}, 147, v{vT0}
            v_lshrrev_b32 v{vT1}, 10, v{vT1}
            v_mul_u32_u24 v{vT1}, {64*1792-7*256}, v{vT1}
            v_lshl_add_u32 v{vT0}, v{vT0}, 8, v{vT1}
            v_lshl_add_u32 v{vKS+i}, v{vL31}, 3, v{vT0}""")
        A(f"s_branch L_vb\nL_va:\ns_sub_u32 s61, s{sJ}, 7\ns_lshl_b32 s61, s61, 6\ns_add_u32 s{sKVS}, s{sKVS}, {VG}")
        for t in range(2):
            A(f"""v_add3_u32 v{vT0}, v{vL31}, s61, {32*t}
            v_lshrrev_b32 v{vT1}, 2, v{vT0}
            v_mul_u32_u24 v{vT1}, 147, v{vT1}
            v_lshrrev_b32 v{vT1}, 10, v{vT1}
            v_mul_u32_u24 v{vT1}, {64*1792-448}, v{vT1}
            v_lshl_add_u32 v{vT0}, v{vT0}, 4, v{vT1}
            v_mul_u32_u24 v{vT1}, 448, v{vHALF}
            v_add_u32 v{vKS+t}, v{vT0}, v{vT1}""")
        for i in range(2, 8): A(f"v_mov_b32 v{vKS+i}, 0")
        A("L_vb:")
    J.update(pR=lambda: [b_pR], pF=lambda: [b_pF], pO=lambda: [b_pO], pQ=lambda: [b_pQ], pS=lambda: [b_pS], pA=lambda: [lambda: (A(prepA), A(kpad), [lg.issue() for _ in range(3)])])
    A(hline)
    A(put('XA', 9))
    A(f"""v_lshlrev_b32 v{vL16}, 4, v{vL}
    v_lshrrev_b32 v{vHALF}, 5, v{vL}
    v_and_b32 v{vL31}, 31, v{vL}
    s_getreg_b32 s46, hwreg(HW_REG_XCC_ID, 0, 4)
    s_mov_b32 s{sUNI}, 0
    s_lshl_b32 s{sCTL}, s{sG}, 12
    s_add_u32 s{sCTL}, s{sCTL}, {CTL}
    v_and_b32 v30, 7, v{vL}
    v_lshrrev_b32 v31, 3, v{vL}
    v_xor_b32 v32, v30, v31
    v_lshlrev_b32 v32, 4, v32
    v_lshl_add_u32 v32, v30, 7, v32
    v_add_u32 v32, {L_X}, v32
    s_lshl_b32 s61, s{sW}, 10
    v_add_u32 v33, s61, v32
    s_mov_b32 s86, 0x07060500
    s_mov_b32 s87, 0x07060501
    s_mov_b32 s88, 0x07060502
    s_mov_b32 s89, 0x07060503
    s_add_u32 s61, s46, 1
    v_cvt_f32_u32 v18, s61
    s_lshl_b32 s61, s{sWG}, 7
    s_add_u32 s90, s61, {XCCG}
    s_mov_b32 s66, 0xffff0000
    s_cmp_eq_u32 s{sHLP}, 1
    s_cbranch_scc1 L_h2""")
    main = A.lines; A.lines = []; hist = A.hist; A.hist = []
    A("L_h2:")
    A(f"""v_lshrrev_b32 v20, 2, v{vL}
    v_bfe_u32 v21, v{vL}, 3, 2
    v_xor_b32 v21, s{sW}, v21
    v_lshlrev_b32 v21, 5, v21
    v_lshl_add_u32 v20, v20, 7, v21
    v_and_b32 v21, 3, v{vL}
    v_lshl_add_u32 v20, v21, 3, v20
    v_add_u32 v20, {L_B}, v20
    v_and_b32 v22, 48, v{vL}
    v_and_b32 v23, 1, v{vL}
    v_lshl_add_u32 v23, v23, 6, v22
    s_and_b32 s61, s{sUI}, 1
    s_mul_i32 s62, s61, 448
    s_add_u32 s62, s62, {L_SILU}
    v_add_u32 v21, s62, v22
    s_mul_i32 s61, s61, 56
    s_lshr_b32 s62, s{sUI}, 1
    s_lshl_b32 s62, s62, 2
    s_add_u32 s61, s61, s62
    s_add_u32 s61, s61, s{sW}
    s_lshl_b32 s61, s61, 7
    s_add_u32 s84, s61, {S0U}
    s_cmp_ge_u32 s{sUI}, 28
    s_cselect_b32 s84, {OOB}, s84
    s_lshl_b32 s{sHI}, s{sG}, 2
    s_add_u32 s{sHI}, s{sHI}, s{sM}
    s_sub_u32 s{sHI}, s{sHI}, 28
    v_bfe_u32 v24, v2, 1, 2
    v_and_b32 v25, 0xf1, v2
    v_lshl_add_u32 v25, v24, 2, v25
    v_bfe_u32 v24, v2, 3, 1
    v_lshl_add_u32 v25, v24, 1, v25
    v_lshlrev_b32 v25, 2, v25
    v_add_u32 v25, {L_SILU}, v25
    s_waitcnt vmcnt(10)
    v_lshlrev_b32 v26, 16, v8
    v_and_b32 v27, 0xffff0000, v8
    v_mul_f32 v28, 0xbfb8aa3b, v26
    v_mul_f32 v29, 0xbfb8aa3b, v27
    v_exp_f32 v28, v28
    v_exp_f32 v29, v29
    v_add_f32 v28, 1.0, v28
    v_add_f32 v29, 1.0, v29
    v_rcp_f32 v28, v28
    v_rcp_f32 v29, v29
    v_mul_f32 v26, v26, v28
    v_mul_f32 v27, v27, v29
    v_cvt_pk_bf16_f32 v26, v26, v27
    ds_write_b32 v25, v26
    s_waitcnt lgkmcnt(0)
    s_mul_i32 s{sTAG}, s{sTAG}, 0x9E3779B1
    s_add_u32 s{sTAG}, s{sTAG}, 0x7F4A7C15
    v_mov_b32 v{vTAG}, s{sTAG}
    s_waitcnt vmcnt(3)""")
    barrier()
    stamp("B1")
    lg.n = lg.done = 0
    toks = []
    for s_ in range(7):
        DS(f"ds_read_b128 v[{140+4*s_}:{143+4*s_}], v21 offset:{64*s_}")
        DS(f"ds_read_b64_tr_b16 v[{168+4*s_}:{169+4*s_}], v20 offset:{4096*s_}")
        toks.append(DS(f"ds_read_b64_tr_b16 v[{170+4*s_}:{171+4*s_}], v20 offset:{4096*s_+2048}"))
    for s_ in range(7):
        lg.wait(toks[s_])
        A(f"v_mfma_f32_16x16x32_bf16 v[24:27], v[{168+4*s_}:{171+4*s_}], v[{140+4*s_}:{143+4*s_}], {'0' if s_ == 0 else 'v[24:27]'}")
    A(f"""s_mov_b32 exec_lo, {0x00030003 if 's' in full else 0x00010001}
    s_mov_b32 exec_hi, exec_lo
    v_perm_b32 v24, v24, v{vTAG}, s86
    v_perm_b32 v25, v25, v{vTAG}, s87
    v_perm_b32 v26, v26, v{vTAG}, s88
    v_perm_b32 v27, v27, v{vTAG}, s89
    buffer_store_dwordx4 v[24:27], v23, {WS}, s84 offen sc1
    s_mov_b64 exec, -1""")
    stamp("gemv")
    xcc = lambda l: f"""s_cmp_lg_u32 s{sW}, 0
    s_cbranch_scc1 {l}
    v_perm_b32 v136, v18, v{vTAG}, s86
    v_perm_b32 v137, v18, v{vTAG}, s87
    v_perm_b32 v138, v18, v{vTAG}, s88
    v_perm_b32 v139, v18, v{vTAG}, s89
    s_mov_b64 exec, {0xff if 'x' in full else 1}
    buffer_store_dwordx4 v[136:139], v{vL16}, {WS}, s90 offen sc1
    s_mov_b64 exec, -1
    {l}:"""
    A(xcc("L_nx1"))
    A(f"""s_lshl_b32 s85, s{sHI}, 2
    s_add_u32 s85, s85, s{sW}
    s_lshl_b32 s61, s85, 8
    s_add_u32 s61, s61, {CTL}
    v_and_b32 v11, 1, v{vL}
    v_lshlrev_b32 v11, 7, v11
    buffer_load_dword v{vJUNK}, v11, {WS}, s61 offen sc1
    buffer_load_dword v{vJUNK}, v77, {OUT}, s98 offen sc1""")
    sv = (vm.n, vm.done); h0 = jobs(hp0, HJ); nh0 = len(h0); run(h0, 99); vm.n, vm.done = sv
    A(f"s_cmp_eq_u32 s{sW}, 0\ns_cbranch_scc1 L_hx\ns_waitcnt vmcnt({3+nh0})\nL_hx:\ns_waitcnt vmcnt({4+nh0})")
    barrier()
    A("s_branch L_w3")
    tail.append(("raw", A.lines)); A.lines = main; A.hist = hist
    run(jobs(a1), 99)
    A(f"""s_waitcnt lgkmcnt(0)
    s_mul_i32 s{sTAG}, s{sTAG}, 0x9E3779B1
    s_add_u32 s{sTAG}, s{sTAG}, 0x7F4A7C15
    v_mov_b32 v{vTAG}, s{sTAG}
""")
    if warm and stop > 5: A("s_branch L_pg"); A.raw("    .p2align 12"); A("L_pg:")
    vm.wait(tx)
    barrier()
    stamp("B0")
    A(xcc("L_nx2"))
    run(jobs(a2), 99)
    A("L_w3:\ns_mov_b32 s66, 0xffff0000")
    lg.n = lg.done = 0
    tk = [DS(f"ds_read_b128 v[{40+4*i}:{43+4*i}], v32 offset:{1024*i}") for i in range(7)]
    DS("ds_read_b128 v[68:71], v33"); town = DS("ds_read_b128 v[72:75], v33 offset:4096")
    for i in range(7):
        lg.wait(tk[i])
        for d in range(4):
            A(f"v_lshlrev_b32 v{80+8*i+2*d}, 16, v{40+4*i+d}\nv_and_b32 v{81+8*i+2*d}, s66, v{40+4*i+d}")
    A.raw("    .p2align 3")
    A("v_pk_add_f32 v[34:35], v[80:81], v[82:83]")
    for i in range(2, 28): A(f"v_pk_add_f32 v[34:35], v[34:35], v[{80+2*i}:{81+2*i}]")
    def red8(r):
        A(f"""v_add_f32_dpp v{r}, v{r}, v{r} row_ror:8 row_mask:0xf bank_mask:0xf
        v_mov_b32 v{vT0}, v{r}
        v_permlane16_swap_b32 v{r}, v{vT0}
        v_add_f32 v{r}, v{r}, v{vT0}
        v_mov_b32 v{vT0}, v{r}
        v_permlane32_swap_b32 v{r}, v{vT0}
        v_add_f32 v{r}, v{r}, v{vT0}""")
    A("v_add_f32 v34, v34, v35"); red8(34)
    A("v_mul_f32 v34, 0xbb124925, v34\nv_mov_b32 v35, v34")
    A.raw("    .p2align 3")
    for i in range(28): A(f"v_pk_add_f32 v[{80+2*i}:{81+2*i}], v[{80+2*i}:{81+2*i}], v[34:35]")
    A("v_pk_mul_f32 v[36:37], v[80:81], v[80:81]")
    for i in range(1, 28): A(f"v_pk_fma_f32 v[36:37], v[{80+2*i}:{81+2*i}], v[{80+2*i}:{81+2*i}], v[36:37]")
    A("v_add_f32 v36, v36, v37"); red8(36)
    A("v_mov_b32 v37, 0x3727c5ac\nv_fmac_f32 v37, 0x3b124925, v36\nv_rsq_f32 v36, v37")
    lg.wait(town)
    for d in range(8):
        A(f"v_lshlrev_b32 v{40+2*d}, 16, v{68+d}\nv_and_b32 v{41+2*d}, s66, v{68+d}")
    A("v_mov_b32 v37, v36")
    for d in range(8): A(f"v_pk_add_f32 v[{40+2*d}:{41+2*d}], v[{40+2*d}:{41+2*d}], v[34:35]")
    for d in range(8): A(f"v_pk_mul_f32 v[{40+2*d}:{41+2*d}], v[{40+2*d}:{41+2*d}], v[36:37]")
    A(f"""v_lshrrev_b32 v62, 2, v0
    v_lshlrev_b32 v62, 7, v62
    v_and_b32 v56, 3, v0
    v_lshl_add_u32 v62, v56, 4, v62
    v_add_u32 v56, {56*128}, v62
    s_lshl_b32 s61, s{sG}, 12
    s_add_u32 s61, s61, {XCCG-S0U}
    v_lshl_add_u32 v57, v{vL31}, 7, s61
    v_cmp_gt_u32 vcc, 224, v0
    v_cndmask_b32 v62, v57, v62, vcc
    v_cndmask_b32 v56, v57, v56, vcc
    v_lshlrev_b32 v57, 4, v0
    v_add_u32 v57, {L_MODV}, v57
    v_cmp_le_u32 vcc, 112, v0
    v_cndmask_b32 v63, 0, 1.0, vcc
    s_lshl_b32 s61, s{sW}, 8
    s_add_u32 s61, s61, {L_MODV}
    v_lshl_add_u32 v58, v31, 5, s61
    v_lshlrev_b32 v59, 4, v{vL31}
    v_add_u32 v59, {L_MODV+3584}, v59
    v_lshlrev_b32 v60, 9, v31
    v_lshl_add_u32 v60, v30, 4, v60
    v_fma_f32 v76, v18, 2.0, 1.0
    s_lshl_b32 s46, s{sM}, 2
    s_add_u32 s46, s46, s{sW}
    s_lshl_b32 s46, s46, 2
    s_add_u32 s46, s46, s{sCTL}""")
    stamp("stats")
    A(f"s_cmp_eq_u32 s{sHLP}, 1\ns_cbranch_scc1 L_w4")
    run(jobs(a3), 99)
    assert not wkv
    A("L_w4:")
    if warm and stop > 5: A.raw("WARM a")
    stamp("prep")
    if 'drain' in dbg: vm.all(); stamp("drain")
    A(f"""s_mov_b32 s{sCNT}, 0
    s_mov_b32 s61, {S0U}
    s_mov_b32 s64, 0x0c0c0400
    s_mov_b32 s65, 0x05040100
    L_s0:
    buffer_load_dwordx4 v[64:67], v62, {WS}, s61 offen sc1
    buffer_load_dwordx4 v[68:71], v56, {WS}, s61 offen sc1
    s_add_u32 s{sCNT}, s{sCNT}, 1
    s_cmp_ge_u32 s{sCNT}, {SPIN}
    s_cbranch_scc1 L_s0d
    s_waitcnt vmcnt(1)
    v_perm_b32 v72, v65, v64, s64
    v_perm_b32 v73, v67, v66, s64
    v_perm_b32 v72, v73, v72, s65
    v_cmp_ne_u32 s[62:63], s{sTAG}, v72
    s_waitcnt vmcnt(0)
    v_perm_b32 v74, v69, v68, s64
    v_perm_b32 v75, v71, v70, s64
    v_perm_b32 v74, v75, v74, s65
    v_cmp_ne_u32 vcc, s{sTAG}, v74
    s_or_b64 vcc, vcc, s[62:63]
    s_cbranch_vccnz L_s0
    L_s0d:
    s_waitcnt vmcnt(0)""")
    if stamps: A(f"v_writelane_b32 v{vST}, s{sCNT}, 62")
    stamp("s0p")
    for r in range(64, 72): A(f"v_and_b32 v{r}, 0xffffff00, v{r}")
    A(f"""v_pk_add_f32 v[64:65], v[64:65], v[68:69]
    v_pk_add_f32 v[66:67], v[66:67], v[70:71]
    v_cvt_pk_bf16_f32 v68, v64, v65
    v_cvt_pk_bf16_f32 v69, v66, v67
    v_lshlrev_b32 v64, 16, v68
    v_and_b32 v65, 0xffff0000, v68
    v_lshlrev_b32 v66, 16, v69
    v_and_b32 v67, 0xffff0000, v69
    v_add_f32 v64, v64, v63
    v_add_f32 v65, v65, v63
    v_add_f32 v66, v66, v63
    v_add_f32 v67, v67, v63
    v_cvt_pk_bf16_f32 v68, v64, v65
    v_cvt_pk_bf16_f32 v69, v66, v67
    v_lshlrev_b32 v64, 16, v68
    v_and_b32 v65, 0xffff0000, v68
    v_lshlrev_b32 v66, 16, v69
    v_and_b32 v67, 0xffff0000, v69
    ds_write_b128 v57, v[64:67]
    s_waitcnt lgkmcnt(0)""")
    vm.drained(); lg.drained()
    barrier()
    stamp("S0")
    t0 = []
    for p in range(2):
        for q in range(2):
            DS(f"ds_read_b128 v[{80+16*p+4*q}:{83+16*p+4*q}], v58 offset:{1792+1024*p+16*q}")
            t0.append(DS(f"ds_read_b128 v[{88+16*p+4*q}:{91+16*p+4*q}], v58 offset:{1024*p+16*q}"))
    txc = DS("ds_read_b32 v61, v59")
    for p in range(2):
        for q in range(2):
            lg.wait(t0[2 * p + q])
            for e in range(0, 4, 2):
                r = 40 + 8 * p + 4 * q + e
                A(f"v_pk_fma_f32 v[{r}:{r+1}], v[{r}:{r+1}], v[{80+16*p+4*q+e}:{81+16*p+4*q+e}], v[{88+16*p+4*q+e}:{89+16*p+4*q+e}]")
        for d in range(4): A(f"v_cvt_pk_bf16_f32 v{112+4*p+d}, v{40+8*p+2*d}, v{41+8*p+2*d}")
        th = VM(f"buffer_store_dwordx4 v[{112+4*p}:{115+4*p}], v60, {OUT}, s{98+p} offen")
    lg.wait(txc)
    A(f"v_cmp_neq_f32 vcc, v76, v61\ns_cmp_eq_u64 vcc, 0\ns_cselect_b32 s{sUNI}, {0 if force_slow else 1}, 0")
    A(f"s_cmp_eq_u32 s{sHLP}, 1\ns_cbranch_scc1 L_help")

    run(jobs(a5), 99)
    ACC = 112; WB = 160
    tw = {}
    def ld(s_):
        b = WB + 8 * (s_ % 4); js = []
        tw[s_] = Tok()
        for t in range(2):
            js.append(jDS(f"ds_read_b64_tr_b16 v[{b+4*t}:{b+4*t+1}], v{vTN0-t} offset:{L_WKV+2048*s_}"))
            js.append(jDS(f"ds_read_b64_tr_b16 v[{b+4*t+2}:{b+4*t+3}], v{vTN0-t} offset:{L_WKV+2048*s_+512}", tw[s_]))
        return js
    for s_ in range(3): run(ld(s_), 4)
    vm.wait(th)
    flag(46)
    stamp("hpub")
    def warmbc(extra=""):
        A(f"s_cmp_eq_u32 s{sHLP}, 2\ns_cbranch_scc1 L_wc")
        if warm and stop > 5: A.raw("WARM b")
        A("s_branch L_wd\nL_wc:")
        n0 = vm.n; run(jobs(extra), 99); assert vm.n == n0
        if warm and stop > 5: A.raw("WARM c")
        A("L_wd:")
    run(jobs(a6), 99)
    if wlate == 'a6': warmbc(kw2)
    A(f"""v_and_b32 v{vT3}, 15, v{vL}
    v_lshlrev_b32 v{vT3}, 2, v{vT3}""")
    poll(vT3, f"s{sFHP}")
    stamp("S0b")
    if stop <= 1:
        A("s_branch L_fin\nL_help:\ns_waitcnt vmcnt(0)"); flag(46); return done()
    th = [Tok() for _ in range(28)]
    def hjobs(): return [jVM(f"buffer_load_dwordx4 v[{4*s_}:{4*s_+3}], v{vL16}, {OUT}, s{sHS} offen offset:{1024*(s_%4)} sc1", th[s_], f"s_add_u32 s{sHS}, s{sHS}, 4096" if (s_ % 4 == 0 and s_) else None) for s_ in range(28)]
    run(hjobs(), PRO)
    run(jobs(a7), 99)
    tQ = Tok()
    vP1 = 222
    getP1 = "\n".join(get(n_, vP1 + i) for i, n_ in enumerate(("P1a", "P1b", "P1c", "P1d")))
    def w1_jobs(second, per, first, tok=None, vp=None, shift=False):
        return dma_jobs(W1, vp or vP1, 3584, per, f"s_mul_i32 s{sSRC}, s{sW}, {per*1024}\ns_add_u32 m0, s{sSRC}, {(L_P1 if second else L_P0)+first*1024}\n{'s_add_u32 m0, m0, s%d' % sSTA if shift else ''}\ns_mul_i32 s{sSRC}, s{sSRC}, 28\ns_add_u32 s{sSRC}, s{sSRC}, s{sW1D if second else sW1C}" + (f"\ns_add_u32 s{sSRC}, s{sSRC}, {first*8*3584}" if first else ""), tok)
    def rsplit():
        l1, l2 = U("rs"), U("rs")
        A(f"s_cmp_eq_u32 s{sHLP}, 2\ns_cbranch_scc1 {l1}")
        A("\n".join(get(n_, 229 + i) for i, n_ in enumerate(("P1a", "P1b", "P1c", "P1d"))))
        n0 = vm.n; run(w1_jobs(1, 5, 0, vp=229), 9)
        while vm.n < n0 + 5: VM(f"buffer_load_dword v{vJUNK}, off, {WS}, 0")
        vm.n = n0
        A(f"s_branch {l2}\n{l1}:"); run(J["XT"](), 9); A(f"{l2}:")
    J["RS"] = lambda: [rsplit]
    S = 0; MK = 192
    def masks():
        A(f"v_lshlrev_b32 v{vT0}, 2, v{vHALF}\nv_sub_u32 v{vT0}, v{vL31}, v{vT0}\nv_mov_b32 v{vT1}, {NEG:#x}")
        mk = (62, 64, 80, 100) if not (stamps or meas) else (62, 64, 80, 82)
        for r in range(16):
            i0 = 8 * (r >> 2) + (r & 3)
            A(f"v_cmp_gt_i32 s[{mk[r&3]}:{mk[r&3]+1}], {i0}, v{vT0}")
            if r & 3 == 3:
                for q in range(4):
                    A(f"v_cndmask_b32 v{S+128+r-3+q}, 0, v{vT1}, s[{mk[q]}:{mk[q]+1}]")
                    A(f"v_cndmask_b32 v{S+r-3+q}, v{vT1}, 0, s[{mk[q]}:{mk[q]+1}]")
        if merge:
            A("s_mov_b32 s62, 0x07060302")
            for d in range(8): A(f"v_perm_b32 v{MK+d}, v{S+2*d+1}, v{S+2*d}, s62\nv_pk_ashrrev_i16 v{MK+d}, 15, v{MK+d} op_sel_hi:[0,1]")
    def kv_pass(vtype):
        sv = (vm.n, vm.done, lg.n, lg.done)
        mem = hjobs()[PRO:]
        mem += jobs(kvt); bulk = mem[28:] + jobs(qp); mem = mem[:28]
        tq = {}
        def ldq(s_):
            b = WB + 4 * (s_ % 8); tq[s_] = Tok()
            return [jDS(f"ds_read_b64_tr_b16 v[{b}:{b+1}], v{vWQ} offset:{1024*s_}"), jDS(f"ds_read_b64_tr_b16 v[{b+2}:{b+3}], v{vWQ} offset:{1024*s_+256}", tq[s_])]
        for s_ in range(28):
            vm.wait(th[s_].t); lg.wait(tw[s_].t)
            if s_ == 26: vm.wait(twq.t); barrier()
            b = WB + 8 * (s_ % 4)
            nx = ld(s_ + 3) if s_ + 3 < 28 else (ldq(2 * (s_ - 26)) + ldq(2 * (s_ - 26) + 1) if s_ >= 26 else [])
            for t in range(2):
                wf, hf = v(b + 4 * t, 4), v(4 * s_, 4)
                c = "0" if s_ == 0 else None
                if vtype: mfma(v(ACC + 16 * t, 16), hf, wf, c)
                else: mfma(v(ACC + 16 * t, 16), wf, hf, c)
                if t == 0:
                    run(mem, 1); run(nx, 1)
                else: run(nx, 3)
            if 'fine' in dbg and s_ in (0, 9, 18): stamp(f'k{s_}')
        stamp("kv")
        epi = []; last = Tok(); kva = KVV if (vtype and KVV is not None) else KVA
        for t in range(2):
            P = 192 + 8 * t
            for d in range(8):
                epi.append(f"v_cvt_pk_bf16_f32 v{P+d}, v{ACC+16*t+2*d}, v{ACC+16*t+2*d+1}")
                if vtype and d % 4 == 3: epi.append(jVM(f"buffer_store_dwordx4 v[{P+d-3}:{P+d}], v{vKS+t}, {WS}, s{sKVS} offen offset:{896*(d//4)} sc1", last))
                if not vtype and d % 2 == 1: epi.append(jVM(f"buffer_store_dwordx2 v[{P+d-1}:{P+d}], v{vKS+4*t+d//2}, {WS}, s{sKVS} offen sc1", last))
        for s_ in range(28):
            lg.wait(tq[s_].t)
            b = WB + 4 * (s_ % 8)
            mfma(v(ACC + 32, 16), v(b, 4), v(4 * s_, 4), "0" if s_ == 0 else None)
            if s_ + 4 < 28: run(ldq(s_ + 4), 2)
            if epi:
                if s_ >= (max(1, VD) if vtype else 1): run(epi, EB)
            elif s_ >= QB and (len(bulk) >= 28 - s_ or s_ % 2 == 0): run(bulk, 1)
            if s_ == 8: barrier()
            if s_ == kva: vm.wait(last.t); flag(sFKV, slow=True)
        run(bulk, 99)
        A(f"s_mov_b32 s61, {QSCALE:#x}")
        for d in range(8):
            A(f"v_mul_f32 v{ACC+32+2*d}, s61, v{ACC+32+2*d}\nv_mul_f32 v{ACC+33+2*d}, s61, v{ACC+33+2*d}\nv_cvt_pk_bf16_f32 v{208+d}, v{ACC+32+2*d}, v{ACC+33+2*d}")
            if d % 2 == 1: tQ.t = VM(f"buffer_store_dwordx2 v[{207+d}:{208+d}], v{vQS+d//2}, {WS}, s{sQS} offen")
        stamp("q")
        if kva > 27: vm.wait(last.t); flag(sFKV, slow=True)
        stamp("kvpub")
        if mlate == 'q': masks()
        vm.wait(tQ.t); flag(sFQ)
        stamp("qpub")
        vm.n, vm.done, lg.n, lg.done = sv
    A(f"s_cmp_ge_u32 s{sJ}, 7\ns_cbranch_scc1 L_kvV")
    e0 = kv_pass(False)
    A("s_branch L_kvE\nL_kvV:")
    e1 = kv_pass(True)
    A("L_kvE:")
    vm.n = vm.done = 0; lg.n = lg.done = 0
    def wo_half(second):
        return dma_jobs(WO, vPAN, 896, 8, f"""s_bitcmp{1 if second else 0}_b32 s{sR4}, 0
        s_cselect_b32 s65, 0, 7168
        s_add_u32 s65, s65, s{sWOL}
        s_mov_b32 m0, s65
        s_mul_i32 s{sSRC}, s65, 7
        s_add_u32 s{sSRC}, s{sSRC}, s{sCOL}""")
    slot = {}; nxt = [0]; nb1 = [5 if 'RS' in used else 0]; na1 = [0]
    def wa_(n):
        na1[0] += n; return w1_jobs(0, n, 4 * (na1[0] - n), shift=True)
    def stage(k):
        assert k not in slot
        slot[k] = (nxt[0], Tok()); nxt[0] += 1
        return w2_dma(slot[k][0], sEX, BLK * k, slot[k][1])
    def wb(n):
        nb1[0] += n; return w1_jobs(1, n, 4 * (nb1[0] - n))
    def zfill(k):
        return [jVM(f"buffer_load_dword v{vJUNK}, v{vT3}, {W2}, s65 offen", None, f"""s_and_b32 s66, s{sG}, 1
        s_xor_b32 s66, s66, {k&1}
        s_lshl_b32 s66, s66, 2
        s_add_u32 s66, s66, s{sW}
        s_mul_i32 s66, s66, 7168
        s_mul_i32 s65, s{sJ}, 114688
        s_add_u32 s65, s65, s66
        s_bitcmp{0 if k >> 1 else 1}_b32 s{sJ}, 1
        s_cselect_b32 s66, 57344, 0
        s_add_u32 s65, s65, s66
        v_min_u32 v{vT3}, 55, v{vL}
        v_lshlrev_b32 v{vT3}, 7, v{vT3}""")]
    J.update({f"Z{k}": (lambda k=k: zfill(k)) for k in range(4)}); J["_"] = lambda: [lambda: None]
    J["XU"] = lambda: [jVM(f"global_load_dwordx2 a[{aB2}:{aB2+1}], v{vT3}, s[42:43]", None, f"s_lshl_b32 s65, s{sCT}, 6\nv_and_b32 v{vT3}, 7, v{vL}\nv_lshl_add_u32 v{vT3}, v{vT3}, 3, s65"),
                       jVM(f"buffer_load_dwordx4 v{vT3}, {X}, s65 offen lds", None, f"{get('XA', vT3)}\ns_and_b32 s65, s{sTO}, 0xfe\ns_lshl_b32 s65, s65, 1\ns_add_u32 s65, s65, s{sW}\ns_mul_i32 s65, s65, 14336\ns_add_u32 s65, s65, s{sCOL}\ns_lshl_b32 s66, s{sW}, 11\ns_add_u32 m0, s66, {L_XT}"),
                       jVM(f"buffer_load_dwordx4 v{vT3}, {X}, s65 offen offset:1024 lds", None, "s_add_u32 s65, s65, 6144"),
                       jVM(f"buffer_load_dwordx4 v{vT3}, {X}, s65 offen lds", None, f"s_add_u32 m0, m0, 8192\ns_add_u32 s65, s65, {114688-6144}"),
                       jVM(f"buffer_load_dwordx4 v{vT3}, {X}, s65 offen offset:1024 lds", None, "s_add_u32 s65, s65, 6144")]
    J['B2'] = lambda: J['XU']()[:1]
    vNU = 228
    J.update(O0=lambda: wo_half(0), O1=lambda: wo_half(1), **{f'Wa{n}': (lambda n=n: wa_(n)) for n in range(1, 11)},
             NU=lambda: [jVM(f"buffer_load_dwordx4 v[{vNU}:{vNU+3}], v232, {WS}, s{sNUS} offen sc1")],
             **{f"Wb{n}": (lambda n=n: wb(n)) for n in range(1, 11)}, **{f"S{k}": (lambda k=k: stage(k)) for k in range(9)})
    A(f"s_cmp_eq_u32 s{sHLP}, 2\ns_cbranch_scc1 L_p42")
    if p41: A(getP1)
    run(jobs(p41), 99)
    A("s_branch L_att\nL_p42:")
    run(jobs(p42), 99)
    A("s_branch L_att")
    A("L_help:")
    A("s_waitcnt vmcnt(0)")
    flag(46)
    A(f"""s_lshl_b32 s85, s{sHI}, 2
    s_add_u32 s85, s85, s{sW}
    s_mul_i32 s61, s85, 896
    s_add_u32 s61, s61, {FKV}
    v_min_u32 v11, 6, v{vL}
    v_lshlrev_b32 v11, 7, v11""")
    if fkt: A(f"buffer_load_dword v{vJUNK}, v11, {WS}, s61 offen sc1")
    run(jobs(hp1, HJ), 99)
    A(panel_addr(4, 5376, "mod"))
    nuj = dma_jobs(WMOD, 4, 5376, 14, f"s_add_u32 s62, s{sHI}, 14\ns_lshl_b32 s{sSRC}, s62, 7\ns_mul_i32 s63, s{sW}, {112*5376}\ns_add_u32 s{sSRC}, s{sSRC}, s63\ns_cmp_eq_u32 s{sG}, 7\ns_cselect_b32 s{sSRC}, {OOB}, s{sSRC}\ns_mul_i32 s63, s{sW}, 14336\ns_add_u32 m0, s63, {L_B}")
    run(nuj, 8)
    A(roles); A(prepA)
    if 'QP' in used: run(jobs('QP'), 9)
    run(nuj, 99)
    A(f"s_mov_b32 s{sW1D}, {OOB}\ns_mov_b32 s{sW1C}, {OOB}\ns_mov_b32 s{sSTA}, {L_P1}\ns_cmp_eq_u32 s{sG}, 7\ns_cbranch_scc1 L_hn")
    A(panel_addr(4, 3584, "mod"))
    w1h = dma_jobs(W1, 4, 3584, 14, f"s_lshl_b32 s{sSRC}, s{sHI}, 7\ns_mul_i32 s63, s{sW}, {112*3584}\ns_add_u32 s{sSRC}, s{sSRC}, s63\ns_mul_i32 m0, s{sW}, 14336")
    run(w1h, 8)
    A(f"v_add_u32 v21, {L_SILU}, v22\ns_waitcnt vmcnt(8)")
    barrier()
    def gemv14(va, vb):
        lg.n = lg.done = 0
        toks = []
        def gemv_ld(s_):
            b = 32 + 8 * (s_ % 5)
            DS(f"ds_read_b128 v[{b}:{b+3}], v{va} offset:{64*s_}")
            DS(f"ds_read_b64_tr_b16 v[{b+4}:{b+5}], v{vb} offset:{4096*s_}")
            toks.append(DS(f"ds_read_b64_tr_b16 v[{b+6}:{b+7}], v{vb} offset:{4096*s_+2048}"))
        for s_ in range(4): gemv_ld(s_)
        for s_ in range(14):
            lg.wait(toks[s_])
            b = 32 + 8 * (s_ % 5)
            A(f"v_mfma_f32_16x16x32_bf16 v[24:27], v[{b}:{b+3}], v[{b+4}:{b+7}], {'0' if s_ == 0 else 'v[24:27]'}")
            if s_ + 4 < 14: gemv_ld(s_ + 4)
    gemv14(21, 20)
    A(f"""s_sub_u32 s61, s{sHI}, 14
    s_cmp_lt_u32 s61, 7
    s_cselect_b32 s62, 1.0, 0
    s_lshl_b32 s61, s{sHI}, 8
    s_lshl_b32 s63, s{sW}, 6
    s_add_u32 s61, s61, s63
    s_add_u32 s61, s61, {NU}
    v_lshlrev_b32 v23, 2, v{vL}
    v_cvt_pk_bf16_f32 v24, v24, v24
    v_and_b32 v24, 0xffff0000, v24
    v_add_f32 v24, s62, v24
    v_mov_b32 v29, s{sTAG}
    v_mov_b32_dpp v25, v24 quad_perm:[1,0,3,2] row_mask:0xf bank_mask:0xf
    v_cvt_pk_bf16_f32 v28, v24, v25
    s_mov_b64 exec, 0x5555
    buffer_store_dwordx2 v[28:29], v23, {WS}, s61 offen sc1
    s_mov_b64 exec, -1""")
    run(w1h, 99)
    A("s_branch L_hn2\nL_hn:\ns_waitcnt vmcnt(0)\nL_hn2:")
    barrier()
    A(kpad)
    A(f"""s_mul_i32 s61, s85, 1792
    s_add_u32 s61, s61, {STATS}
    v_min_u32 v11, 13, v{vL}
    v_lshlrev_b32 v11, 7, v11
    buffer_load_dword v{vJUNK}, v11, {WS}, s61 offen sc1""")
    run(jobs(hp2, HJ), 99)
    if mlate == 'q': masks()
    if hq:
        A(f"{get('PA', vT3)}\nv_readlane_b32 s61, v{vT3}, 12\nv_readlane_b32 s62, v{vT3}, 13\nv_mov_b32 v{vT3}, s61\nv_writelane_b32 v{vT3}, s62, 1")
        poll(vT3, "0")
    A("L_att:")
    if stop <= 2: return done()

    S = 0; QF = 144; KB = 152; OA = 184; VB = 200; MK = 192
    vKA, vVA, vVS, vQA, vMX = 216, 217, 218, 219, 226
    vm.n = vm.done = 0; lg.n = lg.done = 0
    A(f"{get('PA', vT3)}\n{get('QA', vQA)}\n{get('VS', vVS)}")
    if not mlate: masks()
    if not wlate: warmbc()
    stamp("pre1")
    if VD:
        A(f"""v_cmp_gt_u32 vcc, 12, v{vL}
        v_bfe_u32 v{vT0}, v{vL}, 1, 1
        v_mul_u32_u24 v{vT0}, 896, v{vT0}
        v_mov_b32 v221, v{vT3}
        v_cndmask_b32 v{vT0}, 0, v{vT0}, vcc
        v_sub_u32 v{vT3}, v{vT3}, v{vT0}""")
        V1 = V2 = 0
    poll(vT3, "0")
    if stamps: A(f"v_writelane_b32 v{vST}, s{sCNT}, 62")
    stamp("S1")
    if qfirst:
        for i in range(4):
            tq = VM(f"buffer_load_dwordx2 v[{QF+2*i}:{QF+2*i+1}], v{vQA}, {WS}, s{sQO} offen offset:{1024*(i>>1)+256*(i&1)} sc1")
    for q in range(3):
        A(f"s_add_u32 m0, s{sLK}, {2048*q}")
        VM(f"buffer_load_dwordx4 v{vL16}, {WS}, s{sK0+q} offen sc1 lds")
    A("s_mov_b32 exec_hi, 0xffff")
    for q in range(3):
        A(f"s_add_u32 m0, s{sLK}, {2048*q}")
        VM(f"buffer_load_dwordx4 v{vL16}, {WS}, s{sK0+q} offen offset:1024 sc1 lds")
    A("s_mov_b64 exec, -1")
    if not qfirst:
        for i in range(4):
            tq = VM(f"buffer_load_dwordx2 v[{QF+2*i}:{QF+2*i+1}], v{vQA}, {WS}, s{sQO} offen offset:{1024*(i>>1)+256*(i&1)} sc1")
    tq = vm.n
    if VD: tlv = Tok(); look(tlv, 221, None, 0)()
    barrier()
    A("s_mov_b32 exec_lo, 0x0fffffff\ns_mov_b32 exec_hi, 0x0fffffff")
    vj = []
    for q in range(3):
        vj.append(jVM(f"buffer_load_dwordx4 v{vVS}, {WS}, s61 offen sc1 lds", None, f"s_add_u32 m0, s{sLK}, {L_V-L_K+2048*q}\ns_add_u32 s61, s{sK0+q}, {VG-KG}"))
        tv = Tok(); vj.append(jVM(f"buffer_load_dwordx4 v{vVS}, {WS}, s62 offen offset:1024 sc1 lds", tv, f"s_add_u32 s62, s{sK0+q}, {VG-KG-128}"))
    run(vj, V1)
    A(f"""s_not_b64 exec, exec
    v_mov_b32 v152, 0x3f803f80
    v_mov_b32 v153, v152
    v_mov_b32 v154, v152
    v_mov_b32 v155, v152
    v_add_u32 v184, s{sLK}, v{vL16}""")
    for i in range(6): DS(f"ds_write_b128 v184, v[152:155] offset:{L_V-L_K+1024*i}")
    A("s_mov_b64 exec, -1")
    if wlate is True: warmbc(kw2)
    elif kw2 and not wlate:
        A(f"s_cmp_lg_u32 s{sHLP}, 2\ns_cbranch_scc1 L_we"); run(jobs(kw2), 99); A("L_we:")
    if mlate is True: masks()
    A(f"""{get('KA', vKA)}
    {get('NU', 232)}
    {get('P1a', vP1)}
    {get('P1b', vP1+1)}
    {get('P1c', vP1+2)}
    {get('P1d', vP1+3)}
    s_lshl_b32 s61, s{sW}, 11
    s_add_u32 s61, s61, {L_V}
    v_add_u32 v{vVA}, s61, v{vL16}
    v_mov_b32 v{vT0}, 0x3f80
    v_cmp_eq_u32 vcc, 0, v{vHALF}
    s_mov_b32 exec_lo, 0x0fffffff
    s_mov_b32 exec_hi, 0x0fffffff""")
    run(vj, V2)
    lg.all()
    vm.wait(tq)
    if VD:
        A("s_mov_b64 exec, -1"); check(tlv, 221, None, 0)
        A(f"v_cmp_eq_u32 vcc, 0, v{vHALF}\ns_mov_b32 exec_lo, 0x0fffffff\ns_mov_b32 exec_hi, 0x0fffffff")
    run(vj, 9)
    A("s_mov_b64 exec, -1")
    A(f"v_cndmask_b32 v{QF+6}, v{vT0}, v{QF+6}, vcc\nv_cndmask_b32 v{QF+7}, 0, v{QF+7}, vcc")
    barrier()
    stamp("Kin")
    svA = (vm.n, vm.done, lg.n, lg.done)
    def att_core(mem1):
        vm.n, vm.done, lg.n, lg.done = svA
        order = [0, 8, 1, 2, 3, 4, 5, 6, 7] if merge else list(range(9))
        tk = []
        def ldk(k):
            n = order[k]; b = KB + 8 * (k % 4)
            for i in range(4): t_ = DS(f"ds_read_b64 v[{b+2*i}:{b+2*i+1}], v{vKA} offset:{2048*n+1024*(i>>1)+256*(i&1)}")
            tk.append(t_)
        for k in range(3): ldk(k)
        run(mem1, 3)
        first = [True]
        def mx(n):
            r_ = []
            for r in range(0, 16, 2):
                r_.append(f"v_max_f32 v{vMX}, v{S+16*n}, v{S+16*n+1}" if first[0] else f"v_max3_f32 v{vMX}, v{vMX}, v{S+16*n+r}, v{S+16*n+r+1}"); first[0] = False
            return r_
        mrg = [f"v_max_f32 v{S+r}, v{S+r}, v{S+128+r}" for r in range(16)]
        m_ = []
        for k in range(9):
            n = order[k]
            lg.wait(tk[k])
            b = KB + 8 * (k % 4)
            if merge:
                if k == 3: m_ += mrg + mx(0)
                if k >= 4: m_ += mx(order[k - 2])
            elif k >= 2: m_ += mx(k - 2)
            mfma(v(S + 16 * n, 16), v(b, 4), v(QF, 4), None if n in (0, 8) else "0")
            if k + 3 < 9: ldk(k + 3); run(m_, 2)
            else: run(mem1, 1); run(m_, 4)
            mfma(v(S + 16 * n, 16), v(b + 4, 4), v(QF + 4, 4))
            if k < 2: run(mem1, 1)
            run(m_, 6 if not merge else 7)
        tvv = {}
        pv = ([(0, 0), (0, 1), (8, 0), (8, 1)] + [(n, s_) for n in range(1, 8) for s_ in range(2)]) if merge else [(n, s_) for n in range(9) for s_ in range(2)]
        def ldv(k):
            n = pv[2 * k][0]; b = VB + 8 * (k % 2)
            DS(f"ds_read_b128 v[{b}:{b+3}], v{vVA} offset:{2048*n}")
            tvv[k] = DS(f"ds_read_b128 v[{b+4}:{b+7}], v{vVA} offset:{2048*n+1024}")
        def vbar():
            vm.wait(tv.t); barrier(); ldv(0); ldv(1)
        if VBAR == 0: vbar()
        ON, MB = 160, 164
        run(m_, 99); run(mx(order[7]), 9)
        A(f"v_mov_b32 v{vT1}, 0x3f803f80\nv_cndmask_b32 v{ON}, 0, v{vT1}, vcc\nv_cndmask_b32 v{ON+1}, 0, v{vT0}, vcc\nv_mov_b32 v{ON+2}, 0\nv_mov_b32 v{ON+3}, 0\nv_mov_b32 v{MB+2}, 0\nv_mov_b32 v{MB+3}, 0")
        run(mem1, 1); run(mx(order[8]), 9)
        A(f"v_mov_b32 v{vT0}, v{vMX}\nv_permlane32_swap_b32 v{vMX}, v{vT0}\nv_max_f32 v{vMX}, v{vMX}, v{vT0}")
        stamp("qk")
        for i in range(8):
            A(f"v_pk_add_f32 v[{S+2*i}:{S+2*i+1}], v[{S+2*i}:{S+2*i+1}], v[{vMX}:{vMX+1}] op_sel_hi:[1,0] neg_lo:[0,1] neg_hi:[0,1]")
        A(f"""v_and_b32 v{vT0}, 0xffff0000, v{vMX}
        v_sub_f32 v{vT1}, v{vMX}, v{vT0}
        v_and_b32 v{vT2}, 0xffff0000, v{vT1}
        v_sub_f32 v{vT1}, v{vT1}, v{vT2}
        v_cvt_pk_bf16_f32 v{MB}, -v{vT0}, -v{vT2}
        v_cvt_pk_bf16_f32 v{MB+1}, -v{vT1}, 0""")
        mfma(v(S + 16, 16), v(ON, 4), v(MB, 4))
        if VBAR == 1: vbar()
        def soft(n, s_, mid=None):
            r0 = S + 16 * n + 8 * s_
            for e in range(8):
                A(f"v_exp_f32 v{r0+e}, v{r0+e}")
                if e == 3 and mid: mid()
            for e in range(4): A(f"v_cvt_pk_bf16_f32 v{r0+e}, v{r0+2*e}, v{r0+2*e+1}")
            if merge and n == 0:
                for e in range(4): A(f"v_and_b32 v{r0+128+e}, v{MK+4*s_+e}, v{r0+e}\nv_xor_b32 v{r0+e}, v{r0+e}, v{r0+128+e}")
        NT = 8 if merge else 9
        sq = [(n, s_) for n in range(NT) for s_ in range(2)]
        done_ = set(); ip = [0]
        def pvm():
            k = ip[0]; n, s_ = pv[k]; ip[0] += 1
            if s_ == 0: lg.wait(tvv[k >> 1])
            mfma(v(OA, 16), v(VB + 8 * ((k >> 1) % 2) + 4 * s_, 4), v(S + 16 * n + 8 * s_, 4), "0" if k == 0 else None)
            if s_ == 1 and (k >> 1) + 2 < 9: ldv((k >> 1) + 2)
        soft(0, 0)
        if VBAR == 2: vbar()
        for i in range(2 * NT):
            n, s_ = sq[i]
            mid = (lambda: mfma(v(S + 16 * (n + 2), 16), v(ON, 4), v(MB, 4))) if (s_ == 1 and n + 2 < NT) else None
            if merge and i in (2, 4): mid = pvm
            if i + 1 < 2 * NT: soft(*sq[i + 1], mid)
            pvm()
            run(mem1, AR)
        assert ip[0] == 18
        assert not mem1
        A(f"""v_mov_b32 v{vT0}, v{OA+12}
        v_mov_b32 v{vT1}, v{OA+12}
        v_permlane32_swap_b32 v{vT0}, v{vT1}
        v_rcp_f32 v{vT1}, v{vT1}""")
        for d in range(8):
            A(f"v_pk_mul_f32 v[{OA+2*d}:{OA+2*d+1}], v[{OA+2*d}:{OA+2*d+1}], v[{vT1}:{vT1+1}] op_sel_hi:[1,0]\nv_cvt_pk_bf16_f32 v{KB+d}, v{OA+2*d}, v{OA+2*d+1}")
            if d >= 6: A(f"v_cndmask_b32 v{KB+d}, 0, v{KB+d}, vcc")
            if d % 4 == 3: to = VM(f"buffer_store_dwordx4 v[{KB+d-3}:{KB+d}], v{vL16}, {WS}, s{sQO} offen offset:{1024*(d//4)}")
        stamp("att")
        return to
    A(f"s_cmp_eq_u32 s{sHLP}, 2\ns_cbranch_scc1 L_at2")
    A("L_at1:")
    to = att_core(jobs(at1)); assert nb1[0] <= 10
    A(f"s_cmp_eq_u32 s{sHLP}, 1\ns_cbranch_scc1 L_hu0")
    main = A.lines; A.lines = []; hist = A.hist; A.hist = []
    A("L_hu0:\ns_waitcnt vmcnt(0)")
    sv2 = (vm.n, vm.done, lg.n, lg.done); flag(sFO)
    A(f"""s_lshl_b32 s61, s{sW}, 6
    v_add_u32 v4, s61, v{vL}
    v_add_u32 v5, 256, v4
    v_min_u32 v5, 447, v5
    s_lshl_b32 s85, s{sHI}, 2
    s_add_u32 s85, s85, s{sW}
    s_min_u32 s62, s85, 111
    s_lshl_b32 s62, s62, 5
    v_and_b32 v16, 15, v{vL}
    v_lshl_add_u32 v17, v16, 1, s62
    global_load_ushort v18, v17, s[40:41]""")
    for r, d in ((4, 6), (5, 7)):
        A(f"""v_and_b32 v{d}, 0x1f8, v{r}
        v_and_b32 v{vT0}, 3, v{r}
        v_lshl_add_u32 v{d}, v{vT0}, 1, v{d}
        v_bfe_u32 v{vT0}, v{r}, 2, 1
        v_add_lshl_u32 v{d}, v{d}, v{vT0}, 3
        v_add_u32 v{d}, {L_VEC}, v{d}
        v_lshlrev_b32 v{r}, 4, v{r}""")
    A(f"""s_mov_b32 s{sCNT}, 0
    s_mov_b32 s61, {NU}
    L_nu:
    buffer_load_dwordx4 v[8:11], v4, {WS}, s61 offen sc1
    buffer_load_dwordx4 v[12:15], v5, {WS}, s61 offen sc1
    s_add_u32 s{sCNT}, s{sCNT}, 1
    s_waitcnt vmcnt(0)
    v_cmp_ne_u32 vcc, s{sTAG}, v9
    v_cmp_ne_u32 s[62:63], s{sTAG}, v11
    v_cmp_ne_u32 s[64:65], s{sTAG}, v13
    v_cmp_ne_u32 s[82:83], s{sTAG}, v15
    s_or_b64 vcc, vcc, s[62:63]
    s_or_b64 s[64:65], s[64:65], s[82:83]
    s_or_b64 vcc, vcc, s[64:65]
    s_cbranch_vccz L_nud
    s_cmp_lt_u32 s{sCNT}, {SPIN}
    s_cbranch_scc1 L_nu
    L_nud:
    v_mov_b32 v9, v10
    v_mov_b32 v13, v14
    ds_write_b64 v6, v[8:9]
    ds_write_b64 v7, v[12:13]
    v_lshrrev_b32 v20, 2, v{vL}
    v_bfe_u32 v21, v{vL}, 3, 2
    v_xor_b32 v21, s{sW}, v21
    v_lshlrev_b32 v21, 5, v21
    v_lshl_add_u32 v20, v20, 7, v21
    v_and_b32 v21, 3, v{vL}
    v_lshl_add_u32 v20, v21, 3, v20
    v_add_u32 v20, {L_P0}, v20
    v_and_b32 v21, 1, v{vL}
    v_mul_u32_u24 v21, 896, v21
    v_and_b32 v22, 48, v{vL}
    v_sub_u32 v21, v22, v21
    v_add_u32 v21, {L_VEC+1792}, v21
    s_waitcnt lgkmcnt(0)""")
    barrier()
    A(f"""s_cmp_lg_u32 s{sG}, 7
    s_cbranch_scc1 L_hu
    s_cmp_lg_u32 s85, 112
    s_cbranch_scc1 L_hz
    s_mov_b64 exec, 1
    buffer_store_dword v{vTAG}, off, {WS}, 0 sc1
    s_mov_b64 exec, -1
    s_branch L_hz
    L_hu:""")
    gemv14(21, 20)
    A(f"""v_lshlrev_b32 v18, 16, v18
    s_lshl_b32 s61, s85, 8
    s_add_u32 s61, s61, {AUG}
    v_mov_b32 v31, s{sTAG}
    v_add_f32 v25, v25, v18
    v_cvt_pk_bf16_f32 v29, v24, v25
    v_lshlrev_b32 v26, 16, v29
    v_and_b32 v27, 0xffff0000, v29
    v_sub_f32 v24, v24, v26
    v_sub_f32 v25, v25, v27
    v_cvt_pk_bf16_f32 v28, v26, v24
    v_cvt_pk_bf16_f32 v30, v25, v27
    s_mov_b64 exec, 0xffff
    buffer_store_dwordx4 v[28:31], v{vL16}, {WS}, s61 offen sc1
    s_mov_b64 exec, -1
    L_hz:""")
    run(jobs(hz, HJ), 99)
    A("s_branch L_fin")
    tail.append(("raw", A.lines)); A.lines = main; A.hist = hist
    vm.n, vm.done, lg.n, lg.done = sv2

    vm.wait(to); flag(sFO); stamp("opub")
    barrier()
    assert na1[0] <= 10
    run(w1_jobs(1, 14 - nb1[0], 4 * nb1[0]), 99)
    wa = w1_jobs(0, 14 - na1[0], 4 * na1[0]); run(wa, 2)
    vSTA, vFY, vRS, vRA, vTA = 229, 228, 226, vT2, vT3
    sFYP, sYL, sRS, sFD, sSTL, sHST, sAU0, sAU1, sHC = 82, 83, 84, 85, 87, 88, 89, 90, 86
    ACC = 112; WB = 176; AU = 248; BA = (240, 232)
    A(f"""v_min_u32 v{vFY}, 13, v{vL}
    v_lshlrev_b32 v{vFY}, 2, v{vFY}
    s_lshl_b32 s62, s{sW}, 6
    s_add_u32 s62, s62, s{sCTL}
    s_add_u32 s{sFYP}, s62, {C_FY}
    s_lshl_b32 s62, s{sW}, 8
    s_add_u32 s62, s62, s{sCTL}
    s_lshl_b32 s63, s{sJ}, 2
    s_add_u32 s62, s62, s63
    s_add_u32 s{sFD}, s62, {C_FD}
    s_mul_i32 s{sRS}, s{sTQ}, 14
    s_add_u32 s{sRS}, s{sRS}, s{sJ}
    s_lshl_b32 s{sRS}, s{sRS}, 7
    s_add_u32 s{sRS}, s{sRS}, {RS2}
    s_mul_i32 s{sYL}, s{sTQ}, 28672
    s_mul_i32 s{sSTL}, s{sTQ}, 3584
    s_add_u32 s{sSTL}, s{sSTL}, {STATS}
    s_mul_i32 s{sHST}, s{sTQ}, 114688
    s_lshl_b32 s62, s{sW1C}, 5
    s_add_u32 s{sHST}, s{sHST}, s62
    s_add_u32 s{sHST}, s{sHST}, {HID}
    s_lshl_b32 s61, s{sW1C}, 3
    s_add_u32 s{sAU0}, s61, {AUG}
    s_xor_b32 s61, s61, 1024
    s_add_u32 s{sAU1}, s61, {AUG}
    v_lshlrev_b32 v{vSTA}, 11, v{vHALF}
    v_lshl_add_u32 v{vSTA}, v{vL31}, 4, v{vSTA}
    v_lshlrev_b32 v{vSTA+1}, 30, v{vHALF}
    v_add_u32 v{vSTA+1}, v{vSTA+1}, v{vSTA}
    v_add_u32 v{vT0}, {L_P1}, v{vTP0}
    v_add_u32 v{vT1}, {L_P1}, v{vTP1}
    v_cmp_eq_u32 s[80:81], 0, v{vHALF}
    v_lshlrev_b32 v{vRA}, 2, v{vL31}
    v_lshlrev_b32 v{vTA}, 7, v{vL31}""")
    for b_ in BA: A(f"v_accvgpr_write_b32 a{b_+3}, 0\nv_accvgpr_write_b32 a{b_+7}, 0")
    augl = f"buffer_load_dwordx4 v[144:147], v{vL16}, {WS}, s{sAU0} offen sc1\nbuffer_load_dwordx4 v[148:151], v{vL16}, {WS}, s{sAU1} offen sc1"
    run(wa, 99); tw1 = vm.n
    run(jobs(f1f), 99); A(f"v_lshlrev_b32 v{vTA}, 7, v{vL31}")
    hoff = lambda p: f"s_xor_b32 s{sHC}, s{sHST}, {4096*(p&1)}" + (f"\ns_add_u32 s{sHC}, s{sHC}, {4*114688}" if p > 1 else "")
    for p in map(int, plain):
        A(hoff(p)); VM(f"buffer_load_dword v{vPAN}, v{vTA}, {WS}, s{sHC} offen sc1")
    vm.wait(tw1)
    barrier()
    stamp("w1in")
    for l_ in lines(augl): VM(l_)
    NA = 7; WA = (112, 168)
    wad = lambda pn, t: (vTP0 - t) if pn == 0 else (vT0 + t)
    for pn in range(2):
        for s_ in range(NA):
            for t in range(2):
                for p in range(2): twa = DS(f"ds_read_b64_tr_b16 a[{WA[pn]+8*s_+4*t+2*p}:{WA[pn]+8*s_+4*t+2*p+1}], v{wad(pn, t)} offset:{2048*s_+1024*p}")
    tw = {}
    def ld1(n):
        pn, t, s_ = (n // 56) & 1, n & 1, (n % 56) >> 1; b = WB + 4 * (n % 8)
        if s_ < NA: return []
        tw[n] = Tok()
        return [jDS(f"ds_read_b64_tr_b16 v[{b}:{b+1}], v{wad(pn, t)} offset:{2048*s_}"), jDS(f"ds_read_b64_tr_b16 v[{b+2}:{b+3}], v{wad(pn, t)} offset:{2048*s_+1024}", tw[n])]
    stamp("pre3")
    poll(vFY, f"s{sFYP}")
    stamp("S3")
    ty = {}; ts = [Tok(), Tok()]
    def yj(rd_):
        js = []
        for s_ in range(28):
            ty[rd_, s_] = Tok()
            pre = f"s_add_u32 s{sYL}, s{sYL}, {114688-24576}" if (rd_ and s_ == 0) else (f"s_add_u32 s{sYL}, s{sYL}, 4096" if (s_ % 4 == 0 and s_) else None)
            js.append(jVM(f"buffer_load_dwordx4 {'va'[rd_]}[{4*s_}:{4*s_+3}], v{vL16}, {OUT}, s{sYL} offen offset:{1024*(s_%4)} sc1", ty[rd_, s_], pre))
        return js
    SB = (160, 0)
    def stl(rd_): return [jVM(f"buffer_load_dwordx4 v[{SB[rd_]+4*i}:{SB[rd_]+4*i+3}], v{vSTA+(i==3)}, {WS}, s{sSTL} offen offset:{512*i} sc1", ts[rd_], f"s_add_u32 s{sSTL}, s{sSTL}, {4*3584}" if (rd_ and i == 0) else None) for i in range(4)]
    mem = yj(0); run(mem, PRO); lg.wait(twa)
    def augchk():
        A(f"""s_mov_b32 s{sCNT}, 0
        L_au:
        v_cmp_ne_u32 vcc, s{sTAG}, v147
        v_cmp_ne_u32 s[62:63], s{sTAG}, v151
        s_or_b64 vcc, vcc, s[62:63]
        s_cbranch_vccnz L_aur
        L_aud:""")
        tail.append(f"""L_aur:
        s_add_u32 s{sCNT}, s{sCNT}, 1
        s_cmp_ge_u32 s{sCNT}, {SPIN}
        s_cbranch_scc1 L_aud
        {augl}
        s_waitcnt vmcnt(0)
        s_branch L_au""")
    augmv = [f"v_accvgpr_write_b32 a{AU+r}, {'0' if r % 4 == 3 else 'v%d' % (144 + r)}" for r in range(8)]
    def stat_list(rd_):
        b = SB[rd_]
        st = [f"v_add_f32 v{208+i}, v{b+4*(i>>1)+(i&1)}, v{b+4*(i>>1)+(i&1)+2}" for i in range(8)]
        st += lines(f"""v_add_f32 v208, v208, v210
        v_add_f32 v209, v209, v211
        v_add_f32 v212, v212, v214
        v_add_f32 v213, v213, v215
        v_add_f32 v208, v208, v212
        v_add_f32 v209, v209, v213
        v_mov_b32 v210, v208
        v_mov_b32 v211, v209
        v_permlane32_swap_b32 v208, v210
        v_permlane32_swap_b32 v209, v211
        v_add_f32 v208, v208, v210
        v_add_f32 v209, v209, v211
        v_mul_f32 v208, 0xbb124925, v208
        v_mul_f32 v209, 0x3b124925, v209
        v_fma_f32 v209, -v208, v208, v209
        v_max_f32 v209, 0, v209
        v_add_f32 v209, 0x3727c5ac, v209
        v_rcp_f32 v{vRS+rd_}, v209
        v_sqrt_f32 v209, v209
        v_cvt_pk_bf16_f32 v213, v208, v208
        v_cvt_pk_bf16_f32 v210, v209, v209
        v_and_b32 v211, 0xffff0000, v213
        v_and_b32 v210, 0xffff0000, v210
        v_sub_f32 v211, v208, v211
        v_sub_f32 v212, v209, v210
        v_cvt_pk_bf16_f32 v214, v211, v210
        v_cvt_pk_bf16_f32 v215, v210, v212""")
        for r in range(3): st += [f"v_cndmask_b32 v{216+r}, 0, v{213+r}, s[80:81]", f"v_cndmask_b32 v{219+r}, v{213+r}, 0, s[80:81]"]
        for r in range(3): st += [f"v_accvgpr_write_b32 a{BA[rd_]+r}, v{216+r}", f"v_accvgpr_write_b32 a{BA[rd_]+4+r}, v{219+r}"]
        return st
    def epi_list(p, last):
        e = [f"s_xor_b32 s{sHC}, s{sHST}, {4096*(p&1)}"] if p < 2 else [f"s_xor_b32 s{sHC}, s{sHST}, {4096*(p&1)}", f"s_add_u32 s{sHC}, s{sHC}, {4*114688}"]
        for t in range(2):
            c = ACC + 32 * (p & 1) + 16 * t
            for d in range(8):
                r = c + 2 * d; q = 208 + 8 * t + d
                e += [f"v_mul_f32 v{r}, v{r}, abs(v{r})", f"v_mul_f32 v{r+1}, v{r+1}, abs(v{r+1})", f"v_cvt_pk_bf16_f32 v{q}, v{r}, v{r+1}", f"v_pk_max_i16 v{q}, v{q}, 0"]
                if d % 4 == 3: e.append(jVM(f"buffer_store_dwordx4 v[{205+8*t+d}:{208+8*t+d}], v{vL16}, {WS}, s{sHC} offen offset:{2048*t+1024*(d//4)}{'' if str(p) in plain else ' sc1'}", last))
        return e
    def publish(p, last):
        vm.wait(last.t)
        A(f"s_add_u32 s79, s{sFD}, {1024*(p>>1)+64*(p&1)}"); flag(79)
        if str(p) in RT and str(p) not in plain: VM(f"buffer_load_dword v{vPAN}, v{vTA}, {WS}, s{sHC} offen sc1")
        stamp(f"pub{p}")
    mem = mem[:STP] + stl(0) + mem[STP:]
    ST0 = 2 * (STP + PRO); assert ST0 <= 34
    side = []; urgent = []; dq = []; last = [Tok() for _ in range(4)]; pubat = None; tl_ = Tok(); mem2 = []; pub_done = False
    held = 0
    for n in range(224):
        p, m_ = divmod(n, 56); rd_ = p >> 1; t, s_ = m_ & 1, m_ >> 1
        if m_ == 0 and p:
            assert not urgent
            if p & 1: run(side, 99)
            for t2 in range(2): mfma(v(ACC + 32 * ((p - 1) & 1) + 16 * t2, 16), a(AU + 4 * ((p - 1) & 1), 4), a(BA[(p - 1) >> 1] + 4 * t2, 4))
            if p & 1:
                if p == 3: A(f"s_add_u32 s{sRS}, s{sRS}, {4*14*128}")
                VM(f"buffer_store_dword v{vRS+rd_}, v{vRA}, {WS}, s{sRS} offen sc1")
            stamp(f"p{p-1}")
        if m_ == 1 and p: urgent = epi_list(p - 1, last[p - 1]); pubat = -1
        if p & 1 == 0 and t == 0: vm.wait(ty[rd_, s_].t)
        if t == 0 and n + 1 in tw: lg.wait(tw[n + 1].t)
        if n == ST0: vm.wait(ts[0].t); side = stat_list(0) + [augchk] + augmv
        if n == YC - 14: look(tl_, vFY, sFYP, 256)()
        if n == YC: check(tl_, vFY, sFYP, 256); y1 = yj(1); mem += (y1[:SP] + stl(1) + y1[SP:]) if slip else (y1 + stl(1))
        if n == 112 + 22: assert not urgent; vm.wait(ts[1].t); side = stat_list(1)
        if n + 6 < 224: dq += ld1(n + 6)
        wf = a(WA[p & 1] + 8 * s_ + 4 * t, 4) if s_ < NA else v(WB + 4 * (n % 8), 4)
        mfma(v(ACC + 32 * (p & 1) + 16 * t, 16), wf, (a if rd_ else v)(4 * s_, 4), "0" if s_ == 0 else None)
        k = (ERS[p - 1] if ERS else ER) if urgent else SR
        if dq and urgent: k -= 1
        go = (t == 0 or (pub_done and not slip and len(mem) > (112 - n) // 2)) and mem and (not urgent or p == 2) and (p == 0 or pub_done or held < YH)
        if go:
            run(mem, 2 if (p == 0 and STP <= s_ < STP + 4) else 1); run(dq, 3 if t else 1); k -= 1
            if p: held += 1
        else: run(dq, 3 if t else 2)
        if urgent:
            run(urgent, k)
            if not urgent: pubat = min(n + (EP if str(p - 1) in plain else (EAS[p - 1] if EAS else EA)), 56 * p + 55)
        else: run(side, k)
        if n == pubat: publish(p - 1, last[p - 1]); pub_done = True
        if n == 111 and not slip: run(mem, 99)
        if 'fine' in dbg and n % 8 == 7: stamp(f'n{n+1}')
    assert not mem and not side and not urgent and not dq
    for t2 in range(2): mfma(v(ACC + 32 + 16 * t2, 16), a(AU + 4, 4), a(BA[1] + 4 * t2, 4))
    stamp("p3")
    run(epi_list(3, last[3]), 999)
    publish(3, last[3])
    A("s_branch L_fin")

    A("L_at2:")
    to = att_core(jobs(at2))
    XR = 128; GA = 136; A2 = 152; X1 = 168; WB = 184
    vIN, vOUTB, vWO, vXA, vSL = 216, 217, 218, 124, 220
    A(f"""s_and_b32 s61, s{sW}, 1
    s_lshl_b32 s61, s61, 12
    s_add_u32 s61, s61, {L_XT}
    v_lshl_add_u32 v4, v{vL31}, 7, s61
    v_lshl_add_u32 v4, v{vHALF}, 3, v4
    v_and_b32 v5, 7, v{vL}
    s_lshl_b32 s61, s{sKH}, 2
    v_xor_b32 v5, s61, v5""")
    for a_ in range(4): A(f"v_xor_b32 v6, {a_}, v5\nv_lshl_add_u32 v{vXA+a_}, v6, 4, v4")
    txr = Tok()
    def xrd(rd_): return [jDS(f"ds_read_b64 v[{XR+2*a_}:{XR+2*a_+1}], v{vXA+a_} offset:{8192*rd_}", txr) for a_ in range(4)]
    xun = [lambda: lg.wait(txr.t)] + sum(([f"v_lshlrev_b32 v{X1+2*d}, 16, v{XR+d}", f"v_and_b32 v{X1+2*d+1}, s79, v{XR+d}"] for d in range(8)), [])
    run(xrd(0), 4)
    A(f"""v_accvgpr_read_b32 v12, a{aB2}
    v_accvgpr_read_b32 v13, a{aB2+1}
    {get('VW', 7)}
    v_and_b32 v{vT3}, 7, v{vL}
    v_lshlrev_b32 v{vT3}, 2, v{vT3}
    v_bfe_u32 v{vT2}, v{vL}, 3, 1
    v_lshl_add_u32 v{vT3}, v{vT2}, 8, v{vT3}
    s_mul_i32 s61, s{sKH}, {224*128}
    v_add_u32 v{vWO}, s61, v{vR0}
    v_add_u32 v{vWO+1}, s61, v{vR0+1}
    s_add_u32 s61, s{sEX}, {6*BLK}
    v_add_u32 v{vIN}, s61, v{vL16}
    s_xor_b32 s61, s61, 8192
    v_add_u32 v{vOUTB}, s61, v{vL16}
    s_mov_b32 s79, 0xffff0000""")
    run(list(xun), 99)
    vm.wait(to)
    flag(sFO)
    stamp("opub")
    barrier()
    order = [(i, t) for i in range(11) for t in (1, 0)] + [(i, 1) for i in range(11, 16)] + [(i, 0) for i in range(11, 16)]
    two = {}
    def ldo(k):
        i, t = order[k % 32]; b = WB + 4 * (k % 8); two[k] = Tok(); off = L_WO + 3584 * (i >> 1) + 2048 * (i & 1)
        return [jDS(f"ds_read_b64_tr_b16 v[{b}:{b+1}], v{vWO+t} offset:{off}"), jDS(f"ds_read_b64_tr_b16 v[{b+2}:{b+3}], v{vWO+t} offset:{off+1024}", two[k])]
    for k in range(5): run(ldo(k), 2)
    for k in range(3): A(f"s_add_u32 s61, s{sEX}, {65536*k}\nv_add_u32 v{vSL+2*k}, s61, v{vR0}\nv_add_u32 v{vSL+2*k+1}, s61, v{vR0+1}")
    def rdslot(k, tok=None, wait=True):
        u, t_ = slot.pop(k)
        return ([lambda: vm.wait(t_.t)] if wait else []) + w2_read(u, vSL + 2 * (k >> 2), BLK * (k & 3), tok)
    tR = Tok(); tR.t = 0
    for k in list(slot): run(rdslot(k, tR), 99)
    stamp("pre2")
    poll(vT3, f"s{sFOP}")
    stamp("S2")
    to = {}
    def oj(rd_):
        js = []
        for i in range(16):
            to[rd_, i] = Tok()
            pre = f"s_add_u32 s{sOS}, s{sOS}, {131072-12288}" if (rd_ and i == 0) else (f"s_add_u32 s{sOS}, s{sOS}, 4096" if (i % 4 == 0 and i) else None)
            js.append(jVM(f"buffer_load_dwordx4 v[{16+4*i}:{19+4*i}], v{vL16}, {WS}, s{sOS} offen offset:{1024*(i%4)} sc1", to[rd_, i], pre))
        return js
    mem = oj(0); run(mem, PRO)
    A(f"""s_mov_b32 s{sCNT}, 0
    L_nv:
    v_cmp_ne_u32 vcc, s{sTAG}, v{vNU+1}
    v_cmp_ne_u32 s[62:63], s{sTAG}, v{vNU+3}
    s_or_b64 vcc, vcc, s[62:63]
    s_cbranch_vccnz L_nvr
    L_nvd:
    v_cmp_lt_u32 vcc, 23, v{vL31}
    v_cndmask_b32 v8, v{vNU}, v12, vcc
    v_cndmask_b32 v10, v{vNU+2}, v13, vcc
    v_and_b32 v9, s79, v8
    v_lshlrev_b32 v8, 16, v8
    v_and_b32 v11, s79, v10
    v_lshlrev_b32 v10, 16, v10""")
    tail.append(f"""L_nvr:
    s_add_u32 s{sCNT}, s{sCNT}, 1
    s_cmp_ge_u32 s{sCNT}, {SPIN}
    s_cbranch_scc1 L_nvd
    buffer_load_dwordx4 v[{vNU}:{vNU+3}], v232, {WS}, s{sNUS} offen sc1
    s_waitcnt vmcnt(0)
    s_branch L_nv""")
    DS("ds_write_b128 v7, v[8:11]")
    side = []
    for a_ in range(4):
        side.append(jDS(f"ds_read_b128 v[{GA+4*a_}:{GA+4*a_+3}], v{vVEC} offset:{32*a_}"))
        side.append(jDS(f"ds_read_b128 v[{A2+4*a_}:{A2+4*a_+3}], v{vVEC} offset:{128+32*a_}"))
    ACC = 80
    mem1 = oj(1); ty = None
    for rd_ in range(2):
        if rd_ == 0: mem += jobs(ot0); nx_ = min(O1, 16 - len(mem)); mem += mem1[:nx_]; mem1 = mem1[nx_:]
        else: mem = mem1 + [lambda: lg.wait(tR.t)] + jobs(ot1)
        wr = [jDS(f"ds_write_b128 v{vOUTB}, v[{ACC+16+4*q}:{ACC+19+4*q}] offset:{BLK*rd_+1024*q}") for q in range(4)]
        for k, (i, t) in enumerate(order):
            kk = 32 * rd_ + k
            vm.wait(to[rd_, i].t); lg.wait(two[kk].t)
            mfma(v(ACC + 16 * t, 16), v(WB + 4 * (kk % 8), 4), v(16 + 4 * i, 4), "0" if i == 0 else None)
            if kk + 5 < 64: run(ldo(kk + 5), 2)
            if rd_ and k == 0: run(mem, max(0, 9 - O1))
            if k % 2 == 0: run(mem, 1)
            else: run(side, 3)
            if rd_ and k == YF:
                vm.wait(ty); flag(sFY); stamp("ypub")
            if k >= 29: run(wr, 2)
        assert not side
        lg.all()
        barrier()
        tk = [DS(f"ds_read_b128 v[{4*q}:{4*q+3}], v{vIN} offset:{BLK*rd_+1024*q}") for q in range(4)]
        if rd_: A(f"s_add_u32 s{sYS}, s{sYS}, 114688\ns_add_u32 s{sSTS}, s{sSTS}, 14336\ns_add_u32 s{sFY}, s{sFY}, 256")
        for q in range(4):
            lg.wait(tk[q])
            A.raw("    .p2align 3")
            for e in range(0, 4, 2):
                r = 4 * q + e
                A(f"""v_pk_add_f32 v[{r}:{r+1}], v[{ACC+r}:{ACC+r+1}], v[{r}:{r+1}]
                v_pk_fma_f32 v[{X1+r}:{X1+r+1}], v[{r}:{r+1}], v[{GA+r}:{GA+r+1}], v[{X1+r}:{X1+r+1}]
                v_pk_mul_f32 v[{r}:{r+1}], v[{X1+r}:{X1+r+1}], v[{A2+r}:{A2+r+1}]
                v_cvt_pk_bf16_f32 v{112+r//2}, v{r}, v{r+1}""")
            if q % 2 == 1: VM(f"buffer_store_dwordx4 v[{110+2*q}:{113+2*q}], v{vL16}, {OUT}, s{sYS} offen offset:{1024*(q//2)}")
        A(f"v_pk_add_f32 v[120:121], v[{X1}:{X1+1}], v[{X1+2}:{X1+3}]\nv_pk_mul_f32 v[122:123], v[{X1}:{X1+1}], v[{X1}:{X1+1}]")
        for d in range(1, 8):
            if d >= 2: A(f"v_pk_add_f32 v[120:121], v[120:121], v[{X1+2*d}:{X1+2*d+1}]")
            A(f"v_pk_fma_f32 v[122:123], v[{X1+2*d}:{X1+2*d+1}], v[{X1+2*d}:{X1+2*d+1}], v[122:123]")
        A(f"""v_add_f32 v120, v120, v121
        v_add_f32 v121, v122, v123
        v_mov_b32 v122, v120
        v_mov_b32 v123, v121
        v_permlane32_swap_b32 v120, v122
        v_permlane32_swap_b32 v121, v123
        v_add_f32 v120, v120, v122
        v_add_f32 v121, v121, v123
        s_mov_b32 exec_hi, 0""")
        ty = VM(f"buffer_store_dwordx2 v[120:121], v{vL16}, {WS}, s{sSTS} offen")
        A("s_mov_b64 exec, -1")
        stamp(f"op{rd_}")
        if rd_ == 0: side = xrd(1) + [f"v_accvgpr_write_b32 a{224+r}, v{X1+r}" for r in range(16)] + list(xun)
    run(mem, 99)
    GB = 192; ZT = 208
    free = [k for k in range(9) if k not in slot]; pend = list(slot)
    for k in free[:PS]: run(stage(k), 99); pend.append(k)
    free = free[PS:]
    def more():
        k = free.pop(0); run(stage(k), 99); pend.append(k)
    for a_ in range(4):
        DS(f"ds_read_b128 v[{GB+4*a_}:{GB+4*a_+3}], v{vVEC} offset:{256+32*a_}")
        tgb = DS(f"ds_read_b128 v[{GA+4*a_}:{GA+4*a_+3}], v{vVEC} offset:{384+32*a_}")
    vm.wait(ty); flag(sFY); stamp("ypub1")
    more()
    for r in range(16): A(f"v_accvgpr_read_b32 v{A2+r}, a{224+r}")
    lg.wait(tgb)
    for r in range(0, 16, 2):
        A(f"v_pk_fma_f32 v[{A2+r}:{A2+r+1}], v[{GB+r}:{GB+r+1}], v[{GA+r}:{GA+r+1}], v[{A2+r}:{A2+r+1}]\nv_pk_fma_f32 v[{X1+r}:{X1+r+1}], v[{GB+r}:{GB+r+1}], v[{GA+r}:{GA+r+1}], v[{X1+r}:{X1+r+1}]")
    for r in range(16): A(f"v_accvgpr_write_b32 a{224+r}, v{A2+r}\nv_accvgpr_write_b32 a{240+r}, v{X1+r}")
    more()
    vH0, vH1, vFD, vRW, vRR, vRQ = 226, 227, vTN0, 228, 231, vT0
    sFE, sRSL = 91, 58
    A(f"""v_and_b32 v{vFD}, 3, v{vL}
    v_lshlrev_b32 v{vFD}, 2, v{vFD}
    v_bfe_u32 v{vT0}, v{vL}, 2, 1
    v_lshl_add_u32 v{vFD}, v{vT0}, 8, v{vFD}
    s_and_b32 s61, s{sTO}, 6
    s_lshl_b32 s61, s61, 8
    s_add_u32 s61, s61, s{sCTL}
    s_mul_i32 s62, s{sW}, 7
    s_lshr_b32 s62, s62, 1
    s_mul_i32 s{sRSL}, s{sTO}, 14
    s_add_u32 s{sRSL}, s{sRSL}, s62
    s_lshl_b32 s{sRSL}, s{sRSL}, 7
    s_add_u32 s{sRSL}, s{sRSL}, {RS2}
    s_lshl_b32 s62, s62, 2
    s_add_u32 s61, s61, s62
    s_add_u32 s{sFE}, s61, {C_FD}
    s_mul_i32 s61, s{sTO}, 114688
    s_add_u32 s61, s61, {HID}
    v_add_u32 v{vH0}, s61, v{vL16}
    s_xor_b32 s61, s{sTO}, 1
    s_mul_i32 s61, s61, 114688
    s_add_u32 s61, s61, {HID}
    v_add_u32 v{vH1}, s61, v{vL16}
    s_mul_i32 s61, s{sW}, 12288
    v_add_u32 v{vRR}, s61, v{vL16}
    v_lshlrev_b32 v{vT2}, 2, v{vL31}""")
    for k in range(1, 4): A(f"s_xor_b32 s61, s{sW}, {k}\ns_mul_i32 s61, s61, 12288\ns_add_u32 s61, s61, {4096*(k-1)}\nv_add_u32 v{vRW+k-1}, s61, v{vL16}")
    rtok = {}
    while nxt[0] < 14:
        k = free.pop(0)
        if k in rtok: lg.wait(rtok.pop(k))
        run(stage(k), 99); pend.append(k)
        if len(pend) > 3 or not free:
            k2 = pend.pop(0); run(rdslot(k2, tR), 99); free.append(k2); rtok[k2] = tR.t
    for k in pend: run(rdslot(k, tR), 99)
    for q in range(7): A(f"s_lshl_b32 s{sFT+q}, s{sFT+q}, 11")
    lg.all()
    barrier()
    stamp("w2in")
    poll(vFD, f"s{sFE}")
    stamp("S4")

    HB = 128; NB_ = 16
    seq = list(range(56)) + list(range(40)) + list(range(41, 56, 2)) + list(range(40, 56, 2))
    th = [Tok() for _ in range(112)]
    state = {}
    def hj(p):
        rd_ = p // 56; i = seq[p]; u, s_, mh = i >> 2, (i >> 1) & 1, i & 1
        b = HB + 4 * (p % NB_); pre = ""
        if p == 56: pre += f"v_add_u32 v{vH0}, {4*114688}, v{vH0}\nv_add_u32 v{vH1}, {4*114688}, v{vH1}\n"
        if state.get(u % 7, 0) != (u >= 7): state[u % 7] = (u >= 7); pre += f"s_xor_b32 s{sFT+u%7}, s{sFT+u%7}, 4096"
        return jVM(f"buffer_load_dwordx4 v[{b}:{b+3}], v{vH1 if mh else vH0}, {WS}, s{sFT+u%7} offen offset:{1024*s_} sc1", th[p], pre or None)
    def rsj(rd_): return jVM(f"buffer_load_dword v{vRQ+rd_}, v{vT2}, {WS}, s{sRSL} offen sc1", None, f"s_add_u32 s{sRSL}, s{sRSL}, {4*14*128}" if rd_ else None)
    mem = [hj(p) for p in range(28)]
    run(mem, PRO); rsj(0)()
    def mm(p, t):
        rd_ = p // 56; i = seq[p]; u, s_, mh = i >> 2, (i >> 1) & 1, i & 1
        vm.wait(th[p].t)
        mfma(v(64 * rd_ + 16 * (2 * t + mh), 16), a(16 * u + 8 * s_ + 4 * t, 4), v(HB + 4 * (p % NB_), 4), "0" if i < 2 else None)
    wrj = lambda rd_, k: [jDS(f"ds_write_b128 v{vRW+k-1}, v[{64*rd_+16*k+4*q}:{64*rd_+16*k+4*q+3}] offset:{49152*rd_+1024*q}") for q in range(4)]
    tin = Tok()
    fin0 = [jDS(f"ds_read_b128 v[{16+16*k+4*q}:{19+16*k+4*q}], v{vRR} offset:{4096*k+1024*q}", tin) for k in range(3) for q in range(4)]
    fin0 += [f"v_accvgpr_read_b32 v{ZT+r}, a{224+r}" for r in range(16)] + [lambda: lg.wait(tin.t)]
    for r in range(16):
        fin0 += [f"v_add_f32 v{r}, v{r}, v{16+r}", f"v_add_f32 v{32+r}, v{32+r}, v{48+r}", f"v_add_f32 v{r}, v{r}, v{32+r}", f"v_mul_f32 v{r}, v{r}, v{vRQ}", f"v_fmac_f32 v{ZT+r}, v{r}, v{GB+r}"]
    fin0 += [f"v_cvt_pk_bf16_f32 v{d}, v{ZT+2*d}, v{ZT+2*d+1}" for d in range(8)]
    fin0 += [f"v_permlane32_swap_b32 v{b}, v{b+2}" for b in (0, 1, 4, 5)]
    fin0 += [f"v_accvgpr_read_b32 v{ZT+r}, a{240+r}" for r in range(16)] + [f"v_mul_f32 v{GB+r}, v{GB+r}, v{vRQ+1}" for r in range(16)]
    st0 = [jVM(f"buffer_store_dwordx4 v[{4*q}:{4*q+3}], v{vROW}, {OUT}, s{sROW} offen offset:{32*q}{omod}") for q in range(2)]
    tl_ = Tok(); side = []; wr = []
    for p in range(104):
        for lo, off in ((28, 64), (56, 1024), (84, 1088)):
            cp = min(PRO, CP[lo // 28 - 1])
            if p == lo - cp - CK: look(tl_, vFD, sFE, off)()
            if p == lo - cp:
                check(tl_, vFD, sFE, off); stamp(f"c{lo}")
                mem += [hj(k) for k in range(lo, lo + 28)]
                run(mem, PRO - cp)
                if lo == 56: rsj(1)()
        if p == 58: wr = wrj(0, 1) + wrj(0, 2) + wrj(0, 3)
        if p == 71:
            assert not wr
            lg.all(); barrier(); side = fin0
        mm(p, 0); run(mem, 1); mm(p, 1)
        if wr: run(wr, 1)
        else: run(side, 5)
        if p >= 102: assert not side and not mem; run(st0, 1)
        if 'fine' in dbg and p in (0, 28, 56, 84): stamp(f'g{p}')
    wr = wrj(1, 1) + wrj(1, 3)
    tailo = [(48, 1), (48, 0), (49, 1), (49, 0), (50, 1), (50, 0), (51, 1), (52, 1), (53, 1), (54, 1), (55, 1), (51, 0), (52, 0), (53, 0), (54, 0), (55, 0)]
    for n, (p, t) in enumerate(tailo):
        mm(56 + p, t)
        if n == 12: wr += wrj(1, 2)
        if n == wbz:
            A(f"s_lshl_b32 s61, s{sM}, 2\ns_add_u32 s61, s61, s{sW}\ns_cmp_lg_u32 s61, 108\ns_cbranch_scc1 L_nwb\nbuffer_wbl2 sc1\nL_nwb:")
        if n >= 2 and n % 3 != 1: run(wr, 1)
    run(wr, 99)
    stamp("ffn2")
    A(f"s_add_u32 s{sROW}, s{sROW}, 114688")
    lg.all()
    barrier()
    tk = {}
    for q in range(4):
        for k in range(3): tk[q] = DS(f"ds_read_b128 v[{16+16*k+4*q}:{19+16*k+4*q}], v{vRR} offset:{49152+4096*k+1024*q}")
    for q in range(4):
        lg.wait(tk[q])
        A.raw("    .p2align 3")
        for e in range(0, 4, 2):
            r = 4 * q + e
            A(f"""v_pk_add_f32 v[{16+r}:{17+r}], v[{16+r}:{17+r}], v[{32+r}:{33+r}]
            v_pk_add_f32 v[{48+r}:{49+r}], v[{48+r}:{49+r}], v[{64+r}:{65+r}]
            v_pk_add_f32 v[{16+r}:{17+r}], v[{16+r}:{17+r}], v[{48+r}:{49+r}]
            v_pk_fma_f32 v[{ZT+r}:{ZT+r+1}], v[{16+r}:{17+r}], v[{GB+r}:{GB+r+1}], v[{ZT+r}:{ZT+r+1}]
            v_cvt_pk_bf16_f32 v{8+r//2}, v{ZT+r}, v{ZT+r+1}""")
        if q % 2 == 1:
            b = 8 + 2 * (q - 1)
            A(f"v_permlane32_swap_b32 v{b}, v{b+2}\nv_permlane32_swap_b32 v{b+1}, v{b+3}")
            VM(f"buffer_store_dwordx4 v[{b}:{b+3}], v{vROW}, {OUT}, s{sROW} offen offset:{16*(q-1)}{omod}")
    stamp("done")
    if meas:
        A(f"""s_cmp_lg_u32 s2, {meas[3]}
        s_cbranch_scc1 L_fin
        v_readlane_b32 s61, v{vST}, 0
        v_readlane_b32 s62, v{vST}, 1
        s_memrealtime s[100:101]
        s_sub_u32 s61, s62, s61
        s_mul_i32 s61, s61, {meas[2]}
        s_min_u32 s61, s61, 100000
        s_waitcnt lgkmcnt(0)
        s_mov_b32 s63, s100
        L_ms:
        s_memrealtime s[100:101]
        s_waitcnt lgkmcnt(0)
        s_sub_u32 s62, s100, s63
        s_cmp_lt_u32 s62, s61
        s_cbranch_scc1 L_ms""")
    return done()

HEAD = open("adaLN_cond__sliding_block__dense_activation_squared_relu__prompt.s.ref").read().split("; Override launch")[0]
def wrap(A, tail, warm):
    A("L_tail:")
    for t in tail:
        if isinstance(t, tuple): A.lines += t[1]
        else: A(t)
    A("L_exit:\ns_endpgm")
    A.raw("CODE_END:")
    def full(lines):
        txt = HEAD + f"; @launch grid=(256,1,1) block=(256,1,1) lds={LDS_BYTES}\n.amdgcn_target \"amdgcn-amd-amdhsa--gfx950\"\n.text\n" + kernel_header(NAME) + "\n".join(lines) + "\n"
        return txt + ".section .rodata,\"a\"\n.p2align 6\n" + kernel_desc(NAME, 512, 102, 256)
    lines = A.lines
    if warm:
        import warm as W
        lines, stubs = W.add_stubs(lines, full, {"a": [("L_wza", "L_at1")], "b": [("L_at1", "L_at2")], "c": [("L_at2", "L_tail")]},
                                   {"L_kvV", "L_kvE", "L_att", "L_p42", "L_help", "L_at2", "L_va", "L_vb"})
    return full(lines)

if __name__ == "__main__":
    out = sys.argv[1]
    kw = eval("dict(" + (sys.argv[2] if len(sys.argv) > 2 else "") + ")")
    t, names = gen(**kw)
    open(out, "w").write(t)
    if names: json.dump(names, open(out + ".json", "w"))
    print(out, len(t.split("\n")), "lines", len(names), "stamps")
```

```python
import sys, json, struct
from asmgen import *
NAME = "adaLN_cond__sliding_block__dense_activation_squared_relu__prompt_kernel"
QSCALE = struct.unpack("<I", struct.pack("<f", 28 ** -0.5 * 1.4426950408889634))[0]

CTL = 0x4000
C_FH, C_FQ, C_FO, C_FY, C_FD = 0, 0x200, 0x400, 0x600, 0x800
S0U = 0x10000
XCCG = 0x14000
AUG = 0x1C000
STATS = 0x28000
NU = 0x70000
RS2 = 0x80000
FKV = 0xA0000
QO = 0x100000
KG = 0x300000
VG = 0x500000
HID = 0x700000
STAMP = 0xF00000
WSZ = 0x1000000
OOB = 0x40000000
L_WKV, L_B, L_WQ = 0, 57344, 122880
L_K, L_V = 98304, 122880
L_WO = 0
L_P0 = 0; L_P1 = 57344
BLK = 16384
L_MISC = 151552
L_X = L_MISC; L_XT = 5 * BLK; L_SILU = L_MISC + 7168; L_MODV = L_MISC + 8192; L_VEC = L_MODV
LDS_BYTES = 163840
sW, sG, sM, sTAG, sUNI = 3, 4, 5, 6, 7
X, WQKV, WO, W1, W2, WMOD, OUT, WS = [f"s[{i}:{i+3}]" for i in (8, 12, 16, 20, 24, 28, 32, 36)]
sCTL = 47
sJ, sTQ, sHEAD, sRB, sTA, sNB, sTO, sKH, sR4, sWG, sHI, sCOL = 48, 49, 50, 51, 52, 53, 54, 55, 56, 57, 58, 59
sCNT = 60
sSRC, sHLP, sCT = 67, 68, 69
sFT = 70
sROW, sEX, sW1D, sUI, sPSW = 77, 78, 94, 95, 96
sSTB, sKVS, sQS, sHS, sFKV, sFQ, sFHP = 79, 80, 81, 82, 83, 84, 85
sLK, sK0, sQO, sFO, sWOL, sW1C, sSTA = 86, 87, 90, 91, 92, 93, 97
sYS, sFY, sFOP, sOS, sSTS, sNUS = 98, 99, 0, 1, 44, 45
vL, vL16, vTN0, vTN1, vTP0, vTP1 = 255, 254, 253, 252, 251, 250
vPAN = 246
vTAG, vHALF, vL31 = 245, 244, 243
vT0, vT1, vT2, vT3 = 239, 240, 241, 242
vJUNK, vST, vROW, vVEC, vR0 = 238, 237, 236, 235, 233
NEG = 0xF149F2CA
SPIN = 60000

class Ctr:
    def __init__(s, A, name, mx): s.A, s.name, s.mx, s.n, s.done = A, name, mx, 0, 0
    def issue(s): s.n += 1; return s.n
    def wait(s, tok):
        if tok <= s.done: return
        k = min(s.n - tok, s.mx)
        s.A.e(f"s_waitcnt {s.name}({k})"); s.done = s.n - k
    def all(s): s.A.e(f"s_waitcnt {s.name}(0)"); s.done = s.n
    def drained(s): s.done = s.n
class Tok: t = None

def gen(stop=99, stamps=False, force_slow=False, only=None, meas=None, warm=True, dbg=(), lst=None,
        a1='H pR K0', a2='LQ', a3='K1 pQ pA', a5='Q7', a6='', a7='pS', kvt='XT QP', qp='', p41='', p42='', kw2='pO pF', wlate='a6', at1='_ _ _ _ _ _ _ _ Wb10', at2='O0 NU O1', ot0='', ot1='S4 S8',
        hp0='', hp1='', hp2='', hz='E0 E1 E2 E3 E4 E5 E6 F0 F1 F2 F3 F4 F5 F6',
        PRO=10, STP=2, ER=7, EA=18, RT='123', SR=3, CK=6, msub=True, AR=1, KVA=22, QB=10, mlate=False, V1=2, V2=4, qfirst=False, merge=True, VBAR=2, YF=6, plain='', EP=10, YH=28, YC=54, slip=True, VD=0, KVV=None, remap=False, s2a=True, OL=20, OC=30, h7='', wbz=None, ST0P=102, omod='', hq=False, fkt=True, full='', KT=0, EB=6, SP=16, ERS=None, EAS=None, f1f='', PS=2, O1=8, CP=(6, 6, 6)):
    A = Asm()
    vm = Ctr(A, "vmcnt", 63); lg = Ctr(A, "lgkmcnt", 15)
    tail = []; uid = [0]; names = []
    def U(p): uid[0] += 1; return f"L_{p}{uid[0]}"
    def stamp(nm):
        if meas and nm in meas[:2]:
            A(f"s_memrealtime s[100:101]\ns_waitcnt lgkmcnt(0)\nv_writelane_b32 v{vST}, s100, {meas.index(nm)}"); lg.drained()
        if not stamps or (only and nm not in only): return
        if nm not in names: names.append(nm)
        A(f"{'s_memtime' if stamps == 2 else 's_memrealtime'} s[100:101]\ns_waitcnt lgkmcnt(0)\nv_writelane_b32 v{vST}, s100, {names.index(nm)}"); lg.drained()
    def VM(t): A(t); return vm.issue()
    def DS(t): A(t); return lg.issue()
    def barrier(): A("s_barrier")
    def mfma(d, a_, b_, c=None): A(f"v_mfma_f32_32x32x16_bf16 {d}, {a_}, {b_}, {c if c is not None else d}")
    def run(q, n):
        for _ in range(n):
            if not q: return
            e = q.pop(0)
            if callable(e): e()
            else: A(e)
    def lines(t): return [x.strip() for x in t.strip().split("\n") if x.strip()]
    def jVM(text, tok=None, pre=None):
        def f():
            if pre: A(pre)
            k = VM(text)
            if tok is not None: tok.t = k
        return f
    def jDS(text, tok=None):
        def f():
            k = DS(text)
            if tok is not None: tok.t = k
        return f
    def flag(soff, slow=False):
        if slow and 'f' in full:
            A(f"v_lshlrev_b32 v{vT2}, 2, v{vL}\ns_mov_b32 exec_hi, 0"); VM(f"buffer_store_dword v{vTAG}, v{vT2}, {WS}, s{soff} offen sc1"); A("s_mov_b64 exec, -1"); return
        A("s_mov_b64 exec, 1")
        if slow: VM(f"buffer_store_dword v{vTAG}, off, {WS}, s{soff} sc1")
        else:
            ls, lj = U("fs"), U("fj")
            A(f"s_cmp_eq_u32 s{sUNI}, 0\ns_cbranch_scc1 {ls}")
            VM(f"buffer_store_dword v{vTAG}, off, {WS}, s{soff}")
            A(f"{lj}:")
            tail.append(f"{ls}:\nbuffer_wbl2 sc1\ns_waitcnt vmcnt(0)\nbuffer_store_dword v{vTAG}, off, {WS}, s{soff} sc1\ns_branch {lj}")
        A("s_mov_b64 exec, -1")
    def poll(vaddr, soff):
        lp, ld, li, lj = U("p"), U("pd"), U("pi"), U("pj")
        A(f"s_mov_b32 s{sCNT}, 0\n{lp}:\nbuffer_load_dword v{vJUNK}, v{vaddr}, {WS}, {soff} offen sc1\ns_add_u32 s{sCNT}, s{sCNT}, 1\ns_cmp_ge_u32 s{sCNT}, {SPIN}\ns_cbranch_scc1 {ld}\ns_cmp_eq_u32 s{sUNI}, 0\ns_waitcnt vmcnt(0)")
        A(f"v_cmp_ne_u32 vcc, s{sTAG}, v{vJUNK}\ns_cbranch_vccnz {lp}\n{ld}:\ns_cbranch_scc1 {li}\n{lj}:")
        vm.drained()
        tail.append(f"{li}:\ns_waitcnt vmcnt(0)\nbuffer_inv sc1\ns_waitcnt vmcnt(0)\ns_branch {lj}")
    def panel_addr(dst, rs, swz="std"):
        t = f"v_lshrrev_b32 v{vT0}, 3, v{vL}\nv_and_b32 v{vT1}, 7, v{vL}\n"
        if swz == "std": t += f"v_bfe_u32 v{vT2}, v{vL}, 4, 1\nv_lshlrev_b32 v{vT2}, 2, v{vT2}\n"
        else: t += f"v_bfe_u32 v{vT2}, v{vL}, 4, 2\nv_lshlrev_b32 v{vT2}, 1, v{vT2}\n"
        t += f"v_xor_b32 v{vT1}, v{vT1}, v{vT2}\nv_mul_u32_u24 v{vT0}, {rs}, v{vT0}\nv_lshl_add_u32 v{dst}, v{vT1}, 4, v{vT0}\n"
        for i in range(1, 4): t += f"v_add_u32 v{dst+i}, {i*(8*rs-1024)}, v{dst}\n"
        return t
    def dma_jobs(srd, vp, rs, n, setup, tok=None):
        if "nobulk" in dbg and srd in (W2, W1, WO) and vp != 4:
            def nop():
                if tok is not None: tok.t = 0
            return [nop] * n
        js = []
        for i in range(n):
            q = i % 4
            pre = setup if i == 0 else (f"s_add_u32 m0, m0, 4096\ns_add_u32 s{sSRC}, s{sSRC}, {32*rs}" if q == 0 else None)
            js.append(jVM(f"buffer_load_dwordx4 v{vp+q}, {srd}, s{sSRC} offen offset:{1024*q} lds", tok, pre))
        return js
    def w2_dma(u, lds_s, lds_off, tok=None):
        return dma_jobs(W2, vPAN, 896, 4, f"s_add_u32 m0, s{lds_s}, {lds_off}\n{'s_xor_b32 s%d, s%d, 2' % (sSRC, sFT+u%7) if u >= 7 else ''}\ns_mul_i32 s{sSRC}, s{sSRC if u >= 7 else sFT+u}, {32*896}\ns_add_u32 s{sSRC}, s{sSRC}, s{sCOL}", tok)
    def w2_read(u, va, off, tok=None):
        js = []
        for s_ in range(2):
            for t in range(2):
                r = 16 * u + 8 * s_ + 4 * t
                for p in range(2): js.append(jDS(f"ds_read_b64_tr_b16 a[{r+2*p}:{r+2*p+1}], v{va+t} offset:{off+2048*s_+1024*p}", tok))
        return js
    def done():
        A("L_fin:")
        if stamps:
            A(f"v_writelane_b32 v{vST}, s{sUNI}, 63")
            A(f"s_lshl_b32 s61, s2, 2\ns_add_u32 s61, s61, s{sW}\ns_lshl_b32 s61, s61, 8\ns_add_u32 s61, s61, {STAMP}\nv_lshlrev_b32 v{vT1}, 2, v{vL}")
            A(f"buffer_store_dword v{vST}, v{vT1}, {WS}, s61 offen")
        A("s_endpgm")
        return wrap(A, tail, warm and stop > 5), names
    stash = {}
    def put(name, r):
        stash.setdefault(name, 224 + len(stash)); assert stash[name] < 246
        return f"v_accvgpr_write_b32 a{stash[name]}, v{r}"
    def get(name, r): return f"v_accvgpr_read_b32 v{r}, a{stash[name]}"
    aX, aB2 = 248, 246

    def check(tok, va, soff, off):
        lr, lj = U("lr"), U("lj")
        vm.wait(tok.t)
        A(f"v_cmp_ne_u32 vcc, s{sTAG}, v{vJUNK}\ns_cmp_eq_u32 s{sUNI}, 0\ns_cbranch_scc1 {lr}\ns_cbranch_vccnz {lr}\n{lj}:")
        tail.append(f"""{lr}:
        s_mov_b32 s{sCNT}, 0
        {lr}a:
        buffer_load_dword v{vJUNK}, v{va}, {WS}, {'s%d' % soff if soff is not None else 0} offen offset:{off} sc1
        s_add_u32 s{sCNT}, s{sCNT}, 1
        s_waitcnt vmcnt(0)
        v_cmp_ne_u32 vcc, s{sTAG}, v{vJUNK}
        s_cbranch_vccz {lr}b
        s_cmp_lt_u32 s{sCNT}, {SPIN}
        s_cbranch_scc1 {lr}a
        {lr}b:
        s_cmp_eq_u32 s{sUNI}, 1
        s_cbranch_scc1 {lj}
        buffer_inv sc1
        s_waitcnt vmcnt(0)
        s_branch {lj}""")
    def look(tok, va, soff, off): return jVM(f"buffer_load_dword v{vJUNK}, v{va}, {WS}, {'s%d' % soff if soff is not None else 0} offen offset:{off} sc1", tok)

    ent = bool(stamps) or bool(meas and "entry" in meas[:2])
    if ent: A(f"{'s_memtime' if stamps == 2 else 's_memrealtime'} s[100:101]")
    for r, off in ((28, 72), (44, 64), (8, 0)):
        A(f"s_load_dwordx2 s[{r}:{r+1}], s[0:1], {off}")
    A(f"""v_readfirstlane_b32 s{sW}, v0
    s_mov_b32 s30, 2408448
    s_mov_b32 s31, 0x20000
    s_mov_b32 s{sHLP}, 0
    s_sub_u32 s{sUI}, s2, 224
    s_cmp_ge_u32 s{sUI}, 32
    s_cbranch_scc1 L_w0
    s_mov_b32 s{sHLP}, 1
    v_lshrrev_b32 v1, 3, v0
    v_and_b32 v2, 6, v1
    v_xor_b32 v2, v2, v0
    v_and_b32 v2, 7, v2
    v_mul_u32_u24 v1, 5376, v1
    v_lshl_add_u32 v4, v2, 4, v1
    v_min_u32 v2, 223, v0
    v_lshlrev_b32 v3, 2, v2
    s_lshl_b32 s61, s{sW}, 4
    s_add_u32 m0, s61, {L_B}
    s_lshr_b32 s61, s{sUI}, 1
    s_lshl_b32 s61, s61, 7
    s_bitcmp1_b32 s{sUI}, 0
    s_cselect_b32 s62, {224*5376}, 0
    s_add_u32 s61, s61, s62
    s_cmp_ge_u32 s{sUI}, 28
    s_cselect_b32 s61, 2.0, s61
    s_mov_b32 s62, 7
    s_waitcnt lgkmcnt(0)
    global_load_dword v8, v3, s[44:45]
    L_m0:
    buffer_load_dwordx4 v4, {WMOD}, s61 offen lds
    s_addk_i32 m0, 4096
    s_add_u32 s61, s61, {32*5376}
    s_sub_u32 s62, s62, 1
    s_cmp_lg_u32 s62, 0
    s_cbranch_scc1 L_m0
    L_w0:
    s_lshr_b32 s{sM}, s2, 3
    v_min_u32 v5, 12, v0
    v_lshl_add_u32 v5, v5, 5, s{sM}
    s_getpc_b64 s[62:63]
    L_pc:
    v_min_u32 v5, (CODE_END-L_pc-4)>>7, v5
    v_lshlrev_b32 v5, 7, v5
    global_load_dword v{vJUNK}, v5, s[62:63]
    s_cmp_ge_u32 s2, 256
    s_cbranch_scc1 L_exit
    s_lshr_b32 s{sW}, s{sW}, 6
    v_and_b32 v{vL}, 63, v0
    s_and_b32 s{sG}, s2, 7
    s_mov_b32 s10, 1835008
    s_mov_b32 s11, s31""")
    for r, off in ((36, 96), (12, 8), (32, 80), (24, 48), (16, 16), (20, 32), (40, 40), (42, 56)): A(f"s_load_dwordx2 s[{r}:{r+1}], s[0:1], {off}")
    A(f"""v_lshrrev_b32 v9, 3, v{vL}
    v_xor_b32 v10, v9, v{vL}
    v_and_b32 v10, 7, v10
    v_mul_u32_u24 v9, 896, v9
    v_lshl_add_u32 v9, v10, 4, v9
    s_lshl_b32 s61, s{sG}, 5
    s_add_u32 s{sWG}, s61, s{sM}
    s_mul_i32 s61, s{sWG}, 7168
    s_lshl_b32 s62, s{sW}, 7
    s_add_u32 s61, s61, s62
    s_lshl_b32 s62, s{sW}, 10
    s_add_u32 m0, s62, {L_X}
    s_add_u32 s63, s61, 512
    s_cmp_eq_u32 s{sW}, 3
    s_cselect_b32 s63, s61, s63
    s_cselect_b32 s64, 0, 4096
    s_waitcnt lgkmcnt(0)""")
    if ent:
        A(f"v_mov_b32 v{vST}, 0\nv_writelane_b32 v{vST}, s100, 0")
        if stamps: names.append("entry")
    stamp("karg")
    A(f"s_load_dword s{sTAG}, s[36:37], 0")
    VM(f"buffer_load_dwordx4 v9, {X}, s61 offen lds")
    A("s_add_u32 m0, m0, s64")
    tx = VM(f"buffer_load_dwordx4 v9, {X}, s63 offen lds")
    for r, n in ((12, 1204224), (36, WSZ), (32, 1835008), (16, 401408), (20, 1605632), (24, 1605632)):
        A(f"s_mov_b32 s{r+2}, {n}\ns_mov_b32 s{r+3}, s31")
    A(panel_addr(12, 2688))
    A(f"""s_cmp_ge_u32 s{sM}, 14
    s_cselect_b32 s65, 14, 0
    s_cselect_b32 s{sPSW}, 1, 0
    s_sub_u32 s{sJ}, s{sM}, s65
    s_sub_u32 s65, s{sM}, 14
    s_cmp_ge_u32 s65, 14
    s_cbranch_scc1 L_rl
    s_mov_b32 s{sHLP}, 2
    L_rl:""")
    def wkv_half(second):
        return dma_jobs(WQKV, 12, 2688, 7, f"""s_xor_b32 s65, s{sPSW}, s{sG}
        s_and_b32 s65, s65, 1
        {'s_xor_b32 s65, s65, 1' if second else ''}
        s_lshl_b32 s66, s{sW}, 1
        s_add_u32 s65, s65, s66
        s_mul_i32 m0, s65, 7168
        s_mul_i32 s{sSRC}, s65, {56*2688}
        s_lshl_b32 s65, s{sJ}, 7
        s_add_u32 s{sSRC}, s{sSRC}, s65
        s_add_u32 s{sSRC}, s{sSRC}, 896""")
    wkv = wkv_half(0) + wkv_half(1)
    vWQ = 228; vPQ = 229
    twq = Tok()
    def wq_half(second):
        return dma_jobs(WQKV, vPQ, 2 * 2688, 4, f"""s_and_b32 s65, s{sJ}, 1
        {'s_xor_b32 s65, s65, 1' if second else ''}
        s_mul_i32 s65, s65, 3
        s_mul_i32 s66, s{sW}, 7
        s_add_u32 s65, s65, s66
        s_lshl_b32 s66, s65, 10
        s_add_u32 m0, s66, {L_WQ}
        s_mul_i32 s{sSRC}, s65, {16*2688}
        s_lshl_b32 s65, s{sJ}, 6
        s_add_u32 s{sSRC}, s{sSRC}, s65""", twq)
    def touch(srd, n, idx, k=0, of=1):
        return [jVM(f"buffer_load_dword v{vJUNK}, v{vT0}, {srd}, s65 offen", None, f"{idx}\ns_mul_i32 s65, s65, {128*n*of}\ns_add_u32 s65, s65, {128*n*k}\nv_min_u32 v{vT0}, {n-1}, v{vL}\nv_lshlrev_b32 v{vT0}, 7, v{vT0}")]
    wi = f"s_mul_i32 s65, s{sG}, 28\ns_add_u32 s65, s65, s{sM}\ns_lshl_b32 s65, s65, 2\ns_add_u32 s65, s65, s{sW}"
    hi = f"s_lshl_b32 s65, s{sHI}, 2\ns_add_u32 s65, s65, s{sW}"
    hg = hi + "\ns_and_b32 s65, s65, 15"
    J = dict(K0=lambda: [wkv.pop(0) for _ in range(7)], K1=lambda: [wkv.pop(0) for _ in range(7)], K4=lambda: [wkv.pop(0) for _ in range(4)], K3=lambda: [wkv.pop(0) for _ in range(3)],
             Q0=lambda: wq_half(0), Q1=lambda: wq_half(1), W=lambda: [vm.all],
             H=lambda: [jVM(f"buffer_load_dword v{vJUNK}, v77, {OUT}, s98 offen sc1")],
             QP=lambda: [jVM(f"buffer_load_dword v{vJUNK}, v{vT0}, {WS}, s{sQO} offen sc1", None, f"v_and_b32 v{vT0}, 15, v{vL}\nv_lshlrev_b32 v{vT0}, 7, v{vT0}")],
             XT=lambda: [jVM(f"global_load_dwordx2 a[{aB2}:{aB2+1}], v{vT0}, s[42:43]", None, f"s_lshl_b32 s65, s{sCT}, 6\nv_and_b32 v{vT0}, 7, v{vL}\nv_lshl_add_u32 v{vT0}, v{vT0}, 3, s65"),
                         jVM(f"buffer_load_dwordx4 v{vT1}, {X}, s65 offen lds", None, f"{get('XA', vT1)}\ns_and_b32 s65, s{sTO}, 0xfe\ns_lshl_b32 s65, s65, 1\ns_add_u32 s65, s65, s{sW}\ns_mul_i32 s65, s65, 14336\ns_add_u32 s65, s65, s{sCOL}\ns_lshl_b32 s66, s{sW}, 11\ns_add_u32 m0, s66, {L_XT}"),
                         jVM(f"buffer_load_dwordx4 v{vT1}, {X}, s65 offen offset:1024 lds", None, "s_add_u32 s65, s65, 6144"),
                         jVM(f"buffer_load_dwordx4 v{vT1}, {X}, s65 offen lds", None, f"s_add_u32 m0, m0, 8192\ns_add_u32 s65, s65, {114688-6144}"),
                         jVM(f"buffer_load_dwordx4 v{vT1}, {X}, s65 offen offset:1024 lds", None, "s_add_u32 s65, s65, 6144")],
             LQ=lambda: [jVM(f"buffer_load_dword v{vJUNK}, v{vT0}, {WQKV}, s65 offen", None, f"s_lshl_b32 s65, s{sM}, 2\ns_add_u32 s65, s65, s{sW}\ns_mul_i32 s65, s65, {4*2688}\nv_and_b32 v{vT1}, 7, v{vL}\nv_min_u32 v{vT1}, 6, v{vT1}\nv_bfe_u32 v{vT0}, v{vL}, 3, 2\nv_mul_u32_u24 v{vT0}, 2688, v{vT0}\nv_lshl_add_u32 v{vT0}, v{vT1}, 7, v{vT0}")],
             Q7=lambda: dma_jobs(WQKV, vPQ, 2 * 2688, 7, f"s_mul_i32 s65, s{sW}, 7168\ns_add_u32 m0, s65, {L_WQ}\ns_mul_i32 s{sSRC}, s65, 42\ns_lshl_b32 s65, s{sJ}, 6\ns_add_u32 s{sSRC}, s{sSRC}, s65", twq),
             TQ=lambda: touch(WQKV, 11, wi), T2=lambda: touch(W2, 14, wi), T1=lambda: touch(W1, 14, wi), TO=lambda: touch(WO, 4, wi))
    HJ = dict(T1=lambda: touch(W1, 49, hi, 0, 2) + touch(W1, 49, hi, 1, 2), TQ=lambda: touch(WQKV, 37, hi, 0, 2) + touch(WQKV, 37, hi, 1, 2), T2=lambda: touch(W2, 49, hi, 0, 2) + touch(W2, 49, hi, 1, 2), TO=lambda: touch(WO, 25, hi),
              LO=lambda: sum((touch(WO, 49, hg, k, 4) for k in range(4)), []),
              **{f'QP{k}': (lambda k=k: [jVM(f"buffer_load_dword v{vJUNK}, v{vT0}, {WS}, s65 offen sc1", None, f"{hi}\ns_lshl_b32 s65, s65, 14\ns_add_u32 s65, s65, {QO+8192*k}\nv_lshlrev_b32 v{vT0}, 7, v{vL}")]) for k in range(2)},
              QP=lambda: sum(([jVM(f"buffer_load_dword v{vJUNK}, v{vT0}, {WS}, s65 offen sc1", None, f"{hi}\ns_lshl_b32 s65, s65, 14\ns_add_u32 s65, s65, {QO+8192*k}\nv_lshlrev_b32 v{vT0}, 7, v{vL}")] for k in range(2)), []))
    def hfill(kind, k):
        pre = f"{hg}\ns_add_u32 s66, s{sG}, {k}\ns_cmp_ge_u32 s66, 7\ns_cselect_b32 s64, 7, 0\ns_sub_u32 s66, s66, s64\ns_lshl_b32 s66, s66, 4\ns_add_u32 s65, s65, s66\ns_and_b32 s66, s65, 7\ns_lshr_b32 s65, s65, 3\nv_min_u32 v{vT0}, 55, v{vL}\n"
        if kind in "EF":
            pre += f"s_bitcmp{1 if kind == 'E' else 0}_b32 s65, 1\ns_cselect_b32 s64, 57344, 0\ns_mul_i32 s65, s65, 114688\ns_add_u32 s65, s65, s64\ns_mul_i32 s66, s66, 7168\ns_add_u32 s65, s65, s66\nv_lshlrev_b32 v{vT0}, 7, v{vT0}"
            return [jVM(f"buffer_load_dword v{vJUNK}, v{vT0}, {W2}, s65 offen", None, pre)]
        pre += f"s_bitcmp{0 if kind == 'G' else 1}_b32 s65, 1\ns_cselect_b32 s64, 128, 0\ns_lshl_b32 s65, s65, 8\ns_add_u32 s65, s65, s64\ns_mul_i32 s66, s66, {56*3584}\ns_add_u32 s65, s65, s66\nv_mul_u32_u24 v{vT0}, 3584, v{vT0}"
        return [jVM(f"buffer_load_dword v{vJUNK}, v{vT0}, {W1}, s65 offen", None, pre)]
    for kind in "EFGI":
        for k in range(7): HJ[f"{kind}{k}"] = (lambda kind=kind, k=k: hfill(kind, k))
    for k in range(4): HJ[f"O{k}"] = (lambda k=k: touch(WO, 49, hg, k, 4))
    used = set((a1 + " " + a2 + " " + a3 + " " + a7 + " " + a5 + " " + a6 + " " + kvt + " " + qp + " " + p41 + " " + p42).split())
    J['XD'] = lambda: J['XT']()[1:]
    def jobs(sq, T=None): return sum(((T or J)[a_]() for a_ in sq.split()), [])
    hline = f"""s_lshr_b32 s65, s{sWG}, 2
    s_mul_i32 s98, s65, 28672
    s_and_b32 s65, s{sM}, 3
    s_lshl_b32 s65, s65, 7
    s_add_u32 s98, s98, s65
    s_lshl_b32 s62, s{sW}, 12
    s_add_u32 s98, s98, s62
    s_add_u32 s99, s98, 16384
    s_cmp_eq_u32 s{sW}, 3
    s_cselect_b32 s99, {OOB}, s99
    s_cselect_b32 s61, 0, 16384
    v_bfe_u32 v77, v{vL}, 3, 1
    v_mul_u32_u24 v77, s61, v77
    v_and_b32 v30, 7, v{vL}
    v_lshl_add_u32 v77, v30, 9, v77"""
    amap = f"""s_and_b32 s63, s{sM}, 1
    s_add_u32 s63, s63, 14
    s_bfe_u32 s64, s{sM}, 0x10001
    s_cmp_ge_u32 s{sM}, 28
    s_cselect_b32 s{sHEAD}, s63, s{sJ}
    s_cselect_b32 s62, s64, s{sPSW}""" if remap else f"s_and_b32 s{sHEAD}, s{sM}, 15\ns_lshr_b32 s62, s{sM}, 4"
    roles = f"""s_lshl_b32 s61, s{sG}, 1
    s_add_u32 s62, s61, s{sPSW}
    s_lshl_b32 s{sTQ}, s62, 2
    s_add_u32 s{sTQ}, s{sTQ}, s{sW}
    {amap}
    s_add_u32 s{sRB}, s61, s62
    s_lshl_b32 s{sTA}, s{sRB}, 2
    s_add_u32 s{sTA}, s{sTA}, s{sW}
    s_mul_i32 s61, s{sM}, 37
    s_lshr_b32 s{sR4}, s61, 8
    s_mul_i32 s62, s{sR4}, 7
    s_sub_u32 s{sNB}, s{sM}, s62
    s_lshl_b32 s{sCOL}, s{sNB}, 7
    s_and_b32 s61, s{sW}, 1
    s_lshr_b32 s{sKH}, s{sW}, 1
    s_lshl_b32 s{sTO}, s{sG}, 2
    s_and_b32 s{sR4}, s{sR4}, 1
    s_add_u32 s{sTO}, s{sTO}, s{sR4}
    s_lshl_b32 s{sTO}, s{sTO}, 1
    s_add_u32 s{sTO}, s{sTO}, s61
    s_lshl_b32 s{sEX}, s{sW}, 12
    {panel_addr(vPAN, 896)}
    v_and_b32 v{vT0}, 3, v{vL}
    v_lshlrev_b32 v{vT0}, 3, v{vT0}
    v_bfe_u32 v{vT1}, v{vL}, 4, 1
    v_lshl_add_u32 v{vT0}, v{vT1}, 5, v{vT0}
    v_bfe_u32 v{vT1}, v{vL}, 2, 2
    v_lshl_add_u32 v16, v{vT1}, 6, v{vT0}
    v_lshl_add_u32 v16, v{vHALF}, 9, v16
    v_lshl_add_u32 v{vT0}, v{vT1}, 7, v{vT0}
    v_bfe_u32 v{vT1}, v{vL}, 3, 1
    v_lshl_add_u32 v{vT0}, v{vT1}, 6, v{vT0}
    v_lshl_add_u32 v{vTN0}, v{vHALF}, 10, v{vT0}
    v_lshl_add_u32 v{vTP0}, v{vHALF}, 9, v{vT0}
    v_xor_b32 v{vTN1}, 64, v{vTN0}
    v_xor_b32 v{vTP1}, 64, v{vTP0}
    s_lshl_b32 s62, s{sKH}, 6
    v_xor_b32 v{vR0}, s62, v{vTP0}
    v_xor_b32 v{vR0+1}, s62, v{vTP1}"""
    prepA = f"""s_mul_i32 s{sLK}, s{sW}, 6144
    s_add_u32 s{sLK}, s{sLK}, {L_K}
    s_lshl_b32 s61, s{sHEAD}, 6
    s_lshl_b32 s62, s{sRB}, 2
    s_mul_i32 s63, s{sW}, 3
    s_add_u32 s62, s62, s63
    s_sub_u32 s62, s62, 8"""
    for q in range(3):
        prepA += f"""
        s_add_u32 s63, s62, {q}
        s_add_u32 s64, s63, s61
        s_mul_i32 s64, s64, 1792
        s_add_u32 s64, s64, {KG}
        s_cmp_lt_i32 s63, 0
        s_cselect_b32 s{sK0+q}, {OOB}, s64"""
    prepA += f"""
    v_lshlrev_b32 v{vT0}, 9, v{vHALF}
    v_lshl_add_u32 v{vT0}, v{vL31}, 3, v{vT0}
    {put('QA', vT0)}
    s_lshl_b32 s61, s{sW}, 11
    s_add_u32 s61, s61, {L_K}
    v_add_u32 v{vT0}, s61, v{vT0}
    {put('KA', vT0)}
    v_mul_u32_u24 v{vT0}, 448, v{vHALF}
    v_lshl_add_u32 v{vT0}, v{vL31}, 4, v{vT0}
    {put('VS', vT0)}
    s_lshl_b32 s{sQO}, s{sTA}, 4
    s_add_u32 s{sQO}, s{sQO}, s{sHEAD}
    s_and_b32 s61, s{sQO}, 127
    s_lshl_b32 s61, s61, 2
    s_add_u32 s61, s61, s{sCTL}
    s_add_u32 s{sFO}, s61, {C_FO}
    s_lshl_b32 s{sQO}, s{sQO}, 11
    s_add_u32 s{sQO}, s{sQO}, {QO}
    v_min_u32 v{vT0}, 13, v{vL}
    v_and_b32 v{vT1}, 1, v{vT0}
    v_mul_u32_u24 v{vT1}, 27, v{vT1}
    s_mul_i32 s61, s{sHEAD}, 28
    v_add_u32 v{vT1}, s61, v{vT1}
    v_lshrrev_b32 v{vT2}, 6, v{vT1}
    v_bfe_u32 v{vT3}, v{vT0}, 1, 1
    v_mad_u32_u24 v{vT2}, v{vT3}, 7, v{vT2}
    v_lshrrev_b32 v{vT3}, 2, v{vT0}
    v_add_u32 v{vT3}, s62, v{vT3}
    v_max_i32 v{vT3}, 0, v{vT3}
    v_mad_u32_u24 v{vT2}, v{vT3}, 14, v{vT2}
    v_lshlrev_b32 v{vT2}, 7, v{vT2}
    v_add_u32 v{vT2}, {FKV}, v{vT2}
    v_lshrrev_b32 v{vT1}, 5, v{vT1}
    s_and_b32 s61, s{sTA}, 7
    s_lshl_b32 s61, s61, 6
    s_add_u32 s61, s61, s{sCTL}
    s_add_u32 s61, s61, {C_FQ}
    v_lshl_add_u32 v{vT1}, v{vT1}, 2, s61
    v_cmp_gt_u32 vcc, 12, v{vT0}
    v_cndmask_b32 v{vT0}, v{vT1}, v{vT2}, vcc
    {put('PA', vT0)}
    {panel_addr(120, 3584)}
    {put('P1a', 120)}
    {put('P1b', 121)}
    {put('P1c', 122)}
    {put('P1d', 123)}
    s_mul_i32 s{sWOL}, s{sW}, 14336
    s_bfe_u32 s61, s{sJ}, 0x10001
    s_lshl_b32 s{sW1C}, s{sJ}, 1
    s_add_u32 s{sW1C}, s{sW1C}, s61
    s_lshl_b32 s{sW1C}, s{sW1C}, 7
    s_xor_b32 s{sW1D}, s{sW1C}, 128
    s_mov_b32 s{sSTA}, 0
    s_lshl_b32 s61, s{sNB}, 1
    s_add_u32 s{sCT}, s61, s{sKH}
    s_lshl_b32 s61, s{sCT}, 7
    s_add_u32 s{sNUS}, s61, {NU}
    v_and_b32 v{vT0}, 7, v{vL}
    v_bfe_u32 v{vT1}, v{vL}, 3, 2
    v_min_u32 v{vT1}, 2, v{vT1}
    v_min_u32 v{vT2}, 1, v{vT1}
    v_add_u32 v{vT1}, v{vT1}, v{vT2}
    v_mul_u32_u24 v{vT1}, 1792, v{vT1}
    v_lshl_add_u32 v{vT1}, v{vT0}, 4, v{vT1}
    {put('NU', vT1)}"""
    kpad = f"v_mov_b32 v121, 0\nv_lshl_add_u32 v122, v{vL31}, 3, s{sLK}\ns_mov_b32 exec_hi, 0"
    for q in range(3): kpad += f"\ns_cmp_eq_u32 s{sK0+q}, {OOB}\ns_cselect_b32 s64, {NEG>>16:#x}, 0\nv_mov_b32 v120, s64\nds_write_b64 v122, v[120:121] offset:{2048*q+1792}"
    kpad += "\ns_mov_b64 exec, -1"
    vKS = 216; vQS = 224
    def b_pR():
        A(roles)
        A(f"""v_add_u32 v{vWQ}, {L_WQ}, v16
        v_lshrrev_b32 v{vPQ}, 2, v{vL}
        v_mul_u32_u24 v{vPQ}, 2688, v{vPQ}
        v_and_b32 v17, 3, v{vL}
        v_lshl_add_u32 v{vPQ}, v17, 4, v{vPQ}""")
        for i in range(1, 4): A(f"v_add_u32 v{vPQ+i}, {i*(16*2688-1024)}, v{vPQ}")
    def b_pF():
        A(f"""s_lshl_b32 s62, s{sR4}, 1
        s_add_u32 s62, s62, s{sNB}
        s_lshl_b32 s62, s62, 1
        s_add_u32 s62, s62, s{sG}
        s_mul_i32 s64, s62, 37
        s_lshr_b32 s64, s64, 8
        s_mul_i32 s64, s64, 7
        s_sub_u32 s62, s62, s64
        s_mul_i32 s63, s{sW}, 7""")
        for q in range(7):
            A(f"""s_add_u32 s64, s62, {q}
            s_cmp_ge_u32 s64, 7
            s_cselect_b32 s65, 7, 0
            s_sub_u32 s64, s64, s65
            s_add_u32 s64, s64, s63
            s_and_b32 s65, s64, 0xfe
            s_lshr_b32 s66, s64, 1
            s_and_b32 s66, s66, 2
            s_add_u32 s64, s64, s66
            s_add_u32 s{sFT+q}, s64, s65""")
    def b_pO():
        A(f"""v_mul_u32_u24 v{vROW}, 896, v{vL31}
        v_lshl_add_u32 v{vROW}, v{vHALF}, 4, v{vROW}
        s_mul_i32 s62, s{sTO}, 28672
        s_lshl_b32 s61, s{sCT}, 6
        s_add_u32 s{sROW}, s62, s61
    """)
        A(f"""s_lshl_b32 s61, s{sW}, 9
        s_add_u32 s61, s61, {L_VEC}
        v_lshl_add_u32 v{vVEC}, v{vHALF}, 4, s61
        v_lshl_add_u32 v{vT0}, v{vL31}, 4, s61
        {put('VW', vT0)}
        s_and_b32 s61, s{sTO}, 7
        s_lshl_b32 s61, s61, 6
        s_add_u32 s61, s61, s{sCTL}
        s_lshl_b32 s62, s{sKH}, 5
        s_add_u32 s61, s61, s62
        s_add_u32 s{sFOP}, s61, {C_FO}
        s_lshl_b32 s62, s{sTO}, 1
        s_add_u32 s62, s62, s{sKH}
        s_lshl_b32 s62, s62, 14
        s_add_u32 s{sOS}, s62, {QO}
        s_mul_i32 s{sSTS}, s{sTO}, 3584
        s_lshl_b32 s61, s{sNB}, 9
        s_add_u32 s{sSTS}, s{sSTS}, s61
        s_lshl_b32 s61, s{sKH}, 3
        s_add_u32 s{sSTS}, s{sSTS}, s61
        s_add_u32 s{sSTS}, s{sSTS}, {STATS}
    """)
        A(f"""s_mul_i32 s{sYS}, s{sTO}, 28672
        s_lshl_b32 s61, s{sCT}, 11
        s_add_u32 s{sYS}, s{sYS}, s61
        s_and_b32 s61, s{sTO}, 7
        s_lshl_b32 s61, s61, 4
        s_add_u32 s61, s61, s{sCT}
        s_lshl_b32 s61, s61, 2
        s_add_u32 s61, s61, s{sCTL}
        s_add_u32 s{sFY}, s61, {C_FY}""")
    def b_pQ():
        A(f"""s_and_b32 s61, s{sTQ}, 7
        s_lshl_b32 s61, s61, 6
        s_add_u32 s{sFHP}, s61, s{sCTL}
        s_lshl_b32 s62, s{sJ}, 2
        s_add_u32 s62, s62, s{sFHP}
        s_add_u32 s{sFQ}, s62, {C_FQ}
        s_mul_i32 s{sHS}, s{sTQ}, 28672
        s_mul_i32 s{sKVS}, s{sTQ}, 1792
        s_lshl_b32 s{sQS}, s{sTQ}, 15
        s_add_u32 s{sQS}, s{sQS}, {QO}
        s_mul_i32 s{sFKV}, s{sTQ}, 14
        s_add_u32 s{sFKV}, s{sFKV}, s{sJ}
        s_lshl_b32 s{sFKV}, s{sFKV}, 7
        s_add_u32 s{sFKV}, s{sFKV}, {FKV}
    """)
    def b_pS():
        A(f"""s_lshl_b32 s61, s{sJ}, 3""")
        for a_ in range(4):
            A(f"""v_add3_u32 v{vT0}, v{vHALF}, s61, {2*a_}
            v_mul_u32_u24 v{vT1}, 147, v{vT0}
            v_lshrrev_b32 v{vT1}, 10, v{vT1}
            v_add_lshl_u32 v{vT0}, v{vT0}, v{vT1}, 8
            v_lshl_add_u32 v{vQS+a_}, v{vL31}, 3, v{vT0}""")
        A(f"s_cmp_ge_u32 s{sJ}, 7\ns_cbranch_scc1 L_va\ns_lshl_b32 s61, s{sJ}, 4\ns_add_u32 s{sKVS}, s{sKVS}, {KG}")
        for i in range(8):
            A(f"""v_add3_u32 v{vT0}, v{vHALF}, s61, {2*i}
            v_mul_u32_u24 v{vT1}, 147, v{vT0}
            v_lshrrev_b32 v{vT1}, 10, v{vT1}
            v_mul_u32_u24 v{vT1}, {64*1792-7*256}, v{vT1}
            v_lshl_add_u32 v{vT0}, v{vT0}, 8, v{vT1}
            v_lshl_add_u32 v{vKS+i}, v{vL31}, 3, v{vT0}""")
        A(f"s_branch L_vb\nL_va:\ns_sub_u32 s61, s{sJ}, 7\ns_lshl_b32 s61, s61, 6\ns_add_u32 s{sKVS}, s{sKVS}, {VG}")
        for t in range(2):
            A(f"""v_add3_u32 v{vT0}, v{vL31}, s61, {32*t}
            v_lshrrev_b32 v{vT1}, 2, v{vT0}
            v_mul_u32_u24 v{vT1}, 147, v{vT1}
            v_lshrrev_b32 v{vT1}, 10, v{vT1}
            v_mul_u32_u24 v{vT1}, {64*1792-448}, v{vT1}
            v_lshl_add_u32 v{vT0}, v{vT0}, 4, v{vT1}
            v_mul_u32_u24 v{vT1}, 448, v{vHALF}
            v_add_u32 v{vKS+t}, v{vT0}, v{vT1}""")
        for i in range(2, 8): A(f"v_mov_b32 v{vKS+i}, 0")
        A("L_vb:")
    J.update(pR=lambda: [b_pR], pF=lambda: [b_pF], pO=lambda: [b_pO], pQ=lambda: [b_pQ], pS=lambda: [b_pS], pA=lambda: [lambda: (A(prepA), A(kpad), [lg.issue() for _ in range(3)])])
    A(hline)
    A(put('XA', 9))
    A(f"""v_lshlrev_b32 v{vL16}, 4, v{vL}
    v_lshrrev_b32 v{vHALF}, 5, v{vL}
    v_and_b32 v{vL31}, 31, v{vL}
    s_getreg_b32 s46, hwreg(HW_REG_XCC_ID, 0, 4)
    s_mov_b32 s{sUNI}, 0
    s_lshl_b32 s{sCTL}, s{sG}, 12
    s_add_u32 s{sCTL}, s{sCTL}, {CTL}
    v_and_b32 v30, 7, v{vL}
    v_lshrrev_b32 v31, 3, v{vL}
    v_xor_b32 v32, v30, v31
    v_lshlrev_b32 v32, 4, v32
    v_lshl_add_u32 v32, v30, 7, v32
    v_add_u32 v32, {L_X}, v32
    s_lshl_b32 s61, s{sW}, 10
    v_add_u32 v33, s61, v32
    s_mov_b32 s86, 0x07060500
    s_mov_b32 s87, 0x07060501
    s_mov_b32 s88, 0x07060502
    s_mov_b32 s89, 0x07060503
    s_add_u32 s61, s46, 1
    v_cvt_f32_u32 v18, s61
    s_lshl_b32 s61, s{sWG}, 7
    s_add_u32 s90, s61, {XCCG}
    s_mov_b32 s66, 0xffff0000
    s_cmp_eq_u32 s{sHLP}, 1
    s_cbranch_scc1 L_h2""")
    main = A.lines; A.lines = []; hist = A.hist; A.hist = []
    A("L_h2:")
    A(f"""v_lshrrev_b32 v20, 2, v{vL}
    v_bfe_u32 v21, v{vL}, 3, 2
    v_xor_b32 v21, s{sW}, v21
    v_lshlrev_b32 v21, 5, v21
    v_lshl_add_u32 v20, v20, 7, v21
    v_and_b32 v21, 3, v{vL}
    v_lshl_add_u32 v20, v21, 3, v20
    v_add_u32 v20, {L_B}, v20
    v_and_b32 v22, 48, v{vL}
    v_and_b32 v23, 1, v{vL}
    v_lshl_add_u32 v23, v23, 6, v22
    s_and_b32 s61, s{sUI}, 1
    s_mul_i32 s62, s61, 448
    s_add_u32 s62, s62, {L_SILU}
    v_add_u32 v21, s62, v22
    s_mul_i32 s61, s61, 56
    s_lshr_b32 s62, s{sUI}, 1
    s_lshl_b32 s62, s62, 2
    s_add_u32 s61, s61, s62
    s_add_u32 s61, s61, s{sW}
    s_lshl_b32 s61, s61, 7
    s_add_u32 s84, s61, {S0U}
    s_cmp_ge_u32 s{sUI}, 28
    s_cselect_b32 s84, {OOB}, s84
    s_lshl_b32 s{sHI}, s{sG}, 2
    s_add_u32 s{sHI}, s{sHI}, s{sM}
    s_sub_u32 s{sHI}, s{sHI}, 28
    v_bfe_u32 v24, v2, 1, 2
    v_and_b32 v25, 0xf1, v2
    v_lshl_add_u32 v25, v24, 2, v25
    v_bfe_u32 v24, v2, 3, 1
    v_lshl_add_u32 v25, v24, 1, v25
    v_lshlrev_b32 v25, 2, v25
    v_add_u32 v25, {L_SILU}, v25
    s_waitcnt vmcnt(10)
    v_lshlrev_b32 v26, 16, v8
    v_and_b32 v27, 0xffff0000, v8
    v_mul_f32 v28, 0xbfb8aa3b, v26
    v_mul_f32 v29, 0xbfb8aa3b, v27
    v_exp_f32 v28, v28
    v_exp_f32 v29, v29
    v_add_f32 v28, 1.0, v28
    v_add_f32 v29, 1.0, v29
    v_rcp_f32 v28, v28
    v_rcp_f32 v29, v29
    v_mul_f32 v26, v26, v28
    v_mul_f32 v27, v27, v29
    v_cvt_pk_bf16_f32 v26, v26, v27
    ds_write_b32 v25, v26
    s_waitcnt lgkmcnt(0)
    s_mul_i32 s{sTAG}, s{sTAG}, 0x9E3779B1
    s_add_u32 s{sTAG}, s{sTAG}, 0x7F4A7C15
    v_mov_b32 v{vTAG}, s{sTAG}
    s_waitcnt vmcnt(3)""")
    barrier()
    stamp("B1")
    lg.n = lg.done = 0
    toks = []
    for s_ in range(7):
        DS(f"ds_read_b128 v[{140+4*s_}:{143+4*s_}], v21 offset:{64*s_}")
        DS(f"ds_read_b64_tr_b16 v[{168+4*s_}:{169+4*s_}], v20 offset:{4096*s_}")
        toks.append(DS(f"ds_read_b64_tr_b16 v[{170+4*s_}:{171+4*s_}], v20 offset:{4096*s_+2048}"))
    for s_ in range(7):
        lg.wait(toks[s_])
        A(f"v_mfma_f32_16x16x32_bf16 v[24:27], v[{168+4*s_}:{171+4*s_}], v[{140+4*s_}:{143+4*s_}], {'0' if s_ == 0 else 'v[24:27]'}")
    A(f"""s_mov_b32 exec_lo, {0x00030003 if 's' in full else 0x00010001}
    s_mov_b32 exec_hi, exec_lo
    v_perm_b32 v24, v24, v{vTAG}, s86
    v_perm_b32 v25, v25, v{vTAG}, s87
    v_perm_b32 v26, v26, v{vTAG}, s88
    v_perm_b32 v27, v27, v{vTAG}, s89
    buffer_store_dwordx4 v[24:27], v23, {WS}, s84 offen sc1
    s_mov_b64 exec, -1""")
    stamp("gemv")
    xcc = lambda l: f"""s_cmp_lg_u32 s{sW}, 0
    s_cbranch_scc1 {l}
    v_perm_b32 v136, v18, v{vTAG}, s86
    v_perm_b32 v137, v18, v{vTAG}, s87
    v_perm_b32 v138, v18, v{vTAG}, s88
    v_perm_b32 v139, v18, v{vTAG}, s89
    s_mov_b64 exec, {0xff if 'x' in full else 1}
    buffer_store_dwordx4 v[136:139], v{vL16}, {WS}, s90 offen sc1
    s_mov_b64 exec, -1
    {l}:"""
    A(xcc("L_nx1"))
    A(f"""s_lshl_b32 s85, s{sHI}, 2
    s_add_u32 s85, s85, s{sW}
    s_lshl_b32 s61, s85, 8
    s_add_u32 s61, s61, {CTL}
    v_and_b32 v11, 1, v{vL}
    v_lshlrev_b32 v11, 7, v11
    buffer_load_dword v{vJUNK}, v11, {WS}, s61 offen sc1
    buffer_load_dword v{vJUNK}, v77, {OUT}, s98 offen sc1""")
    sv = (vm.n, vm.done); h0 = jobs(hp0, HJ); nh0 = len(h0); run(h0, 99); vm.n, vm.done = sv
    A(f"s_cmp_eq_u32 s{sW}, 0\ns_cbranch_scc1 L_hx\ns_waitcnt vmcnt({3+nh0})\nL_hx:\ns_waitcnt vmcnt({4+nh0})")
    barrier()
    A("s_branch L_w3")
    tail.append(("raw", A.lines)); A.lines = main; A.hist = hist
    run(jobs(a1), 99)
    A(f"""s_waitcnt lgkmcnt(0)
    s_mul_i32 s{sTAG}, s{sTAG}, 0x9E3779B1
    s_add_u32 s{sTAG}, s{sTAG}, 0x7F4A7C15
    v_mov_b32 v{vTAG}, s{sTAG}
""")
    if warm and stop > 5: A("s_branch L_pg"); A.raw("    .p2align 12"); A("L_pg:")
    vm.wait(tx)
    barrier()
    stamp("B0")
    A(xcc("L_nx2"))
    run(jobs(a2), 99)
    A("L_w3:\ns_mov_b32 s66, 0xffff0000")
    lg.n = lg.done = 0
    tk = [DS(f"ds_read_b128 v[{40+4*i}:{43+4*i}], v32 offset:{1024*i}") for i in range(7)]
    DS("ds_read_b128 v[68:71], v33"); town = DS("ds_read_b128 v[72:75], v33 offset:4096")
    for i in range(7):
        lg.wait(tk[i])
        for d in range(4):
            A(f"v_lshlrev_b32 v{80+8*i+2*d}, 16, v{40+4*i+d}\nv_and_b32 v{81+8*i+2*d}, s66, v{40+4*i+d}")
    A.raw("    .p2align 3")
    A("v_pk_add_f32 v[34:35], v[80:81], v[82:83]")
    for i in range(2, 28): A(f"v_pk_add_f32 v[34:35], v[34:35], v[{80+2*i}:{81+2*i}]")
    def red8(r):
        A(f"""v_add_f32_dpp v{r}, v{r}, v{r} row_ror:8 row_mask:0xf bank_mask:0xf
        v_mov_b32 v{vT0}, v{r}
        v_permlane16_swap_b32 v{r}, v{vT0}
        v_add_f32 v{r}, v{r}, v{vT0}
        v_mov_b32 v{vT0}, v{r}
        v_permlane32_swap_b32 v{r}, v{vT0}
        v_add_f32 v{r}, v{r}, v{vT0}""")
    A("v_add_f32 v34, v34, v35"); red8(34)
    A("v_mul_f32 v34, 0xbb124925, v34\nv_mov_b32 v35, v34")
    A.raw("    .p2align 3")
    for i in range(28): A(f"v_pk_add_f32 v[{80+2*i}:{81+2*i}], v[{80+2*i}:{81+2*i}], v[34:35]")
    A("v_pk_mul_f32 v[36:37], v[80:81], v[80:81]")
    for i in range(1, 28): A(f"v_pk_fma_f32 v[36:37], v[{80+2*i}:{81+2*i}], v[{80+2*i}:{81+2*i}], v[36:37]")
    A("v_add_f32 v36, v36, v37"); red8(36)
    A("v_mov_b32 v37, 0x3727c5ac\nv_fmac_f32 v37, 0x3b124925, v36\nv_rsq_f32 v36, v37")
    lg.wait(town)
    for d in range(8):
        A(f"v_lshlrev_b32 v{40+2*d}, 16, v{68+d}\nv_and_b32 v{41+2*d}, s66, v{68+d}")
    A("v_mov_b32 v37, v36")
    for d in range(8): A(f"v_pk_add_f32 v[{40+2*d}:{41+2*d}], v[{40+2*d}:{41+2*d}], v[34:35]")
    for d in range(8): A(f"v_pk_mul_f32 v[{40+2*d}:{41+2*d}], v[{40+2*d}:{41+2*d}], v[36:37]")
    A(f"""v_lshrrev_b32 v62, 2, v0
    v_lshlrev_b32 v62, 7, v62
    v_and_b32 v56, 3, v0
    v_lshl_add_u32 v62, v56, 4, v62
    v_add_u32 v56, {56*128}, v62
    s_lshl_b32 s61, s{sG}, 12
    s_add_u32 s61, s61, {XCCG-S0U}
    v_lshl_add_u32 v57, v{vL31}, 7, s61
    v_cmp_gt_u32 vcc, 224, v0
    v_cndmask_b32 v62, v57, v62, vcc
    v_cndmask_b32 v56, v57, v56, vcc
    v_lshlrev_b32 v57, 4, v0
    v_add_u32 v57, {L_MODV}, v57
    v_cmp_le_u32 vcc, 112, v0
    v_cndmask_b32 v63, 0, 1.0, vcc
    s_lshl_b32 s61, s{sW}, 8
    s_add_u32 s61, s61, {L_MODV}
    v_lshl_add_u32 v58, v31, 5, s61
    v_lshlrev_b32 v59, 4, v{vL31}
    v_add_u32 v59, {L_MODV+3584}, v59
    v_lshlrev_b32 v60, 9, v31
    v_lshl_add_u32 v60, v30, 4, v60
    v_fma_f32 v76, v18, 2.0, 1.0
    s_lshl_b32 s46, s{sM}, 2
    s_add_u32 s46, s46, s{sW}
    s_lshl_b32 s46, s46, 2
    s_add_u32 s46, s46, s{sCTL}""")
    stamp("stats")
    A(f"s_cmp_eq_u32 s{sHLP}, 1\ns_cbranch_scc1 L_w4")
    run(jobs(a3), 99)
    assert not wkv
    A("L_w4:")
    if warm and stop > 5: A.raw("WARM a")
    stamp("prep")
    if 'drain' in dbg: vm.all(); stamp("drain")
    A(f"""s_mov_b32 s{sCNT}, 0
    s_mov_b32 s61, {S0U}
    s_mov_b32 s64, 0x0c0c0400
    s_mov_b32 s65, 0x05040100
    L_s0:
    buffer_load_dwordx4 v[64:67], v62, {WS}, s61 offen sc1
    buffer_load_dwordx4 v[68:71], v56, {WS}, s61 offen sc1
    s_add_u32 s{sCNT}, s{sCNT}, 1
    s_cmp_ge_u32 s{sCNT}, {SPIN}
    s_cbranch_scc1 L_s0d
    s_waitcnt vmcnt(1)
    v_perm_b32 v72, v65, v64, s64
    v_perm_b32 v73, v67, v66, s64
    v_perm_b32 v72, v73, v72, s65
    v_cmp_ne_u32 s[62:63], s{sTAG}, v72
    s_waitcnt vmcnt(0)
    v_perm_b32 v74, v69, v68, s64
    v_perm_b32 v75, v71, v70, s64
    v_perm_b32 v74, v75, v74, s65
    v_cmp_ne_u32 vcc, s{sTAG}, v74
    s_or_b64 vcc, vcc, s[62:63]
    s_cbranch_vccnz L_s0
    L_s0d:
    s_waitcnt vmcnt(0)""")
    if stamps: A(f"v_writelane_b32 v{vST}, s{sCNT}, 62")
    stamp("s0p")
    for r in range(64, 72): A(f"v_and_b32 v{r}, 0xffffff00, v{r}")
    A(f"""v_pk_add_f32 v[64:65], v[64:65], v[68:69]
    v_pk_add_f32 v[66:67], v[66:67], v[70:71]
    v_cvt_pk_bf16_f32 v68, v64, v65
    v_cvt_pk_bf16_f32 v69, v66, v67
    v_lshlrev_b32 v64, 16, v68
    v_and_b32 v65, 0xffff0000, v68
    v_lshlrev_b32 v66, 16, v69
    v_and_b32 v67, 0xffff0000, v69
    v_add_f32 v64, v64, v63
    v_add_f32 v65, v65, v63
    v_add_f32 v66, v66, v63
    v_add_f32 v67, v67, v63
    v_cvt_pk_bf16_f32 v68, v64, v65
    v_cvt_pk_bf16_f32 v69, v66, v67
    v_lshlrev_b32 v64, 16, v68
    v_and_b32 v65, 0xffff0000, v68
    v_lshlrev_b32 v66, 16, v69
    v_and_b32 v67, 0xffff0000, v69
    ds_write_b128 v57, v[64:67]
    s_waitcnt lgkmcnt(0)""")
    vm.drained(); lg.drained()
    barrier()
    stamp("S0")
    t0 = []
    for p in range(2):
        for q in range(2):
            DS(f"ds_read_b128 v[{80+16*p+4*q}:{83+16*p+4*q}], v58 offset:{1792+1024*p+16*q}")
            t0.append(DS(f"ds_read_b128 v[{88+16*p+4*q}:{91+16*p+4*q}], v58 offset:{1024*p+16*q}"))
    txc = DS("ds_read_b32 v61, v59")
    for p in range(2):
        for q in range(2):
            lg.wait(t0[2 * p + q])
            for e in range(0, 4, 2):
                r = 40 + 8 * p + 4 * q + e
                A(f"v_pk_fma_f32 v[{r}:{r+1}], v[{r}:{r+1}], v[{80+16*p+4*q+e}:{81+16*p+4*q+e}], v[{88+16*p+4*q+e}:{89+16*p+4*q+e}]")
        for d in range(4): A(f"v_cvt_pk_bf16_f32 v{112+4*p+d}, v{40+8*p+2*d}, v{41+8*p+2*d}")
        th = VM(f"buffer_store_dwordx4 v[{112+4*p}:{115+4*p}], v60, {OUT}, s{98+p} offen")
    lg.wait(txc)
    A(f"v_cmp_neq_f32 vcc, v76, v61\ns_cmp_eq_u64 vcc, 0\ns_cselect_b32 s{sUNI}, {0 if force_slow else 1}, 0")
    A(f"s_cmp_eq_u32 s{sHLP}, 1\ns_cbranch_scc1 L_help")

    run(jobs(a5), 99)
    ACC = 112; WB = 160
    tw = {}
    def ld(s_):
        b = WB + 8 * (s_ % 4); js = []
        tw[s_] = Tok()
        for t in range(2):
            js.append(jDS(f"ds_read_b64_tr_b16 v[{b+4*t}:{b+4*t+1}], v{vTN0-t} offset:{L_WKV+2048*s_}"))
            js.append(jDS(f"ds_read_b64_tr_b16 v[{b+4*t+2}:{b+4*t+3}], v{vTN0-t} offset:{L_WKV+2048*s_+512}", tw[s_]))
        return js
    for s_ in range(3): run(ld(s_), 4)
    vm.wait(th)
    flag(46)
    stamp("hpub")
    def warmbc(extra=""):
        A(f"s_cmp_eq_u32 s{sHLP}, 2\ns_cbranch_scc1 L_wc")
        if warm and stop > 5: A.raw("WARM b")
        A("s_branch L_wd\nL_wc:")
        n0 = vm.n; run(jobs(extra), 99); assert vm.n == n0
        if warm and stop > 5: A.raw("WARM c")
        A("L_wd:")
    run(jobs(a6), 99)
    if wlate == 'a6': warmbc(kw2)
    A(f"""v_and_b32 v{vT3}, 15, v{vL}
    v_lshlrev_b32 v{vT3}, 2, v{vT3}""")
    poll(vT3, f"s{sFHP}")
    stamp("S0b")
    if stop <= 1:
        A("s_branch L_fin\nL_help:\ns_waitcnt vmcnt(0)"); flag(46); return done()
    th = [Tok() for _ in range(28)]
    def hjobs(): return [jVM(f"buffer_load_dwordx4 v[{4*s_}:{4*s_+3}], v{vL16}, {OUT}, s{sHS} offen offset:{1024*(s_%4)} sc1", th[s_], f"s_add_u32 s{sHS}, s{sHS}, 4096" if (s_ % 4 == 0 and s_) else None) for s_ in range(28)]
    run(hjobs(), PRO)
    run(jobs(a7), 99)
    tQ = Tok()
    vP1 = 222
    getP1 = "\n".join(get(n_, vP1 + i) for i, n_ in enumerate(("P1a", "P1b", "P1c", "P1d")))
    def w1_jobs(second, per, first, tok=None, vp=None, shift=False):
        return dma_jobs(W1, vp or vP1, 3584, per, f"s_mul_i32 s{sSRC}, s{sW}, {per*1024}\ns_add_u32 m0, s{sSRC}, {(L_P1 if second else L_P0)+first*1024}\n{'s_add_u32 m0, m0, s%d' % sSTA if shift else ''}\ns_mul_i32 s{sSRC}, s{sSRC}, 28\ns_add_u32 s{sSRC}, s{sSRC}, s{sW1D if second else sW1C}" + (f"\ns_add_u32 s{sSRC}, s{sSRC}, {first*8*3584}" if first else ""), tok)
    def zfill(k, half=False):
        return [jVM(f"buffer_load_dword v{vJUNK}, v{vT3}, {W2}, s65 offen", None, f"""s_and_b32 s66, s{sG}, 1
        s_xor_b32 s66, s66, {k&1}
        s_lshl_b32 s66, s66, 2
        s_add_u32 s66, s66, s{sW}
        s_mul_i32 s66, s66, 7168
        s_mul_i32 s65, s{sJ}, 114688
        s_add_u32 s65, s65, s66
        s_bitcmp{0 if k >> 1 else 1}_b32 s{sJ}, 1
        s_cselect_b32 s66, 57344, 0
        s_add_u32 s65, s65, s66
        {'s_mul_i32 s66, s%d, 3584' % sPSW if half else ''}
        {'s_add_u32 s65, s65, s66' if half else ''}
        v_min_u32 v{vT3}, {27 if half else 55}, v{vL}
        v_lshlrev_b32 v{vT3}, 7, v{vT3}""")]
    J.update({f"Z{k}": (lambda k=k: zfill(k)) for k in range(4)}); J["_"] = lambda: [lambda: None]
    J.update({f'Y{k}': (lambda k=k: zfill(k, True)) for k in range(4)})
    def rsplit():
        l1, l2 = U("rs"), U("rs")
        A(f"s_cmp_eq_u32 s{sHLP}, 2\ns_cbranch_scc1 {l1}")
        A("\n".join(get(n_, 229 + i) for i, n_ in enumerate(("P1a", "P1b", "P1c", "P1d"))))
        n0 = vm.n; run(w1_jobs(1, 5, 0, vp=229), 9)
        while vm.n < n0 + 5: VM(f"buffer_load_dword v{vJUNK}, off, {WS}, 0")
        vm.n = n0
        A(f"s_branch {l2}\n{l1}:"); run(J["XT"](), 9); A(f"{l2}:")
    J["RS"] = lambda: [rsplit]
    S = 0; MK = 192
    def masks():
        A(f"v_lshlrev_b32 v{vT0}, 2, v{vHALF}\nv_sub_u32 v{vT0}, v{vL31}, v{vT0}\nv_mov_b32 v{vT1}, {NEG:#x}")
        mk = (62, 64, 80, 100) if not (stamps or meas) else (62, 64, 80, 82)
        for r in range(16):
            i0 = 8 * (r >> 2) + (r & 3)
            A(f"v_cmp_gt_i32 s[{mk[r&3]}:{mk[r&3]+1}], {i0}, v{vT0}")
            if r & 3 == 3:
                for q in range(4):
                    A(f"v_cndmask_b32 v{S+128+r-3+q}, 0, v{vT1}, s[{mk[q]}:{mk[q]+1}]")
                    A(f"v_cndmask_b32 v{S+r-3+q}, v{vT1}, 0, s[{mk[q]}:{mk[q]+1}]")
        if merge:
            A("s_mov_b32 s62, 0x07060302")
            for d in range(8): A(f"v_perm_b32 v{MK+d}, v{S+2*d+1}, v{S+2*d}, s62\nv_pk_ashrrev_i16 v{MK+d}, 15, v{MK+d} op_sel_hi:[0,1]")
    def kv_pass(vtype):
        sv = (vm.n, vm.done, lg.n, lg.done)
        mem = hjobs()[PRO:]
        mem += jobs(kvt); bulk = mem[28:] + jobs(qp); mem = mem[:28]
        tq = {}
        def ldq(s_):
            b = WB + 4 * (s_ % 8); tq[s_] = Tok()
            return [jDS(f"ds_read_b64_tr_b16 v[{b}:{b+1}], v{vWQ} offset:{1024*s_}"), jDS(f"ds_read_b64_tr_b16 v[{b+2}:{b+3}], v{vWQ} offset:{1024*s_+256}", tq[s_])]
        for s_ in range(28):
            vm.wait(th[s_].t); lg.wait(tw[s_].t)
            if s_ == 26: vm.wait(twq.t); barrier()
            b = WB + 8 * (s_ % 4)
            nx = ld(s_ + 3) if s_ + 3 < 28 else (ldq(2 * (s_ - 26)) + ldq(2 * (s_ - 26) + 1) if s_ >= 26 else [])
            for t in range(2):
                wf, hf = v(b + 4 * t, 4), v(4 * s_, 4)
                c = "0" if s_ == 0 else None
                if vtype: mfma(v(ACC + 16 * t, 16), hf, wf, c)
                else: mfma(v(ACC + 16 * t, 16), wf, hf, c)
                if t == 0:
                    run(mem, 1); run(nx, 1)
                else: run(nx, 3)
            if 'fine' in dbg and s_ in (0, 9, 18): stamp(f'k{s_}')
        stamp("kv")
        epi = []; last = Tok(); kva = KVV if (vtype and KVV is not None) else KVA
        for t in range(2):
            P = 192 + 8 * t
            for d in range(8):
                epi.append(f"v_cvt_pk_bf16_f32 v{P+d}, v{ACC+16*t+2*d}, v{ACC+16*t+2*d+1}")
                if vtype and d % 4 == 3: epi.append(jVM(f"buffer_store_dwordx4 v[{P+d-3}:{P+d}], v{vKS+t}, {WS}, s{sKVS} offen offset:{896*(d//4)} sc1", last))
                if not vtype and d % 2 == 1: epi.append(jVM(f"buffer_store_dwordx2 v[{P+d-1}:{P+d}], v{vKS+4*t+d//2}, {WS}, s{sKVS} offen sc1", last))
        for s_ in range(28):
            lg.wait(tq[s_].t)
            b = WB + 4 * (s_ % 8)
            mfma(v(ACC + 32, 16), v(b, 4), v(4 * s_, 4), "0" if s_ == 0 else None)
            if s_ + 4 < 28: run(ldq(s_ + 4), 2)
            if epi:
                if s_ >= (max(1, VD) if vtype else 1): run(epi, EB)
            elif s_ >= QB and (len(bulk) >= 28 - s_ or s_ % 2 == 0): run(bulk, 1)
            if s_ == 8: barrier()
            if s_ == kva: vm.wait(last.t); flag(sFKV, slow=True)
        run(bulk, 99)
        A(f"s_mov_b32 s61, {QSCALE:#x}")
        for d in range(8):
            A(f"v_mul_f32 v{ACC+32+2*d}, s61, v{ACC+32+2*d}\nv_mul_f32 v{ACC+33+2*d}, s61, v{ACC+33+2*d}\nv_cvt_pk_bf16_f32 v{208+d}, v{ACC+32+2*d}, v{ACC+33+2*d}")
            if d % 2 == 1: tQ.t = VM(f"buffer_store_dwordx2 v[{207+d}:{208+d}], v{vQS+d//2}, {WS}, s{sQS} offen")
        stamp("q")
        if kva > 27: vm.wait(last.t); flag(sFKV, slow=True)
        stamp("kvpub")
        if mlate == 'q': masks()
        vm.wait(tQ.t); flag(sFQ)
        stamp("qpub")
        vm.n, vm.done, lg.n, lg.done = sv
    A(f"s_cmp_ge_u32 s{sJ}, 7\ns_cbranch_scc1 L_kvV")
    e0 = kv_pass(False)
    A("s_branch L_kvE\nL_kvV:")
    e1 = kv_pass(True)
    A("L_kvE:")
    vm.n = vm.done = 0; lg.n = lg.done = 0
    def wo_half(second):
        return dma_jobs(WO, vPAN, 896, 8, f"""s_bitcmp{1 if second else 0}_b32 s{sR4}, 0
        s_cselect_b32 s65, 0, 7168
        s_add_u32 s65, s65, s{sWOL}
        s_mov_b32 m0, s65
        s_mul_i32 s{sSRC}, s65, 7
        s_add_u32 s{sSRC}, s{sSRC}, s{sCOL}""")
    slot = {}; nxt = [0]; nb1 = [5 if 'RS' in used else 0]; na1 = [0]
    def wa_(n):
        na1[0] += n; return w1_jobs(0, n, 4 * (na1[0] - n), shift=True)
    def stage(k):
        assert k not in slot
        slot[k] = (nxt[0], Tok()); nxt[0] += 1
        return w2_dma(slot[k][0], sEX, BLK * k, slot[k][1])
    def wb(n):
        nb1[0] += n; return w1_jobs(1, n, 4 * (nb1[0] - n))
    J["XU"] = lambda: [jVM(f"global_load_dwordx2 a[{aB2}:{aB2+1}], v{vT3}, s[42:43]", None, f"s_lshl_b32 s65, s{sCT}, 6\nv_and_b32 v{vT3}, 7, v{vL}\nv_lshl_add_u32 v{vT3}, v{vT3}, 3, s65"),
                       jVM(f"buffer_load_dwordx4 v{vT3}, {X}, s65 offen lds", None, f"{get('XA', vT3)}\ns_and_b32 s65, s{sTO}, 0xfe\ns_lshl_b32 s65, s65, 1\ns_add_u32 s65, s65, s{sW}\ns_mul_i32 s65, s65, 14336\ns_add_u32 s65, s65, s{sCOL}\ns_lshl_b32 s66, s{sW}, 11\ns_add_u32 m0, s66, {L_XT}"),
                       jVM(f"buffer_load_dwordx4 v{vT3}, {X}, s65 offen offset:1024 lds", None, "s_add_u32 s65, s65, 6144"),
                       jVM(f"buffer_load_dwordx4 v{vT3}, {X}, s65 offen lds", None, f"s_add_u32 m0, m0, 8192\ns_add_u32 s65, s65, {114688-6144}"),
                       jVM(f"buffer_load_dwordx4 v{vT3}, {X}, s65 offen offset:1024 lds", None, "s_add_u32 s65, s65, 6144")]
    J['B2'] = lambda: J['XU']()[:1]
    vNU = 228
    J.update(O0=lambda: wo_half(0), O1=lambda: wo_half(1), **{f'Wa{n}': (lambda n=n: wa_(n)) for n in range(1, 11)},
             NU=lambda: [jVM(f"buffer_load_dwordx4 v[{vNU}:{vNU+3}], v232, {WS}, s{sNUS} offen sc1")],
             **{f"Wb{n}": (lambda n=n: wb(n)) for n in range(1, 11)}, **{f"S{k}": (lambda k=k: stage(k)) for k in range(9)})
    A(f"s_cmp_eq_u32 s{sHLP}, 2\ns_cbranch_scc1 L_p42")
    if p41: A(getP1)
    run(jobs(p41), 99)
    A("s_branch L_att\nL_p42:")
    run(jobs(p42), 99)
    A("s_branch L_att")
    A("L_help:")
    A("s_waitcnt vmcnt(0)")
    flag(46)
    A(f"""s_lshl_b32 s85, s{sHI}, 2
    s_add_u32 s85, s85, s{sW}
    s_mul_i32 s61, s85, 896
    s_add_u32 s61, s61, {FKV}
    v_min_u32 v11, 6, v{vL}
    v_lshlrev_b32 v11, 7, v11""")
    if fkt: A(f"buffer_load_dword v{vJUNK}, v11, {WS}, s61 offen sc1")
    run(jobs(hp1, HJ), 99)
    A(panel_addr(4, 5376, "mod"))
    nuj = dma_jobs(WMOD, 4, 5376, 14, f"s_add_u32 s62, s{sHI}, 14\ns_lshl_b32 s{sSRC}, s62, 7\ns_mul_i32 s63, s{sW}, {112*5376}\ns_add_u32 s{sSRC}, s{sSRC}, s63\ns_cmp_eq_u32 s{sG}, 7\ns_cselect_b32 s{sSRC}, {OOB}, s{sSRC}\ns_mul_i32 s63, s{sW}, 14336\ns_add_u32 m0, s63, {L_B}")
    run(nuj, 8)
    A(roles); A(prepA)
    if 'QP' in used: run(jobs('QP'), 9)
    run(nuj, 99)
    A(f"s_mov_b32 s{sW1D}, {OOB}\ns_mov_b32 s{sW1C}, {OOB}\ns_mov_b32 s{sSTA}, {L_P1}\ns_cmp_eq_u32 s{sG}, 7\ns_cbranch_scc1 L_hn")
    A(panel_addr(4, 3584, "mod"))
    w1h = dma_jobs(W1, 4, 3584, 14, f"s_lshl_b32 s{sSRC}, s{sHI}, 7\ns_mul_i32 s63, s{sW}, {112*3584}\ns_add_u32 s{sSRC}, s{sSRC}, s63\ns_mul_i32 m0, s{sW}, 14336")
    run(w1h, 8)
    A(f"v_add_u32 v21, {L_SILU}, v22\ns_waitcnt vmcnt(8)")
    barrier()
    def gemv14(va, vb):
        lg.n = lg.done = 0
        toks = []
        def gemv_ld(s_):
            b = 32 + 8 * (s_ % 5)
            DS(f"ds_read_b128 v[{b}:{b+3}], v{va} offset:{64*s_}")
            DS(f"ds_read_b64_tr_b16 v[{b+4}:{b+5}], v{vb} offset:{4096*s_}")
            toks.append(DS(f"ds_read_b64_tr_b16 v[{b+6}:{b+7}], v{vb} offset:{4096*s_+2048}"))
        for s_ in range(4): gemv_ld(s_)
        for s_ in range(14):
            lg.wait(toks[s_])
            b = 32 + 8 * (s_ % 5)
            A(f"v_mfma_f32_16x16x32_bf16 v[24:27], v[{b}:{b+3}], v[{b+4}:{b+7}], {'0' if s_ == 0 else 'v[24:27]'}")
            if s_ + 4 < 14: gemv_ld(s_ + 4)
    gemv14(21, 20)
    A(f"""s_sub_u32 s61, s{sHI}, 14
    s_cmp_lt_u32 s61, 7
    s_cselect_b32 s62, 1.0, 0
    s_lshl_b32 s61, s{sHI}, 8
    s_lshl_b32 s63, s{sW}, 6
    s_add_u32 s61, s61, s63
    s_add_u32 s61, s61, {NU}
    v_lshlrev_b32 v23, 2, v{vL}
    v_cvt_pk_bf16_f32 v24, v24, v24
    v_and_b32 v24, 0xffff0000, v24
    v_add_f32 v24, s62, v24
    v_mov_b32 v29, s{sTAG}
    v_mov_b32_dpp v25, v24 quad_perm:[1,0,3,2] row_mask:0xf bank_mask:0xf
    v_cvt_pk_bf16_f32 v28, v24, v25
    s_mov_b64 exec, 0x5555
    buffer_store_dwordx2 v[28:29], v23, {WS}, s61 offen sc1
    s_mov_b64 exec, -1""")
    run(w1h, 99)
    A("s_branch L_hn2\nL_hn:\ns_waitcnt vmcnt(0)")
    run(jobs(h7, HJ), 99)
    A("L_hn2:")
    barrier()
    A(kpad)
    A(f"""s_mul_i32 s61, s85, 1792
    s_add_u32 s61, s61, {STATS}
    v_min_u32 v11, 13, v{vL}
    v_lshlrev_b32 v11, 7, v11
    buffer_load_dword v{vJUNK}, v11, {WS}, s61 offen sc1""")
    run(jobs(hp2, HJ), 99)
    A(f"""s_lshl_b32 s61, s{sW}, 6
    v_add_u32 v4, s61, v{vL}
    v_add_u32 v5, 256, v4
    v_min_u32 v5, 447, v5
    s_lshl_b32 s85, s{sHI}, 2
    s_add_u32 s85, s85, s{sW}
    s_min_u32 s62, s85, 111
    s_lshl_b32 s62, s62, 5
    v_and_b32 v16, 15, v{vL}
    v_lshl_add_u32 v17, v16, 1, s62
    global_load_ushort v18, v17, s[40:41]""")
    for r, d in ((4, 6), (5, 7)):
        A(f"""v_and_b32 v{d}, 0x1f8, v{r}
        v_and_b32 v{vT0}, 3, v{r}
        v_lshl_add_u32 v{d}, v{vT0}, 1, v{d}
        v_bfe_u32 v{vT0}, v{r}, 2, 1
        v_add_lshl_u32 v{d}, v{d}, v{vT0}, 3
        v_add_u32 v{d}, {L_VEC}, v{d}
        v_lshlrev_b32 v{r}, 4, v{r}""")
    A(f"""s_mov_b32 s{sCNT}, 0
    s_mov_b32 s61, {NU}
    L_nu:
    buffer_load_dwordx4 v[8:11], v4, {WS}, s61 offen sc1
    buffer_load_dwordx4 v[12:15], v5, {WS}, s61 offen sc1
    s_add_u32 s{sCNT}, s{sCNT}, 1
    s_waitcnt vmcnt(0)
    v_cmp_ne_u32 vcc, s{sTAG}, v9
    v_cmp_ne_u32 s[62:63], s{sTAG}, v11
    v_cmp_ne_u32 s[64:65], s{sTAG}, v13
    v_cmp_ne_u32 s[82:83], s{sTAG}, v15
    s_or_b64 vcc, vcc, s[62:63]
    s_or_b64 s[64:65], s[64:65], s[82:83]
    s_or_b64 vcc, vcc, s[64:65]
    s_cbranch_vccz L_nud
    s_cmp_lt_u32 s{sCNT}, {SPIN}
    s_cbranch_scc1 L_nu
    L_nud:
    v_mov_b32 v9, v10
    v_mov_b32 v13, v14
    ds_write_b64 v6, v[8:9]
    ds_write_b64 v7, v[12:13]
    v_lshrrev_b32 v20, 2, v{vL}
    v_bfe_u32 v21, v{vL}, 3, 2
    v_xor_b32 v21, s{sW}, v21
    v_lshlrev_b32 v21, 5, v21
    v_lshl_add_u32 v20, v20, 7, v21
    v_and_b32 v21, 3, v{vL}
    v_lshl_add_u32 v20, v21, 3, v20
    v_add_u32 v20, {L_P0}, v20
    v_and_b32 v21, 1, v{vL}
    v_mul_u32_u24 v21, 896, v21
    v_and_b32 v22, 48, v{vL}
    v_sub_u32 v21, v22, v21
    v_add_u32 v21, {L_VEC+1792}, v21
    s_waitcnt lgkmcnt(0)""")
    if mlate == 'q': masks()
    if hq:
        A(f"{get('PA', vT3)}\nv_readlane_b32 s61, v{vT3}, 12\nv_readlane_b32 s62, v{vT3}, 13\nv_mov_b32 v{vT3}, s61\nv_writelane_b32 v{vT3}, s62, 1")
        poll(vT3, "0")
    A("L_att:")
    if stop <= 2: return done()

    S = 0; QF = 144; KB = 152; OA = 184; VB = 200; MK = 192
    vKA, vVA, vVS, vQA, vMX = 216, 217, 218, 219, 226
    vm.n = vm.done = 0; lg.n = lg.done = 0
    A(f"{get('PA', vT3)}\n{get('QA', vQA)}\n{get('VS', vVS)}")
    if not mlate: masks()
    if not wlate: warmbc()
    stamp("pre1")
    if VD:
        A(f"""v_cmp_gt_u32 vcc, 12, v{vL}
        v_bfe_u32 v{vT0}, v{vL}, 1, 1
        v_mul_u32_u24 v{vT0}, 896, v{vT0}
        v_mov_b32 v221, v{vT3}
        v_cndmask_b32 v{vT0}, 0, v{vT0}, vcc
        v_sub_u32 v{vT3}, v{vT3}, v{vT0}""")
        V1 = V2 = 0
    poll(vT3, "0")
    if stamps: A(f"v_writelane_b32 v{vST}, s{sCNT}, 62")
    stamp("S1")
    if qfirst:
        for i in range(4):
            tq = VM(f"buffer_load_dwordx2 v[{QF+2*i}:{QF+2*i+1}], v{vQA}, {WS}, s{sQO} offen offset:{1024*(i>>1)+256*(i&1)} sc1")
    for q in range(3):
        A(f"s_add_u32 m0, s{sLK}, {2048*q}")
        VM(f"buffer_load_dwordx4 v{vL16}, {WS}, s{sK0+q} offen sc1 lds")
    A("s_mov_b32 exec_hi, 0xffff")
    for q in range(3):
        A(f"s_add_u32 m0, s{sLK}, {2048*q}")
        VM(f"buffer_load_dwordx4 v{vL16}, {WS}, s{sK0+q} offen offset:1024 sc1 lds")
    A("s_mov_b64 exec, -1")
    if not qfirst:
        for i in range(4):
            tq = VM(f"buffer_load_dwordx2 v[{QF+2*i}:{QF+2*i+1}], v{vQA}, {WS}, s{sQO} offen offset:{1024*(i>>1)+256*(i&1)} sc1")
    tq = vm.n
    if VD: tlv = Tok(); look(tlv, 221, None, 0)()
    barrier()
    A("s_mov_b32 exec_lo, 0x0fffffff\ns_mov_b32 exec_hi, 0x0fffffff")
    vj = []
    for q in range(3):
        vj.append(jVM(f"buffer_load_dwordx4 v{vVS}, {WS}, s61 offen sc1 lds", None, f"s_add_u32 m0, s{sLK}, {L_V-L_K+2048*q}\ns_add_u32 s61, s{sK0+q}, {VG-KG}"))
        tv = Tok(); vj.append(jVM(f"buffer_load_dwordx4 v{vVS}, {WS}, s62 offen offset:1024 sc1 lds", tv, f"s_add_u32 s62, s{sK0+q}, {VG-KG-128}"))
    run(vj, V1)
    A(f"""s_not_b64 exec, exec
    v_mov_b32 v152, 0x3f803f80
    v_mov_b32 v153, v152
    v_mov_b32 v154, v152
    v_mov_b32 v155, v152
    v_add_u32 v184, s{sLK}, v{vL16}""")
    for i in range(6): DS(f"ds_write_b128 v184, v[152:155] offset:{L_V-L_K+1024*i}")
    A("s_mov_b64 exec, -1")
    A(f"s_cmp_eq_u32 s{sHLP}, 1\ns_cbranch_scc1 L_ug\nL_ug2:")
    main = A.lines; A.lines = []; hist = A.hist; A.hist = []; sv2 = (lg.n, lg.done)
    A("L_ug:\ns_waitcnt lgkmcnt(0)")
    A(f"""s_cmp_lg_u32 s{sG}, 7
    s_cbranch_scc1 L_hu
    s_cmp_lg_u32 s85, 112
    s_cbranch_scc1 L_hy
    s_mov_b64 exec, 1
    buffer_store_dword v{vTAG}, off, {WS}, 0 sc1
    s_mov_b64 exec, -1
    s_branch L_hy
    L_hu:""")
    gemv14(21, 20)
    A(f"""v_lshlrev_b32 v18, 16, v18
    s_lshl_b32 s61, s85, 8
    s_add_u32 s61, s61, {AUG}
    v_mov_b32 v31, s{sTAG}
    v_add_f32 v25, v25, v18
    v_cvt_pk_bf16_f32 v29, v24, v25
    v_lshlrev_b32 v26, 16, v29
    v_and_b32 v27, 0xffff0000, v29
    v_sub_f32 v24, v24, v26
    v_sub_f32 v25, v25, v27
    v_cvt_pk_bf16_f32 v28, v26, v24
    v_cvt_pk_bf16_f32 v30, v25, v27
    s_mov_b64 exec, 0xffff
    buffer_store_dwordx4 v[28:31], v{vL16}, {WS}, s61 offen sc1
    s_mov_b64 exec, -1
    L_hy:""")
    A("s_branch L_ug2")
    tail.append(("raw", A.lines)); A.lines = main; A.hist = hist; lg.n, lg.done = sv2
    if wlate is True: warmbc(kw2)
    elif kw2 and not wlate:
        A(f"s_cmp_lg_u32 s{sHLP}, 2\ns_cbranch_scc1 L_we"); run(jobs(kw2), 99); A("L_we:")
    if mlate is True: masks()
    A(f"""{get('KA', vKA)}
    {get('NU', 232)}
    {get('P1a', vP1)}
    {get('P1b', vP1+1)}
    {get('P1c', vP1+2)}
    {get('P1d', vP1+3)}
    s_lshl_b32 s61, s{sW}, 11
    s_add_u32 s61, s61, {L_V}
    v_add_u32 v{vVA}, s61, v{vL16}
    v_mov_b32 v{vT0}, 0x3f80
    v_cmp_eq_u32 vcc, 0, v{vHALF}
    s_mov_b32 exec_lo, 0x0fffffff
    s_mov_b32 exec_hi, 0x0fffffff""")
    run(vj, V2)
    lg.all()
    vm.wait(tq)
    if VD:
        A("s_mov_b64 exec, -1"); check(tlv, 221, None, 0)
        A(f"v_cmp_eq_u32 vcc, 0, v{vHALF}\ns_mov_b32 exec_lo, 0x0fffffff\ns_mov_b32 exec_hi, 0x0fffffff")
    run(vj, 9)
    A("s_mov_b64 exec, -1")
    A(f"v_cndmask_b32 v{QF+6}, v{vT0}, v{QF+6}, vcc\nv_cndmask_b32 v{QF+7}, 0, v{QF+7}, vcc")
    barrier()
    stamp("Kin")
    svA = (vm.n, vm.done, lg.n, lg.done)
    def att_core(mem1):
        vm.n, vm.done, lg.n, lg.done = svA
        order = [0, 8, 1, 2, 3, 4, 5, 6, 7] if merge else list(range(9))
        tk = []
        def ldk(k):
            n = order[k]; b = KB + 8 * (k % 4)
            for i in range(4): t_ = DS(f"ds_read_b64 v[{b+2*i}:{b+2*i+1}], v{vKA} offset:{2048*n+1024*(i>>1)+256*(i&1)}")
            tk.append(t_)
        for k in range(3): ldk(k)
        run(mem1, 3)
        first = [True]
        def mx(n):
            r_ = []
            for r in range(0, 16, 2):
                r_.append(f"v_max_f32 v{vMX}, v{S+16*n}, v{S+16*n+1}" if first[0] else f"v_max3_f32 v{vMX}, v{vMX}, v{S+16*n+r}, v{S+16*n+r+1}"); first[0] = False
            return r_
        mrg = [f"v_max_f32 v{S+r}, v{S+r}, v{S+128+r}" for r in range(16)]
        m_ = []
        for k in range(9):
            n = order[k]
            lg.wait(tk[k])
            b = KB + 8 * (k % 4)
            if merge:
                if k == 3: m_ += mrg + mx(0)
                if k >= 4: m_ += mx(order[k - 2])
            elif k >= 2: m_ += mx(k - 2)
            mfma(v(S + 16 * n, 16), v(b, 4), v(QF, 4), None if n in (0, 8) else "0")
            if k + 3 < 9: ldk(k + 3); run(m_, 2)
            else: run(mem1, 1); run(m_, 4)
            mfma(v(S + 16 * n, 16), v(b + 4, 4), v(QF + 4, 4))
            if k < 2: run(mem1, 1)
            run(m_, 6 if not merge else 7)
        tvv = {}
        pv = ([(0, 0), (0, 1), (8, 0), (8, 1)] + [(n, s_) for n in range(1, 8) for s_ in range(2)]) if merge else [(n, s_) for n in range(9) for s_ in range(2)]
        def ldv(k):
            n = pv[2 * k][0]; b = VB + 8 * (k % 2)
            DS(f"ds_read_b128 v[{b}:{b+3}], v{vVA} offset:{2048*n}")
            tvv[k] = DS(f"ds_read_b128 v[{b+4}:{b+7}], v{vVA} offset:{2048*n+1024}")
        def vbar():
            vm.wait(tv.t); barrier(); ldv(0); ldv(1)
        if VBAR == 0: vbar()
        ON, MB = 160, 164
        run(m_, 99); run(mx(order[7]), 9)
        A(f"v_mov_b32 v{vT1}, 0x3f803f80\nv_cndmask_b32 v{ON}, 0, v{vT1}, vcc\nv_cndmask_b32 v{ON+1}, 0, v{vT0}, vcc\nv_mov_b32 v{ON+2}, 0\nv_mov_b32 v{ON+3}, 0\nv_mov_b32 v{MB+2}, 0\nv_mov_b32 v{MB+3}, 0")
        run(mem1, 1); run(mx(order[8]), 9)
        A(f"v_mov_b32 v{vT0}, v{vMX}\nv_permlane32_swap_b32 v{vMX}, v{vT0}\nv_max_f32 v{vMX}, v{vMX}, v{vT0}")
        stamp("qk")
        for i in range(8):
            A(f"v_pk_add_f32 v[{S+2*i}:{S+2*i+1}], v[{S+2*i}:{S+2*i+1}], v[{vMX}:{vMX+1}] op_sel_hi:[1,0] neg_lo:[0,1] neg_hi:[0,1]")
        A(f"""v_and_b32 v{vT0}, 0xffff0000, v{vMX}
        v_sub_f32 v{vT1}, v{vMX}, v{vT0}
        v_and_b32 v{vT2}, 0xffff0000, v{vT1}
        v_sub_f32 v{vT1}, v{vT1}, v{vT2}
        v_cvt_pk_bf16_f32 v{MB}, -v{vT0}, -v{vT2}
        v_cvt_pk_bf16_f32 v{MB+1}, -v{vT1}, 0""")
        mfma(v(S + 16, 16), v(ON, 4), v(MB, 4))
        if VBAR == 1: vbar()
        def soft(n, s_, mid=None):
            r0 = S + 16 * n + 8 * s_
            for e in range(8):
                A(f"v_exp_f32 v{r0+e}, v{r0+e}")
                if e == 3 and mid: mid()
            for e in range(4): A(f"v_cvt_pk_bf16_f32 v{r0+e}, v{r0+2*e}, v{r0+2*e+1}")
            if merge and n == 0:
                for e in range(4): A(f"v_and_b32 v{r0+128+e}, v{MK+4*s_+e}, v{r0+e}\nv_xor_b32 v{r0+e}, v{r0+e}, v{r0+128+e}")
        NT = 8 if merge else 9
        sq = [(n, s_) for n in range(NT) for s_ in range(2)]
        done_ = set(); ip = [0]
        def pvm():
            k = ip[0]; n, s_ = pv[k]; ip[0] += 1
            if s_ == 0: lg.wait(tvv[k >> 1])
            mfma(v(OA, 16), v(VB + 8 * ((k >> 1) % 2) + 4 * s_, 4), v(S + 16 * n + 8 * s_, 4), "0" if k == 0 else None)
            if s_ == 1 and (k >> 1) + 2 < 9: ldv((k >> 1) + 2)
        soft(0, 0)
        if VBAR == 2: vbar()
        for i in range(2 * NT):
            n, s_ = sq[i]
            mid = (lambda: mfma(v(S + 16 * (n + 2), 16), v(ON, 4), v(MB, 4))) if (s_ == 1 and n + 2 < NT) else None
            if merge and i in (2, 4): mid = pvm
            if i + 1 < 2 * NT: soft(*sq[i + 1], mid)
            pvm()
            run(mem1, AR)
        assert ip[0] == 18
        assert not mem1
        A(f"""v_mov_b32 v{vT0}, v{OA+12}
        v_mov_b32 v{vT1}, v{OA+12}
        v_permlane32_swap_b32 v{vT0}, v{vT1}
        v_rcp_f32 v{vT1}, v{vT1}""")
        for d in range(8):
            A(f"v_pk_mul_f32 v[{OA+2*d}:{OA+2*d+1}], v[{OA+2*d}:{OA+2*d+1}], v[{vT1}:{vT1+1}] op_sel_hi:[1,0]\nv_cvt_pk_bf16_f32 v{KB+d}, v{OA+2*d}, v{OA+2*d+1}")
            if d >= 6: A(f"v_cndmask_b32 v{KB+d}, 0, v{KB+d}, vcc")
            if d % 4 == 3: to = VM(f"buffer_store_dwordx4 v[{KB+d-3}:{KB+d}], v{vL16}, {WS}, s{sQO} offen offset:{1024*(d//4)}")
        stamp("att")
        return to
    A(f"s_cmp_eq_u32 s{sHLP}, 2\ns_cbranch_scc1 L_at2")
    A("L_at1:")
    to = att_core(jobs(at1)); assert nb1[0] <= 10
    A(f"s_cmp_eq_u32 s{sHLP}, 1\ns_cbranch_scc1 L_hu0")
    main = A.lines; A.lines = []; hist = A.hist; A.hist = []
    A("L_hu0:\ns_waitcnt vmcnt(0)")
    sv2 = (vm.n, vm.done, lg.n, lg.done); flag(sFO)
    run(jobs(hz, HJ), 99)
    A("s_branch L_fin")
    tail.append(("raw", A.lines)); A.lines = main; A.hist = hist
    vm.n, vm.done, lg.n, lg.done = sv2

    vm.wait(to); flag(sFO); stamp("opub")
    barrier()
    assert na1[0] <= 10
    run(w1_jobs(1, 14 - nb1[0], 4 * nb1[0]), 99)
    wa = w1_jobs(0, 14 - na1[0], 4 * na1[0]); run(wa, 2)
    vSTA, vFY, vRS, vRA, vTA = 229, 228, 226, vT2, vT3
    sFYP, sYL, sRS, sFD, sSTL, sHST, sAU0, sAU1, sHC = 82, 83, 84, 85, 87, 88, 89, 90, 86
    ACC = 112; WB = 176; AU = 248; BA = (240, 232)
    A(f"""v_min_u32 v{vFY}, 13, v{vL}
    v_lshlrev_b32 v{vFY}, 2, v{vFY}
    s_lshl_b32 s62, s{sW}, 6
    s_add_u32 s62, s62, s{sCTL}
    s_add_u32 s{sFYP}, s62, {C_FY}
    s_lshl_b32 s62, s{sW}, 8
    s_add_u32 s62, s62, s{sCTL}
    s_lshl_b32 s63, s{sJ}, 2
    s_add_u32 s62, s62, s63
    s_add_u32 s{sFD}, s62, {C_FD}
    s_mul_i32 s{sRS}, s{sTQ}, 14
    s_add_u32 s{sRS}, s{sRS}, s{sJ}
    s_lshl_b32 s{sRS}, s{sRS}, 7
    s_add_u32 s{sRS}, s{sRS}, {RS2}
    s_mul_i32 s{sYL}, s{sTQ}, 28672
    s_mul_i32 s{sSTL}, s{sTQ}, 3584
    s_add_u32 s{sSTL}, s{sSTL}, {STATS}
    s_mul_i32 s{sHST}, s{sTQ}, 114688
    s_lshl_b32 s62, s{sW1C}, 5
    s_add_u32 s{sHST}, s{sHST}, s62
    s_add_u32 s{sHST}, s{sHST}, {HID}
    s_lshl_b32 s61, s{sW1C}, 3
    s_add_u32 s{sAU0}, s61, {AUG}
    s_xor_b32 s61, s61, 1024
    s_add_u32 s{sAU1}, s61, {AUG}
    v_lshlrev_b32 v{vSTA}, 11, v{vHALF}
    v_lshl_add_u32 v{vSTA}, v{vL31}, 4, v{vSTA}
    v_lshlrev_b32 v{vSTA+1}, 30, v{vHALF}
    v_add_u32 v{vSTA+1}, v{vSTA+1}, v{vSTA}
    v_add_u32 v{vT0}, {L_P1}, v{vTP0}
    v_add_u32 v{vT1}, {L_P1}, v{vTP1}
    v_cmp_eq_u32 s[80:81], 0, v{vHALF}
    v_lshlrev_b32 v{vRA}, 2, v{vL31}
    v_lshlrev_b32 v{vTA}, 7, v{vL31}""")
    for b_ in BA: A(f"v_accvgpr_write_b32 a{b_+3}, 0\nv_accvgpr_write_b32 a{b_+7}, 0")
    augl = f"buffer_load_dwordx4 v[144:147], v{vL16}, {WS}, s{sAU0} offen sc1\nbuffer_load_dwordx4 v[148:151], v{vL16}, {WS}, s{sAU1} offen sc1"
    run(wa, 99); tw1 = vm.n
    run(jobs(f1f), 99); A(f"v_lshlrev_b32 v{vTA}, 7, v{vL31}")
    hoff = lambda p: f"s_xor_b32 s{sHC}, s{sHST}, {4096*(p&1)}" + (f"\ns_add_u32 s{sHC}, s{sHC}, {4*114688}" if p > 1 else "")
    for p in map(int, plain):
        A(hoff(p)); VM(f"buffer_load_dword v{vPAN}, v{vTA}, {WS}, s{sHC} offen sc1")
    vm.wait(tw1)
    barrier()
    stamp("w1in")
    for l_ in lines(augl): VM(l_)
    NA = 7; WA = (112, 168)
    wad = lambda pn, t: (vTP0 - t) if pn == 0 else (vT0 + t)
    for pn in range(2):
        for s_ in range(NA):
            for t in range(2):
                for p in range(2): twa = DS(f"ds_read_b64_tr_b16 a[{WA[pn]+8*s_+4*t+2*p}:{WA[pn]+8*s_+4*t+2*p+1}], v{wad(pn, t)} offset:{2048*s_+1024*p}")
    tw = {}
    def ld1(n):
        pn, t, s_ = (n // 56) & 1, n & 1, (n % 56) >> 1; b = WB + 4 * (n % 8)
        if s_ < NA: return []
        tw[n] = Tok()
        return [jDS(f"ds_read_b64_tr_b16 v[{b}:{b+1}], v{wad(pn, t)} offset:{2048*s_}"), jDS(f"ds_read_b64_tr_b16 v[{b+2}:{b+3}], v{wad(pn, t)} offset:{2048*s_+1024}", tw[n])]
    stamp("pre3")
    poll(vFY, f"s{sFYP}")
    stamp("S3")
    ty = {}; ts = [Tok(), Tok()]
    def yj(rd_):
        js = []
        for s_ in range(28):
            ty[rd_, s_] = Tok()
            pre = f"s_add_u32 s{sYL}, s{sYL}, {114688-24576}" if (rd_ and s_ == 0) else (f"s_add_u32 s{sYL}, s{sYL}, 4096" if (s_ % 4 == 0 and s_) else None)
            js.append(jVM(f"buffer_load_dwordx4 {'va'[rd_]}[{4*s_}:{4*s_+3}], v{vL16}, {OUT}, s{sYL} offen offset:{1024*(s_%4)} sc1", ty[rd_, s_], pre))
        return js
    SB = (160, 0)
    def stl(rd_): return [jVM(f"buffer_load_dwordx4 v[{SB[rd_]+4*i}:{SB[rd_]+4*i+3}], v{vSTA+(i==3)}, {WS}, s{sSTL} offen offset:{512*i} sc1", ts[rd_], f"s_add_u32 s{sSTL}, s{sSTL}, {4*3584}" if (rd_ and i == 0) else None) for i in range(4)]
    mem = yj(0); run(mem, PRO); lg.wait(twa)
    def augchk():
        A(f"""s_mov_b32 s{sCNT}, 0
        L_au:
        v_cmp_ne_u32 vcc, s{sTAG}, v147
        v_cmp_ne_u32 s[62:63], s{sTAG}, v151
        s_or_b64 vcc, vcc, s[62:63]
        s_cbranch_vccnz L_aur
        L_aud:""")
        tail.append(f"""L_aur:
        s_add_u32 s{sCNT}, s{sCNT}, 1
        s_cmp_ge_u32 s{sCNT}, {SPIN}
        s_cbranch_scc1 L_aud
        {augl}
        s_waitcnt vmcnt(0)
        s_branch L_au""")
    augmv = [f"v_accvgpr_write_b32 a{AU+r}, {'0' if r % 4 == 3 else 'v%d' % (144 + r)}" for r in range(8)]
    def stat_list(rd_):
        b = SB[rd_]
        st = [f"v_add_f32 v{208+i}, v{b+4*(i>>1)+(i&1)}, v{b+4*(i>>1)+(i&1)+2}" for i in range(8)]
        st += lines(f"""v_add_f32 v208, v208, v210
        v_add_f32 v209, v209, v211
        v_add_f32 v212, v212, v214
        v_add_f32 v213, v213, v215
        v_add_f32 v208, v208, v212
        v_add_f32 v209, v209, v213
        v_mov_b32 v210, v208
        v_mov_b32 v211, v209
        v_permlane32_swap_b32 v208, v210
        v_permlane32_swap_b32 v209, v211
        v_add_f32 v208, v208, v210
        v_add_f32 v209, v209, v211
        v_mul_f32 v208, 0xbb124925, v208
        v_mul_f32 v209, 0x3b124925, v209
        v_fma_f32 v209, -v208, v208, v209
        v_max_f32 v209, 0, v209
        v_add_f32 v209, 0x3727c5ac, v209
        v_rcp_f32 v{vRS+rd_}, v209
        v_sqrt_f32 v209, v209
        v_cvt_pk_bf16_f32 v213, v208, v208
        v_cvt_pk_bf16_f32 v210, v209, v209
        v_and_b32 v211, 0xffff0000, v213
        v_and_b32 v210, 0xffff0000, v210
        v_sub_f32 v211, v208, v211
        v_sub_f32 v212, v209, v210
        v_cvt_pk_bf16_f32 v214, v211, v210
        v_cvt_pk_bf16_f32 v215, v210, v212""")
        for r in range(3): st += [f"v_cndmask_b32 v{216+r}, 0, v{213+r}, s[80:81]", f"v_cndmask_b32 v{219+r}, v{213+r}, 0, s[80:81]"]
        for r in range(3): st += [f"v_accvgpr_write_b32 a{BA[rd_]+r}, v{216+r}", f"v_accvgpr_write_b32 a{BA[rd_]+4+r}, v{219+r}"]
        return st
    def epi_list(p, last):
        e = [f"s_xor_b32 s{sHC}, s{sHST}, {4096*(p&1)}"] if p < 2 else [f"s_xor_b32 s{sHC}, s{sHST}, {4096*(p&1)}", f"s_add_u32 s{sHC}, s{sHC}, {4*114688}"]
        for t in range(2):
            c = ACC + 32 * (p & 1) + 16 * t
            for d in range(8):
                r = c + 2 * d; q = 208 + 8 * t + d
                e += [f"v_mul_f32 v{r}, v{r}, abs(v{r})", f"v_mul_f32 v{r+1}, v{r+1}, abs(v{r+1})", f"v_cvt_pk_bf16_f32 v{q}, v{r}, v{r+1}", f"v_pk_max_i16 v{q}, v{q}, 0"]
                if d % 4 == 3: e.append(jVM(f"buffer_store_dwordx4 v[{205+8*t+d}:{208+8*t+d}], v{vL16}, {WS}, s{sHC} offen offset:{2048*t+1024*(d//4)}{'' if str(p) in plain else ' sc1'}", last))
        return e
    def publish(p, last):
        vm.wait(last.t)
        A(f"s_add_u32 s79, s{sFD}, {1024*(p>>1)+64*(p&1)}"); flag(79)
        if str(p) in RT and str(p) not in plain: VM(f"buffer_load_dword v{vPAN}, v{vTA}, {WS}, s{sHC} offen sc1")
        stamp(f"pub{p}")
    mem = mem[:STP] + stl(0) + mem[STP:]
    ST0 = 2 * (STP + PRO); assert ST0 <= 34
    side = []; urgent = []; dq = []; last = [Tok() for _ in range(4)]; pubat = None; tl_ = Tok(); mem2 = []; pub_done = False
    held = 0
    for n in range(224):
        p, m_ = divmod(n, 56); rd_ = p >> 1; t, s_ = m_ & 1, m_ >> 1
        if m_ == 0 and p:
            assert not urgent
            if p & 1: run(side, 99)
            for t2 in range(2): mfma(v(ACC + 32 * ((p - 1) & 1) + 16 * t2, 16), a(AU + 4 * ((p - 1) & 1), 4), a(BA[(p - 1) >> 1] + 4 * t2, 4))
            if p & 1:
                if p == 3: A(f"s_add_u32 s{sRS}, s{sRS}, {4*14*128}")
                VM(f"buffer_store_dword v{vRS+rd_}, v{vRA}, {WS}, s{sRS} offen sc1")
            stamp(f"p{p-1}")
        if m_ == 1 and p: urgent = epi_list(p - 1, last[p - 1]); pubat = -1
        if p & 1 == 0 and t == 0: vm.wait(ty[rd_, s_].t)
        if t == 0 and n + 1 in tw: lg.wait(tw[n + 1].t)
        if n == ST0: vm.wait(ts[0].t); side = stat_list(0) + [augchk] + augmv
        if n == YC - 14: look(tl_, vFY, sFYP, 256)()
        if n == YC: check(tl_, vFY, sFYP, 256); y1 = yj(1); mem += (y1[:SP] + stl(1) + y1[SP:]) if slip else (y1 + stl(1))
        if n == 112 + 22: assert not urgent; vm.wait(ts[1].t); side = stat_list(1)
        if n + 6 < 224: dq += ld1(n + 6)
        wf = a(WA[p & 1] + 8 * s_ + 4 * t, 4) if s_ < NA else v(WB + 4 * (n % 8), 4)
        mfma(v(ACC + 32 * (p & 1) + 16 * t, 16), wf, (a if rd_ else v)(4 * s_, 4), "0" if s_ == 0 else None)
        k = (ERS[p - 1] if ERS else ER) if urgent else SR
        if dq and urgent: k -= 1
        go = (t == 0 or (pub_done and not slip and len(mem) > (112 - n) // 2)) and mem and (not urgent or p == 2) and (p == 0 or pub_done or held < YH)
        if go:
            run(mem, 2 if (p == 0 and STP <= s_ < STP + 4) else 1); run(dq, 3 if t else 1); k -= 1
            if p: held += 1
        else: run(dq, 3 if t else 2)
        if urgent:
            run(urgent, k)
            if not urgent: pubat = min(n + (EP if str(p - 1) in plain else (EAS[p - 1] if EAS else EA)), 56 * p + 55)
        else: run(side, k)
        if n == pubat: publish(p - 1, last[p - 1]); pub_done = True
        if n == 111 and not slip: run(mem, 99)
        if 'fine' in dbg and n % 8 == 7: stamp(f'n{n+1}')
    assert not mem and not side and not urgent and not dq
    for t2 in range(2): mfma(v(ACC + 32 + 16 * t2, 16), a(AU + 4, 4), a(BA[1] + 4 * t2, 4))
    stamp("p3")
    run(epi_list(3, last[3]), 999)
    publish(3, last[3])
    A("s_branch L_fin")

    A("L_at2:")
    to = att_core(jobs(at2))
    tl0 = Tok(); tl1 = Tok()
    if s2a:
        A(f"v_and_b32 v{vT3}, 7, v{vL}\nv_lshlrev_b32 v{vT3}, 2, v{vT3}"); look(tl0, vT3, sFOP, 0)()
    XR = 128; GA = 136; A2 = 152; X1 = 168; WB = 184
    vIN, vOUTB, vWO, vXA, vSL = 216, 217, 218, 124, 220
    A(f"""s_and_b32 s61, s{sW}, 1
    s_lshl_b32 s61, s61, 12
    s_add_u32 s61, s61, {L_XT}
    v_lshl_add_u32 v4, v{vL31}, 7, s61
    v_lshl_add_u32 v4, v{vHALF}, 3, v4
    v_and_b32 v5, 7, v{vL}
    s_lshl_b32 s61, s{sKH}, 2
    v_xor_b32 v5, s61, v5""")
    for a_ in range(4): A(f"v_xor_b32 v6, {a_}, v5\nv_lshl_add_u32 v{vXA+a_}, v6, 4, v4")
    txr = Tok()
    def xrd(rd_): return [jDS(f"ds_read_b64 v[{XR+2*a_}:{XR+2*a_+1}], v{vXA+a_} offset:{8192*rd_}", txr) for a_ in range(4)]
    xun = [lambda: lg.wait(txr.t)] + sum(([f"v_lshlrev_b32 v{X1+2*d}, 16, v{XR+d}", f"v_and_b32 v{X1+2*d+1}, s79, v{XR+d}"] for d in range(8)), [])
    run(xrd(0), 4)
    fop = f"v_and_b32 v{vT3}, 7, v{vL}\nv_lshlrev_b32 v{vT3}, 2, v{vT3}\nv_bfe_u32 v{vT2}, v{vL}, 3, 1\nv_lshl_add_u32 v{vT3}, v{vT2}, 8, v{vT3}"
    A(f"""v_accvgpr_read_b32 v12, a{aB2}
    v_accvgpr_read_b32 v13, a{aB2+1}
    {get('VW', 7)}
    {'' if s2a else fop}
    s_mul_i32 s61, s{sKH}, {224*128}
    v_add_u32 v{vWO}, s61, v{vR0}
    v_add_u32 v{vWO+1}, s61, v{vR0+1}
    s_add_u32 s61, s{sEX}, {6*BLK}
    v_add_u32 v{vIN}, s61, v{vL16}
    s_xor_b32 s61, s61, 8192
    v_add_u32 v{vOUTB}, s61, v{vL16}
    s_mov_b32 s79, 0xffff0000""")
    run(list(xun), 99)
    vm.wait(to)
    flag(sFO)
    stamp("opub")
    to = {}
    def oj(rd_):
        js = []
        for i in range(16):
            to[rd_, i] = Tok()
            pre = f"s_add_u32 s{sOS}, s{sOS}, {131072-12288}" if (rd_ and i == 0) else (f"s_add_u32 s{sOS}, s{sOS}, 4096" if (i % 4 == 0 and i) else None)
            js.append(jVM(f"buffer_load_dwordx4 v[{16+4*i}:{19+4*i}], v{vL16}, {WS}, s{sOS} offen offset:{1024*(i%4)} sc1", to[rd_, i], pre))
        return js
    mem = oj(0)
    if s2a: check(tl0, vT3, sFOP, 0); stamp("S2"); run(mem, PRO)
    barrier()
    order = [(i, t) for i in range(11) for t in (1, 0)] + [(i, 1) for i in range(11, 16)] + [(i, 0) for i in range(11, 16)]
    two = {}
    def ldo(k):
        i, t = order[k % 32]; b = WB + 4 * (k % 8); two[k] = Tok(); off = L_WO + 3584 * (i >> 1) + 2048 * (i & 1)
        return [jDS(f"ds_read_b64_tr_b16 v[{b}:{b+1}], v{vWO+t} offset:{off}"), jDS(f"ds_read_b64_tr_b16 v[{b+2}:{b+3}], v{vWO+t} offset:{off+1024}", two[k])]
    for k in range(5): run(ldo(k), 2)
    for k in range(3): A(f"s_add_u32 s61, s{sEX}, {65536*k}\nv_add_u32 v{vSL+2*k}, s61, v{vR0}\nv_add_u32 v{vSL+2*k+1}, s61, v{vR0+1}")
    def rdslot(k, tok=None, wait=True):
        u, t_ = slot.pop(k)
        return ([lambda: vm.wait(t_.t)] if wait else []) + w2_read(u, vSL + 2 * (k >> 2), BLK * (k & 3), tok)
    tR = Tok(); tR.t = 0
    for k in list(slot): run(rdslot(k, tR), 99)
    if not s2a:
        stamp("pre2"); poll(vT3, f"s{sFOP}"); stamp("S2"); run(mem, PRO)
    A(f"""s_mov_b32 s{sCNT}, 0
    L_nv:
    v_cmp_ne_u32 vcc, s{sTAG}, v{vNU+1}
    v_cmp_ne_u32 s[62:63], s{sTAG}, v{vNU+3}
    s_or_b64 vcc, vcc, s[62:63]
    s_cbranch_vccnz L_nvr
    L_nvd:
    v_cmp_lt_u32 vcc, 23, v{vL31}
    v_cndmask_b32 v8, v{vNU}, v12, vcc
    v_cndmask_b32 v10, v{vNU+2}, v13, vcc
    v_and_b32 v9, s79, v8
    v_lshlrev_b32 v8, 16, v8
    v_and_b32 v11, s79, v10
    v_lshlrev_b32 v10, 16, v10""")
    tail.append(f"""L_nvr:
    s_add_u32 s{sCNT}, s{sCNT}, 1
    s_cmp_ge_u32 s{sCNT}, {SPIN}
    s_cbranch_scc1 L_nvd
    buffer_load_dwordx4 v[{vNU}:{vNU+3}], v232, {WS}, s{sNUS} offen sc1
    s_waitcnt vmcnt(0)
    s_branch L_nv""")
    DS("ds_write_b128 v7, v[8:11]")
    side = []
    for a_ in range(4):
        side.append(jDS(f"ds_read_b128 v[{GA+4*a_}:{GA+4*a_+3}], v{vVEC} offset:{32*a_}"))
        side.append(jDS(f"ds_read_b128 v[{A2+4*a_}:{A2+4*a_+3}], v{vVEC} offset:{128+32*a_}"))
    ACC = 80
    mem1 = oj(1); ty = None
    for rd_ in range(2):
        if rd_ == 0: mem += jobs(ot0); mem += [lambda: None] * max(0, (OC + 1) // 2 - len(mem)); nx_ = min(O1, 16 - len(mem)); mem += mem1[:nx_]; mem1 = mem1[nx_:]
        else: mem = mem1 + [lambda: lg.wait(tR.t)] + jobs(ot1)
        wr = [jDS(f"ds_write_b128 v{vOUTB}, v[{ACC+16+4*q}:{ACC+19+4*q}] offset:{BLK*rd_+1024*q}") for q in range(4)]
        for k, (i, t) in enumerate(order):
            kk = 32 * rd_ + k
            vm.wait(to[rd_, i].t); lg.wait(two[kk].t)
            mfma(v(ACC + 16 * t, 16), v(WB + 4 * (kk % 8), 4), v(16 + 4 * i, 4), "0" if i == 0 else None)
            if kk + 5 < 64: run(ldo(kk + 5), 2)
            if s2a and rd_ == 0 and k == OL: look(tl1, vT3, sFOP, 256)()
            if s2a and rd_ == 0 and k == OC: check(tl1, vT3, sFOP, 256)
            if rd_ and k == 0: run(mem, max(0, 9 - nx_))
            if k % 2 == 0: run(mem, 1)
            else: run(side, 3)
            if rd_ and k == YF:
                vm.wait(ty); flag(sFY); stamp("ypub")
            if k >= 29: run(wr, 2)
        assert not side
        lg.all()
        barrier()
        tk = [DS(f"ds_read_b128 v[{4*q}:{4*q+3}], v{vIN} offset:{BLK*rd_+1024*q}") for q in range(4)]
        if rd_: A(f"s_add_u32 s{sYS}, s{sYS}, 114688\ns_add_u32 s{sSTS}, s{sSTS}, 14336\ns_add_u32 s{sFY}, s{sFY}, 256")
        for q in range(4):
            lg.wait(tk[q])
            A.raw("    .p2align 3")
            for e in range(0, 4, 2):
                r = 4 * q + e
                A(f"""v_pk_add_f32 v[{r}:{r+1}], v[{ACC+r}:{ACC+r+1}], v[{r}:{r+1}]
                v_pk_fma_f32 v[{X1+r}:{X1+r+1}], v[{r}:{r+1}], v[{GA+r}:{GA+r+1}], v[{X1+r}:{X1+r+1}]
                v_pk_mul_f32 v[{r}:{r+1}], v[{X1+r}:{X1+r+1}], v[{A2+r}:{A2+r+1}]
                v_cvt_pk_bf16_f32 v{112+r//2}, v{r}, v{r+1}""")
            if q % 2 == 1: VM(f"buffer_store_dwordx4 v[{110+2*q}:{113+2*q}], v{vL16}, {OUT}, s{sYS} offen offset:{1024*(q//2)}")
        A(f"v_pk_add_f32 v[120:121], v[{X1}:{X1+1}], v[{X1+2}:{X1+3}]\nv_pk_mul_f32 v[122:123], v[{X1}:{X1+1}], v[{X1}:{X1+1}]")
        for d in range(1, 8):
            if d >= 2: A(f"v_pk_add_f32 v[120:121], v[120:121], v[{X1+2*d}:{X1+2*d+1}]")
            A(f"v_pk_fma_f32 v[122:123], v[{X1+2*d}:{X1+2*d+1}], v[{X1+2*d}:{X1+2*d+1}], v[122:123]")
        A(f"""v_add_f32 v120, v120, v121
        v_add_f32 v121, v122, v123
        v_mov_b32 v122, v120
        v_mov_b32 v123, v121
        v_permlane32_swap_b32 v120, v122
        v_permlane32_swap_b32 v121, v123
        v_add_f32 v120, v120, v122
        v_add_f32 v121, v121, v123
        s_mov_b32 exec_hi, 0""")
        ty = VM(f"buffer_store_dwordx2 v[120:121], v{vL16}, {WS}, s{sSTS} offen")
        A("s_mov_b64 exec, -1")
        stamp(f"op{rd_}")
        if rd_ == 0: side = xrd(1) + [f"v_accvgpr_write_b32 a{224+r}, v{X1+r}" for r in range(16)] + list(xun)
    run(mem, 99)
    GB = 192; ZT = 208
    free = [k for k in range(9) if k not in slot]; pend = list(slot)
    for k in free[:PS]: run(stage(k), 99); pend.append(k)
    free = free[PS:]
    def more():
        k = free.pop(0); run(stage(k), 99); pend.append(k)
    for a_ in range(4):
        DS(f"ds_read_b128 v[{GB+4*a_}:{GB+4*a_+3}], v{vVEC} offset:{256+32*a_}")
        tgb = DS(f"ds_read_b128 v[{GA+4*a_}:{GA+4*a_+3}], v{vVEC} offset:{384+32*a_}")
    vm.wait(ty); flag(sFY); stamp("ypub1")
    more()
    for r in range(16): A(f"v_accvgpr_read_b32 v{A2+r}, a{224+r}")
    lg.wait(tgb)
    for r in range(0, 16, 2):
        A(f"v_pk_fma_f32 v[{A2+r}:{A2+r+1}], v[{GB+r}:{GB+r+1}], v[{GA+r}:{GA+r+1}], v[{A2+r}:{A2+r+1}]\nv_pk_fma_f32 v[{X1+r}:{X1+r+1}], v[{GB+r}:{GB+r+1}], v[{GA+r}:{GA+r+1}], v[{X1+r}:{X1+r+1}]")
    for r in range(16): A(f"v_accvgpr_write_b32 a{224+r}, v{A2+r}\nv_accvgpr_write_b32 a{240+r}, v{X1+r}")
    more()
    vH0, vH1, vFD, vRW, vRR, vRQ = 226, 227, vTN0, 228, 231, vT0
    sFE, sRSL = 91, 58
    A(f"""v_and_b32 v{vFD}, 3, v{vL}
    v_lshlrev_b32 v{vFD}, 2, v{vFD}
    v_bfe_u32 v{vT0}, v{vL}, 2, 1
    v_lshl_add_u32 v{vFD}, v{vT0}, 8, v{vFD}
    s_and_b32 s61, s{sTO}, 6
    s_lshl_b32 s61, s61, 8
    s_add_u32 s61, s61, s{sCTL}
    s_mul_i32 s62, s{sW}, 7
    s_lshr_b32 s62, s62, 1
    s_mul_i32 s{sRSL}, s{sTO}, 14
    s_add_u32 s{sRSL}, s{sRSL}, s62
    s_lshl_b32 s{sRSL}, s{sRSL}, 7
    s_add_u32 s{sRSL}, s{sRSL}, {RS2}
    s_lshl_b32 s62, s62, 2
    s_add_u32 s61, s61, s62
    s_add_u32 s{sFE}, s61, {C_FD}
    s_mul_i32 s61, s{sTO}, 114688
    s_add_u32 s61, s61, {HID}
    v_add_u32 v{vH0}, s61, v{vL16}
    s_xor_b32 s61, s{sTO}, 1
    s_mul_i32 s61, s61, 114688
    s_add_u32 s61, s61, {HID}
    v_add_u32 v{vH1}, s61, v{vL16}
    s_mul_i32 s61, s{sW}, 12288
    v_add_u32 v{vRR}, s61, v{vL16}
    v_lshlrev_b32 v{vT2}, 2, v{vL31}""")
    for k in range(1, 4): A(f"s_xor_b32 s61, s{sW}, {k}\ns_mul_i32 s61, s61, 12288\ns_add_u32 s61, s61, {4096*(k-1)}\nv_add_u32 v{vRW+k-1}, s61, v{vL16}")
    rtok = {}
    while nxt[0] < 14:
        k = free.pop(0)
        if k in rtok: lg.wait(rtok.pop(k))
        run(stage(k), 99); pend.append(k)
        if len(pend) > 3 or not free:
            k2 = pend.pop(0); run(rdslot(k2, tR), 99); free.append(k2); rtok[k2] = tR.t
    for k in pend: run(rdslot(k, tR), 99)
    for q in range(7): A(f"s_lshl_b32 s{sFT+q}, s{sFT+q}, 11")
    lg.all()
    barrier()
    stamp("w2in")
    poll(vFD, f"s{sFE}")
    stamp("S4")

    HB = 128; NB_ = 16
    seq = list(range(56)) + list(range(40)) + list(range(41, 56, 2)) + list(range(40, 56, 2))
    th = [Tok() for _ in range(112)]
    state = {}
    def hj(p):
        rd_ = p // 56; i = seq[p]; u, s_, mh = i >> 2, (i >> 1) & 1, i & 1
        b = HB + 4 * (p % NB_); pre = ""
        if p == 56: pre += f"v_add_u32 v{vH0}, {4*114688}, v{vH0}\nv_add_u32 v{vH1}, {4*114688}, v{vH1}\n"
        if state.get(u % 7, 0) != (u >= 7): state[u % 7] = (u >= 7); pre += f"s_xor_b32 s{sFT+u%7}, s{sFT+u%7}, 4096"
        return jVM(f"buffer_load_dwordx4 v[{b}:{b+3}], v{vH1 if mh else vH0}, {WS}, s{sFT+u%7} offen offset:{1024*s_} sc1", th[p], pre or None)
    def rsj(rd_): return jVM(f"buffer_load_dword v{vRQ+rd_}, v{vT2}, {WS}, s{sRSL} offen sc1", None, f"s_add_u32 s{sRSL}, s{sRSL}, {4*14*128}" if rd_ else None)
    mem = [hj(p) for p in range(28)]
    run(mem, PRO); rsj(0)()
    def mm(p, t):
        rd_ = p // 56; i = seq[p]; u, s_, mh = i >> 2, (i >> 1) & 1, i & 1
        vm.wait(th[p].t)
        mfma(v(64 * rd_ + 16 * (2 * t + mh), 16), a(16 * u + 8 * s_ + 4 * t, 4), v(HB + 4 * (p % NB_), 4), "0" if i < 2 else None)
    wrj = lambda rd_, k: [jDS(f"ds_write_b128 v{vRW+k-1}, v[{64*rd_+16*k+4*q}:{64*rd_+16*k+4*q+3}] offset:{49152*rd_+1024*q}") for q in range(4)]
    tin = Tok()
    fin0 = [jDS(f"ds_read_b128 v[{16+16*k+4*q}:{19+16*k+4*q}], v{vRR} offset:{4096*k+1024*q}", tin) for k in range(3) for q in range(4)]
    fin0 += [f"v_accvgpr_read_b32 v{ZT+r}, a{224+r}" for r in range(16)] + [lambda: lg.wait(tin.t)]
    for r in range(16):
        fin0 += [f"v_add_f32 v{r}, v{r}, v{16+r}", f"v_add_f32 v{32+r}, v{32+r}, v{48+r}", f"v_add_f32 v{r}, v{r}, v{32+r}", f"v_mul_f32 v{r}, v{r}, v{vRQ}", f"v_fmac_f32 v{ZT+r}, v{r}, v{GB+r}"]
    fin0 += [f"v_cvt_pk_bf16_f32 v{d}, v{ZT+2*d}, v{ZT+2*d+1}" for d in range(8)]
    fin0 += [f"v_permlane32_swap_b32 v{b}, v{b+2}" for b in (0, 1, 4, 5)]
    fin0 += [f"v_accvgpr_read_b32 v{ZT+r}, a{240+r}" for r in range(16)] + [f"v_mul_f32 v{GB+r}, v{GB+r}, v{vRQ+1}" for r in range(16)]
    st0 = [jVM(f"buffer_store_dwordx4 v[{4*q}:{4*q+3}], v{vROW}, {OUT}, s{sROW} offen offset:{32*q}{omod}") for q in range(2)]
    tl_ = Tok(); side = []; wr = []
    for p in range(104):
        for lo, off in ((28, 64), (56, 1024), (84, 1088)):
            cp = min(PRO, CP[lo // 28 - 1])
            if p == lo - cp - CK: look(tl_, vFD, sFE, off)()
            if p == lo - cp:
                check(tl_, vFD, sFE, off); stamp(f"c{lo}")
                mem += [hj(k) for k in range(lo, lo + 28)]
                run(mem, PRO - cp)
                if lo == 56: rsj(1)()
        if p == 58: wr = wrj(0, 1) + wrj(0, 2) + wrj(0, 3)
        if p == 71:
            assert not wr
            lg.all(); barrier(); side = fin0
        mm(p, 0); run(mem, 1); mm(p, 1)
        if wr: run(wr, 1)
        else: run(side, 5)
        if p >= 102: assert not side and not mem; run(st0, 1)
        if 'fine' in dbg and p in (0, 28, 56, 84): stamp(f'g{p}')
    wr = wrj(1, 1) + wrj(1, 3)
    tailo = [(48, 1), (48, 0), (49, 1), (49, 0), (50, 1), (50, 0), (51, 1), (52, 1), (53, 1), (54, 1), (55, 1), (51, 0), (52, 0), (53, 0), (54, 0), (55, 0)]
    for n, (p, t) in enumerate(tailo):
        mm(56 + p, t)
        if n == 12: wr += wrj(1, 2)
        if n == wbz:
            A(f"s_lshl_b32 s61, s{sM}, 2\ns_add_u32 s61, s61, s{sW}\ns_cmp_lg_u32 s61, 108\ns_cbranch_scc1 L_nwb\nbuffer_wbl2 sc1\nL_nwb:")
        if n >= 2 and n % 3 != 1: run(wr, 1)
    run(wr, 99)
    stamp("ffn2")
    A(f"s_add_u32 s{sROW}, s{sROW}, 114688")
    lg.all()
    barrier()
    tk = {}
    for q in range(4):
        for k in range(3): tk[q] = DS(f"ds_read_b128 v[{16+16*k+4*q}:{19+16*k+4*q}], v{vRR} offset:{49152+4096*k+1024*q}")
    for q in range(4):
        lg.wait(tk[q])
        A.raw("    .p2align 3")
        for e in range(0, 4, 2):
            r = 4 * q + e
            A(f"""v_pk_add_f32 v[{16+r}:{17+r}], v[{16+r}:{17+r}], v[{32+r}:{33+r}]
            v_pk_add_f32 v[{48+r}:{49+r}], v[{48+r}:{49+r}], v[{64+r}:{65+r}]
            v_pk_add_f32 v[{16+r}:{17+r}], v[{16+r}:{17+r}], v[{48+r}:{49+r}]
            v_pk_fma_f32 v[{ZT+r}:{ZT+r+1}], v[{16+r}:{17+r}], v[{GB+r}:{GB+r+1}], v[{ZT+r}:{ZT+r+1}]
            v_cvt_pk_bf16_f32 v{8+r//2}, v{ZT+r}, v{ZT+r+1}""")
        if q % 2 == 1:
            b = 8 + 2 * (q - 1)
            A(f"v_permlane32_swap_b32 v{b}, v{b+2}\nv_permlane32_swap_b32 v{b+1}, v{b+3}")
            VM(f"buffer_store_dwordx4 v[{b}:{b+3}], v{vROW}, {OUT}, s{sROW} offen offset:{16*(q-1)}{omod}")
    stamp("done")
    if meas:
        A(f"""s_cmp_lg_u32 s2, {meas[3]}
        s_cbranch_scc1 L_fin
        v_readlane_b32 s61, v{vST}, 0
        v_readlane_b32 s62, v{vST}, 1
        s_memrealtime s[100:101]
        s_sub_u32 s61, s62, s61
        s_mul_i32 s61, s61, {meas[2]}
        s_min_u32 s61, s61, 100000
        s_waitcnt lgkmcnt(0)
        s_mov_b32 s63, s100
        L_ms:
        s_memrealtime s[100:101]
        s_waitcnt lgkmcnt(0)
        s_sub_u32 s62, s100, s63
        s_cmp_lt_u32 s62, s61
        s_cbranch_scc1 L_ms""")
    return done()

HEAD = open("adaLN_cond__sliding_block__dense_activation_squared_relu__prompt.s.ref").read().split("; Override launch")[0]
def wrap(A, tail, warm):
    A("L_tail:")
    for t in tail:
        if isinstance(t, tuple): A.lines += t[1]
        else: A(t)
    A("L_exit:\ns_endpgm")
    A.raw("CODE_END:")
    def full(lines):
        txt = HEAD + f"; @launch grid=(256,1,1) block=(256,1,1) lds={LDS_BYTES}\n.amdgcn_target \"amdgcn-amd-amdhsa--gfx950\"\n.text\n" + kernel_header(NAME) + "\n".join(lines) + "\n"
        return txt + ".section .rodata,\"a\"\n.p2align 6\n" + kernel_desc(NAME, 512, 102, 256)
    lines = A.lines
    if warm:
        import warm as W
        lines, stubs = W.add_stubs(lines, full, {"a": [("L_wza", "L_at1")], "b": [("L_at1", "L_at2")], "c": [("L_at2", "L_tail")]},
                                   {"L_kvV", "L_kvE", "L_att", "L_p42", "L_help", "L_at2", "L_va", "L_vb"})
    return full(lines)

if __name__ == "__main__":
    out = sys.argv[1]
    kw = eval("dict(" + (sys.argv[2] if len(sys.argv) > 2 else "") + ")")
    t, names = gen(**kw)
    open(out, "w").write(t)
    if names: json.dump(names, open(out + ".json", "w"))
    print(out, len(t.split("\n")), "lines", len(names), "stamps")
```
